```python
import torch

def _softmax(x, axis=-1):
    return torch.softmax(x, dim=axis)
def _gelu(x):
    return torch.nn.functional.gelu(x, approximate="tanh")
def _silu(x):
    return torch.nn.functional.silu(x)
def _sigmoid(x):
    return torch.sigmoid(x)
def _layernorm(x, axis=-1, eps=1e-5):
    m = x.mean(dim=axis, keepdim=True)
    v = x.var(dim=axis, keepdim=True, unbiased=False)
    return (x - m) / torch.sqrt(v + eps)
def _scatter_add(tgt, idx, src, axis=0):
    return tgt.clone().index_add_(axis, idx, src)
def _segment_sum(src, seg, n):
    out = torch.zeros((n,) + src.shape[1:], dtype=src.dtype)
    return out.index_add_(0, seg, src)
def _pad(x, pw):
    flat = tuple(v for pair in reversed(pw) for v in pair)
    return torch.nn.functional.pad(x, flat)

kernel_name = 'standalone__grouped__vision'

def setup_inputs():

    _w = (lambda a: (lambda t: t.to(torch.bfloat16) if t.is_floating_point() else t)(torch.as_tensor(a)))
    H = W = 384
    G = 4
    Cg = max(96 // G, 2)
    C = G * Cg
    k = 3
    scale = 1.0 / (k * Cg ** 0.5)
    return {
        "x": _w((lambda *s: torch.randn(*s, dtype=torch.bfloat16) * 0.05)(1, H, W, C)),
        "w": _w((lambda *s: torch.randn(*s, dtype=torch.bfloat16) * 0.05)(k, k, G, Cg, Cg) * scale),
    }

def reference(x, w):
    B, H, W, C = x.shape
    k = w.shape[0]
    G = w.shape[2]
    Cg = C // G
    pad = k // 2
    xp = _pad(x, ((0,0),(pad,pad),(pad,pad),(0,0)))
    xg = xp.reshape(B, H + 2 * pad, W + 2 * pad, G, Cg)
    out = torch.zeros_like(x).reshape(B, H, W, G, Cg)
    for i in range(k):
        for j in range(k):
            out = out + torch.einsum('bhwgc,gcd->bhwgd', xg[:, i:i+H, j:j+W, :, :], w[i, j])
    return out.reshape(B, H, W, C)
```

```python
import argparse
import sys

ROWB = 73728
XBYTES = 28311552
WBYTES = 41472
PITCH = 9728
PAIR = 19456
STG0 = 136192
LDS_TOTAL = 163840
WREG = LDS_TOTAL - 4 * 11264

HEADER = """; Kernarg layout for this problem (40 bytes, ptrs only, base s[0:1]):
; @launch grid=(256,1,1) block=(512,1,1) lds=163840
.amdgcn_target "amdgcn-amd-amdhsa--gfx950"
.text
.globl standalone__grouped__vision_kernel
.p2align 8
.type standalone__grouped__vision_kernel,@function
standalone__grouped__vision_kernel:
"""

FOOTER = """.section .rodata,"a"
.p2align 6
.amdhsa_kernel standalone__grouped__vision_kernel
  .amdhsa_next_free_vgpr {vgpr}
  .amdhsa_next_free_sgpr 102
  .amdhsa_accum_offset {acc}
  .amdhsa_group_segment_fixed_size 0
  .amdhsa_kernarg_size 40
  .amdhsa_user_sgpr_count 2
  .amdhsa_user_sgpr_kernarg_segment_ptr 1
  .amdhsa_system_sgpr_workgroup_id_x 1
.end_amdhsa_kernel
"""


class Gen:
    def __init__(self, o):
        self.o = o
        self.L = []
        self.nstamp = 0

    def e(self, s):
        self.L.append("    " + s)

    def lab(self, s):
        self.L.append(s + ":")

    def c(self, s):
        self.L.append("    ; " + s)

    def stamp(self):
        if not self.o.prof:
            return
        k = self.nstamp
        self.nstamp += 1
        assert k < 26
        self.e(f"s_memtime s[{44 + 2 * k}:{45 + 2 * k}]")

    def stamp_reset(self, n):
        self.nstamp = n

    def stamp_loop(self, slot):
        if not self.o.prof:
            return
        r = 96 + 2 * slot
        self.e(f"s_memtime s[{r}:{r + 1}]")

    def stamp_commit(self, slot, base):
        if not self.o.prof:
            return
        r = 96 + 2 * slot
        self.e(f"s_add_u32 s43, s37, {base}")
        self.e(f"v_writelane_b32 v215, s{r}, s43")

    def stamp_flush(self):
        if not self.o.prof:
            return
        self.e("s_waitcnt lgkmcnt(0)")
        self.e("s_load_dwordx2 s[40:41], s[0:1], 32")
        self.e("s_lshl_b32 s42, s2, 3")
        self.e("s_add_u32 s42, s42, s3")
        self.e("s_lshl_b32 s42, s42, 8")
        self.e("v_lshl_add_u32 v1, v0, 2, s42")
        for k in range(self.nstamp):
            self.e(f"v_writelane_b32 v215, s{44 + 2 * k}, {k}")
        self.e(f"s_mov_b32 s42, {self.nstamp}")
        self.e("v_writelane_b32 v215, s42, 63")
        self.e("s_getreg_b32 s42, hwreg(HW_REG_XCC_ID)")
        self.e("v_writelane_b32 v215, s42, 62")
        self.e("s_getreg_b32 s42, hwreg(HW_REG_HW_ID)")
        self.e("v_writelane_b32 v215, s42, 61")
        self.e("v_writelane_b32 v215, s38, 60")
        self.e("s_memrealtime s[38:39]")
        self.e("s_waitcnt lgkmcnt(0)")
        self.e("v_writelane_b32 v215, s38, 59")
        self.e("global_store_dword v1, v215, s[40:41]")

    def prologue(self):
        e = self.e
        e("s_cmp_ge_u32 s2, 256")
        e("s_cbranch_scc1 L_end")
        e("s_load_dwordx4 s[4:7], s[0:1], 0")
        e("s_load_dwordx2 s[8:9], s[0:1], 16")
        if self.o.prof:
            e("s_memrealtime s[38:39]")
        self.stamp()
        if self.o.prof:
            e("v_mov_b32 v215, 0")
        e("v_lshrrev_b32 v1, 6, v0")
        e("v_and_b32 v0, 63, v0")
        e("s_and_b32 s10, s2, 1")
        e("v_readfirstlane_b32 s3, v1")
        e("s_lshl_b32 s10, s10, 2")
        e("s_bfe_u32 s11, s2, 0x20003")
        e("s_add_u32 s10, s10, s11")
        e("s_bfe_u32 s11, s2, 0x20001")
        e("s_lshl_b32 s11, s11, 3")
        e("s_lshr_b32 s24, s2, 5")
        e("s_add_u32 s11, s11, s24")
        e("s_mul_i32 s24, s10, 9216")
        e("s_mul_i32 s25, s11, 12")
        if self.o.flip:
            e("s_and_b32 s26, s11, 1")
        else:
            e("s_and_b32 s26, s11, 0")
        e("s_cselect_b32 s27, -1, 1")
        e(f"s_mul_i32 s27, s27, {ROWB}")
        e("s_cmp_ge_u32 s3, 6")
        e("s_cbranch_scc1 L_storer")
        e("s_cmp_lt_u32 s3, 4")
        e("s_cbranch_scc1 L_compute")

    def loader(self):
        e, o = self.e, self.o
        self.lab("L_loader")
        if o.prio_loader:
            e(f"s_setprio {o.prio_loader}")
        e("v_lshrrev_b32 v1, 2, v0")
        for i in range(3):
            e(f"v_add_u32 v2, {16 * i + 2}, v1")
            e("v_mul_u32_u24 v2, 171, v2")
            e("v_bfe_u32 v2, v2, 11, 2")
            e("v_xor_b32 v2, v2, v0")
            e(f"v_lshl_add_u32 v{10 + i}, v2, 4, s24")
        e("s_cmp_eq_u32 s10, 0")
        e("s_cselect_b32 s28, 16, 0")
        e("s_cmp_eq_u32 s10, 7")
        e("s_cselect_b32 s29, 16, 64")
        e("v_bfrev_b32 v3, 1")
        e("v_cmp_gt_u32 vcc, s28, v0")
        e("s_and_b32 s30, s3, 1")
        e("s_cmp_eq_u32 s26, 0")
        e("v_cndmask_b32 v13, v10, v3, vcc")
        e("v_cmp_le_u32 vcc, s29, v0")
        e("s_cselect_b32 s31, -1, 12")
        e("s_add_i32 s31, s31, s25")
        e("v_cndmask_b32 v14, v10, v3, vcc")
        e(f"s_mul_i32 s31, s31, {ROWB}")
        e("s_mul_i32 s32, s30, s27")
        e("s_add_i32 s31, s31, s32")
        e("s_lshl_b32 s32, s27, 1")
        e(f"s_mul_i32 s33, s30, {PITCH}")
        e("s_waitcnt lgkmcnt(0)")
        e("s_sub_u32 s12, s4, 256")
        e("s_subb_u32 s13, s5, 0")
        e(f"s_mov_b32 s14, {XBYTES + 256}")
        e("s_mov_b32 s15, 0x20000")
        self.stamp()
        fl = o.ldflags

        def issue_row():
            e("s_cmp_lt_i32 s31, 0")
            e("s_cselect_b32 s34, 0x40000000, s31")
            e("s_mov_b32 m0, s33")
            e("s_add_u32 s35, s34, 4096")
            pats = [13, 11, 12, 10, 11, 12, 10, 11, 12, 14]
            for i in range(10):
                so = ["s34", "s35", "s36"][i // 4]
                if i == 4:
                    e("s_add_u32 m0, s33, 4096")
                    e("s_add_u32 s36, s34, 8192")
                if i == 8:
                    e("s_add_u32 m0, s33, 8192")
                    e("s_add_i32 s31, s31, s32")
                if i == 9:
                    e("s_mov_b32 exec_hi, 0")
                off = 1024 * (i % 4)
                e(f"buffer_load_dwordx4 v{pats[i]}, s[12:15], {so} offen offset:{off} {fl} lds")
            e("s_mov_b32 exec_hi, -1")
            e(f"s_add_u32 s33, s33, {PAIR}")

        D = o.depth
        issued = 0
        for k in range(D):
            issue_row()
            issued += 1
            if k in (1,) or k == D - 1:
                self.stamp()
        for j in range(6):
            need = j + 2
            e(f"s_waitcnt vmcnt({10 * (issued - need)})")
            self.stamp()
            if issued < 6:
                issue_row()
                issued += 1
            e("s_barrier")
            if issued == 6 :
                issue_row()
                issued += 1
        self.stamp()
        self.stamp_flush()
        e("s_endpgm")

    def storer(self):
        e, o = self.e, self.o
        self.lab("L_storer")
        self.stamp_reset(1)
        e("s_and_b32 s30, s3, 1")
        e("v_lshrrev_b32 v1, 2, v0")
        e("s_mul_i32 s28, s30, 9216")
        for i in range(3):
            e(f"v_add_u32 v2, {16 * i}, v1")
            e("v_mul_u32_u24 v2, 171, v2")
            e("v_bfe_u32 v2, v2, 10, 2")
            e("v_xor_b32 v2, v2, v0")
            e(f"v_lshl_add_u32 v{10 + i}, v2, 4, s28")
            if i:
                e(f"v_add_u32 v{10 + i}, {1024 * i}, v{10 + i}")
        e("v_lshlrev_b32 v9, 4, v0")
        e("s_cmp_eq_u32 s26, 0")
        e("s_cselect_b32 s31, 0, 11")
        e("s_add_i32 s31, s31, s25")
        e(f"s_mul_i32 s31, s31, {ROWB}")
        e("s_mul_i32 s32, s30, s27")
        e("s_add_i32 s31, s31, s32")
        e("s_add_i32 s31, s31, s24")
        e("s_lshl_b32 s32, s27, 1")
        e(f"s_mov_b32 s33, {STG0}")
        e("s_mov_b32 s37, 0")
        e("s_waitcnt lgkmcnt(0)")
        e("s_mov_b32 s20, s8")
        e("s_mov_b32 s21, s9")
        e(f"s_mov_b32 s22, {XBYTES}")
        e("s_mov_b32 s23, 0x20000")
        e("s_barrier")
        self.lab("L_st_loop")
        for i in range(3):
            e(f"v_add_u32 v{13 + i}, s33, v{10 + i}")
        e("s_add_u32 s34, s31, 4096")
        e("s_add_u32 s35, s31, 8192")
        e("s_barrier")
        self.stamp_loop(0)
        for i in range(9):
            e(f"ds_read_b128 v[{16 + 4 * i}:{19 + 4 * i}], v{13 + i % 3} offset:{3072 * (i // 3)}")
        for i in range(9):
            e(f"s_waitcnt lgkmcnt({8 - i})")
            so = ["s31", "s34", "s35"][i // 4]
            e(f"buffer_store_dwordx4 v[{16 + 4 * i}:{19 + 4 * i}], v9, s[20:23], {so} offen offset:{1024 * (i % 4)} {o.stflags}")
        e("s_add_i32 s31, s31, s32")
        e(f"s_mul_i32 s33, s37, {PAIR}")
        e("s_add_u32 s37, s37, 1")
        if o.prof:
            self.stamp_loop(1)
            e("s_waitcnt lgkmcnt(0)")
            self.stamp_commit(0, 31)
            self.stamp_commit(1, 39)
        e("s_cmp_lt_u32 s37, 6")
        e("s_cbranch_scc1 L_st_loop")
        if o.prof:
            self.stamp()
            e("s_waitcnt vmcnt(0)")
            self.stamp()
        self.stamp_flush()
        e("s_endpgm")

    def compute(self):
        e, o = self.e, self.o
        W = lambda m, t: 16 + 4 * (3 * m + t)
        B = lambda m: 124 + 4 * m
        ACC = lambda s, t: 160 + 12 * s + 4 * t
        PK = 184
        BA = lambda m: 190 + m
        self.lab("L_compute")
        self.stamp_reset(1)
        e("s_mul_i32 s28, s3, 1152")
        e("v_lshl_add_u32 v1, v0, 4, s28")
        e("s_movk_i32 s29, 3456")
        for i in range(11):
            if i == 0:
                e("v_mov_b32 v200, v1")
                continue
            e(f"v_add_u32 v2, {64 * i}, v0")
            e("v_mul_u32_u24 v2, 911, v2")
            e("v_lshrrev_b32 v2, 16, v2")
            e(f"v_mad_u32_u24 v{200 + i}, v2, s29, v1")
        e(f"s_mul_i32 s33, s3, 11264")
        e(f"s_add_u32 s33, s33, {WREG}")
        e("s_waitcnt lgkmcnt(0)")
        e("s_mov_b32 s16, s6")
        e("s_mov_b32 s17, s7")
        e(f"s_mov_b32 s18, {WBYTES}")
        e("s_mov_b32 s19, 0x20000")
        e("s_movk_i32 s34, 4096")
        e("s_movk_i32 s35, 8192")
        for i in range(11):
            if i % 4 == 0:
                e(f"s_add_u32 m0, s33, {4096 * (i // 4)}")
                e("s_nop 0")
            so = ["0", "s34", "s35"][i // 4]
            e(f"buffer_load_dwordx4 v{200 + i}, s[16:19], {so} offen offset:{1024 * (i % 4)} lds")
        self.stamp()
        e("v_and_b32 v1, 15, v0")
        e("v_lshrrev_b32 v2, 4, v0")
        e("s_mul_i32 s28, s3, 3")
        e(f"s_movk_i32 s29, {PITCH}")
        e("v_mul_u32_u24 v3, 192, v1")
        e("v_mad_u32_u24 v3, v2, s29, v3")
        for dx in range(3):
            e(f"v_add_u32 v4, {dx + 1}, v1")
            e("v_bfe_u32 v4, v4, 2, 2")
            e(f"v_add_u32 v5, {64 + 192 * dx}, v3")
            for cc in range(3):
                e(f"s_add_u32 s30, s28, {cc}")
                e("v_xor_b32 v6, s30, v4")
                e(f"v_lshl_add_u32 v{BA(3 * dx + cc)}, v6, 4, v5")
        e("v_bfe_u32 v4, v1, 1, 2")
        e("v_mul_u32_u24 v3, 192, v1")
        e("v_cmp_eq_u32 vcc, 3, v2")
        e("v_add_u32 v7, 9216, v3")
        e("v_lshrrev_b32 v8, 1, v2")
        e("v_cndmask_b32 v5, v2, 0, vcc")
        e("v_cndmask_b32 v6, v3, v7, vcc")
        e("v_add_u32 v5, s28, v5")
        e("v_xor_b32 v5, v5, v4")
        e("v_lshl_add_u32 v11, v5, 4, v6")
        e("v_add3_u32 v5, v8, s28, 1")
        e("v_xor_b32 v5, v5, v4")
        e("v_lshl_add_u32 v12, v5, 4, v7")
        e("v_and_b32 v5, 1, v2")
        e("v_lshl_add_u32 v12, v5, 3, v12")
        e("v_and_b32 v3, 3, v0")
        e("v_bfe_u32 v4, v0, 2, 2")
        e("v_mul_u32_u24 v4, 48, v4")
        e("v_add_u32 v4, s33, v4")
        e("v_cmp_eq_u32 vcc, 3, v3")
        e("s_mul_i32 s30, s26, 6912")
        e("s_cmp_eq_u32 s26, 0")
        e("s_cselect_b32 s31, 1, -1")
        e("s_mulk_i32 s31, 3456")
        e("v_cndmask_b32 v5, v3, 0, vcc")
        e("v_cndmask_b32 v6, 0, 1, vcc")
        e("v_add_u32 v4, s30, v4")
        e("v_lshl_add_u32 v7, v5, 4, v4")
        e("v_sub_u32 v6, v2, v6")
        e("v_mul_lo_u32 v5, v6, s31")
        e("v_add_u32 v7, v7, v5")
        e("v_cmp_gt_u32 vcc, 3, v6")
        e("s_add_u32 s36, s33, 10368")
        e("v_mov_b32 v13, s36")
        e("v_mov_b32 v14, 384")
        e("v_cndmask_b32 v7, v13, v7, vcc")
        e("v_cndmask_b32 v8, 0, v14, vcc")
        e("v_lshl_add_u32 v9, v3, 3, v4")
        e("v_add_u32 v9, 16, v9")
        e("v_add_u32 v6, -1, v2")
        e("v_mul_lo_u32 v5, v6, s31")
        e("v_add_u32 v9, v9, v5")
        e("v_cmp_gt_u32 vcc, 3, v6")
        e(f"s_mov_b32 s33, {STG0}")
        e("s_mov_b32 s37, 0")
        e("v_cndmask_b32 v9, v13, v9, vcc")
        e("v_cndmask_b32 v10, 0, v14, vcc")
        e("s_waitcnt vmcnt(0)")
        self.stamp()
        for m in range(9):
            for t, (a, off) in enumerate([(7, 0), (7, 8), (9, 0)]):
                w = W(m, t)
                e(f"ds_read_b64_tr_b16 v[{w}:{w + 1}], v{a} offset:{off}")
                e(f"ds_read_b64_tr_b16 v[{w + 2}:{w + 3}], v{a} offset:{off + 192}")
            if m < 8:
                e("v_add_u32 v7, v7, v8")
                e("v_add_u32 v9, v9, v10")
            if m % 2 == 1:
                e("s_waitcnt lgkmcnt(0)")
        e("s_waitcnt lgkmcnt(0)")
        self.stamp()

        def epilogue_ops(s, T):
            ops = []
            a0, a1, a2 = ACC(s, 0), ACC(s, 1), ACC(s, 2)
            ops.append(f"v_cvt_pk_bf16_f32 v{PK}, v{a0}, v{a0 + 1}")
            ops.append(f"v_cvt_pk_bf16_f32 v{PK + 1}, v{a0 + 2}, v{a0 + 3}")
            ops.append(f"v_cvt_pk_bf16_f32 v{PK + 2}, v{a1}, v{a1 + 1}")
            ops.append(f"v_cvt_pk_bf16_f32 v{PK + 3}, v{a1 + 2}, v{a1 + 3}")
            ops.append(f"ds_write_b128 v13, v[{PK}:{PK + 3}] offset:{3072 * T}")
            ops.append(f"v_cvt_pk_bf16_f32 v{PK + 4}, v{a2}, v{a2 + 1}")
            ops.append(f"v_cvt_pk_bf16_f32 v{PK + 5}, v{a2 + 2}, v{a2 + 3}")
            ops.append(f"ds_write_b64 v14, v[{PK + 4}:{PK + 5}] offset:{3072 * T}")
            return ops

        self.lab("L_c_loop")
        e("v_add_u32 v13, s33, v11")
        e("v_add_u32 v14, s33, v12")
        e("s_barrier")
        self.stamp_loop(0)
        q = []

        def ds(tag, s):
            e(s)
            q.append(tag)

        def wait_for(tag):
            idx = q.index(tag)
            n = len(q) - 1 - idx
            e(f"s_waitcnt lgkmcnt({n})")
            del q[: idx + 1]

        for m in range(9):
            ds(("B", 0, m), f"ds_read_b128 v[{B(m)}:{B(m) + 3}], v{BA(m)} offset:0")
        for T in range(3):
            s = T & 1
            pend = epilogue_ops(s ^ 1, T - 1) if T > 0 else []
            for m in range(9):
                wait_for(("B", T, m))
                for t in range(3):
                    a = ACC(s, t)
                    cin = "0" if m == 0 else f"v[{a}:{a + 3}]"
                    e(f"v_mfma_f32_16x16x32_bf16 v[{a}:{a + 3}], v[{W(m, t)}:{W(m, t) + 3}], v[{B(m)}:{B(m) + 3}], {cin}")
                    if m >= 2 and pend:
                        op = pend.pop(0)
                        if op.startswith("ds_"):
                            ds(("W",), op)
                        else:
                            e(op)
                if T < 2:
                    ds(("B", T + 1, m), f"ds_read_b128 v[{B(m)}:{B(m) + 3}], v{BA(m)} offset:{3072 * (T + 1)}")
                else:
                    e(f"v_add_u32 v{BA(m)}, {PAIR}, v{BA(m)}")
            assert not pend
        e(f"s_mul_i32 s33, s37, {PAIR}")
        e("s_add_u32 s37, s37, 1")
        e("s_nop 4")
        for op in epilogue_ops(0, 2):
            e(op)
        self.stamp_loop(1)
        e("s_waitcnt lgkmcnt(0)")
        self.stamp_commit(0, 31)
        self.stamp_commit(1, 39)
        e("s_cmp_lt_u32 s37, 6")
        e("s_cbranch_scc1 L_c_loop")
        self.stamp()
        e("s_barrier")
        self.stamp_flush()
        self.lab("L_end")
        e("s_endpgm")

    def build(self):
        self.prologue()
        self.loader()
        self.compute_first = True
        self.storer()
        self.compute()
        return HEADER + "\n".join(self.L) + "\n" + FOOTER.format(vgpr=216, acc=216)


def main():
    p = argparse.ArgumentParser()
    p.add_argument("-o", default="-")
    p.add_argument("--prof", type=int, default=0)
    p.add_argument("--flip", type=int, default=1)
    p.add_argument("--depth", type=int, default=4)
    p.add_argument("--ldflags", default="")
    p.add_argument("--stflags", default="")
    p.add_argument("--prio_loader", type=int, default=0)
    p.add_argument("--unroll_c", type=int, default=0)
    o = p.parse_args()
    s = Gen(o).build()
    if o.o == "-":
        sys.stdout.write(s)
    else:
        open(o.o, "w").write(s)


if __name__ == "__main__":
    main()
```

```python
import argparse
import sys

ROWB = 73728
XBYTES = 28311552
WBYTES = 41472
PITCH = 9728
PAIR = 19456
STG0 = 136192
LDS_TOTAL = 163840
WREG = LDS_TOTAL - 4 * 11264

HEADER = """; Kernarg layout for this problem (40 bytes, ptrs only, base s[0:1]):
; @launch grid=(256,1,1) block=(512,1,1) lds=163840
.amdgcn_target "amdgcn-amd-amdhsa--gfx950"
.text
.globl standalone__grouped__vision_kernel
.p2align 8
.type standalone__grouped__vision_kernel,@function
standalone__grouped__vision_kernel:
"""

FOOTER = """.section .rodata,"a"
.p2align 6
.amdhsa_kernel standalone__grouped__vision_kernel
  .amdhsa_next_free_vgpr {vgpr}
  .amdhsa_next_free_sgpr 102
  .amdhsa_accum_offset {acc}
  .amdhsa_group_segment_fixed_size 0
  .amdhsa_kernarg_size 40
  .amdhsa_user_sgpr_count 2
  .amdhsa_user_sgpr_kernarg_segment_ptr 1
  .amdhsa_system_sgpr_workgroup_id_x 1
.end_amdhsa_kernel
"""


class Gen:
    def __init__(self, o):
        self.o = o
        self.L = []
        self.nstamp = 0

    def e(self, s):
        self.L.append("    " + s)

    def lab(self, s):
        self.L.append(s + ":")

    def c(self, s):
        self.L.append("    ; " + s)

    def stamp(self):
        if not self.o.prof:
            return
        k = self.nstamp
        self.nstamp += 1
        assert k < 26
        self.e(f"s_memtime s[{44 + 2 * k}:{45 + 2 * k}]")

    def stamp_reset(self, n):
        self.nstamp = n

    def stamp_loop(self, slot):
        if not self.o.prof:
            return
        r = 96 + 2 * slot
        self.e(f"s_memtime s[{r}:{r + 1}]")

    def stamp_commit(self, slot, base):
        if not self.o.prof:
            return
        r = 96 + 2 * slot
        self.e(f"s_add_u32 m0, s37, {base}")
        self.e(f"v_writelane_b32 v215, s{r}, m0")

    def stamp_flush(self):
        if self.o.dbg:
            self.e("s_waitcnt vmcnt(0) lgkmcnt(0)")
            self.e("s_load_dwordx2 s[40:41], s[0:1], 24")
            self.e("s_memrealtime s[42:43]")
            self.e("s_memtime s[46:47]")
            self.e("s_mov_b64 exec, 1")
            self.e("v_mov_b32 v1, 0")
            self.e("s_waitcnt lgkmcnt(0)")
            self.e("s_not_b32 s38, s38")
            self.e("v_mov_b32 v2, s38")
            self.e("global_atomic_umax v1, v2, s[40:41]")
            self.e("v_mov_b32 v2, s42")
            self.e("global_atomic_umax v1, v2, s[40:41] offset:4")
            self.e("s_sub_u32 s46, s46, s44")
            self.e("v_mov_b32 v2, s46")
            self.e("s_lshl_b32 s42, s3, 2")
            self.e("v_mov_b32 v1, s42")
            self.e("global_atomic_umax v1, v2, s[40:41] offset:8")
            return
        if not self.o.prof:
            return
        self.e("s_waitcnt lgkmcnt(0)")
        self.e("s_load_dwordx2 s[40:41], s[0:1], 32")
        self.e("s_lshl_b32 s42, s2, 3")
        self.e("s_add_u32 s42, s42, s3")
        self.e("s_lshl_b32 s42, s42, 8")
        self.e("v_lshl_add_u32 v1, v0, 2, s42")
        for k in range(self.nstamp):
            self.e(f"v_writelane_b32 v215, s{44 + 2 * k}, {k}")
        self.e(f"s_mov_b32 s42, {self.nstamp}")
        self.e("v_writelane_b32 v215, s42, 63")
        self.e("s_getreg_b32 s42, hwreg(HW_REG_XCC_ID)")
        self.e("v_writelane_b32 v215, s42, 62")
        self.e("s_getreg_b32 s42, hwreg(HW_REG_HW_ID)")
        self.e("v_writelane_b32 v215, s42, 61")
        self.e("v_writelane_b32 v215, s38, 60")
        self.e("s_memrealtime s[38:39]")
        self.e("s_waitcnt lgkmcnt(0)")
        self.e("v_writelane_b32 v215, s38, 59")
        self.e("global_store_dword v1, v215, s[40:41]")

    def prologue(self):
        e = self.e
        e("s_cmp_ge_u32 s2, 256")
        e("s_cbranch_scc1 L_end")
        e("s_load_dwordx4 s[4:7], s[0:1], 0")
        e("s_load_dwordx2 s[8:9], s[0:1], 16")
        if self.o.prof or self.o.dbg:
            e("s_memrealtime s[38:39]")
        if self.o.dbg:
            e("s_memtime s[44:45]")
        self.stamp()
        if self.o.prof:
            e("v_mov_b32 v215, 0")
        e("v_lshrrev_b32 v1, 6, v0")
        e("v_and_b32 v0, 63, v0")
        e("s_and_b32 s10, s2, 1")
        e("v_readfirstlane_b32 s3, v1")
        e("s_lshl_b32 s10, s10, 2")
        e("s_bfe_u32 s11, s2, 0x20003")
        e("s_add_u32 s10, s10, s11")
        e("s_bfe_u32 s11, s2, 0x20001")
        e("s_lshl_b32 s11, s11, 3")
        e("s_lshr_b32 s24, s2, 5")
        e("s_add_u32 s11, s11, s24")
        e("s_mul_i32 s24, s10, 9216")
        e("s_mul_i32 s25, s11, 12")
        if self.o.flip:
            e("s_and_b32 s26, s11, 1")
        else:
            e("s_and_b32 s26, s11, 0")
        e("s_cselect_b32 s27, -1, 1")
        e(f"s_mul_i32 s27, s27, {ROWB}")
        e("s_cmp_ge_u32 s3, 6")
        e("s_cbranch_scc1 L_storer")
        e("s_cmp_lt_u32 s3, 4")
        e("s_cbranch_scc1 L_compute")

    def loader(self):
        e, o = self.e, self.o
        self.lab("L_loader")
        if o.prio_loader:
            e(f"s_setprio {o.prio_loader}")
        e("v_lshrrev_b32 v1, 2, v0")
        for i in range(3):
            e(f"v_add_u32 v2, {16 * i + 2}, v1")
            e("v_mul_u32_u24 v2, 171, v2")
            e("v_bfe_u32 v2, v2, 11, 2")
            e("v_xor_b32 v2, v2, v0")
            e(f"v_lshl_add_u32 v{10 + i}, v2, 4, s24")
        e("s_cmp_eq_u32 s10, 0")
        e("s_cselect_b32 s28, 16, 0")
        e("s_cmp_eq_u32 s10, 7")
        e("s_cselect_b32 s29, 16, 64")
        e("v_bfrev_b32 v3, 1")
        e("v_cmp_gt_u32 vcc, s28, v0")
        e("s_and_b32 s30, s3, 1")
        e("s_cmp_eq_u32 s26, 0")
        e("v_cndmask_b32 v13, v10, v3, vcc")
        e("v_cmp_le_u32 vcc, s29, v0")
        e("s_cselect_b32 s31, -1, 12")
        e("s_add_i32 s31, s31, s25")
        e("v_cndmask_b32 v14, v10, v3, vcc")
        e(f"s_mul_i32 s31, s31, {ROWB}")
        e("s_mul_i32 s32, s30, s27")
        e("s_add_i32 s31, s31, s32")
        e("s_lshl_b32 s32, s27, 1")
        e(f"s_mul_i32 s33, s30, {PITCH}")
        e("s_waitcnt lgkmcnt(0)")
        e("s_sub_u32 s12, s4, 256")
        e("s_subb_u32 s13, s5, 0")
        e(f"s_mov_b32 s14, {XBYTES + 256}")
        e("s_mov_b32 s15, 0x20000")
        self.stamp()
        fl = o.ldflags

        def issue_row():
            e("s_cmp_lt_i32 s31, 0")
            e("s_cselect_b32 s34, 0x40000000, s31")
            e("s_mov_b32 m0, s33")
            e("s_add_u32 s35, s34, 4096")
            pats = [13, 11, 12, 10, 11, 12, 10, 11, 12, 14]
            for i in range(10):
                so = ["s34", "s35", "s36"][i // 4]
                if i == 4:
                    e("s_add_u32 m0, s33, 4096")
                    e("s_add_u32 s36, s34, 8192")
                if i == 8:
                    e("s_add_u32 m0, s33, 8192")
                    e("s_add_i32 s31, s31, s32")
                if i == 9:
                    e("s_mov_b32 exec_hi, 0")
                off = 1024 * (i % 4)
                e(f"buffer_load_dwordx4 v{pats[i]}, s[12:15], {so} offen offset:{off} {fl} lds")
            e("s_mov_b32 exec_hi, -1")
            e(f"s_add_u32 s33, s33, {PAIR}")

        D = o.depth
        issued = 0
        for k in range(D):
            issue_row()
            issued += 1
            if k in (1,) or k == D - 1:
                self.stamp()
        for j in range(6):
            need = j + 2
            e(f"s_waitcnt vmcnt({10 * (issued - need)})")
            self.stamp()
            if issued < 6:
                issue_row()
                issued += 1
            e("s_barrier")
            if issued == 6 :
                issue_row()
                issued += 1
        self.stamp()
        self.stamp_flush()
        e("s_endpgm")

    def storer(self):
        e, o = self.e, self.o
        self.lab("L_storer")
        self.stamp_reset(1)
        e("s_and_b32 s30, s3, 1")
        e("v_lshrrev_b32 v1, 2, v0")
        e("s_mul_i32 s28, s30, 9216")
        for i in range(3):
            e(f"v_add_u32 v2, {16 * i}, v1")
            e("v_mul_u32_u24 v2, 171, v2")
            e("v_bfe_u32 v2, v2, 10, 2")
            e("v_xor_b32 v2, v2, v0")
            e(f"v_lshl_add_u32 v{10 + i}, v2, 4, s28")
            if i:
                e(f"v_add_u32 v{10 + i}, {1024 * i}, v{10 + i}")
        e("v_lshlrev_b32 v9, 4, v0")
        e("s_cmp_eq_u32 s26, 0")
        e("s_cselect_b32 s31, 0, 11")
        e("s_add_i32 s31, s31, s25")
        e(f"s_mul_i32 s31, s31, {ROWB}")
        e("s_mul_i32 s32, s30, s27")
        e("s_add_i32 s31, s31, s32")
        e("s_add_i32 s31, s31, s24")
        e("s_lshl_b32 s32, s27, 1")
        e(f"s_mov_b32 s33, {STG0}")
        e("s_mov_b32 s37, 0")
        e("s_waitcnt lgkmcnt(0)")
        e("s_mov_b32 s20, s8")
        e("s_mov_b32 s21, s9")
        e(f"s_mov_b32 s22, {XBYTES}")
        e("s_mov_b32 s23, 0x20000")
        e("s_barrier")
        self.lab("L_st_loop")
        for i in range(3):
            e(f"v_add_u32 v{13 + i}, s33, v{10 + i}")
        e("s_add_u32 s34, s31, 4096")
        e("s_add_u32 s35, s31, 8192")
        e("s_barrier")
        self.stamp_loop(0)
        for i in range(9):
            e(f"ds_read_b128 v[{16 + 4 * i}:{19 + 4 * i}], v{13 + i % 3} offset:{3072 * (i // 3)}")
        for i in range(9):
            e(f"s_waitcnt lgkmcnt({8 - i})")
            so = ["s31", "s34", "s35"][i // 4]
            e(f"buffer_store_dwordx4 v[{16 + 4 * i}:{19 + 4 * i}], v9, s[20:23], {so} offen offset:{1024 * (i % 4)} {o.stflags}")
        e("s_add_i32 s31, s31, s32")
        e(f"s_mul_i32 s33, s37, {PAIR}")
        e("s_add_u32 s37, s37, 1")
        if o.prof:
            self.stamp_loop(1)
            e("s_waitcnt lgkmcnt(0)")
            self.stamp_commit(0, 31)
            self.stamp_commit(1, 39)
        e("s_cmp_lt_u32 s37, 6")
        e("s_cbranch_scc1 L_st_loop")
        if o.prof:
            self.stamp()
            e("s_waitcnt vmcnt(0)")
            self.stamp()
        self.stamp_flush()
        e("s_endpgm")

    def compute(self):
        e, o = self.e, self.o
        W = lambda m, t: 16 + 4 * (3 * m + t)
        B = lambda m: 124 + 4 * m
        ACC = lambda s, t: 160 + 12 * s + 4 * t
        PK = 184
        BA = lambda m: 190 + m
        self.lab("L_compute")
        self.stamp_reset(1)
        e("s_mul_i32 s28, s3, 1152")
        e("v_lshl_add_u32 v1, v0, 4, s28")
        e("s_movk_i32 s29, 3456")
        for i in range(11):
            if i == 0:
                e("v_mov_b32 v200, v1")
                continue
            e(f"v_add_u32 v2, {64 * i}, v0")
            e("v_mul_u32_u24 v2, 911, v2")
            e("v_lshrrev_b32 v2, 16, v2")
            e(f"v_mad_u32_u24 v{200 + i}, v2, s29, v1")
        e(f"s_mul_i32 s33, s3, 11264")
        e(f"s_add_u32 s33, s33, {WREG}")
        e("s_waitcnt lgkmcnt(0)")
        e("s_mov_b32 s16, s6")
        e("s_mov_b32 s17, s7")
        e(f"s_mov_b32 s18, {WBYTES}")
        e("s_mov_b32 s19, 0x20000")
        e("s_movk_i32 s34, 4096")
        e("s_movk_i32 s35, 8192")
        for i in range(11):
            if i % 4 == 0:
                e(f"s_add_u32 m0, s33, {4096 * (i // 4)}")
                e("s_nop 0")
            so = ["0", "s34", "s35"][i // 4]
            e(f"buffer_load_dwordx4 v{200 + i}, s[16:19], {so} offen offset:{1024 * (i % 4)} lds")
        self.stamp()
        e("v_and_b32 v1, 15, v0")
        e("v_lshrrev_b32 v2, 4, v0")
        e("s_mul_i32 s28, s3, 3")
        e(f"s_movk_i32 s29, {PITCH}")
        e("v_mul_u32_u24 v3, 192, v1")
        e("v_mad_u32_u24 v3, v2, s29, v3")
        for dx in range(3):
            e(f"v_add_u32 v4, {dx + 1}, v1")
            e("v_bfe_u32 v4, v4, 2, 2")
            e(f"v_add_u32 v5, {64 + 192 * dx}, v3")
            for cc in range(3):
                e(f"s_add_u32 s30, s28, {cc}")
                e("v_xor_b32 v6, s30, v4")
                e(f"v_lshl_add_u32 v{BA(3 * dx + cc)}, v6, 4, v5")
        e("v_bfe_u32 v4, v1, 1, 2")
        e("v_mul_u32_u24 v3, 192, v1")
        e("v_cmp_eq_u32 vcc, 3, v2")
        e("v_add_u32 v7, 9216, v3")
        e("v_lshrrev_b32 v8, 1, v2")
        e("v_cndmask_b32 v5, v2, 0, vcc")
        e("v_cndmask_b32 v6, v3, v7, vcc")
        e("v_add_u32 v5, s28, v5")
        e("v_xor_b32 v5, v5, v4")
        e("v_lshl_add_u32 v11, v5, 4, v6")
        e("v_add3_u32 v5, v8, s28, 1")
        e("v_xor_b32 v5, v5, v4")
        e("v_lshl_add_u32 v12, v5, 4, v7")
        e("v_and_b32 v5, 1, v2")
        e("v_lshl_add_u32 v12, v5, 3, v12")
        e("v_and_b32 v3, 3, v0")
        e("v_bfe_u32 v4, v0, 2, 2")
        e("v_mul_u32_u24 v4, 48, v4")
        e("v_add_u32 v4, s33, v4")
        e("v_cmp_eq_u32 vcc, 3, v3")
        e("s_mul_i32 s30, s26, 6912")
        e("s_cmp_eq_u32 s26, 0")
        e("s_cselect_b32 s31, 1, -1")
        e("s_mulk_i32 s31, 3456")
        e("v_cndmask_b32 v5, v3, 0, vcc")
        e("v_cndmask_b32 v6, 0, 1, vcc")
        e("v_add_u32 v4, s30, v4")
        e("v_lshl_add_u32 v7, v5, 4, v4")
        e("v_sub_u32 v6, v2, v6")
        e("v_mul_lo_u32 v5, v6, s31")
        e("v_add_u32 v7, v7, v5")
        e("v_cmp_gt_u32 vcc, 3, v6")
        e("s_add_u32 s36, s33, 10368")
        e("v_mov_b32 v13, s36")
        e("v_mov_b32 v14, 384")
        e("v_cndmask_b32 v7, v13, v7, vcc")
        e("v_cndmask_b32 v8, 0, v14, vcc")
        e("v_lshl_add_u32 v9, v3, 3, v4")
        e("v_add_u32 v9, 16, v9")
        e("v_add_u32 v6, -1, v2")
        e("v_mul_lo_u32 v5, v6, s31")
        e("v_add_u32 v9, v9, v5")
        e("v_cmp_gt_u32 vcc, 3, v6")
        e(f"s_mov_b32 s33, {STG0}")
        e("s_mov_b32 s37, 0")
        e("v_cndmask_b32 v9, v13, v9, vcc")
        e("v_cndmask_b32 v10, 0, v14, vcc")
        e("s_waitcnt vmcnt(0)")
        self.stamp()
        for m in range(9):
            for t, (a, off) in enumerate([(7, 0), (7, 8), (9, 0)]):
                w = W(m, t)
                e(f"ds_read_b64_tr_b16 v[{w}:{w + 1}], v{a} offset:{off}")
                e(f"ds_read_b64_tr_b16 v[{w + 2}:{w + 3}], v{a} offset:{off + 192}")
            if m < 8:
                e("v_add_u32 v7, v7, v8")
                e("v_add_u32 v9, v9, v10")
            if m % 2 == 1:
                e("s_waitcnt lgkmcnt(0)")
        e("s_waitcnt lgkmcnt(0)")
        self.stamp()

        def epilogue_ops(s, T):
            ops = []
            a0, a1, a2 = ACC(s, 0), ACC(s, 1), ACC(s, 2)
            ops.append(f"v_cvt_pk_bf16_f32 v{PK}, v{a0}, v{a0 + 1}")
            ops.append(f"v_cvt_pk_bf16_f32 v{PK + 1}, v{a0 + 2}, v{a0 + 3}")
            ops.append(f"v_cvt_pk_bf16_f32 v{PK + 2}, v{a1}, v{a1 + 1}")
            ops.append(f"v_cvt_pk_bf16_f32 v{PK + 3}, v{a1 + 2}, v{a1 + 3}")
            ops.append(f"ds_write_b128 v13, v[{PK}:{PK + 3}] offset:{3072 * T}")
            ops.append(f"v_cvt_pk_bf16_f32 v{PK + 4}, v{a2}, v{a2 + 1}")
            ops.append(f"v_cvt_pk_bf16_f32 v{PK + 5}, v{a2 + 2}, v{a2 + 3}")
            ops.append(f"ds_write_b64 v14, v[{PK + 4}:{PK + 5}] offset:{3072 * T}")
            return ops

        self.lab("L_c_loop")
        e("v_add_u32 v13, s33, v11")
        e("v_add_u32 v14, s33, v12")
        e("s_barrier")
        self.stamp_loop(0)
        q = []

        def ds(tag, s):
            e(s)
            q.append(tag)

        def wait_for(tag):
            idx = q.index(tag)
            n = len(q) - 1 - idx
            e(f"s_waitcnt lgkmcnt({n})")
            del q[: idx + 1]

        for m in range(9):
            ds(("B", 0, m), f"ds_read_b128 v[{B(m)}:{B(m) + 3}], v{BA(m)} offset:0")
        for T in range(3):
            s = T & 1
            pend = epilogue_ops(s ^ 1, T - 1) if T > 0 else []
            for m in range(9):
                wait_for(("B", T, m))
                for t in range(3):
                    a = ACC(s, t)
                    cin = "0" if m == 0 else f"v[{a}:{a + 3}]"
                    e(f"v_mfma_f32_16x16x32_bf16 v[{a}:{a + 3}], v[{W(m, t)}:{W(m, t) + 3}], v[{B(m)}:{B(m) + 3}], {cin}")
                    if m >= 2 and pend:
                        op = pend.pop(0)
                        if op.startswith("ds_"):
                            ds(("W",), op)
                        else:
                            e(op)
                if T < 2:
                    ds(("B", T + 1, m), f"ds_read_b128 v[{B(m)}:{B(m) + 3}], v{BA(m)} offset:{3072 * (T + 1)}")
                else:
                    e(f"v_add_u32 v{BA(m)}, {PAIR}, v{BA(m)}")
            assert not pend
        e(f"s_mul_i32 s33, s37, {PAIR}")
        e("s_add_u32 s37, s37, 1")
        e("s_nop 4")
        for op in epilogue_ops(0, 2):
            e(op)
        self.stamp_loop(1)
        e("s_waitcnt lgkmcnt(0)")
        self.stamp_commit(0, 31)
        self.stamp_commit(1, 39)
        e("s_cmp_lt_u32 s37, 6")
        e("s_cbranch_scc1 L_c_loop")
        self.stamp()
        e("s_barrier")
        self.stamp_flush()
        self.lab("L_end")
        e("s_endpgm")

    def build(self):
        self.prologue()
        self.loader()
        self.compute_first = True
        self.storer()
        self.compute()
        return HEADER + "\n".join(self.L) + "\n" + FOOTER.format(vgpr=216, acc=216)


def main():
    p = argparse.ArgumentParser()
    p.add_argument("-o", default="-")
    p.add_argument("--prof", type=int, default=0)
    p.add_argument("--dbg", type=int, default=0)
    p.add_argument("--flip", type=int, default=1)
    p.add_argument("--depth", type=int, default=4)
    p.add_argument("--ldflags", default="")
    p.add_argument("--stflags", default="")
    p.add_argument("--prio_loader", type=int, default=0)
    p.add_argument("--unroll_c", type=int, default=0)
    o = p.parse_args()
    s = Gen(o).build()
    if o.o == "-":
        sys.stdout.write(s)
    else:
        open(o.o, "w").write(s)


if __name__ == "__main__":
    main()
```

```python
import argparse
import sys

ROWB = 73728
XBYTES = 28311552
WBYTES = 41472
PITCH = 9728
PAIR = 19456
LDS_TOTAL = 163840
WSZ = 10752
FLAGS = LDS_TOTAL - 256
WREG = FLAGS - 4 * WSZ

HEADER = """; Kernarg layout for this problem (40 bytes, ptrs only, base s[0:1]):
;   offset  32: d_ws      workspace
; @launch grid=(256,1,1) block=(512,1,1) lds=163840
.amdgcn_target "amdgcn-amd-amdhsa--gfx950"
.text
.globl standalone__grouped__vision_kernel
.p2align 8
.type standalone__grouped__vision_kernel,@function
standalone__grouped__vision_kernel:
"""

FOOTER = """.section .rodata,"a"
.p2align 6
.amdhsa_kernel standalone__grouped__vision_kernel
  .amdhsa_next_free_vgpr {vgpr}
  .amdhsa_next_free_sgpr 102
  .amdhsa_accum_offset {acc}
  .amdhsa_group_segment_fixed_size 0
  .amdhsa_kernarg_size 40
  .amdhsa_user_sgpr_count 2
  .amdhsa_user_sgpr_kernarg_segment_ptr 1
  .amdhsa_system_sgpr_workgroup_id_x 1
.end_amdhsa_kernel
"""


class Gen:
    def __init__(self, o):
        self.o = o
        self.L = []
        self.nstamp = 0
        self.nlab = 0

    def e(self, s):
        self.L.append("    " + s)

    def lab(self, s):
        self.L.append(s + ":")

    def newlab(self, p):
        self.nlab += 1
        return f"L_{p}{self.nlab}"

    def stamp(self):
        if not self.o.prof:
            return
        k = self.nstamp
        self.nstamp += 1
        assert k < 24
        self.e(f"s_memtime s[{44 + 2 * k}:{45 + 2 * k}]")

    def stamp_reset(self, n):
        self.nstamp = n

    def stamp_loop(self, slot):
        if not self.o.prof:
            return
        r = 96 + 2 * slot
        self.e(f"s_memtime s[{r}:{r + 1}]")

    def stamp_commit(self, slot, base, ctr="s37"):
        if not self.o.prof:
            return
        r = 96 + 2 * slot
        self.e("s_mov_b32 s95, m0")
        self.e(f"s_add_u32 m0, {ctr}, {base}")
        self.e(f"v_writelane_b32 v215, s{r}, m0")
        self.e("s_mov_b32 m0, s95")

    def stamp_flush(self):
        if not self.o.prof:
            return
        self.e("s_waitcnt lgkmcnt(0)")
        self.e("s_load_dwordx2 s[40:41], s[0:1], 32")
        self.e("s_lshl_b32 s42, s2, 3")
        self.e("s_add_u32 s42, s42, s3")
        self.e("s_lshl_b32 s42, s42, 8")
        self.e("v_lshl_add_u32 v1, v0, 2, s42")
        for k in range(self.nstamp):
            self.e(f"v_writelane_b32 v215, s{44 + 2 * k}, {k}")
        self.e(f"s_mov_b32 s42, {self.nstamp}")
        self.e("v_writelane_b32 v215, s42, 63")
        self.e("s_getreg_b32 s42, hwreg(HW_REG_XCC_ID)")
        self.e("v_writelane_b32 v215, s42, 62")
        self.e("s_getreg_b32 s42, hwreg(HW_REG_HW_ID)")
        self.e("v_writelane_b32 v215, s42, 61")
        self.e("v_writelane_b32 v215, s38, 60")
        if self.o.early:
            self.e("v_writelane_b32 v215, s92, 55")
        self.e("s_memrealtime s[38:39]")
        self.e("s_waitcnt lgkmcnt(0)")
        self.e("v_writelane_b32 v215, s38, 59")
        self.e("global_store_dword v1, v215, s[40:41]")

    def poll(self, vaddr, vtmp, sneed, sleep=1):
        e = self.e
        l = self.newlab("poll")
        d = self.newlab("pdone")
        self.lab(l)
        e(f"ds_read_b32 v{vtmp}, v{vaddr}")
        e("s_waitcnt lgkmcnt(0)")
        e(f"v_cmp_gt_u32 vcc, {sneed}, v{vtmp}")
        e(f"s_cbranch_vccz {d}")
        if sleep:
            e(f"s_sleep {sleep}")
        e(f"s_branch {l}")
        self.lab(d)

    def prologue(self):
        e = self.e
        e("s_cmp_ge_u32 s2, 256")
        e("s_cbranch_scc1 L_end")
        e("s_load_dwordx4 s[4:7], s[0:1], 0")
        e("s_load_dwordx2 s[8:9], s[0:1], 16")
        if self.o.prof:
            e("s_memrealtime s[38:39]")
        self.stamp()
        if self.o.early:
            e("s_waitcnt lgkmcnt(0)")
            e("s_memtime s[92:93]")
        if self.o.prof:
            e("v_mov_b32 v215, 0")
        e("v_lshrrev_b32 v1, 6, v0")
        e("v_and_b32 v0, 63, v0")
        e(f"v_mov_b32 v3, {FLAGS}")
        e("v_readfirstlane_b32 s3, v1")
        e("v_xor_b32 v2, 4, v1")
        e("v_lshl_add_u32 v8, v2, 2, v3")
        e("v_mov_b32 v2, 0")
        e("ds_write_b32 v8, v2")
        e("v_and_b32 v2, 3, v0")
        e("v_lshl_add_u32 v9, v2, 2, v3")
        e("s_and_b32 s10, s2, 1")
        e("s_lshl_b32 s10, s10, 2")
        e("s_bfe_u32 s11, s2, 0x20003")
        e("s_add_u32 s10, s10, s11")
        e("s_bfe_u32 s11, s2, 0x20001")
        e("s_lshl_b32 s11, s11, 3")
        e("s_lshr_b32 s24, s2, 5")
        e("s_add_u32 s11, s11, s24")
        e("s_mul_i32 s24, s10, 9216")
        e("s_mul_i32 s25, s11, 12")
        if self.o.flip:
            e("s_and_b32 s26, s11, 1")
        else:
            e("s_and_b32 s26, s11, 0")
        e("s_cselect_b32 s27, -1, 1")
        e(f"s_mul_i32 s27, s27, {ROWB}")
        e("s_cmp_lt_u32 s3, 4")
        e("s_cbranch_scc1 L_compute")

    def helper(self):
        e, o = self.e, self.o
        self.lab("L_helper")
        if o.prio_loader:
            e(f"s_setprio {o.prio_loader}")
        e("s_and_b32 s30, s3, 1")
        e("s_bfe_u32 s29, s3, 0x10001")
        e("s_mul_i32 s28, s29, 80")
        e("s_mul_i32 s33, s29, 5120")
        e("s_add_u32 s36, s24, s33")
        e("v_lshrrev_b32 v1, 2, v0")
        e("v_add_u32 v1, s28, v1")
        for k in range(5):
            e(f"v_add_u32 v2, {16 * k + 2}, v1")
            e("v_mul_u32_u24 v2, 171, v2")
            e("v_bfe_u32 v2, v2, 11, 2")
            e("v_xor_b32 v2, v2, v0")
            e(f"v_lshl_add_u32 v{10 + k}, v2, 4, s36")
        e("v_add_u32 v14, 4096, v14")
        e("s_lshl_b32 s28, s29, 3")
        e("s_add_u32 s28, s28, s10")
        e("s_cmp_eq_u32 s28, 0")
        e("s_cselect_b32 s34, 16, 0")
        e("s_cmp_eq_u32 s28, 15")
        e("s_cselect_b32 s35, 16, 64")
        e("v_bfrev_b32 v3, 1")
        e("v_cmp_gt_u32 vcc, s34, v0")
        e("s_sub_u32 s43, s29, 1")
        e("s_cmp_eq_u32 s26, 0")
        e("v_cndmask_b32 v10, v10, v3, vcc")
        e("v_cmp_le_u32 vcc, s35, v0")
        e("s_cselect_b32 s31, -1, 12")
        e("s_add_i32 s31, s31, s25")
        e("v_cndmask_b32 v14, v14, v3, vcc")
        e(f"s_mul_i32 s31, s31, {ROWB}")
        e("s_mul_i32 s32, s30, s27")
        e("s_add_i32 s31, s31, s32")
        e("s_lshl_b32 s32, s27, 1")
        e(f"s_mul_i32 s28, s30, {PITCH}")
        e("s_add_u32 s33, s33, s28")
        e("s_mov_b32 s37, 0")
        e("s_waitcnt lgkmcnt(0)")
        e("s_sub_u32 s12, s4, 256")
        e("s_subb_u32 s13, s5, 0")
        e(f"s_mov_b32 s14, {XBYTES + 256}")
        e("s_mov_b32 s15, 0x20000")
        self.stamp()
        fl = o.ldflags
        Wn = o.win
        kstar = (Wn - 1) % 5
        lag = (Wn - 1) // 5
        if o.noload:
            e("s_barrier")
            e("v_mov_b32 v2, 64")
            e("ds_write_b32 v8, v2")
            if o.noload == 1:
                self.stamp_flush()
                e("s_endpgm")
            else:
                e("s_branch L_ld_tail")
        self.lab("L_ld_loop")
        e("s_cmp_lt_i32 s31, 0")
        e("s_cselect_b32 s34, 0x40000000, s31")
        e("s_mov_b32 m0, s33")
        e("s_add_i32 s31, s31, s32")
        e(f"s_sub_i32 s28, s37, {lag}")
        e("s_max_i32 s28, s28, 0")
        e("v_mov_b32 v2, s28")
        for k in range(5):
            if k == 4:
                e("s_add_u32 m0, s33, 4096")
            e(f"s_waitcnt vmcnt({Wn - 1})")
            if k == kstar:
                e("ds_write_b32 v8, v2")
                if o.prof:
                    self.stamp_loop(0)
                    e("s_waitcnt lgkmcnt(0)")
                    self.stamp_commit(0, 32 - lag)
            if k == 4:
                e("s_mov_b32 exec_hi, s43")
                e(f"buffer_load_dwordx4 v14, s[12:15], s34 offen {fl} lds")
                e("s_mov_b32 exec_hi, -1")
            else:
                e(f"buffer_load_dwordx4 v{10 + k}, s[12:15], s34 offen offset:{1024 * k} {fl} lds")
        if o.prof:
            self.stamp_loop(1)
            e("s_waitcnt lgkmcnt(0)")
            self.stamp_commit(1, 24)
        e(f"s_add_u32 s33, s33, {PAIR}")
        e("s_add_u32 s37, s37, 1")
        e(f"s_cmp_lg_u32 s37, {o.barpair}")
        e("s_cbranch_scc1 L_ld_nobar")
        e("s_barrier")
        self.lab("L_ld_nobar")
        e("s_cmp_lt_u32 s37, 6")
        e("s_cbranch_scc1 L_ld_loop")
        e("s_cmp_eq_u32 s37, 7")
        e("s_cbranch_scc1 L_ld_tail")
        e("v_add_u32 v4, 16, v9")
        self.poll(4, 5, 1)
        e("s_branch L_ld_loop")
        self.lab("L_ld_tail")
        e("v_lshrrev_b32 v1, 2, v0")
        e("s_mul_i32 s28, s29, 80")
        e("v_add_u32 v1, s28, v1")
        e("v_add_u32 v6, 4, v0")
        e(f"s_mul_i32 s28, s30, {PITCH}")
        e("s_mul_i32 s33, s29, 5120")
        e("s_add_u32 s28, s28, s33")
        for k in range(5):
            e(f"v_add_u32 v2, {16 * k + 3}, v1")
            e("v_mul_u32_u24 v2, 171, v2")
            e("v_bfe_u32 v2, v2, 11, 2")
            e("v_xor_b32 v2, v2, v6")
            e(f"v_lshl_add_u32 v{10 + k}, v2, 4, s28")
        e("v_lshlrev_b32 v15, 4, v0")
        e("s_cmp_eq_u32 s26, 0")
        e("s_cselect_b32 s31, 0, 11")
        e("s_add_i32 s31, s31, s25")
        e(f"s_mul_i32 s31, s31, {ROWB}")
        e("s_mul_i32 s28, s30, s27")
        e("s_add_i32 s31, s31, s28")
        e("s_add_i32 s31, s31, s36")
        e("s_mov_b32 s20, s8")
        e("s_mov_b32 s21, s9")
        e(f"s_mov_b32 s22, {XBYTES}")
        e("s_mov_b32 s23, 0x20000")
        e("v_add_u32 v4, 16, v9")
        for v in range(7 - lag, 8):
            val = v if v < 7 else 64
            e(f"v_mov_b32 v2, {val}")
            e(f"s_waitcnt vmcnt({35 - 5 * v})")
            e("ds_write_b32 v8, v2")
            self.stamp()
        if o.waitall:
            self.poll(9, 5, 64)
        e("s_mov_b32 s37, 2")
        self.lab("L_st_loop")
        if not o.nocomp:
            self.poll(4, 5, "s37", sleep=o.sleep)
        self.stamp_loop(0)
        for k in range(4):
            e(f"ds_read_b128 v[{16 + 4 * k}:{19 + 4 * k}], v{10 + k} offset:{1024 * k}")
        e("s_add_u32 s34, s31, 4096")
        e("s_cmp_lg_u32 s29, 0")
        e("s_cbranch_scc1 L_st_skip")
        e("ds_read_b128 v[32:35], v14 offset:4096")
        e("s_waitcnt lgkmcnt(0)")
        e(f"buffer_store_dwordx4 v[32:35], v15, s[20:23], s34 offen {o.stflags}")
        self.lab("L_st_skip")
        for k in range(4):
            e(f"s_waitcnt lgkmcnt({3 - k})")
            e(f"buffer_store_dwordx4 v[{16 + 4 * k}:{19 + 4 * k}], v15, s[20:23], s31 offen offset:{1024 * k} {o.stflags}")
            e(f"v_add_u32 v{10 + k}, {PAIR}, v{10 + k}")
        e(f"v_add_u32 v14, {PAIR}, v14")
        e("s_add_i32 s31, s31, s32")
        if o.prof:
            self.stamp_loop(1)
            e("s_waitcnt lgkmcnt(0)")
            self.stamp_commit(0, 38)
            self.stamp_commit(1, 46)
        e("s_add_u32 s37, s37, 1")
        e("s_cmp_lt_u32 s37, 8")
        e("s_cbranch_scc1 L_st_loop")
        if o.prof:
            e("s_waitcnt vmcnt(0)")
            self.stamp()
        self.stamp_flush()
        e("s_endpgm")

    def compute(self):
        e, o = self.e, self.o
        W = lambda m, t: 16 + 4 * (3 * m + t)
        B = lambda m: 124 + 4 * m
        ACC = lambda s, t: 160 + 12 * s + 4 * t
        PK = 196
        BA = lambda m: 202 + m
        self.lab("L_compute")
        self.stamp_reset(1)
        if o.prio_comp:
            e(f"s_setprio {o.prio_comp}")
        e("s_mul_i32 s28, s3, 1152")
        e("v_lshl_add_u32 v1, v0, 4, s28")
        e("s_movk_i32 s29, 3456")
        for i in range(1, 11):
            e(f"v_add_u32 v2, {64 * i}, v0")
            e("v_mul_u32_u24 v2, 911, v2")
            e("v_lshrrev_b32 v2, 16, v2")
            e(f"v_mad_u32_u24 v{124 + i}, v2, s29, v1")
        e(f"s_mul_i32 s33, s3, {WSZ}")
        e(f"s_add_u32 s33, s33, {WREG}")
        e("s_movk_i32 s34, 4096")
        e("s_movk_i32 s35, 8192")
        e("s_waitcnt lgkmcnt(0)")
        e("s_barrier")
        e("s_mov_b32 s16, s6")
        e("s_mov_b32 s17, s7")
        e(f"s_mov_b32 s18, {WBYTES}")
        e("s_mov_b32 s19, 0x20000")
        for i in range(11):
            if i % 4 == 0:
                e(f"s_add_u32 m0, s33, {4096 * (i // 4)}")
                e("s_nop 0")
            if i == 10:
                e("s_mov_b32 exec_hi, 0")
            so = ["0", "s34", "s35"][i // 4]
            va = 1 if i == 0 else 124 + i
            e(f"buffer_load_dwordx4 v{va}, s[16:19], {so} offen offset:{1024 * (i % 4)} {o.wflags} lds")
        e("s_mov_b32 exec_hi, -1")
        self.stamp()
        e("v_and_b32 v1, 15, v0")
        e("v_lshrrev_b32 v2, 4, v0")
        e("s_mul_i32 s28, s3, 3")
        e(f"s_movk_i32 s29, {PITCH}")
        e("v_mul_u32_u24 v3, 192, v1")
        e("v_add_u32 v3, 64, v3")
        e("v_mad_u32_u24 v7, v2, s29, v3")
        for dx in range(3):
            e(f"v_add_u32 v4, {dx + 1}, v1")
            e(f"v_bfe_u32 v{4 if dx else 15}, v4, 2, 2")
            if dx:
                e(f"v_add_u32 v7, 192, v7")
            for cc in range(3):
                e(f"s_add_u32 s30, s28, {cc}")
                e(f"v_xor_b32 v6, s30, v{4 if dx else 15}")
                e(f"v_lshl_add_u32 v{BA(3 * dx + cc)}, v6, 4, v7")
        e("v_cmp_eq_u32 vcc, 3, v2")
        e(f"v_add_u32 v7, {PITCH}, v3")
        e("v_lshrrev_b32 v10, 1, v2")
        e("v_cndmask_b32 v5, v2, 0, vcc")
        e("v_cndmask_b32 v6, v3, v7, vcc")
        e("v_add_u32 v5, s28, v5")
        e("v_xor_b32 v5, v5, v15")
        e("v_lshl_add_u32 v11, v5, 4, v6")
        e("v_add3_u32 v5, v10, s28, 1")
        e("v_xor_b32 v5, v5, v15")
        e("v_lshl_add_u32 v12, v5, 4, v7")
        e("v_and_b32 v5, 1, v2")
        e("v_lshl_add_u32 v12, v5, 3, v12")
        e("v_and_b32 v3, 3, v0")
        e("v_bfe_u32 v4, v0, 2, 2")
        e("v_mul_u32_u24 v4, 48, v4")
        e("v_add_u32 v4, s33, v4")
        e("v_cmp_eq_u32 vcc, 3, v3")
        e("s_mul_i32 s30, s26, 6912")
        e("s_cmp_eq_u32 s26, 0")
        e("s_cselect_b32 s31, 1, -1")
        e("s_mulk_i32 s31, 3456")
        e("v_cndmask_b32 v5, v3, 0, vcc")
        e("v_cndmask_b32 v6, 0, 1, vcc")
        e("v_add_u32 v4, s30, v4")
        e("v_lshl_add_u32 v160, v5, 4, v4")
        e("v_sub_u32 v6, v2, v6")
        e("v_mul_lo_u32 v5, v6, s31")
        e("v_add_u32 v160, v160, v5")
        e("v_cmp_gt_u32 vcc, 3, v6")
        e("s_add_u32 s36, s33, 10368")
        e("v_mov_b32 v13, s36")
        e("v_mov_b32 v14, 384")
        e("v_cndmask_b32 v160, v13, v160, vcc")
        e("v_cndmask_b32 v161, 0, v14, vcc")
        e("v_lshl_add_u32 v162, v3, 3, v4")
        e("v_add_u32 v162, 16, v162")
        e("v_add_u32 v6, -1, v2")
        e("v_mul_lo_u32 v5, v6, s31")
        e("v_add_u32 v162, v162, v5")
        e("v_cmp_gt_u32 vcc, 3, v6")
        e("s_mov_b32 s37, 1")
        e("s_mov_b32 s36, 3")
        e("v_cndmask_b32 v162, v13, v162, vcc")
        e("v_cndmask_b32 v163, 0, v14, vcc")
        e(f"v_mov_b32 v13, {FLAGS + 64 - 6144}")
        e(f"v_mov_b32 v14, {FLAGS + 128 - 6144}")
        e("v_mov_b32 v10, 1")
        if o.trwarm:
            e("v_mov_b32 v164, v160")
            e("v_mov_b32 v165, v162")
            e("s_mov_b32 s30, 0")
            self.stamp()
            self.lab("L_tr")
        else:
            e("s_waitcnt vmcnt(0)")
            self.stamp()
        for m in range(9):
            for t, (a, off) in enumerate([(160, 0), (160, 8), (162, 0)]):
                w = W(m, t)
                e(f"ds_read_b64_tr_b16 v[{w}:{w + 1}], v{a} offset:{off}")
                e(f"ds_read_b64_tr_b16 v[{w + 2}:{w + 3}], v{a} offset:{off + 192}")
            if m < 8:
                e("v_add_u32 v160, v160, v161")
                e("v_add_u32 v162, v162, v163")
            if 0 < m < 8 and o.trwait:
                e("s_waitcnt lgkmcnt(6)")
        if o.trwarm:
            e("s_cmp_lg_u32 s30, 0")
            e("s_cbranch_scc1 L_tr_done")
            e("s_mov_b32 s30, 1")
            e("v_mov_b32 v160, v164")
            e("v_mov_b32 v162, v165")
            if o.prof:
                e("s_waitcnt lgkmcnt(0)")
                self.stamp()
            e("s_waitcnt vmcnt(0) lgkmcnt(0)")
            self.stamp()
            e("s_branch L_tr")
            self.lab("L_tr_done")
        e("ds_write_b32 v8, v10")
        self.stamp()
        if o.nocomp:
            self.stamp_flush()
            self.lab("L_end")
            e("s_endpgm")
            return
        self.poll(9, 5, 2)
        self.stamp()

        def epilogue_ops(s, T):
            ops = []
            a0, a1, a2 = ACC(s, 0), ACC(s, 1), ACC(s, 2)
            ops.append(f"v_cvt_pk_bf16_f32 v{PK}, v{a0}, v{a0 + 1}")
            ops.append(f"v_cvt_pk_bf16_f32 v{PK + 1}, v{a0 + 2}, v{a0 + 3}")
            ops.append(f"v_cvt_pk_bf16_f32 v{PK + 2}, v{a1}, v{a1 + 1}")
            ops.append(f"v_cvt_pk_bf16_f32 v{PK + 3}, v{a1 + 2}, v{a1 + 3}")
            if o.wr == "128":
                ops.append(f"ds_write_b128 v13, v[{PK}:{PK + 3}] offset:{3072 * T}")
            elif o.wr == "64":
                ops.insert(2, f"ds_write_b64 v13, v[{PK}:{PK + 1}] offset:{3072 * T}")
                ops.append(f"ds_write_b64 v13, v[{PK + 2}:{PK + 3}] offset:{3072 * T + 8}")
            else:
                c = list(ops)
                ops.clear()
                for k in range(4):
                    ops.append(c[k])
                    ops.append(f"ds_write_b32 v13, v{PK + k} offset:{3072 * T + 4 * k}")
            ops.append(f"v_cvt_pk_bf16_f32 v{PK + 4}, v{a2}, v{a2 + 1}")
            ops.append(f"v_cvt_pk_bf16_f32 v{PK + 5}, v{a2 + 2}, v{a2 + 3}")
            if o.wr == "32":
                ops.insert(-1, f"ds_write_b32 v14, v{PK + 4} offset:{3072 * T}")
                ops.append(f"ds_write_b32 v14, v{PK + 5} offset:{3072 * T + 4}")
            else:
                ops.append(f"ds_write_b64 v14, v[{PK + 4}:{PK + 5}] offset:{3072 * T}")
            return ops

        q = []

        def ds(tag, s):
            e(s)
            q.append(tag)

        def wait_for(tag):
            idx = q.index(tag)
            n = len(q) - 1 - idx
            e(f"s_waitcnt lgkmcnt({n})")
            del q[: idx + 1]

        def bread(T, m, tagT):
            ds(("B", tagT, m), f"ds_read_b128 v[{B(m)}:{B(m) + 3}], v{BA(m)} offset:{3072 * T}")

        for m in range(8):
            bread(0, m, 0)
        wait_for(("B", 0, 0))
        q0 = list(q)
        self.lab("L_c_loop")
        if o.cstamp:
            self.stamp_loop(0)
        for T in range(3):
            s = T
            pend = epilogue_ops((T - 1) % 3, (T - 1) % 3)
            if T == 0:
                pend += ["ds_write_b32 v8, v10", "v_mov_b32 v13, v11", "v_mov_b32 v14, v12",
                         f"v_add_u32 v11, {PAIR}, v11", f"v_add_u32 v12, {PAIR}, v12", "v_add_u32 v10, 1, v10"]
            if T == 1:
                pend += ["FLAGREAD"]
            if T == 2:
                pend += ["s_add_u32 s37, s37, 1", "s_add_u32 s36, s36, 1", "s_cmp_lt_u32 s37, 7"]
            late = []

            def fill(n, m):
                while n > 0:
                    if late:
                        e(late.pop(0))
                        n -= 1
                        continue
                    if m < 1 or not pend:
                        return
                    op = pend[0]
                    cost = 2 if op.startswith("ds_write") else 1
                    if cost > n:
                        return
                    pend.pop(0)
                    n -= cost
                    if op == "FLAGREAD":
                        ds(("F",), "ds_read_b32 v5, v9")
                    elif op.startswith("ds_"):
                        ds(("W",), op)
                    else:
                        e(op)

            def mfma(m, t):
                a = ACC(s, t)
                cin = "0" if m == 0 else f"v[{a}:{a + 3}]"
                e(f"v_mfma_f32_16x16x32_bf16 v[{a}:{a + 3}], v[{W(m, t)}:{W(m, t) + 3}], v[{B(m)}:{B(m) + 3}], {cin}")

            for m in range(9):
                mfma(m, 0)
                if m == 0:
                    bread(T, 8, T)
                    if T == 2:
                        late.append(f"v_add_u32 v{BA(8)}, {PAIR}, v{BA(8)}")
                else:
                    bread((T + 1) % 3, m - 1, (T + 1) % 3)
                    if T == 1:
                        late.append(f"v_add_u32 v{BA(m - 1)}, {PAIR}, v{BA(m - 1)}")
                fill(1, m)
                mfma(m, 1)
                if T == 2 and m == 0:
                    if ("F",) in q:
                        wait_for(("F",))
                    e("v_cmp_gt_u32 vcc, s36, v5")
                else:
                    fill(2, m)
                mfma(m, 2)
                if T == 2 and m == 0:
                    e("s_cbranch_vccnz L_c_slow")
                    self.lab("L_c_ready")
                else:
                    fill(1, m)
                nxt = ("B", T, m + 1) if m < 8 else ("B", (T + 1) % 3, 0)
                if nxt in q:
                    wait_for(nxt)
            assert not pend and not late, (T, pend, late)
        assert [t for t in q if t[0] == "B"] == q0, (q, q0)
        if o.prof and o.cstamp:
            e("s_waitcnt lgkmcnt(0)")
            self.stamp_commit(0, 30)
            e("s_cmp_lt_u32 s37, 7")
        e("s_cbranch_scc1 L_c_loop")
        e("s_nop 4")
        for op in epilogue_ops(2, 2):
            e(op)
        e("ds_write_b32 v8, v10")
        self.stamp()
        self.stamp_flush()
        self.lab("L_end")
        e("s_endpgm")
        self.lab("L_c_slow")
        self.poll(9, 5, "s36")
        e("s_branch L_c_ready")

    def build(self):
        self.prologue()
        self.helper()
        self.compute()
        if self.o.drop:
            i = self.L.index("L_c_loop:")
            j = max(k for k, l in enumerate(self.L) if "s_cbranch_scc1 L_c_loop" in l)
            pats = self.o.drop.split(",")
            self.L = self.L[:i] + [l for l in self.L[i:j] if not any(l.strip().startswith(p) for p in pats)] + self.L[j:]
        return HEADER + "\n".join(self.L) + "\n" + FOOTER.format(vgpr=216, acc=216)


def main():
    p = argparse.ArgumentParser()
    p.add_argument("-o", default="-")
    p.add_argument("--prof", type=int, default=0)
    p.add_argument("--flip", type=int, default=1)
    p.add_argument("--win", type=int, default=12)
    p.add_argument("--barpair", type=int, default=1)
    p.add_argument("--ldflags", default="nt")
    p.add_argument("--wflags", default="")
    p.add_argument("--stflags", default="sc0 sc1 nt")
    p.add_argument("--prio_loader", type=int, default=0)
    p.add_argument("--prio_comp", type=int, default=0)
    p.add_argument("--waitall", type=int, default=0)
    p.add_argument("--nocomp", type=int, default=0)
    p.add_argument("--noload", type=int, default=0)
    p.add_argument("--cstamp", type=int, default=0)
    p.add_argument("--drop", default="")
    p.add_argument("--trwarm", type=int, default=0)
    p.add_argument("--trwait", type=int, default=0)
    p.add_argument("--wr", default="32")
    p.add_argument("--early", type=int, default=0)
    p.add_argument("--sleep", type=int, default=2)
    o = p.parse_args()
    s = Gen(o).build()
    if o.o == "-":
        sys.stdout.write(s)
    else:
        open(o.o, "w").write(s)


if __name__ == "__main__":
    main()
```

```python
import argparse
import sys

ROWB = 73728
XBYTES = 28311552
WBYTES = 41472
PITCH = 9728
PAIR = 19456
LDS_TOTAL = 163840
WSZ = 10752
FLAGS = LDS_TOTAL - 256
WREG = FLAGS - 4 * WSZ

HEADER = """; Kernarg layout for this problem (40 bytes, ptrs only, base s[0:1]):
;   offset  32: d_ws      workspace
; @launch grid=(256,1,1) block=(512,1,1) lds=163840
.amdgcn_target "amdgcn-amd-amdhsa--gfx950"
.text
.globl standalone__grouped__vision_kernel
.p2align 8
.type standalone__grouped__vision_kernel,@function
standalone__grouped__vision_kernel:
"""

FOOTER = """.section .rodata,"a"
.p2align 6
.amdhsa_kernel standalone__grouped__vision_kernel
  .amdhsa_next_free_vgpr {vgpr}
  .amdhsa_next_free_sgpr 102
  .amdhsa_accum_offset {acc}
  .amdhsa_group_segment_fixed_size 0
  .amdhsa_kernarg_size 40
  .amdhsa_user_sgpr_count 2
  .amdhsa_user_sgpr_kernarg_segment_ptr 1
  .amdhsa_system_sgpr_workgroup_id_x 1
.end_amdhsa_kernel
"""


class Gen:
    def __init__(self, o):
        self.o = o
        self.L = []
        self.nstamp = 0
        self.nlab = 0

    def e(self, s):
        self.L.append("    " + s)

    def lab(self, s):
        self.L.append(s + ":")

    def newlab(self, p):
        self.nlab += 1
        return f"L_{p}{self.nlab}"

    def stamp(self):
        if not self.o.prof:
            return
        k = self.nstamp
        self.nstamp += 1
        assert k < 24
        self.e(f"s_memtime s[{44 + 2 * k}:{45 + 2 * k}]")

    def stamp_reset(self, n):
        self.nstamp = n

    def stamp_loop(self, slot):
        if not self.o.prof:
            return
        r = 96 + 2 * slot
        self.e(f"s_memtime s[{r}:{r + 1}]")

    def stamp_commit(self, slot, base, ctr="s37"):
        if not self.o.prof:
            return
        r = 96 + 2 * slot
        self.e("s_mov_b32 s95, m0")
        self.e(f"s_add_u32 m0, {ctr}, {base}")
        self.e(f"v_writelane_b32 v215, s{r}, m0")
        self.e("s_mov_b32 m0, s95")

    def stamp_flush(self):
        if not self.o.prof:
            return
        self.e("s_waitcnt lgkmcnt(0)")
        self.e("s_load_dwordx2 s[40:41], s[0:1], 32")
        self.e("s_lshl_b32 s42, s2, 3")
        self.e("s_add_u32 s42, s42, s3")
        self.e("s_lshl_b32 s42, s42, 8")
        self.e("v_lshl_add_u32 v1, v0, 2, s42")
        for k in range(self.nstamp):
            self.e(f"v_writelane_b32 v215, s{44 + 2 * k}, {k}")
        self.e(f"s_mov_b32 s42, {self.nstamp}")
        self.e("v_writelane_b32 v215, s42, 63")
        self.e("s_getreg_b32 s42, hwreg(HW_REG_XCC_ID)")
        self.e("v_writelane_b32 v215, s42, 62")
        self.e("s_getreg_b32 s42, hwreg(HW_REG_HW_ID)")
        self.e("v_writelane_b32 v215, s42, 61")
        self.e("v_writelane_b32 v215, s38, 60")
        if self.o.early:
            self.e("v_writelane_b32 v215, s92, 55")
        self.e("s_memrealtime s[38:39]")
        self.e("s_waitcnt lgkmcnt(0)")
        self.e("v_writelane_b32 v215, s38, 59")
        self.e("global_store_dword v1, v215, s[40:41]")

    def diag_mark(self, name):
        if self.o.diag == name:
            self.e("s_memrealtime s[90:91]")

    def diag_end(self):
        o, e = self.o, self.e
        if not o.diag:
            return
        e("s_waitcnt vmcnt(0) lgkmcnt(0)")
        if o.diag == "end":
            e("s_memrealtime s[90:91]")
            e("s_waitcnt lgkmcnt(0)")
        if o.diag == "cyc":
            self.lab("L_dg")
            e("s_memtime s[40:41]")
            e("s_waitcnt lgkmcnt(0)")
            e("s_sub_u32 s40, s40, s92")
            e("s_cmp_lt_u32 s40, 80000")
            e("s_cbranch_scc1 L_dg")
            return
        if o.diag == "rt":
            e("s_movk_i32 s42, 4000")
        else:
            e("s_sub_u32 s42, s90, s38")
            e("s_mul_i32 s42, s42, 4")
            e("s_add_u32 s42, s42, 4000")
        self.lab("L_dg")
        e("s_memrealtime s[40:41]")
        e("s_waitcnt lgkmcnt(0)")
        e("s_sub_u32 s40, s40, s38")
        e("s_cmp_lt_u32 s40, s42")
        e("s_cbranch_scc1 L_dg")

    def poll(self, vaddr, vtmp, sneed, sleep=1):
        e = self.e
        l = self.newlab("poll")
        d = self.newlab("pdone")
        self.lab(l)
        e(f"ds_read_b32 v{vtmp}, v{vaddr}")
        e("s_waitcnt lgkmcnt(0)")
        e(f"v_cmp_gt_u32 vcc, {sneed}, v{vtmp}")
        e(f"s_cbranch_vccz {d}")
        if sleep:
            e(f"s_sleep {sleep}")
        e(f"s_branch {l}")
        self.lab(d)

    def prologue(self):
        e = self.e
        e("s_cmp_ge_u32 s2, 256")
        e("s_cbranch_scc1 L_end")
        e("s_load_dwordx4 s[4:7], s[0:1], 0")
        e("s_load_dwordx2 s[8:9], s[0:1], 16")
        if self.o.prof or self.o.diag:
            e("s_memrealtime s[38:39]")
        if self.o.diag == "cyc":
            e("s_memtime s[92:93]")
        self.stamp()
        if self.o.early:
            e("s_waitcnt lgkmcnt(0)")
            e("s_memtime s[92:93]")
        if self.o.prof:
            e("v_mov_b32 v215, 0")
        e("v_lshrrev_b32 v1, 6, v0")
        e("v_and_b32 v0, 63, v0")
        e(f"v_mov_b32 v3, {FLAGS}")
        e("v_readfirstlane_b32 s3, v1")
        e("v_xor_b32 v2, 4, v1")
        e("v_lshl_add_u32 v8, v2, 2, v3")
        e("v_mov_b32 v2, 0")
        e("ds_write_b32 v8, v2")
        e("v_and_b32 v2, 3, v0")
        e("v_lshl_add_u32 v9, v2, 2, v3")
        e("s_and_b32 s10, s2, 1")
        e("s_lshl_b32 s10, s10, 2")
        e("s_bfe_u32 s11, s2, 0x20003")
        e("s_add_u32 s10, s10, s11")
        e("s_bfe_u32 s11, s2, 0x20001")
        e("s_lshl_b32 s11, s11, 3")
        e("s_lshr_b32 s24, s2, 5")
        e("s_add_u32 s11, s11, s24")
        e("s_mul_i32 s24, s10, 9216")
        e("s_mul_i32 s25, s11, 12")
        if self.o.flip:
            e("s_and_b32 s26, s11, 1")
        else:
            e("s_and_b32 s26, s11, 0")
        e("s_cselect_b32 s27, -1, 1")
        e(f"s_mul_i32 s27, s27, {ROWB}")
        e("s_cmp_lt_u32 s3, 4")
        e("s_cbranch_scc1 L_compute")

    def helper(self):
        e, o = self.e, self.o
        self.lab("L_helper")
        if o.prio_loader:
            e(f"s_setprio {o.prio_loader}")
        e("s_and_b32 s30, s3, 1")
        e("s_bfe_u32 s29, s3, 0x10001")
        e("s_mul_i32 s28, s29, 80")
        e("s_mul_i32 s33, s29, 5120")
        e("s_add_u32 s36, s24, s33")
        e("v_lshrrev_b32 v1, 2, v0")
        e("v_add_u32 v1, s28, v1")
        for k in range(5):
            e(f"v_add_u32 v2, {16 * k + 2}, v1")
            e("v_mul_u32_u24 v2, 171, v2")
            e("v_bfe_u32 v2, v2, 11, 2")
            e("v_xor_b32 v2, v2, v0")
            e(f"v_lshl_add_u32 v{10 + k}, v2, 4, s36")
        e("v_add_u32 v14, 4096, v14")
        e("s_lshl_b32 s28, s29, 3")
        e("s_add_u32 s28, s28, s10")
        e("s_cmp_eq_u32 s28, 0")
        e("s_cselect_b32 s34, 16, 0")
        e("s_cmp_eq_u32 s28, 15")
        e("s_cselect_b32 s35, 16, 64")
        e("v_bfrev_b32 v3, 1")
        e("v_cmp_gt_u32 vcc, s34, v0")
        e("s_sub_u32 s43, s29, 1")
        e("s_cmp_eq_u32 s26, 0")
        e("v_cndmask_b32 v10, v10, v3, vcc")
        e("v_cmp_le_u32 vcc, s35, v0")
        e("s_cselect_b32 s31, -1, 12")
        e("s_add_i32 s31, s31, s25")
        e("v_cndmask_b32 v14, v14, v3, vcc")
        e(f"s_mul_i32 s31, s31, {ROWB}")
        e("s_mul_i32 s32, s30, s27")
        e("s_add_i32 s31, s31, s32")
        e("s_lshl_b32 s32, s27, 1")
        e(f"s_mul_i32 s28, s30, {PITCH}")
        e("s_add_u32 s33, s33, s28")
        e("s_mov_b32 s37, 0")
        e("s_waitcnt lgkmcnt(0)")
        e("s_sub_u32 s12, s4, 256")
        e("s_subb_u32 s13, s5, 0")
        e(f"s_mov_b32 s14, {XBYTES + 256}")
        e("s_mov_b32 s15, 0x20000")
        self.stamp()
        self.diag_mark("karg")
        fl = o.ldflags
        Wn = o.win
        kstar = (Wn - 1) % 5
        lag = (Wn - 1) // 5
        if o.noload:
            e("s_barrier")
            e("v_mov_b32 v2, 64")
            e("ds_write_b32 v8, v2")
            if o.noload == 1:
                self.stamp_flush()
                e("s_endpgm")
            else:
                e("s_branch L_ld_tail")
        self.lab("L_ld_loop")
        e("s_cmp_lt_i32 s31, 0")
        e("s_cselect_b32 s34, 0x40000000, s31")
        e("s_mov_b32 m0, s33")
        e("s_add_i32 s31, s31, s32")
        e(f"s_sub_i32 s28, s37, {lag}")
        e("s_max_i32 s28, s28, 0")
        e("v_mov_b32 v2, s28")
        for k in range(5):
            if k == 4:
                e("s_add_u32 m0, s33, 4096")
            e(f"s_waitcnt vmcnt({Wn - 1})")
            if k == kstar:
                e("ds_write_b32 v8, v2")
                if o.prof:
                    self.stamp_loop(0)
                    e("s_waitcnt lgkmcnt(0)")
                    self.stamp_commit(0, 32 - lag)
            if k == 4:
                e("s_mov_b32 exec_hi, s43")
                e(f"buffer_load_dwordx4 v14, s[12:15], s34 offen {fl} lds")
                e("s_mov_b32 exec_hi, -1")
            else:
                e(f"buffer_load_dwordx4 v{10 + k}, s[12:15], s34 offen offset:{1024 * k} {fl} lds")
        if o.prof:
            self.stamp_loop(1)
            e("s_waitcnt lgkmcnt(0)")
            self.stamp_commit(1, 24)
        e(f"s_add_u32 s33, s33, {PAIR}")
        e("s_add_u32 s37, s37, 1")
        e(f"s_cmp_lg_u32 s37, {o.barpair}")
        e("s_cbranch_scc1 L_ld_nobar")
        e("s_barrier")
        self.lab("L_ld_nobar")
        e("s_cmp_lt_u32 s37, 6")
        e("s_cbranch_scc1 L_ld_loop")
        e("s_cmp_eq_u32 s37, 7")
        e("s_cbranch_scc1 L_ld_tail")
        e("v_add_u32 v4, 16, v9")
        self.diag_mark("p5iss")
        self.poll(4, 5, 1)
        e("s_branch L_ld_loop")
        self.lab("L_ld_tail")
        e("v_lshrrev_b32 v1, 2, v0")
        e("s_mul_i32 s28, s29, 80")
        e("v_add_u32 v1, s28, v1")
        e("v_add_u32 v6, 4, v0")
        e(f"s_mul_i32 s28, s30, {PITCH}")
        e("s_mul_i32 s33, s29, 5120")
        e("s_add_u32 s28, s28, s33")
        for k in range(5):
            e(f"v_add_u32 v2, {16 * k + 3}, v1")
            e("v_mul_u32_u24 v2, 171, v2")
            e("v_bfe_u32 v2, v2, 11, 2")
            e("v_xor_b32 v2, v2, v6")
            e(f"v_lshl_add_u32 v{10 + k}, v2, 4, s28")
        e("v_lshlrev_b32 v15, 4, v0")
        e("s_cmp_eq_u32 s26, 0")
        e("s_cselect_b32 s31, 0, 11")
        e("s_add_i32 s31, s31, s25")
        e(f"s_mul_i32 s31, s31, {ROWB}")
        e("s_mul_i32 s28, s30, s27")
        e("s_add_i32 s31, s31, s28")
        e("s_add_i32 s31, s31, s36")
        e("s_mov_b32 s20, s8")
        e("s_mov_b32 s21, s9")
        e(f"s_mov_b32 s22, {XBYTES}")
        e("s_mov_b32 s23, 0x20000")
        e("v_add_u32 v4, 16, v9")
        for v in range(7 - lag, 8):
            val = v if v < 7 else 64
            e(f"v_mov_b32 v2, {val}")
            e(f"s_waitcnt vmcnt({35 - 5 * v})")
            e("ds_write_b32 v8, v2")
            self.stamp()
        self.diag_mark("ldone")
        if o.waitall:
            self.poll(9, 5, 64)
        e("s_mov_b32 s37, 2")
        self.lab("L_st_loop")
        if not o.nocomp:
            self.poll(4, 5, "s37", sleep=o.sleep)
        self.stamp_loop(0)
        for k in range(4):
            e(f"ds_read_b128 v[{16 + 4 * k}:{19 + 4 * k}], v{10 + k} offset:{1024 * k}")
        e("s_add_u32 s34, s31, 4096")
        e("s_cmp_lg_u32 s29, 0")
        e("s_cbranch_scc1 L_st_skip")
        e("ds_read_b128 v[32:35], v14 offset:4096")
        e("s_waitcnt lgkmcnt(0)")
        e(f"buffer_store_dwordx4 v[32:35], v15, s[20:23], s34 offen {o.stflags}")
        self.lab("L_st_skip")
        for k in range(4):
            e(f"s_waitcnt lgkmcnt({3 - k})")
            e(f"buffer_store_dwordx4 v[{16 + 4 * k}:{19 + 4 * k}], v15, s[20:23], s31 offen offset:{1024 * k} {o.stflags}")
            e(f"v_add_u32 v{10 + k}, {PAIR}, v{10 + k}")
        e(f"v_add_u32 v14, {PAIR}, v14")
        e("s_add_i32 s31, s31, s32")
        if o.prof:
            self.stamp_loop(1)
            e("s_waitcnt lgkmcnt(0)")
            self.stamp_commit(0, 38)
            self.stamp_commit(1, 46)
        e("s_add_u32 s37, s37, 1")
        e("s_cmp_lt_u32 s37, 8")
        e("s_cbranch_scc1 L_st_loop")
        self.diag_mark("stiss")
        if o.prof:
            e("s_waitcnt vmcnt(0)")
            self.stamp()
        self.stamp_flush()
        self.diag_end()
        e("s_endpgm")

    def compute(self):
        e, o = self.e, self.o
        W = lambda m, t: 16 + 4 * (3 * m + t)
        B = lambda m: 124 + 4 * m
        ACC = lambda s, t: 160 + 12 * s + 4 * t
        PK = 196
        BA = lambda m: 202 + m
        self.lab("L_compute")
        self.stamp_reset(1)
        if o.prio_comp:
            e(f"s_setprio {o.prio_comp}")
        e("s_mul_i32 s28, s3, 1152")
        e("v_lshl_add_u32 v1, v0, 4, s28")
        e("s_movk_i32 s29, 3456")
        for i in range(1, 11):
            e(f"v_add_u32 v2, {64 * i}, v0")
            e("v_mul_u32_u24 v2, 911, v2")
            e("v_lshrrev_b32 v2, 16, v2")
            e(f"v_mad_u32_u24 v{124 + i}, v2, s29, v1")
        e(f"s_mul_i32 s33, s3, {WSZ}")
        e(f"s_add_u32 s33, s33, {WREG}")
        e("s_movk_i32 s34, 4096")
        e("s_movk_i32 s35, 8192")
        e("s_waitcnt lgkmcnt(0)")
        e("s_barrier")
        e("s_mov_b32 s16, s6")
        e("s_mov_b32 s17, s7")
        e(f"s_mov_b32 s18, {WBYTES}")
        e("s_mov_b32 s19, 0x20000")
        for i in range(11):
            if i % 4 == 0:
                e(f"s_add_u32 m0, s33, {4096 * (i // 4)}")
                e("s_nop 0")
            if i == 10:
                e("s_mov_b32 exec_hi, 0")
            so = ["0", "s34", "s35"][i // 4]
            va = 1 if i == 0 else 124 + i
            e(f"buffer_load_dwordx4 v{va}, s[16:19], {so} offen offset:{1024 * (i % 4)} {o.wflags} lds")
        e("s_mov_b32 exec_hi, -1")
        self.stamp()
        e("v_and_b32 v1, 15, v0")
        e("v_lshrrev_b32 v2, 4, v0")
        e("s_mul_i32 s28, s3, 3")
        e(f"s_movk_i32 s29, {PITCH}")
        e("v_mul_u32_u24 v3, 192, v1")
        e("v_add_u32 v3, 64, v3")
        e("v_mad_u32_u24 v7, v2, s29, v3")
        for dx in range(3):
            e(f"v_add_u32 v4, {dx + 1}, v1")
            e(f"v_bfe_u32 v{4 if dx else 15}, v4, 2, 2")
            if dx:
                e(f"v_add_u32 v7, 192, v7")
            for cc in range(3):
                e(f"s_add_u32 s30, s28, {cc}")
                e(f"v_xor_b32 v6, s30, v{4 if dx else 15}")
                e(f"v_lshl_add_u32 v{BA(3 * dx + cc)}, v6, 4, v7")
        e("v_cmp_eq_u32 vcc, 3, v2")
        e(f"v_add_u32 v7, {PITCH}, v3")
        e("v_lshrrev_b32 v10, 1, v2")
        e("v_cndmask_b32 v5, v2, 0, vcc")
        e("v_cndmask_b32 v6, v3, v7, vcc")
        e("v_add_u32 v5, s28, v5")
        e("v_xor_b32 v5, v5, v15")
        e("v_lshl_add_u32 v11, v5, 4, v6")
        e("v_add3_u32 v5, v10, s28, 1")
        e("v_xor_b32 v5, v5, v15")
        e("v_lshl_add_u32 v12, v5, 4, v7")
        e("v_and_b32 v5, 1, v2")
        e("v_lshl_add_u32 v12, v5, 3, v12")
        e("v_and_b32 v3, 3, v0")
        e("v_bfe_u32 v4, v0, 2, 2")
        e("v_mul_u32_u24 v4, 48, v4")
        e("v_add_u32 v4, s33, v4")
        e("v_cmp_eq_u32 vcc, 3, v3")
        e("s_mul_i32 s30, s26, 6912")
        e("s_cmp_eq_u32 s26, 0")
        e("s_cselect_b32 s31, 1, -1")
        e("s_mulk_i32 s31, 3456")
        e("v_cndmask_b32 v5, v3, 0, vcc")
        e("v_cndmask_b32 v6, 0, 1, vcc")
        e("v_add_u32 v4, s30, v4")
        e("v_lshl_add_u32 v160, v5, 4, v4")
        e("v_sub_u32 v6, v2, v6")
        e("v_mul_lo_u32 v5, v6, s31")
        e("v_add_u32 v160, v160, v5")
        e("v_cmp_gt_u32 vcc, 3, v6")
        e("s_add_u32 s36, s33, 10368")
        e("v_mov_b32 v13, s36")
        e("v_mov_b32 v14, 384")
        e("v_cndmask_b32 v160, v13, v160, vcc")
        e("v_cndmask_b32 v161, 0, v14, vcc")
        e("v_lshl_add_u32 v162, v3, 3, v4")
        e("v_add_u32 v162, 16, v162")
        e("v_add_u32 v6, -1, v2")
        e("v_mul_lo_u32 v5, v6, s31")
        e("v_add_u32 v162, v162, v5")
        e("v_cmp_gt_u32 vcc, 3, v6")
        e("s_mov_b32 s37, 1")
        e("s_mov_b32 s36, 3")
        e("v_cndmask_b32 v162, v13, v162, vcc")
        e("v_cndmask_b32 v163, 0, v14, vcc")
        e(f"v_mov_b32 v13, {FLAGS + 64 - 6144}")
        e(f"v_mov_b32 v14, {FLAGS + 128 - 6144}")
        e("v_mov_b32 v10, 1")
        if o.trwarm:
            e("v_mov_b32 v164, v160")
            e("v_mov_b32 v165, v162")
            e("s_mov_b32 s30, 0")
            self.stamp()
            self.lab("L_tr")
        else:
            e("s_waitcnt vmcnt(0)")
            self.stamp()
        for m in range(9):
            for t, (a, off) in enumerate([(160, 0), (160, 8), (162, 0)]):
                w = W(m, t)
                e(f"ds_read_b64_tr_b16 v[{w}:{w + 1}], v{a} offset:{off}")
                e(f"ds_read_b64_tr_b16 v[{w + 2}:{w + 3}], v{a} offset:{off + 192}")
            if m < 8:
                e("v_add_u32 v160, v160, v161")
                e("v_add_u32 v162, v162, v163")
            if 0 < m < 8 and o.trwait:
                e("s_waitcnt lgkmcnt(6)")
        if o.trwarm:
            e("s_cmp_lg_u32 s30, 0")
            e("s_cbranch_scc1 L_tr_done")
            e("s_mov_b32 s30, 1")
            e("v_mov_b32 v160, v164")
            e("v_mov_b32 v162, v165")
            if o.prof:
                e("s_waitcnt lgkmcnt(0)")
                self.stamp()
            e("s_waitcnt vmcnt(0) lgkmcnt(0)")
            self.stamp()
            e("s_branch L_tr")
            self.lab("L_tr_done")
        e("ds_write_b32 v8, v10")
        self.stamp()
        if o.nocomp:
            self.stamp_flush()
            self.lab("L_end")
            e("s_endpgm")
            return
        self.poll(9, 5, 2)
        self.stamp()

        def epilogue_ops(s, T):
            ops = []
            a0, a1, a2 = ACC(s, 0), ACC(s, 1), ACC(s, 2)
            ops.append(f"v_cvt_pk_bf16_f32 v{PK}, v{a0}, v{a0 + 1}")
            ops.append(f"v_cvt_pk_bf16_f32 v{PK + 1}, v{a0 + 2}, v{a0 + 3}")
            ops.append(f"v_cvt_pk_bf16_f32 v{PK + 2}, v{a1}, v{a1 + 1}")
            ops.append(f"v_cvt_pk_bf16_f32 v{PK + 3}, v{a1 + 2}, v{a1 + 3}")
            if o.wr == "128":
                ops.append(f"ds_write_b128 v13, v[{PK}:{PK + 3}] offset:{3072 * T}")
            elif o.wr == "64":
                ops.insert(2, f"ds_write_b64 v13, v[{PK}:{PK + 1}] offset:{3072 * T}")
                ops.append(f"ds_write_b64 v13, v[{PK + 2}:{PK + 3}] offset:{3072 * T + 8}")
            else:
                c = list(ops)
                ops.clear()
                for k in range(4):
                    ops.append(c[k])
                    ops.append(f"ds_write_b32 v13, v{PK + k} offset:{3072 * T + 4 * k}")
            ops.append(f"v_cvt_pk_bf16_f32 v{PK + 4}, v{a2}, v{a2 + 1}")
            ops.append(f"v_cvt_pk_bf16_f32 v{PK + 5}, v{a2 + 2}, v{a2 + 3}")
            if o.wr == "32":
                ops.insert(-1, f"ds_write_b32 v14, v{PK + 4} offset:{3072 * T}")
                ops.append(f"ds_write_b32 v14, v{PK + 5} offset:{3072 * T + 4}")
            else:
                ops.append(f"ds_write_b64 v14, v[{PK + 4}:{PK + 5}] offset:{3072 * T}")
            return ops

        q = []

        def ds(tag, s):
            e(s)
            q.append(tag)

        def wait_for(tag):
            idx = q.index(tag)
            n = len(q) - 1 - idx
            e(f"s_waitcnt lgkmcnt({n})")
            del q[: idx + 1]

        def bread(T, m, tagT):
            ds(("B", tagT, m), f"ds_read_b128 v[{B(m)}:{B(m) + 3}], v{BA(m)} offset:{3072 * T}")

        for m in range(8):
            bread(0, m, 0)
        wait_for(("B", 0, 0))
        q0 = list(q)
        self.lab("L_c_loop")
        if o.cstamp:
            self.stamp_loop(0)
        for T in range(3):
            s = T
            pend = epilogue_ops((T - 1) % 3, (T - 1) % 3)
            if T == 0:
                pend += ["ds_write_b32 v8, v10", "v_mov_b32 v13, v11", "v_mov_b32 v14, v12",
                         f"v_add_u32 v11, {PAIR}, v11", f"v_add_u32 v12, {PAIR}, v12", "v_add_u32 v10, 1, v10"]
            if T == 1:
                pend += ["FLAGREAD"]
            if T == 2:
                pend += ["s_add_u32 s37, s37, 1", "s_add_u32 s36, s36, 1", "s_cmp_lt_u32 s37, 7"]
            late = []

            def fill(n, m):
                while n > 0:
                    if late:
                        e(late.pop(0))
                        n -= 1
                        continue
                    if m < 1 or not pend:
                        return
                    op = pend[0]
                    cost = 2 if op.startswith("ds_write") else 1
                    if cost > n:
                        return
                    pend.pop(0)
                    n -= cost
                    if op == "FLAGREAD":
                        ds(("F",), "ds_read_b32 v5, v9")
                    elif op.startswith("ds_"):
                        ds(("W",), op)
                    else:
                        e(op)

            def mfma(m, t):
                a = ACC(s, t)
                cin = "0" if m == 0 else f"v[{a}:{a + 3}]"
                e(f"v_mfma_f32_16x16x32_bf16 v[{a}:{a + 3}], v[{W(m, t)}:{W(m, t) + 3}], v[{B(m)}:{B(m) + 3}], {cin}")

            for m in range(9):
                mfma(m, 0)
                if m == 0:
                    bread(T, 8, T)
                    if T == 2:
                        late.append(f"v_add_u32 v{BA(8)}, {PAIR}, v{BA(8)}")
                else:
                    bread((T + 1) % 3, m - 1, (T + 1) % 3)
                    if T == 1:
                        late.append(f"v_add_u32 v{BA(m - 1)}, {PAIR}, v{BA(m - 1)}")
                fill(1, m)
                mfma(m, 1)
                if T == 2 and m == 0:
                    if ("F",) in q:
                        wait_for(("F",))
                    e("v_cmp_gt_u32 vcc, s36, v5")
                else:
                    fill(2, m)
                mfma(m, 2)
                if T == 2 and m == 0:
                    e("s_cbranch_vccnz L_c_slow")
                    self.lab("L_c_ready")
                else:
                    fill(1, m)
                nxt = ("B", T, m + 1) if m < 8 else ("B", (T + 1) % 3, 0)
                if nxt in q:
                    wait_for(nxt)
            assert not pend and not late, (T, pend, late)
        assert [t for t in q if t[0] == "B"] == q0, (q, q0)
        if o.prof and o.cstamp:
            e("s_waitcnt lgkmcnt(0)")
            self.stamp_commit(0, 30)
            e("s_cmp_lt_u32 s37, 7")
        e("s_cbranch_scc1 L_c_loop")
        e("s_nop 4")
        for op in epilogue_ops(2, 2):
            e(op)
        e("ds_write_b32 v8, v10")
        self.stamp()
        self.stamp_flush()
        self.lab("L_end")
        e("s_endpgm")
        self.lab("L_c_slow")
        self.poll(9, 5, "s36")
        e("s_branch L_c_ready")

    def build(self):
        self.prologue()
        self.helper()
        self.compute()
        if self.o.drop:
            i = self.L.index("L_c_loop:")
            j = max(k for k, l in enumerate(self.L) if "s_cbranch_scc1 L_c_loop" in l)
            pats = self.o.drop.split(",")
            self.L = self.L[:i] + [l for l in self.L[i:j] if not any(l.strip().startswith(p) for p in pats)] + self.L[j:]
        return HEADER + "\n".join(self.L) + "\n" + FOOTER.format(vgpr=216, acc=216)


def main():
    p = argparse.ArgumentParser()
    p.add_argument("-o", default="-")
    p.add_argument("--prof", type=int, default=0)
    p.add_argument("--flip", type=int, default=1)
    p.add_argument("--win", type=int, default=12)
    p.add_argument("--barpair", type=int, default=1)
    p.add_argument("--ldflags", default="nt")
    p.add_argument("--wflags", default="")
    p.add_argument("--stflags", default="sc0 sc1 nt")
    p.add_argument("--prio_loader", type=int, default=0)
    p.add_argument("--prio_comp", type=int, default=0)
    p.add_argument("--waitall", type=int, default=0)
    p.add_argument("--nocomp", type=int, default=0)
    p.add_argument("--noload", type=int, default=0)
    p.add_argument("--cstamp", type=int, default=0)
    p.add_argument("--drop", default="")
    p.add_argument("--trwarm", type=int, default=0)
    p.add_argument("--trwait", type=int, default=0)
    p.add_argument("--wr", default="32")
    p.add_argument("--early", type=int, default=0)
    p.add_argument("--diag", default="")
    p.add_argument("--sleep", type=int, default=2)
    o = p.parse_args()
    s = Gen(o).build()
    if o.o == "-":
        sys.stdout.write(s)
    else:
        open(o.o, "w").write(s)


if __name__ == "__main__":
    main()
```

```python
import argparse
import re
import sys

ROWB = 73728
XBYTES = 28311552
WBYTES = 41472
P = 3584
STRIP = 14 * P
FREE = 3 * STRIP
LDS_TOTAL = 163840
FLAGS = LDS_TOTAL - 256
WREG = 2 * STRIP
WSZ = 12288

HEADER = """; Kernarg layout for this problem (40 bytes, ptrs only, base s[0:1]):
; @launch grid=(256,1,1) block=(512,1,1) lds=163840
.amdgcn_target "amdgcn-amd-amdhsa--gfx950"
.text
.globl standalone__grouped__vision_kernel
.p2align 8
.type standalone__grouped__vision_kernel,@function
standalone__grouped__vision_kernel:
"""

FOOTER = """.section .rodata,"a"
.p2align 6
.amdhsa_kernel standalone__grouped__vision_kernel
  .amdhsa_next_free_vgpr {vgpr}
  .amdhsa_next_free_sgpr 102
  .amdhsa_accum_offset {acc}
  .amdhsa_group_segment_fixed_size 0
  .amdhsa_kernarg_size 40
  .amdhsa_user_sgpr_count 2
  .amdhsa_user_sgpr_kernarg_segment_ptr 1
  .amdhsa_system_sgpr_workgroup_id_x 1
.end_amdhsa_kernel
"""

PV = 183


class Gen:
    def __init__(self, o):
        self.o = o
        self.L = []
        self.nstamp = 0
        self.nlab = 0

    def e(self, s):
        self.L.append("    " + s)

    def lab(self, s):
        self.L.append(s + ":")

    def newlab(self, p):
        self.nlab += 1
        return f"L_{p}{self.nlab}"

    def stamp(self):
        if not self.o.prof:
            return
        k = self.nstamp
        self.nstamp += 1
        assert k < 22
        self.e(f"s_memtime s[{46 + 2 * k}:{47 + 2 * k}]")

    def stamp_now(self, base, ctr, real=False):
        if not self.o.prof:
            return
        self.e("s_memrealtime s[96:97]" if real else "s_memtime s[96:97]")
        self.e("s_waitcnt lgkmcnt(0)")
        self.e("s_mov_b32 s95, m0")
        if isinstance(ctr, str):
            self.e(f"s_add_u32 m0, {ctr}, {base}")
        else:
            self.e(f"s_mov_b32 m0, {base + ctr}")
        self.e(f"v_writelane_b32 v{PV}, s96, m0")
        self.e("s_mov_b32 m0, s95")

    def stamp_flush(self):
        if not self.o.prof:
            return
        e = self.e
        e("s_mov_b64 exec, -1")
        e("s_waitcnt lgkmcnt(0)")
        e("s_load_dwordx2 s[40:41], s[0:1], 32")
        e("s_lshl_b32 s42, s2, 3")
        e("s_add_u32 s42, s42, s3")
        e("s_lshl_b32 s42, s42, 8")
        e("v_lshl_add_u32 v1, v0, 2, s42")
        for k in range(self.nstamp):
            e(f"v_writelane_b32 v{PV}, s{46 + 2 * k}, {k}")
        e(f"s_mov_b32 s42, {self.nstamp}")
        e(f"v_writelane_b32 v{PV}, s42, 63")
        e("s_getreg_b32 s42, hwreg(HW_REG_XCC_ID)")
        e(f"v_writelane_b32 v{PV}, s42, 62")
        e(f"v_writelane_b32 v{PV}, s92, 60")
        e("s_memrealtime s[92:93]")
        e("s_waitcnt lgkmcnt(0)")
        e(f"v_writelane_b32 v{PV}, s92, 59")
        e(f"global_store_dword v1, v{PV}, s[40:41]")

    def diag_mark(self, name):
        if self.o.diag == name:
            self.e("s_memrealtime s[90:91]")

    def diag_end(self):
        o, e = self.o, self.e
        if not o.diag:
            return
        e("s_waitcnt vmcnt(0) lgkmcnt(0)")
        if o.diag == "end":
            e("s_memrealtime s[90:91]")
            e("s_waitcnt lgkmcnt(0)")
        e("s_sub_u32 s42, s90, s92")
        e("s_mul_i32 s42, s42, 4")
        e("s_add_u32 s42, s42, 4000")
        self.lab("L_dg")
        e("s_memrealtime s[40:41]")
        e("s_waitcnt lgkmcnt(0)")
        e("s_sub_u32 s40, s40, s92")
        e("s_cmp_lt_u32 s40, s42")
        e("s_cbranch_scc1 L_dg")

    def poll(self, vaddr, vtmp, sneed, sleep=1):
        e = self.e
        l = self.newlab("poll")
        d = self.newlab("pdone")
        self.lab(l)
        e(f"ds_read_b32 v{vtmp}, v{vaddr}")
        e("s_waitcnt lgkmcnt(0)")
        e(f"v_cmp_gt_i32 vcc, {sneed}, v{vtmp}")
        e(f"s_cbranch_vccz {d}")
        if sleep:
            e(f"s_sleep {sleep}")
        e(f"s_branch {l}")
        self.lab(d)

    def prologue(self):
        e = self.e
        e("s_cmp_ge_u32 s2, 256")
        e("s_cbranch_scc1 L_end")
        e("s_load_dwordx4 s[4:7], s[0:1], 0")
        e("s_load_dwordx2 s[8:9], s[0:1], 16")
        if self.o.prof or self.o.diag:
            e("s_memrealtime s[92:93]")
        self.stamp()
        if self.o.prof:
            e(f"v_mov_b32 v{PV}, 0")
        e("v_lshrrev_b32 v1, 6, v0")
        e("v_and_b32 v0, 63, v0")
        e(f"v_mov_b32 v3, {FLAGS}")
        e("v_readfirstlane_b32 s3, v1")
        e("v_xor_b32 v2, 4, v1")
        e("v_lshl_add_u32 v8, v2, 2, v3")
        e("v_mov_b32 v2, 0")
        e("ds_write_b32 v8, v2")
        e("v_and_b32 v2, 3, v0")
        e("v_lshl_add_u32 v9, v2, 2, v3")
        e("s_bfe_u32 s26, s2, 0x10005")
        e("s_cmp_lt_u32 s3, 4")
        e("s_cbranch_scc1 L_compute")

    def helper(self):
        e, o = self.e, self.o
        self.lab("L_helper")
        if o.prio_loader:
            e(f"s_setprio {o.prio_loader}")
        Wn = o.win
        assert Wn % 2 == 1
        e("s_and_b32 s10, s2, 1")
        e("s_lshl_b32 s10, s10, 2")
        e("s_bfe_u32 s11, s2, 0x20003")
        e("s_add_u32 s10, s10, s11")
        e("s_bfe_u32 s11, s2, 0x20001")
        e("s_lshl_b32 s11, s11, 3")
        e("s_lshr_b32 s24, s2, 5")
        e("s_add_u32 s11, s11, s24")
        e("s_mul_i32 s25, s11, 12")
        e("s_and_b32 s30, s3, 3")
        e("s_mul_i32 s28, s30, 14")
        e("s_add_u32 s28, s28, 2")
        e("v_lshrrev_b32 v1, 2, v0")
        e("v_add_u32 v2, s28, v1")
        e("v_mul_u32_u24 v2, 171, v2")
        e("v_bfe_u32 v2, v2, 11, 2")
        e("v_xor_b32 v2, v2, v0")
        e("s_mul_i32 s33, s30, 896")
        e("v_lshl_add_u32 v10, v2, 4, s33")
        e("s_cmp_eq_u32 s26, 0")
        e("s_cselect_b32 s27, 1, -1")
        e("s_cselect_b32 s29, -1, 12")
        e(f"s_mul_i32 s27, s27, {ROWB}")
        e("s_add_i32 s29, s29, s25")
        e(f"s_mul_i32 s29, s29, {ROWB}")
        e("s_mul_i32 s24, s10, 9216")
        if o.hflip:
            e("s_and_b32 s28, s10, 1")
        else:
            e("s_and_b32 s28, s10, 0")
        e("s_cselect_b32 s35, -1, 1")
        e("s_mulk_i32 s35, 3072")
        e("s_mulk_i32 s28, 6144")
        e("s_add_u32 s24, s24, s28")
        e("s_mov_b32 s36, s24")
        e("s_cmp_eq_u32 s30, 3")
        e("s_cselect_b32 s28, 40, 0")
        e("s_cselect_b32 s43, 70656, -1")
        e("v_subrev_u32 v2, s28, v0")
        e("s_cmp_eq_u32 s30, 0")
        e("v_cmp_gt_u32 vcc, 16, v2")
        e("s_cselect_b32 s43, 0, s43")
        e("v_bfrev_b32 v3, 1")
        e(f"v_mov_b32 v6, {-(Wn - 1)}")
        e("v_cndmask_b32 v11, v10, v3, vcc")
        e("s_mov_b32 s37, 0")
        if o.eflag:
            e("v_mov_b32 v7, 0")
        e("s_mov_b32 exec_hi, 0xffffff")
        e("s_waitcnt lgkmcnt(0)")
        e("s_sub_u32 s12, s4, 256")
        e("s_subb_u32 s13, s5, 0")
        e(f"s_mov_b32 s14, {XBYTES + 256}")
        e("s_mov_b32 s15, 0x20000")
        self.stamp()
        self.diag_mark("karg")
        fl = o.ldflags
        if o.noload:
            e("s_barrier")
            e("v_mov_b32 v2, 64")
            e("ds_write_b32 v8, v2")
            self.stamp_flush()
            e("s_endpgm")
        self.lab("L_strip")
        e("s_cmp_eq_u32 s36, s43")
        e("s_cselect_b64 s[38:39], -1, 0")
        e("s_mov_b32 s31, s29")
        e("s_mov_b32 s32, 0")
        e("v_cndmask_b32 v12, v10, v11, s[38:39]")
        self.lab("L_ld_loop")
        e("s_add_u32 s34, s31, s36")
        e("s_cmp_lt_i32 s31, 0")
        e("s_cselect_b32 s34, 0x40000000, s34")
        e("s_mov_b32 m0, s33")
        e("s_add_i32 s31, s31, s27")
        e(f"s_waitcnt vmcnt({Wn - 1})")
        e("ds_write_b32 v8, v7" if o.eflag else "ds_write_b32 v8, v6")
        e(f"buffer_load_dwordx4 v12, s[12:15], s34 offen {fl} lds")
        e("s_add_u32 s34, s31, s36")
        e(f"s_add_u32 m0, s33, {P}")
        e("s_add_i32 s31, s31, s27")
        e(f"s_waitcnt vmcnt({Wn - 1})")
        e(f"buffer_load_dwordx4 v12, s[12:15], s34 offen {fl} lds")
        e("v_add_u32 v6, 2, v6")
        if o.eflag:
            e("v_max_i32 v7, v7, v6")
        e(f"s_add_u32 s33, s33, {2 * P}")
        e("s_add_u32 s32, s32, 1")
        if o.prof and not o.cstamp:
            e("s_mul_i32 s94, s37, 7")
            e("s_add_u32 s94, s94, s32")
            self.stamp_now(23, "s94")
        e(f"s_cmp_lg_u32 s32, {(o.barpair - 1) % 7 + 1}")
        e("s_cbranch_scc1 L_ld_nobar")
        e(f"s_cmp_lg_u32 s37, {(o.barpair - 1) // 7}")
        e("s_cbranch_scc1 L_ld_nobar")
        e("s_barrier")
        if o.eflag:
            e("v_mov_b32 v2, 4")
            e(f"s_waitcnt vmcnt({2 * o.barpair - 4})")
            e("ds_write_b32 v8, v2")
            e("v_max_i32 v7, 4, v6")
        self.lab("L_ld_nobar")
        e("s_cmp_lt_u32 s32, 7")
        e("s_cbranch_scc1 L_ld_loop")
        e("s_add_u32 s36, s36, s35")
        e("s_add_u32 s37, s37, 1")
        e("s_cmp_lt_u32 s37, 2")
        e("s_cbranch_scc1 L_strip")
        e("s_cmp_eq_u32 s37, 3")
        e("s_cbranch_scc1 L_ld_tail")
        e("v_add_u32 v4, 16, v9")
        self.poll(4, 5, 1)
        e("s_branch L_strip")
        self.lab("L_ld_tail")
        e("s_mul_i32 s28, s30, 12")
        e("s_add_u32 s28, s28, 3")
        e("v_add_u32 v2, s28, v1")
        e("v_mul_u32_u24 v2, 171, v2")
        e("v_bfe_u32 v2, v2, 11, 2")
        e("v_xor_b32 v2, v2, v0")
        e("s_mul_i32 s33, s30, 768")
        e("s_add_u32 s28, s33, 64")
        e("v_lshl_add_u32 v10, v2, 4, s28")
        e("v_lshl_add_u32 v11, v0, 4, s33")
        e("s_cmp_eq_u32 s26, 0")
        e("s_cselect_b32 s29, 0, 11")
        e("s_add_i32 s29, s29, s25")
        e(f"s_mul_i32 s29, s29, {ROWB}")
        e("s_add_u32 s29, s29, s24")
        e("s_mov_b32 s20, s8")
        e("s_mov_b32 s21, s9")
        e(f"s_mov_b32 s22, {XBYTES}")
        e("s_mov_b32 s23, 0x20000")
        e("s_mov_b32 exec_hi, 0xffff")
        for v in range(42 - (Wn - 1), 43, 2):
            val = v if v < 42 else 64
            e(f"v_mov_b32 v2, {val}")
            e(f"s_waitcnt vmcnt({42 - v})")
            e("ds_write_b32 v8, v2")
        self.stamp()
        self.diag_mark("ldone")
        self.stamp_now(58, 0, real=True)
        if o.stwait:
            self.poll(4, 5, o.stwait, sleep=o.sleep)
        e("s_mov_b32 s37, 2")
        self.lab("L_st_strip")
        e("s_mov_b32 s31, s29")
        e("s_mov_b32 s32, 0")
        self.lab("L_st_loop")
        if not o.nocomp:
            e("v_cmp_gt_i32 vcc, s37, v5")
            e("s_cbranch_vccz L_st_go")
            self.poll(4, 5, "s37", sleep=o.sleep)
            self.lab("L_st_go")
        e("ds_read_b128 v[16:19], v10")
        e(f"ds_read_b128 v[20:23], v10 offset:{P}")
        e("s_add_i32 s34, s31, s27")
        e(f"v_add_u32 v10, {2 * P}, v10")
        e("s_add_u32 s37, s37, 1")
        e("s_add_u32 s32, s32, 1")
        if o.stwin:
            e(f"s_waitcnt vmcnt({o.stwin})")
        e("s_waitcnt lgkmcnt(1)")
        e(f"buffer_store_dwordx4 v[16:19], v11, s[20:23], s31 offen {o.stflags}")
        e("s_add_i32 s31, s34, s27")
        e("s_waitcnt lgkmcnt(0)")
        e(f"buffer_store_dwordx4 v[20:23], v11, s[20:23], s34 offen {o.stflags}")
        if o.prof and o.cstamp:
            self.stamp_now(22 - 3, "s37")
            self.stamp_now(40 - 3, "s37", real=True)
        elif o.prof:
            e("s_cmp_lt_u32 s37, 14")
            e("s_cbranch_scc1 L_nost")
            self.stamp_now(45 - 14, "s37")
            self.lab("L_nost")
        e("s_cmp_lt_u32 s32, 6")
        e("s_cbranch_scc1 L_st_loop")
        e("s_add_u32 s29, s29, s35")
        e(f"v_add_u32 v10, {2 * P}, v10")
        e("s_cmp_lt_u32 s37, 20")
        e("s_cbranch_scc1 L_st_strip")
        self.diag_mark("stiss")
        if o.prof:
            self.stamp()
            e("s_waitcnt vmcnt(0)")
            self.stamp()
        self.stamp_flush()
        self.diag_end()
        e("s_endpgm")

    def compute(self):
        e, o = self.e, self.o
        ops = [("U0", 0), ("U0", 1), ("U1", 0), ("U1", 1), ("U2", 0), ("U2", 1), ("U2", 2), ("U3", 0), ("U3", 1), ("U3", 2),
               ("X", 0), ("X", 1), ("X", 2),
               ("L0", 0), ("L0", 1), ("L0", 2), ("L1", 0), ("L1", 1), ("L1", 2), ("L2", 1), ("L2", 2), ("L3", 1), ("L3", 2)]
        W = {k: 16 + 4 * i for i, k in enumerate(ops)}
        SET = [108, 124]
        XR = 140
        ACC = lambda s, t: 144 + 12 * s + 4 * t
        PK = 168
        A1, A2, AX = 174, 175, 176
        ST = [177, 178, 179]
        self.lab("L_compute")
        self.nstamp = 1
        if o.prio_comp:
            e(f"s_setprio {o.prio_comp}")
        e("s_mul_i32 s28, s3, 1152")
        e("v_lshl_add_u32 v108, v0, 4, s28")
        e("s_movk_i32 s29, 3456")
        for i in range(1, 4):
            e(f"v_add_u32 v2, {64 * i}, v0")
            e("v_mul_u32_u24 v2, 911, v2")
            e("v_lshrrev_b32 v2, 16, v2")
            e(f"v_mad_u32_u24 v{108 + i}, v2, s29, v108")
        e("v_cmp_lt_u32 vcc, 23, v0")
        e("v_bfrev_b32 v3, 1")
        e(f"s_mul_i32 s33, s3, {WSZ}")
        e(f"s_add_u32 s33, s33, {WREG}")
        e("v_cndmask_b32 v111, v111, v3, vcc")
        e("s_mul_i32 s34, s26, 27648")
        e("s_movk_i32 s35, 13824")
        e("s_sub_u32 s36, 27648, s34")
        e("s_waitcnt lgkmcnt(0)")
        e("s_barrier")
        e("s_mov_b32 s16, s6")
        e("s_mov_b32 s17, s7")
        e(f"s_mov_b32 s18, {WBYTES}")
        e("s_mov_b32 s19, 0x20000")
        for p in range(3):
            e(f"s_add_u32 m0, s33, {4096 * p}")
            e("s_nop 0")
            for i in range(4):
                if not o.now:
                    e(f"buffer_load_dwordx4 v{108 + i}, s[16:19], s{34 + p} offen offset:{1024 * i} {o.wflags} lds")
        self.stamp()
        e("v_and_b32 v1, 15, v0")
        e("v_lshrrev_b32 v2, 4, v0")
        e("s_mul_i32 s28, s3, 3")
        e("v_and_b32 v3, 1, v2")
        e("v_lshrrev_b32 v4, 1, v2")
        e("v_cmp_gt_u32 vcc, 2, v2")
        e("s_movk_i32 s29, 192")
        e("s_movk_i32 s30, 1152")

        def baddr(dst, vdx, vcc_, tmp1, tmp2, extra=None):
            e(f"v_add_u32 v{tmp1}, {vdx}, v1")
            e(f"v_add_u32 v{tmp2}, 1, v{tmp1}")
            e(f"v_bfe_u32 v{tmp2}, v{tmp2}, 2, 2")
            e(f"v_mad_u32_u24 v{tmp1}, v{tmp1}, s29, 64")
            e(f"v_add_u32 v{dst}, s28, {vcc_}")
            e(f"v_xor_b32 v{dst}, v{dst}, v{tmp2}")
            e(f"v_lshl_add_u32 v{dst}, v{dst}, 4, v{tmp1}")
            if extra:
                e(f"v_add_u32 v{dst}, {extra}, v{dst}")

        e("v_cndmask_b32 v6, 2, v2, vcc")
        e("v_cndmask_b32 v7, v3, 2, vcc")
        baddr(A1, "v3", "v4", 11, 12)
        baddr(A2, "v6", "v7", 11, 12)
        e(f"v_mul_u32_u24 v13, {P}, v2")
        e("v_mov_b32 v14, 2")
        baddr(AX, "2", "v14", 11, 12, "v13")
        e("v_add_u32 v12, 1, v1")
        e("v_bfe_u32 v12, v12, 2, 2")
        e("v_mad_u32_u24 v11, v1, s29, 64")
        e("v_lshl_add_u32 v11, v3, 3, v11")
        e(f"v_add_u32 v13, {P}, v11")
        e("v_add_u32 v14, s28, v4")
        e("v_xor_b32 v15, v14, v12")
        e(f"v_lshl_add_u32 v{ST[0]}, v15, 4, v11")
        e("v_add_u32 v14, 1, v14")
        e("v_xor_b32 v15, v14, v12")
        e(f"v_lshl_add_u32 v{ST[2]}, v15, 4, v13")
        e("v_cndmask_b32 v14, 0, 2, vcc")
        e("v_cndmask_b32 v13, v13, v11, vcc")
        e("v_add_u32 v14, s28, v14")
        e("v_xor_b32 v15, v14, v12")
        e(f"v_lshl_add_u32 v{ST[1]}, v15, 4, v13")
        E1, E2, F1, F2, F1z, F2z, F1y, F2y, G0, G1, G2, Z = range(144, 156)
        e("v_bfe_u32 v11, v0, 2, 2")
        e("v_mul_u32_u24 v11, 48, v11")
        e("v_add_u32 v11, s33, v11")
        e("v_and_b32 v12, 3, v0")
        e("v_lshl_add_u32 v11, v12, 3, v11")
        e("v_mul_u32_u24 v13, 384, v4")
        e("v_mad_u32_u24 v13, v3, s30, v13")
        e("v_mul_u32_u24 v14, 384, v7")
        e("v_mad_u32_u24 v14, v6, s30, v14")
        e(f"v_add_u32 v{E1}, v11, v13")
        e(f"v_add_u32 v{E2}, v11, v14")
        e("v_cmp_lt_u32 vcc, 1, v12")
        e("s_add_u32 s30, s33, 3456")
        e(f"v_mov_b32 v{Z}, s30")
        e("v_mov_b32 v13, 32")
        e("v_mov_b32 v14, -4112")
        e("v_cndmask_b32 v13, v13, v14, vcc")
        e("v_cndmask_b32 v15, 0, 1, vcc")
        e(f"v_add_u32 v{F1}, v{E1}, v13")
        e(f"v_add_u32 v{F2}, v{E2}, v13")
        e(f"v_cndmask_b32 v{F1z}, v{F1}, v{Z}, vcc")
        e(f"v_cndmask_b32 v{F2z}, v{F2}, v{Z}, vcc")
        e(f"v_add_u32 v{F1y}, 12288, v{F1}")
        e(f"v_add_u32 v{F2y}, 12288, v{F2}")
        e(f"v_cndmask_b32 v{F1y}, v{Z}, v{F1y}, vcc")
        e(f"v_cndmask_b32 v{F2y}, v{Z}, v{F2y}, vcc")
        e("v_lshl_add_u32 v11, v2, 12, v11")
        e("v_add_u32 v11, 3072, v11")
        e("v_sub_u32 v15, v2, v15")
        e("v_cmp_gt_u32 vcc, 3, v15")
        e(f"v_add_u32 v{G1}, v11, v13")
        e(f"v_add_u32 v{G2}, -4080, v11")
        e(f"v_cndmask_b32 v{G1}, v{Z}, v{G1}, vcc")
        e("v_cmp_gt_u32 vcc, 3, v2")
        e("s_mov_b32 s37, 0")
        e("s_nop 0")
        e(f"v_cndmask_b32 v{G0}, v{Z}, v11, vcc")
        e("v_cmp_lt_u32 vcc, 0, v2")
        e("s_nop 0")
        e("v_mov_b32 v10, 1")
        e(f"v_cndmask_b32 v{G2}, v{Z}, v{G2}, vcc")

        def tr(key, a, off):
            w = W[key]
            e(f"ds_read_b64_tr_b16 v[{w}:{w + 1}], v{a} offset:{off}")
            e(f"ds_read_b64_tr_b16 v[{w + 2}:{w + 3}], v{a} offset:{off + 192}")

        e("s_waitcnt vmcnt(8)")
        self.stamp()
        tr(("U0", 0), E1, 0); tr(("U1", 0), E2, 0); tr(("U0", 1), F1z, 0); tr(("U1", 1), F2z, 0)
        tr(("U2", 2), E1, 16); tr(("U3", 2), E2, 16)
        e("s_waitcnt vmcnt(4)")
        tr(("U2", 0), E1, 4096); tr(("U3", 0), E2, 4096); tr(("U2", 1), F1, 4096); tr(("U3", 1), F2, 4096)
        tr(("L0", 2), E1, 4112); tr(("L1", 2), E2, 4112)
        e("s_waitcnt vmcnt(0)")
        self.stamp()
        tr(("X", 0), G0, 0); tr(("X", 1), G1, 0); tr(("X", 2), G2, 0)
        tr(("L0", 0), E1, 8192); tr(("L1", 0), E2, 8192); tr(("L0", 1), F1, 8192); tr(("L1", 1), F2, 8192)
        tr(("L2", 1), F1y, 0); tr(("L3", 1), F2y, 0); tr(("L2", 2), E1, 8208); tr(("L3", 2), E2, 8208)
        e("ds_write_b32 v8, v10")
        self.stamp()
        if o.nocomp:
            self.stamp_flush()
            self.lab("L_end")
            e("s_endpgm")
            return
        def mf(k, b, seen):
            t = k[1]
            a = ACC(0, t)
            cin = f"v[{a}:{a + 3}]" if t in seen else "0"
            seen.add(t)
            e(f"v_mfma_f32_16x16x32_bf16 v[{a}:{a + 3}], v[{W[k]}:{W[k] + 3}], v[{b}:{b + 3}], {cin}")

        def pair_reads(st, off):
            b = SET[st]
            e(f"ds_read_b128 v[{b}:{b + 3}], v{A1} offset:{off}")
            e(f"ds_read_b128 v[{b + 4}:{b + 7}], v{A2} offset:{off}")
            e(f"ds_read_b128 v[{b + 8}:{b + 11}], v{A1} offset:{off + P}")
            e(f"ds_read_b128 v[{b + 12}:{b + 15}], v{A2} offset:{off + P}")

        e("s_mov_b32 s36, 4")
        if o.fpre:
            e("ds_read_b32 v5, v9")
        self.lab("L_c_loop")
        slow = []
        for s in range(6):
            if o.prof and o.cstamp:
                e("s_mul_i32 s94, s37, 6")
                self.stamp_now(22 + s, "s94")
                self.stamp_now(40 + s, "s94", real=True)
            U, Lo = s & 1, (s & 1) ^ 1
            if o.fpre:
                nw = (6 if o.wr == 32 else 3) + 1
                e(f"s_waitcnt lgkmcnt({0 if s == 0 else nw})")
                e("v_cmp_gt_i32 vcc, s36, v5")
                e(f"s_cbranch_vccnz L_c_slow{s}")
                self.lab(f"L_c_ready{s}")
                slow.append(s)
            else:
                self.poll(9, 5, "s36", sleep=o.csleep)
            if s == 0:
                if o.prof and not o.cstamp:
                    self.stamp_now(24, "s37")
                pair_reads(0, 0)
            mark = len(self.L)
            pair_reads(Lo, 2 * (s + 1) * P)
            e(f"ds_read_b128 v[{XR}:{XR + 3}], v{AX} offset:{2 * s * P}")
            e(f"s_add_u32 s36, s36, {4 if s == 5 else 2}")
            inter = []
            if o.rdint and s > 0:
                inter = self.L[mark:]
                del self.L[mark:]
            seen = set()
            if s == 0:
                e("s_waitcnt lgkmcnt(5)")
            for k in ops[:10]:
                mf(k, SET[U] + 4 * int(k[0][1]), seen)
                if inter:
                    self.L.append(inter.pop(0))
            e("s_waitcnt lgkmcnt(0)")
            for k in ops[13:]:
                mf(k, SET[Lo] + 4 * int(k[0][1]), seen)
            for k in ops[10:13]:
                mf(k, XR, seen)
            e("v_add_u32 v10, 1, v10")
            if o.fpre:
                e("ds_read_b32 v5, v9")
            if s == 5:
                for r in (A1, A2, AX):
                    e(f"v_add_u32 v{r}, {STRIP}, v{r}")
                e("s_add_u32 s37, s37, 1")
                e("s_cmp_lt_u32 s37, 3")
            else:
                e("s_nop 4" if not o.fpre else "s_nop 3")
            for t in range(3):
                a = ACC(0, t)
                e(f"v_cvt_pk_bf16_f32 v{PK + 2 * t}, v{a}, v{a + 1}")
                e(f"v_cvt_pk_bf16_f32 v{PK + 2 * t + 1}, v{a + 2}, v{a + 3}")
                if o.wr == 32:
                    e(f"ds_write_b32 v{ST[t]}, v{PK + 2 * t} offset:{2 * s * P}")
                    e(f"ds_write_b32 v{ST[t]}, v{PK + 2 * t + 1} offset:{2 * s * P + 4}")
                else:
                    e(f"ds_write_b64 v{ST[t]}, v[{PK + 2 * t}:{PK + 2 * t + 1}] offset:{2 * s * P}")
            e("ds_write_b32 v8, v10")
            if s == 5:
                for t in range(3):
                    e(f"v_add_u32 v{ST[t]}, {STRIP}, v{ST[t]}")
        e("s_cbranch_scc1 L_c_loop")
        self.stamp()
        self.stamp_flush()
        self.lab("L_end")
        e("s_endpgm")
        for s in slow:
            self.lab(f"L_c_slow{s}")
            self.poll(9, 5, "s36", sleep=o.csleep)
            e(f"s_branch L_c_ready{s}")

    @staticmethod
    def srcs(txt):
        m = re.search(r", v\[(\d+):(\d+)\]", txt)
        if m:
            return [str(r) for r in range(int(m.group(1)), int(m.group(2)) + 1)]
        return [re.search(r", v(\d+)", txt).group(1)]

    def check_mfma_hazards(self):
        L = [l.strip() for l in self.L]
        if "L_c_loop:" not in L:
            return
        i = L.index("L_c_loop:")
        j = max(k for k, l in enumerate(L) if l.startswith("s_cbranch_scc1 L_c_loop"))
        k = L.index("L_end:")
        for seqn in (L[i:j + 1] + L[i:j + 1], L[i:k]):
            pend = {}
            pos = 0
            for l in seqn:
                if l.endswith(":"):
                    continue
                regs = set()
                for m in re.finditer(r"v\[(\d+):(\d+)\]|v(\d+)", l.split(None, 1)[1] if " " in l else ""):
                    if m.group(3):
                        regs.add(int(m.group(3)))
                    else:
                        regs.update(range(int(m.group(1)), int(m.group(2)) + 1))
                if l.startswith("v_mfma"):
                    m = re.match(r"v_mfma\S+ v\[(\d+):(\d+)\]", l)
                    for r in range(int(m.group(1)), int(m.group(2)) + 1):
                        pend[r] = pos
                else:
                    for r in regs:
                        if r in pend:
                            assert pos - pend[r] - 1 >= 8, (l, pos - pend[r] - 1)
                m = re.match(r"s_nop (\d+)", l)
                pos += int(m.group(1)) + 1 if m else 1

    def build(self):
        self.prologue()
        self.helper()
        self.compute()
        self.check_mfma_hazards()
        if self.o.pad:
            i = self.L.index("L_c_loop:")
            j = max(k for k, l in enumerate(self.L) if "s_cbranch_scc1 L_c_loop" in l)
            body = []
            n = 0
            for l in self.L[i:j]:
                body.append(l)
                if "v_mfma" in l:
                    n += 1
                    if n % self.o.padk == 0:
                        if self.o.padmask == 7:
                            body.append(f"    s_nop {self.o.pad}")
                        elif n < 120:
                            body.append(f"    s_bitcmp1_b32 s44, s37")
                            body.append(f"    s_cbranch_scc0 L_pad{n}")
                            body.append(f"    s_nop {self.o.pad}")
                            body.append(f"L_pad{n}:")
            self.L = self.L[:i] + [f"    s_mov_b32 s44, {self.o.padmask}"] + body + self.L[j:]
        if self.o.drop:
            i = self.L.index("L_c_loop:")
            j = max(k for k, l in enumerate(self.L) if "s_cbranch_scc1 L_c_loop" in l)
            pats = self.o.drop.split(",")
            self.L = self.L[:i] + [l for l in self.L[i:j] if not any(l.strip().startswith(p) for p in pats)] + self.L[j:]
        return HEADER + "\n".join(self.L) + "\n" + FOOTER.format(vgpr=184, acc=184)


def main():
    p = argparse.ArgumentParser()
    p.add_argument("-o", default="-")
    p.add_argument("--prof", type=int, default=0)
    p.add_argument("--hflip", type=int, default=1)
    p.add_argument("--win", type=int, default=13)
    p.add_argument("--barpair", type=int, default=2)
    p.add_argument("--ldflags", default="nt")
    p.add_argument("--wflags", default="")
    p.add_argument("--stflags", default="sc0 sc1 nt")
    p.add_argument("--prio_loader", type=int, default=0)
    p.add_argument("--prio_comp", type=int, default=0)
    p.add_argument("--nocomp", type=int, default=0)
    p.add_argument("--noload", type=int, default=0)
    p.add_argument("--cstamp", type=int, default=0)
    p.add_argument("--drop", default="")
    p.add_argument("--wr", type=int, default=64)
    p.add_argument("--estart", type=int, default=2)
    p.add_argument("--diag", default="")
    p.add_argument("--now", type=int, default=0)
    p.add_argument("--stwait", type=int, default=0)
    p.add_argument("--stwin", type=int, default=0)
    p.add_argument("--pad", type=int, default=0)
    p.add_argument("--padk", type=int, default=1)
    p.add_argument("--padmask", type=int, default=7)
    p.add_argument("--fpre", type=int, default=0)
    p.add_argument("--csleep", type=int, default=1)
    p.add_argument("--eflag", type=int, default=1)
    p.add_argument("--rdint", type=int, default=0)
    p.add_argument("--sleep", type=int, default=2)
    o = p.parse_args()
    s = Gen(o).build()
    if o.o == "-":
        sys.stdout.write(s)
    else:
        open(o.o, "w").write(s)


if __name__ == "__main__":
    main()
```

```python
import argparse
import re
import sys

ROWB = 73728
XBYTES = 28311552
WBYTES = 41472
P = 3584
STRIP = 14 * P
FREE = 3 * STRIP
LDS_TOTAL = 163840
FLAGS = LDS_TOTAL - 256
WREG = 2 * STRIP
WSZ = 12288

HEADER = """; Kernarg layout for this problem (40 bytes, ptrs only, base s[0:1]):
; @launch grid=(256,1,1) block=(512,1,1) lds=163840
.amdgcn_target "amdgcn-amd-amdhsa--gfx950"
.text
.globl standalone__grouped__vision_kernel
.p2align 8
.type standalone__grouped__vision_kernel,@function
standalone__grouped__vision_kernel:
"""

FOOTER = """.section .rodata,"a"
.p2align 6
.amdhsa_kernel standalone__grouped__vision_kernel
  .amdhsa_next_free_vgpr {vgpr}
  .amdhsa_next_free_sgpr 102
  .amdhsa_accum_offset {acc}
  .amdhsa_group_segment_fixed_size 0
  .amdhsa_kernarg_size 40
  .amdhsa_user_sgpr_count 2
  .amdhsa_user_sgpr_kernarg_segment_ptr 1
  .amdhsa_system_sgpr_workgroup_id_x 1
.end_amdhsa_kernel
"""

PV = 183


class Gen:
    def __init__(self, o):
        self.o = o
        self.L = []
        self.nstamp = 0
        self.nlab = 0

    def e(self, s):
        self.L.append("    " + s)

    def lab(self, s):
        self.L.append(s + ":")

    def newlab(self, p):
        self.nlab += 1
        return f"L_{p}{self.nlab}"

    def stamp(self):
        if not self.o.prof:
            return
        k = self.nstamp
        self.nstamp += 1
        assert k < 22
        self.e(f"s_memtime s[{46 + 2 * k}:{47 + 2 * k}]")

    def stamp_now(self, base, ctr, real=False):
        if not self.o.prof:
            return
        self.e("s_memrealtime s[96:97]" if real else "s_memtime s[96:97]")
        self.e("s_waitcnt lgkmcnt(0)")
        self.e("s_mov_b32 s95, m0")
        if isinstance(ctr, str):
            self.e(f"s_add_u32 m0, {ctr}, {base}")
        else:
            self.e(f"s_mov_b32 m0, {base + ctr}")
        self.e(f"v_writelane_b32 v{PV}, s96, m0")
        self.e("s_mov_b32 m0, s95")

    def stamp_flush(self):
        if not self.o.prof:
            return
        e = self.e
        e("s_mov_b64 exec, -1")
        e("s_waitcnt lgkmcnt(0)")
        e("s_load_dwordx2 s[40:41], s[0:1], 32")
        e("s_lshl_b32 s42, s2, 3")
        e("s_add_u32 s42, s42, s3")
        e("s_lshl_b32 s42, s42, 8")
        e("v_lshl_add_u32 v1, v0, 2, s42")
        for k in range(self.nstamp):
            e(f"v_writelane_b32 v{PV}, s{46 + 2 * k}, {k}")
        e(f"s_mov_b32 s42, {self.nstamp}")
        e(f"v_writelane_b32 v{PV}, s42, 63")
        e("s_getreg_b32 s42, hwreg(HW_REG_XCC_ID)")
        e(f"v_writelane_b32 v{PV}, s42, 62")
        e(f"v_writelane_b32 v{PV}, s92, 60")
        e("s_memrealtime s[92:93]")
        e("s_waitcnt lgkmcnt(0)")
        e(f"v_writelane_b32 v{PV}, s92, 59")
        e(f"global_store_dword v1, v{PV}, s[40:41]")

    def diag_mark(self, name):
        d = self.o.diag
        if d == name:
            self.e("s_memrealtime s[90:91]")
        if d == "c" + name:
            self.e("s_memtime s[90:91]")

    def diag_end(self):
        o, e = self.o, self.e
        if not o.diag:
            return
        e("s_waitcnt vmcnt(0) lgkmcnt(0)")
        self.diag_mark("end")
        e("s_waitcnt lgkmcnt(0)")
        if o.diag == "rt":
            e("s_mov_b32 s42, 0")
        elif o.diag.startswith("c"):
            e("s_sub_u32 s42, s90, s88")
            e("s_lshr_b32 s42, s42, 2")
        else:
            e("s_sub_u32 s42, s90, s92")
            e("s_mul_i32 s42, s42, 4")
        e("s_add_u32 s42, s42, 4000")
        self.lab("L_dg")
        e("s_memrealtime s[40:41]")
        e("s_waitcnt lgkmcnt(0)")
        e("s_sub_u32 s40, s40, s92")
        e("s_cmp_lt_u32 s40, s42")
        e("s_cbranch_scc1 L_dg")

    def poll(self, vaddr, vtmp, sneed, sleep=1):
        e = self.e
        l = self.newlab("poll")
        d = self.newlab("pdone")
        self.lab(l)
        e(f"ds_read_b32 v{vtmp}, v{vaddr}")
        e("s_waitcnt lgkmcnt(0)")
        e(f"v_cmp_gt_i32 vcc, {sneed}, v{vtmp}")
        e(f"s_cbranch_vccz {d}")
        if sleep:
            e(f"s_sleep {sleep}")
        e(f"s_branch {l}")
        self.lab(d)

    def prologue(self):
        e = self.e
        e("s_cmp_ge_u32 s2, 256")
        e("s_cbranch_scc1 L_end")
        e("s_load_dwordx4 s[4:7], s[0:1], 0")
        e("s_load_dwordx2 s[8:9], s[0:1], 16")
        if self.o.prof or self.o.diag:
            e("s_memrealtime s[92:93]")
        if self.o.diag:
            e("s_memtime s[88:89]")
        self.stamp()
        if self.o.prof:
            e(f"v_mov_b32 v{PV}, 0")
        e("v_lshrrev_b32 v1, 6, v0")
        e("v_and_b32 v0, 63, v0")
        e(f"v_mov_b32 v3, {FLAGS}")
        e("v_readfirstlane_b32 s3, v1")
        e("v_xor_b32 v2, 4, v1")
        e("v_lshl_add_u32 v8, v2, 2, v3")
        e("v_mov_b32 v2, 0")
        e("ds_write_b32 v8, v2")
        e("v_and_b32 v2, 3, v0")
        e("v_lshl_add_u32 v9, v2, 2, v3")
        e("s_bfe_u32 s26, s2, 0x10005")
        e("s_cmp_lt_u32 s3, 4")
        e("s_cbranch_scc1 L_compute")

    def helper(self):
        e, o = self.e, self.o
        self.lab("L_helper")
        if o.prio_loader:
            e(f"s_setprio {o.prio_loader}")
        Wn = o.win
        assert Wn % 2 == 1
        e("s_and_b32 s10, s2, 1")
        e("s_lshl_b32 s10, s10, 2")
        e("s_bfe_u32 s11, s2, 0x20003")
        e("s_add_u32 s10, s10, s11")
        e("s_bfe_u32 s11, s2, 0x20001")
        e("s_lshl_b32 s11, s11, 3")
        e("s_lshr_b32 s24, s2, 5")
        e("s_add_u32 s11, s11, s24")
        e("s_mul_i32 s25, s11, 12")
        e("s_and_b32 s30, s3, 3")
        e("s_mul_i32 s28, s30, 14")
        e("s_add_u32 s28, s28, 2")
        e("v_lshrrev_b32 v1, 2, v0")
        e("v_add_u32 v2, s28, v1")
        e("v_mul_u32_u24 v2, 171, v2")
        e("v_bfe_u32 v2, v2, 11, 2")
        e("v_xor_b32 v2, v2, v0")
        e("s_mul_i32 s33, s30, 896")
        e("v_lshl_add_u32 v10, v2, 4, s33")
        e("s_cmp_eq_u32 s26, 0")
        e("s_cselect_b32 s27, 1, -1")
        e("s_cselect_b32 s29, -1, 12")
        e(f"s_mul_i32 s27, s27, {ROWB}")
        e("s_add_i32 s29, s29, s25")
        e(f"s_mul_i32 s29, s29, {ROWB}")
        e("s_mul_i32 s24, s10, 9216")
        if o.hflip:
            e("s_and_b32 s28, s10, 1")
        else:
            e("s_and_b32 s28, s10, 0")
        e("s_cselect_b32 s35, -1, 1")
        e("s_mulk_i32 s35, 3072")
        e("s_mulk_i32 s28, 6144")
        e("s_add_u32 s24, s24, s28")
        e("s_mov_b32 s36, s24")
        e("s_cmp_eq_u32 s30, 3")
        e("s_cselect_b32 s28, 40, 0")
        e("s_cselect_b32 s43, 70656, -1")
        e("v_subrev_u32 v2, s28, v0")
        e("s_cmp_eq_u32 s30, 0")
        e("v_cmp_gt_u32 vcc, 16, v2")
        e("s_cselect_b32 s43, 0, s43")
        e("v_bfrev_b32 v3, 1")
        e(f"v_mov_b32 v6, {-(Wn - 1)}")
        e("v_cndmask_b32 v11, v10, v3, vcc")
        e("s_mov_b32 s37, 0")
        if o.stag:
            e(f"s_bfe_u32 s44, s2, {hex((o.stagw << 16) | 3)}")
            e(f"s_mul_i32 s44, s44, {o.stag}")
            e(f"s_add_u32 s44, s44, {o.barpair}")
        else:
            e(f"s_mov_b32 s44, {o.barpair}")
        if o.eflag:
            e("v_mov_b32 v7, 0")
        e("s_mov_b32 exec_hi, 0xffffff")
        e("s_waitcnt lgkmcnt(0)")
        e("s_sub_u32 s12, s4, 256")
        e("s_subb_u32 s13, s5, 0")
        e(f"s_mov_b32 s14, {XBYTES + 256}")
        e("s_mov_b32 s15, 0x20000")
        self.stamp()
        self.diag_mark("karg")
        fl = o.ldflags
        if o.noload:
            e("s_barrier")
            e("v_mov_b32 v2, 64")
            e("ds_write_b32 v8, v2")
            self.stamp_flush()
            e("s_endpgm")
        self.lab("L_strip")
        e("s_cmp_eq_u32 s36, s43")
        e("s_cselect_b64 s[38:39], -1, 0")
        e("s_mov_b32 s31, s29")
        e("s_mov_b32 s32, 0")
        e("v_cndmask_b32 v12, v10, v11, s[38:39]")
        self.lab("L_ld_loop")
        e("s_add_u32 s34, s31, s36")
        e("s_cmp_lt_i32 s31, 0")
        e("s_cselect_b32 s34, 0x40000000, s34")
        e("s_mov_b32 m0, s33")
        e("s_add_i32 s31, s31, s27")
        e(f"s_waitcnt vmcnt({Wn - 1})")
        e("ds_write_b32 v8, v7" if o.eflag else "ds_write_b32 v8, v6")
        e(f"buffer_load_dwordx4 v12, s[12:15], s34 offen {fl} lds")
        e("s_add_u32 s34, s31, s36")
        e(f"s_add_u32 m0, s33, {P}")
        e("s_add_i32 s31, s31, s27")
        e(f"s_waitcnt vmcnt({Wn - 1})")
        e(f"buffer_load_dwordx4 v12, s[12:15], s34 offen {fl} lds")
        e("v_add_u32 v6, 2, v6")
        if o.eflag:
            e("v_max_i32 v7, v7, v6")
        e(f"s_add_u32 s33, s33, {2 * P}")
        e("s_add_u32 s32, s32, 1")
        if o.prof and not o.cstamp:
            e("s_mul_i32 s94, s37, 7")
            e("s_add_u32 s94, s94, s32")
            self.stamp_now(23, "s94")
        e("s_sub_u32 s44, s44, 1")
        e("s_cmp_lg_u32 s44, 0")
        e("s_cbranch_scc1 L_ld_nobar")
        e("s_barrier")
        if o.eflag:
            e("v_mov_b32 v2, 4")
            e(f"s_waitcnt vmcnt({2 * o.barpair - 4})")
            e("ds_write_b32 v8, v2")
            e("v_max_i32 v7, 4, v6")
        self.lab("L_ld_nobar")
        e("s_cmp_lt_u32 s32, 7")
        e("s_cbranch_scc1 L_ld_loop")
        e("s_add_u32 s36, s36, s35")
        e("s_add_u32 s37, s37, 1")
        e("s_cmp_lt_u32 s37, 2")
        e("s_cbranch_scc1 L_strip")
        e("s_cmp_eq_u32 s37, 3")
        e("s_cbranch_scc1 L_ld_tail")
        e("v_add_u32 v4, 16, v9")
        self.poll(4, 5, 1)
        e("s_branch L_strip")
        self.lab("L_ld_tail")
        e("s_mul_i32 s28, s30, 12")
        e("s_add_u32 s28, s28, 3")
        e("v_add_u32 v2, s28, v1")
        e("v_mul_u32_u24 v2, 171, v2")
        e("v_bfe_u32 v2, v2, 11, 2")
        e("v_xor_b32 v2, v2, v0")
        e("s_mul_i32 s33, s30, 768")
        e("s_add_u32 s28, s33, 64")
        e("v_lshl_add_u32 v10, v2, 4, s28")
        e("v_lshl_add_u32 v11, v0, 4, s33")
        e("s_cmp_eq_u32 s26, 0")
        e("s_cselect_b32 s29, 0, 11")
        e("s_add_i32 s29, s29, s25")
        e(f"s_mul_i32 s29, s29, {ROWB}")
        e("s_add_u32 s29, s29, s24")
        e("s_mov_b32 s20, s8")
        e("s_mov_b32 s21, s9")
        e(f"s_mov_b32 s22, {XBYTES}")
        e("s_mov_b32 s23, 0x20000")
        e("s_mov_b32 exec_hi, 0xffff")
        for v in range(42 - (Wn - 1), 43, 2):
            val = v if v < 42 else 64
            e(f"v_mov_b32 v2, {val}")
            e(f"s_waitcnt vmcnt({42 - v})")
            e("ds_write_b32 v8, v2")
        self.stamp()
        self.diag_mark("ldone")
        self.stamp_now(58, 0, real=True)
        if o.stwait:
            self.poll(4, 5, o.stwait, sleep=o.sleep)
        e("s_mov_b32 s37, 2")
        self.lab("L_st_strip")
        e("s_mov_b32 s31, s29")
        e("s_mov_b32 s32, 0")
        self.lab("L_st_loop")
        if not o.nocomp:
            e("v_cmp_gt_i32 vcc, s37, v5")
            e("s_cbranch_vccz L_st_go")
            self.poll(4, 5, "s37", sleep=o.sleep)
            self.lab("L_st_go")
        e("ds_read_b128 v[16:19], v10")
        e(f"ds_read_b128 v[20:23], v10 offset:{P}")
        e("s_add_i32 s34, s31, s27")
        e(f"v_add_u32 v10, {2 * P}, v10")
        e("s_add_u32 s37, s37, 1")
        e("s_add_u32 s32, s32, 1")
        if o.stwin:
            e(f"s_waitcnt vmcnt({o.stwin})")
        e("s_waitcnt lgkmcnt(1)")
        e(f"buffer_store_dwordx4 v[16:19], v11, s[20:23], s31 offen {o.stflags}")
        e("s_add_i32 s31, s34, s27")
        e("s_waitcnt lgkmcnt(0)")
        e(f"buffer_store_dwordx4 v[20:23], v11, s[20:23], s34 offen {o.stflags}")
        if o.prof and o.cstamp:
            self.stamp_now(22 - 3, "s37")
            self.stamp_now(40 - 3, "s37", real=True)
        elif o.prof:
            e("s_cmp_lt_u32 s37, 14")
            e("s_cbranch_scc1 L_nost")
            self.stamp_now(45 - 14, "s37")
            self.lab("L_nost")
        e("s_cmp_lt_u32 s32, 6")
        e("s_cbranch_scc1 L_st_loop")
        e("s_add_u32 s29, s29, s35")
        e(f"v_add_u32 v10, {2 * P}, v10")
        e("s_cmp_lt_u32 s37, 20")
        e("s_cbranch_scc1 L_st_strip")
        self.diag_mark("stiss")
        if o.prof:
            self.stamp()
            e("s_waitcnt vmcnt(0)")
            self.stamp()
        self.stamp_flush()
        self.diag_end()
        e("s_endpgm")

    def compute(self):
        e, o = self.e, self.o
        ops = [("U0", 0), ("U0", 1), ("U1", 0), ("U1", 1), ("U2", 0), ("U2", 1), ("U2", 2), ("U3", 0), ("U3", 1), ("U3", 2),
               ("X", 0), ("X", 1), ("X", 2),
               ("L0", 0), ("L0", 1), ("L0", 2), ("L1", 0), ("L1", 1), ("L1", 2), ("L2", 1), ("L2", 2), ("L3", 1), ("L3", 2)]
        W = {k: 16 + 4 * i for i, k in enumerate(ops)}
        SET = [108, 124]
        XR = 140
        ACC = lambda s, t: 144 + 12 * s + 4 * t
        PK = 168
        A1, A2, AX = 174, 175, 176
        ST = [177, 178, 179]
        self.lab("L_compute")
        self.nstamp = 1
        if o.prio_comp:
            e(f"s_setprio {o.prio_comp}")
        e("s_mul_i32 s28, s3, 1152")
        e("v_lshl_add_u32 v108, v0, 4, s28")
        e("s_movk_i32 s29, 3456")
        for i in range(1, 4):
            e(f"v_add_u32 v2, {64 * i}, v0")
            e("v_mul_u32_u24 v2, 911, v2")
            e("v_lshrrev_b32 v2, 16, v2")
            e(f"v_mad_u32_u24 v{108 + i}, v2, s29, v108")
        e("v_cmp_lt_u32 vcc, 23, v0")
        e("v_bfrev_b32 v3, 1")
        e(f"s_mul_i32 s33, s3, {WSZ}")
        e(f"s_add_u32 s33, s33, {WREG}")
        e("v_cndmask_b32 v111, v111, v3, vcc")
        e("s_mul_i32 s34, s26, 27648")
        e("s_movk_i32 s35, 13824")
        e("s_sub_u32 s36, 27648, s34")
        e("s_waitcnt lgkmcnt(0)")
        e("s_barrier")
        e("s_mov_b32 s16, s6")
        e("s_mov_b32 s17, s7")
        e(f"s_mov_b32 s18, {WBYTES}")
        e("s_mov_b32 s19, 0x20000")
        for p in range(3):
            e(f"s_add_u32 m0, s33, {4096 * p}")
            e("s_nop 0")
            for i in range(4):
                if not o.now:
                    e(f"buffer_load_dwordx4 v{108 + i}, s[16:19], s{34 + p} offen offset:{1024 * i} {o.wflags} lds")
        self.stamp()
        e("v_and_b32 v1, 15, v0")
        e("v_lshrrev_b32 v2, 4, v0")
        e("s_mul_i32 s28, s3, 3")
        e("v_and_b32 v3, 1, v2")
        e("v_lshrrev_b32 v4, 1, v2")
        e("v_cmp_gt_u32 vcc, 2, v2")
        e("s_movk_i32 s29, 192")
        e("s_movk_i32 s30, 1152")

        def baddr(dst, vdx, vcc_, tmp1, tmp2, extra=None):
            e(f"v_add_u32 v{tmp1}, {vdx}, v1")
            e(f"v_add_u32 v{tmp2}, 1, v{tmp1}")
            e(f"v_bfe_u32 v{tmp2}, v{tmp2}, 2, 2")
            e(f"v_mad_u32_u24 v{tmp1}, v{tmp1}, s29, 64")
            e(f"v_add_u32 v{dst}, s28, {vcc_}")
            e(f"v_xor_b32 v{dst}, v{dst}, v{tmp2}")
            e(f"v_lshl_add_u32 v{dst}, v{dst}, 4, v{tmp1}")
            if extra:
                e(f"v_add_u32 v{dst}, {extra}, v{dst}")

        e("v_cndmask_b32 v6, 2, v2, vcc")
        e("v_cndmask_b32 v7, v3, 2, vcc")
        baddr(A1, "v3", "v4", 11, 12)
        baddr(A2, "v6", "v7", 11, 12)
        e(f"v_mul_u32_u24 v13, {P}, v2")
        e("v_mov_b32 v14, 2")
        baddr(AX, "2", "v14", 11, 12, "v13")
        e("v_add_u32 v12, 1, v1")
        e("v_bfe_u32 v12, v12, 2, 2")
        e("v_mad_u32_u24 v11, v1, s29, 64")
        e("v_lshl_add_u32 v11, v3, 3, v11")
        e(f"v_add_u32 v13, {P}, v11")
        e("v_add_u32 v14, s28, v4")
        e("v_xor_b32 v15, v14, v12")
        e(f"v_lshl_add_u32 v{ST[0]}, v15, 4, v11")
        e("v_add_u32 v14, 1, v14")
        e("v_xor_b32 v15, v14, v12")
        e(f"v_lshl_add_u32 v{ST[2]}, v15, 4, v13")
        e("v_cndmask_b32 v14, 0, 2, vcc")
        e("v_cndmask_b32 v13, v13, v11, vcc")
        e("v_add_u32 v14, s28, v14")
        e("v_xor_b32 v15, v14, v12")
        e(f"v_lshl_add_u32 v{ST[1]}, v15, 4, v13")
        E1, E2, F1, F2, F1z, F2z, F1y, F2y, G0, G1, G2, Z = range(144, 156)
        e("v_bfe_u32 v11, v0, 2, 2")
        e("v_mul_u32_u24 v11, 48, v11")
        e("v_add_u32 v11, s33, v11")
        e("v_and_b32 v12, 3, v0")
        e("v_lshl_add_u32 v11, v12, 3, v11")
        e("v_mul_u32_u24 v13, 384, v4")
        e("v_mad_u32_u24 v13, v3, s30, v13")
        e("v_mul_u32_u24 v14, 384, v7")
        e("v_mad_u32_u24 v14, v6, s30, v14")
        e(f"v_add_u32 v{E1}, v11, v13")
        e(f"v_add_u32 v{E2}, v11, v14")
        e("v_cmp_lt_u32 vcc, 1, v12")
        e("s_add_u32 s30, s33, 3456")
        e(f"v_mov_b32 v{Z}, s30")
        e("v_mov_b32 v13, 32")
        e("v_mov_b32 v14, -4112")
        e("v_cndmask_b32 v13, v13, v14, vcc")
        e("v_cndmask_b32 v15, 0, 1, vcc")
        e(f"v_add_u32 v{F1}, v{E1}, v13")
        e(f"v_add_u32 v{F2}, v{E2}, v13")
        e(f"v_cndmask_b32 v{F1z}, v{F1}, v{Z}, vcc")
        e(f"v_cndmask_b32 v{F2z}, v{F2}, v{Z}, vcc")
        e(f"v_add_u32 v{F1y}, 12288, v{F1}")
        e(f"v_add_u32 v{F2y}, 12288, v{F2}")
        e(f"v_cndmask_b32 v{F1y}, v{Z}, v{F1y}, vcc")
        e(f"v_cndmask_b32 v{F2y}, v{Z}, v{F2y}, vcc")
        e("v_lshl_add_u32 v11, v2, 12, v11")
        e("v_add_u32 v11, 3072, v11")
        e("v_sub_u32 v15, v2, v15")
        e("v_cmp_gt_u32 vcc, 3, v15")
        e(f"v_add_u32 v{G1}, v11, v13")
        e(f"v_add_u32 v{G2}, -4080, v11")
        e(f"v_cndmask_b32 v{G1}, v{Z}, v{G1}, vcc")
        e("v_cmp_gt_u32 vcc, 3, v2")
        e("s_mov_b32 s37, 0")
        e("s_nop 0")
        e(f"v_cndmask_b32 v{G0}, v{Z}, v11, vcc")
        e("v_cmp_lt_u32 vcc, 0, v2")
        e("s_nop 0")
        e("v_mov_b32 v10, 1")
        e(f"v_cndmask_b32 v{G2}, v{Z}, v{G2}, vcc")

        def tr(key, a, off):
            w = W[key]
            e(f"ds_read_b64_tr_b16 v[{w}:{w + 1}], v{a} offset:{off}")
            e(f"ds_read_b64_tr_b16 v[{w + 2}:{w + 3}], v{a} offset:{off + 192}")

        e("s_waitcnt vmcnt(8)")
        self.stamp()
        tr(("U0", 0), E1, 0); tr(("U1", 0), E2, 0); tr(("U0", 1), F1z, 0); tr(("U1", 1), F2z, 0)
        tr(("U2", 2), E1, 16); tr(("U3", 2), E2, 16)
        e("s_waitcnt vmcnt(4)")
        tr(("U2", 0), E1, 4096); tr(("U3", 0), E2, 4096); tr(("U2", 1), F1, 4096); tr(("U3", 1), F2, 4096)
        tr(("L0", 2), E1, 4112); tr(("L1", 2), E2, 4112)
        e("s_waitcnt vmcnt(0)")
        self.stamp()
        tr(("X", 0), G0, 0); tr(("X", 1), G1, 0); tr(("X", 2), G2, 0)
        tr(("L0", 0), E1, 8192); tr(("L1", 0), E2, 8192); tr(("L0", 1), F1, 8192); tr(("L1", 1), F2, 8192)
        tr(("L2", 1), F1y, 0); tr(("L3", 1), F2y, 0); tr(("L2", 2), E1, 8208); tr(("L3", 2), E2, 8208)
        e("ds_write_b32 v8, v10")
        self.stamp()
        if o.nocomp:
            self.stamp_flush()
            self.lab("L_end")
            e("s_endpgm")
            return
        if o.sched == "pipe":
            self.loop_pipe(ops, W, SET, XR, ACC, PK, A1, A2, AX, ST)
        else:
            self.loop_plain(ops, W, SET, XR, ACC, PK, A1, A2, AX, ST)

    def loop_plain(self, ops, W, SET, XR, ACC, PK, A1, A2, AX, ST):
        e, o = self.e, self.o
        def mf(k, b, seen):
            t = k[1]
            a = ACC(0, t)
            cin = f"v[{a}:{a + 3}]" if t in seen else "0"
            seen.add(t)
            e(f"v_mfma_f32_16x16x32_bf16 v[{a}:{a + 3}], v[{W[k]}:{W[k] + 3}], v[{b}:{b + 3}], {cin}")

        def pair_reads(st, off):
            b = SET[st]
            e(f"ds_read_b128 v[{b}:{b + 3}], v{A1} offset:{off}")
            e(f"ds_read_b128 v[{b + 4}:{b + 7}], v{A2} offset:{off}")
            e(f"ds_read_b128 v[{b + 8}:{b + 11}], v{A1} offset:{off + P}")
            e(f"ds_read_b128 v[{b + 12}:{b + 15}], v{A2} offset:{off + P}")

        e("s_mov_b32 s36, 4")
        if o.fpre:
            e("ds_read_b32 v5, v9")
        self.lab("L_c_loop")
        slow = []
        for s in range(6):
            if o.prof and o.cstamp:
                e("s_mul_i32 s94, s37, 6")
                self.stamp_now(22 + s, "s94")
                self.stamp_now(40 + s, "s94", real=True)
            U, Lo = s & 1, (s & 1) ^ 1
            if o.fpre:
                nw = (6 if o.wr == 32 else 3) + 1
                e(f"s_waitcnt lgkmcnt({0 if s == 0 else nw})")
                e("v_cmp_gt_i32 vcc, s36, v5")
                e(f"s_cbranch_vccnz L_c_slow{s}")
                self.lab(f"L_c_ready{s}")
                slow.append(s)
            else:
                self.poll(9, 5, "s36", sleep=o.csleep)
            if s == 0:
                if o.prof and not o.cstamp:
                    self.stamp_now(24, "s37")
                pair_reads(0, 0)
            mark = len(self.L)
            pair_reads(Lo, 2 * (s + 1) * P)
            e(f"ds_read_b128 v[{XR}:{XR + 3}], v{AX} offset:{2 * s * P}")
            e(f"s_add_u32 s36, s36, {4 if s == 5 else 2}")
            inter = []
            if o.rdint and s > 0:
                inter = self.L[mark:]
                del self.L[mark:]
            seen = set()
            if s == 0:
                e("s_waitcnt lgkmcnt(5)")
            for k in ops[:10]:
                mf(k, SET[U] + 4 * int(k[0][1]), seen)
                if inter:
                    self.L.append(inter.pop(0))
            e("s_waitcnt lgkmcnt(0)")
            for k in ops[13:]:
                mf(k, SET[Lo] + 4 * int(k[0][1]), seen)
            for k in ops[10:13]:
                mf(k, XR, seen)
            e("v_add_u32 v10, 1, v10")
            if o.fpre:
                e("ds_read_b32 v5, v9")
            if s == 5:
                for r in (A1, A2, AX):
                    e(f"v_add_u32 v{r}, {STRIP}, v{r}")
                e("s_add_u32 s37, s37, 1")
                e("s_cmp_lt_u32 s37, 3")
            else:
                e("s_nop 4" if not o.fpre else "s_nop 3")
            for t in range(3):
                a = ACC(0, t)
                e(f"v_cvt_pk_bf16_f32 v{PK + 2 * t}, v{a}, v{a + 1}")
                e(f"v_cvt_pk_bf16_f32 v{PK + 2 * t + 1}, v{a + 2}, v{a + 3}")
                if o.wr == 32:
                    e(f"ds_write_b32 v{ST[t]}, v{PK + 2 * t} offset:{2 * s * P}")
                    e(f"ds_write_b32 v{ST[t]}, v{PK + 2 * t + 1} offset:{2 * s * P + 4}")
                else:
                    e(f"ds_write_b64 v{ST[t]}, v[{PK + 2 * t}:{PK + 2 * t + 1}] offset:{2 * s * P}")
            e("ds_write_b32 v8, v10")
            if s == 5:
                for t in range(3):
                    e(f"v_add_u32 v{ST[t]}, {STRIP}, v{ST[t]}")
        e("s_cbranch_scc1 L_c_loop")
        self.stamp()
        self.stamp_flush()
        self.lab("L_end")
        e("s_endpgm")
        for s in slow:
            self.lab(f"L_c_slow{s}")
            self.poll(9, 5, "s36", sleep=o.csleep)
            e(f"s_branch L_c_ready{s}")

    def loop_pipe(self, ops, W, SET, XR, ACC, PK, A1, A2, AX, ST):
        e, o = self.e, self.o
        for t in range(3):
            e(f"v_add_u32 v{ST[t]}, {FREE - 10 * P}, v{ST[t]}")
        e("s_mov_b32 s36, 6")
        e(f"s_mov_b32 s35, {-(FREE - 10 * P)}")
        self.poll(9, 5, 4)
        self.stamp()

        q = []

        def ds(tag, s):
            e(s)
            q.append(tag)

        def wait_for(tags):
            idx = max(q.index(t) for t in tags if t in q) if any(t in q for t in tags) else None
            if idx is None:
                return
            e(f"s_waitcnt lgkmcnt({len(q) - 1 - idx})")
            del q[: idx + 1]

        def rd(tag, reg, a, off):
            return ("ds", tag, f"ds_read_b128 v[{reg}:{reg + 3}], v{a} offset:{off}")

        def pair_reads(k, st):
            b = SET[st]
            return [rd(("P", k, 0), b, A1, 2 * k * P), rd(("P", k, 1), b + 4, A2, 2 * k * P),
                    rd(("P", k, 2), b + 8, A1, (2 * k + 1) * P), rd(("P", k, 3), b + 12, A2, (2 * k + 1) * P)]

        def epilogue(s, row):
            r = []
            for t in range(3):
                a = ACC(s, t)
                r.append(("v", None, f"v_cvt_pk_bf16_f32 v{PK + 2 * t}, v{a}, v{a + 1}"))
                if o.wr == 32:
                    r.append(("dw", ("W",), f"ds_write_b32 v{ST[t]}, v{PK + 2 * t} offset:{row * P}"))
                r.append(("v", None, f"v_cvt_pk_bf16_f32 v{PK + 2 * t + 1}, v{a + 2}, v{a + 3}"))
                if o.wr == 32:
                    r.append(("dw", ("W",), f"ds_write_b32 v{ST[t]}, v{PK + 2 * t + 1} offset:{row * P + 4}"))
                else:
                    r.append(("dw", ("W",), f"ds_write_b64 v{ST[t]}, v[{PK + 2 * t}:{PK + 2 * t + 1}] offset:{row * P}"))
            return r

        def emit(it):
            kind, tag, s = it
            if kind in ("ds", "dw"):
                ds(tag, s)
            else:
                e(s)

        for it in pair_reads(0, 0) + [rd(("X", 0), XR, AX, 0)]:
            emit(it)
        wait_for([("P", 0, 3)])
        q0 = list(q)
        self.lab("L_c_loop")
        slow = []
        for s in range(6):
            if o.prof and o.cstamp:
                e("s_mul_i32 s94, s37, 6")
                self.stamp_now(22 + s, "s94")
                self.stamp_now(40 + s, "s94", real=True)
                q.clear()
            U, Lo = s & 1, (s & 1) ^ 1
            acc = s & 1
            bU = lambda i: SET[U] + 4 * i
            bL = lambda i: SET[Lo] + 4 * i
            up = [(k, bU(int(k[0][1]))) for k in ops[:10]]
            xs = [(k, XR) for k in ops[10:13]]
            lo = [(k, bL(int(k[0][1]))) for k in ops[13:]]
            seq = up + xs + lo if s < 5 else lo + xs + up
            pinned = {g: [] for g in range(23)}
            if s < 5:
                pr = pair_reads(s + 2, U)
                xr = rd(("X", s + 1), XR, AX, 2 * (s + 1) * P)
            else:
                pr = pair_reads(0, Lo)
                xr = rd(("X", 0), XR, AX, 0)
            for i, it in enumerate(pr):
                pinned[10 + i].append(it)
            pinned[14].append(xr)
            pinned[0].append(("ds", ("F",), "ds_read_b32 v5, v9"))
            if s == 0:
                for i, it in enumerate(pair_reads(1, 1)):
                    pinned[1 + i].append(it)
            flow = epilogue(acc ^ 1, 2 * s - 2 if s else 10)
            flow += [("dw", ("W",), "ds_write_b32 v8, v10"), ("v", None, "v_add_u32 v10, 1, v10")]
            if s == 0:
                flow += [("v", None, f"v_add_u32 v{ST[t]}, s35, v{ST[t]}") for t in range(3)]
                flow += [("s", None, f"s_mov_b32 s35, {STRIP}")]
            if s == 5:
                pinned[0] += [("v", None, f"v_add_u32 v{AX}, s34, v{AX}")]
                pinned[1] += [("v", None, f"v_add_u32 v{A1}, s34, v{A1}"), ("v", None, f"v_add_u32 v{A2}, s34, v{A2}")]
                pinned[16] += [("s", None, "s_add_u32 s37, s37, 1"), ("s", None, "s_cmp_lt_u32 s37, 3")]
            if s == 4:
                pinned[21] += [("s", None, "s_cmp_lt_u32 s37, 2"), ("s", None, f"s_cselect_b32 s34, {STRIP}, 0")]
            pinned[15].append(("s", None, f"s_add_u32 s36, s36, {4 if s == 4 else 2}"))
            seen = set()
            start = o.estart
            for g, (k, b) in enumerate(seq):
                t = k[1]
                a = ACC(acc, t)
                cin = f"v[{a}:{a + 3}]" if t in seen else "0"
                seen.add(t)
                e(f"v_mfma_f32_16x16x32_bf16 v[{a}:{a + 3}], v[{W[k]}:{W[k] + 3}], v[{b}:{b + 3}], {cin}")
                cap = 2
                if g == 8:
                    need = [("F",), ("X", s)] + ([("P", s + 1, 3)] if 0 < s < 5 else [])
                    wait_for(need)
                    e("v_cmp_gt_i32 vcc, s36, v5")
                    cap = 0
                if g == 9:
                    e(f"s_cbranch_vccnz L_c_slow{s}")
                    self.lab(f"L_c_ready{s}")
                    slow.append(s)
                    cap -= 1
                if s == 0 and g == 12:
                    wait_for([("P", 1, 3)])
                    cap -= 1
                if s in (4, 5) and g == 22:
                    wait_for([("P", 6, 3)] if s == 4 else [("P", 0, 3)])
                    cap -= 1
                for it in pinned[g]:
                    emit(it)
                    cap -= 1
                while flow and g >= start and cap > 0:
                    pick = None
                    ndw = sum(1 for f in flow if f[0] == "dw")
                    for idx, f in enumerate(flow):
                        if f[0] == "dw":
                            src = re.findall(r"v\[?(\d+)", f[2])[1:]
                            dep = any(h[0] == "v" and "v_cvt" in h[2] for h in flow[:idx])
                            older = any(h[0] == "dw" for h in flow[:idx])
                            if cap >= 2 and not older and not any("v_cvt" in h[2] and re.match(r"v_cvt\S+ v(\d+)", h[2]).group(1) in self.srcs(f[2]) for h in flow[:idx]) and not (dep and "v8" in f[2]):
                                pick = idx
                                break
                    if pick is None:
                        for idx, f in enumerate(flow):
                            if f[0] != "dw" and ("v_cvt" in f[2] or ndw == 0):
                                pick = idx
                                break
                    if pick is None:
                        break
                    it = flow.pop(pick)
                    emit(it)
                    cap -= 2 if it[0] == "dw" else 1
            assert not flow, (s, flow)
        assert set(q0) <= set(q) or o.cstamp, (q, q0)
        e("s_cbranch_scc1 L_c_loop")
        e("s_nop 5")
        for it in epilogue(1, 10):
            e(it[2])
        e("ds_write_b32 v8, v10")
        self.stamp()
        self.stamp_flush()
        self.lab("L_end")
        e("s_endpgm")
        for s in slow:
            self.lab(f"L_c_slow{s}")
            self.poll(9, 5, "s36")
            e(f"s_branch L_c_ready{s}")

    @staticmethod
    def srcs(txt):
        m = re.search(r", v\[(\d+):(\d+)\]", txt)
        if m:
            return [str(r) for r in range(int(m.group(1)), int(m.group(2)) + 1)]
        return [re.search(r", v(\d+)", txt).group(1)]

    def check_mfma_hazards(self):
        L = [l.strip() for l in self.L]
        if "L_c_loop:" not in L:
            return
        i = L.index("L_c_loop:")
        j = max(k for k, l in enumerate(L) if l.startswith("s_cbranch_scc1 L_c_loop"))
        k = L.index("L_end:")
        for seqn in (L[i:j + 1] + L[i:j + 1], L[i:k]):
            pend = {}
            pos = 0
            for l in seqn:
                if l.endswith(":"):
                    continue
                regs = set()
                for m in re.finditer(r"v\[(\d+):(\d+)\]|v(\d+)", l.split(None, 1)[1] if " " in l else ""):
                    if m.group(3):
                        regs.add(int(m.group(3)))
                    else:
                        regs.update(range(int(m.group(1)), int(m.group(2)) + 1))
                if l.startswith("v_mfma"):
                    m = re.match(r"v_mfma\S+ v\[(\d+):(\d+)\]", l)
                    for r in range(int(m.group(1)), int(m.group(2)) + 1):
                        pend[r] = pos
                else:
                    for r in regs:
                        if r in pend:
                            assert pos - pend[r] - 1 >= 8, (l, pos - pend[r] - 1)
                m = re.match(r"s_nop (\d+)", l)
                pos += int(m.group(1)) + 1 if m else 1

    def build(self):
        self.prologue()
        self.helper()
        self.compute()
        self.check_mfma_hazards()
        if self.o.pad:
            i = self.L.index("L_c_loop:")
            j = max(k for k, l in enumerate(self.L) if "s_cbranch_scc1 L_c_loop" in l)
            body = []
            n = 0
            for l in self.L[i:j]:
                body.append(l)
                if "v_mfma" in l:
                    n += 1
                    if n % self.o.padk == 0:
                        if self.o.padmask == 7:
                            body.append(f"    s_nop {self.o.pad}")
                        elif n < 120:
                            body.append(f"    s_bitcmp1_b32 s44, s37")
                            body.append(f"    s_cbranch_scc0 L_pad{n}")
                            body.append(f"    s_nop {self.o.pad}")
                            body.append(f"L_pad{n}:")
            self.L = self.L[:i] + [f"    s_mov_b32 s44, {self.o.padmask}"] + body + self.L[j:]
        if self.o.drop:
            i = self.L.index("L_c_loop:")
            j = max(k for k, l in enumerate(self.L) if "s_cbranch_scc1 L_c_loop" in l)
            pats = self.o.drop.split(",")
            self.L = self.L[:i] + [l for l in self.L[i:j] if not any(l.strip().startswith(p) for p in pats)] + self.L[j:]
        return HEADER + "\n".join(self.L) + "\n" + FOOTER.format(vgpr=184, acc=184)


def main():
    p = argparse.ArgumentParser()
    p.add_argument("-o", default="-")
    p.add_argument("--prof", type=int, default=0)
    p.add_argument("--hflip", type=int, default=1)
    p.add_argument("--win", type=int, default=13)
    p.add_argument("--barpair", type=int, default=2)
    p.add_argument("--ldflags", default="nt")
    p.add_argument("--wflags", default="")
    p.add_argument("--stflags", default="sc0 sc1 nt")
    p.add_argument("--prio_loader", type=int, default=0)
    p.add_argument("--prio_comp", type=int, default=0)
    p.add_argument("--nocomp", type=int, default=0)
    p.add_argument("--noload", type=int, default=0)
    p.add_argument("--cstamp", type=int, default=0)
    p.add_argument("--drop", default="")
    p.add_argument("--wr", type=int, default=64)
    p.add_argument("--estart", type=int, default=2)
    p.add_argument("--diag", default="")
    p.add_argument("--now", type=int, default=0)
    p.add_argument("--stwait", type=int, default=0)
    p.add_argument("--stwin", type=int, default=0)
    p.add_argument("--pad", type=int, default=0)
    p.add_argument("--padk", type=int, default=1)
    p.add_argument("--padmask", type=int, default=7)
    p.add_argument("--fpre", type=int, default=0)
    p.add_argument("--csleep", type=int, default=1)
    p.add_argument("--eflag", type=int, default=0)
    p.add_argument("--rdint", type=int, default=0)
    p.add_argument("--sched", default="plain")
    p.add_argument("--stag", type=int, default=0)
    p.add_argument("--stagw", type=int, default=2)
    p.add_argument("--sleep", type=int, default=2)
    o = p.parse_args()
    s = Gen(o).build()
    if o.o == "-":
        sys.stdout.write(s)
    else:
        open(o.o, "w").write(s)


if __name__ == "__main__":
    main()
```

```python
import argparse
import re
import sys

ROWB = 73728
XBYTES = 28311552
WBYTES = 41472
P = 3584
STRIP = 14 * P
FREE = 3 * STRIP
LDS_TOTAL = 163840
FLAGS = LDS_TOTAL - 256
WREG = 2 * STRIP
WSZ = 12288

HEADER = """; Kernarg layout for this problem (40 bytes, ptrs only, base s[0:1]):
; @launch grid=(256,1,1) block=(512,1,1) lds=163840
.amdgcn_target "amdgcn-amd-amdhsa--gfx950"
.text
.globl standalone__grouped__vision_kernel
.p2align 8
.type standalone__grouped__vision_kernel,@function
standalone__grouped__vision_kernel:
"""

FOOTER = """.section .rodata,"a"
.p2align 6
.amdhsa_kernel standalone__grouped__vision_kernel
  .amdhsa_next_free_vgpr {vgpr}
  .amdhsa_next_free_sgpr 102
  .amdhsa_accum_offset {acc}
  .amdhsa_group_segment_fixed_size 0
  .amdhsa_kernarg_size 40
  .amdhsa_user_sgpr_count 2
  .amdhsa_user_sgpr_kernarg_segment_ptr 1
  .amdhsa_system_sgpr_workgroup_id_x 1
.end_amdhsa_kernel
"""

PV = 183


class Gen:
    def __init__(self, o):
        self.o = o
        self.L = []
        self.nstamp = 0
        self.nlab = 0

    def e(self, s):
        self.L.append("    " + s)

    def lab(self, s):
        self.L.append(s + ":")

    def newlab(self, p):
        self.nlab += 1
        return f"L_{p}{self.nlab}"

    def stamp(self):
        if not self.o.prof:
            return
        k = self.nstamp
        self.nstamp += 1
        assert k < 22
        self.e(f"s_memtime s[{46 + 2 * k}:{47 + 2 * k}]")

    def stamp_now(self, base, ctr, real=False):
        if not self.o.prof:
            return
        self.e("s_memrealtime s[96:97]" if real else "s_memtime s[96:97]")
        self.e("s_waitcnt lgkmcnt(0)")
        self.e("s_mov_b32 s95, m0")
        if isinstance(ctr, str):
            self.e(f"s_add_u32 m0, {ctr}, {base}")
        else:
            self.e(f"s_mov_b32 m0, {base + ctr}")
        self.e(f"v_writelane_b32 v{PV}, s96, m0")
        self.e("s_mov_b32 m0, s95")

    def stamp_flush(self):
        if not self.o.prof:
            return
        e = self.e
        e("s_mov_b64 exec, -1")
        e("s_waitcnt lgkmcnt(0)")
        e("s_load_dwordx2 s[40:41], s[0:1], 32")
        e("s_lshl_b32 s42, s2, 3")
        e("s_add_u32 s42, s42, s3")
        e("s_lshl_b32 s42, s42, 8")
        e("v_lshl_add_u32 v1, v0, 2, s42")
        for k in range(self.nstamp):
            e(f"v_writelane_b32 v{PV}, s{46 + 2 * k}, {k}")
        e(f"s_mov_b32 s42, {self.nstamp}")
        e(f"v_writelane_b32 v{PV}, s42, 63")
        e("s_getreg_b32 s42, hwreg(HW_REG_XCC_ID)")
        e(f"v_writelane_b32 v{PV}, s42, 62")
        e(f"v_writelane_b32 v{PV}, s92, 60")
        e("s_memrealtime s[92:93]")
        e("s_waitcnt lgkmcnt(0)")
        e(f"v_writelane_b32 v{PV}, s92, 59")
        e(f"global_store_dword v1, v{PV}, s[40:41]")

    def diag_mark(self, name):
        d = self.o.diag
        if d == name:
            self.e("s_memrealtime s[90:91]")
        if d == "c" + name:
            self.e("s_memtime s[90:91]")

    def diag_end(self):
        o, e = self.o, self.e
        if not o.diag:
            return
        e("s_waitcnt vmcnt(0) lgkmcnt(0)")
        self.diag_mark("end")
        e("s_waitcnt lgkmcnt(0)")
        if o.diag == "rt":
            e("s_mov_b32 s42, 0")
        elif o.diag.startswith("c"):
            e("s_sub_u32 s42, s90, s88")
            e("s_lshr_b32 s42, s42, 2")
        else:
            e("s_sub_u32 s42, s90, s92")
            e("s_mul_i32 s42, s42, 4")
        e("s_add_u32 s42, s42, 4000")
        self.lab("L_dg")
        e("s_memrealtime s[40:41]")
        e("s_waitcnt lgkmcnt(0)")
        e("s_sub_u32 s40, s40, s92")
        e("s_cmp_lt_u32 s40, s42")
        e("s_cbranch_scc1 L_dg")

    def poll(self, vaddr, vtmp, sneed, sleep=1):
        e = self.e
        l = self.newlab("poll")
        d = self.newlab("pdone")
        self.lab(l)
        e(f"ds_read_b32 v{vtmp}, v{vaddr}")
        e("s_waitcnt lgkmcnt(0)")
        e(f"v_cmp_gt_i32 vcc, {sneed}, v{vtmp}")
        e(f"s_cbranch_vccz {d}")
        if sleep:
            e(f"s_sleep {sleep}")
        e(f"s_branch {l}")
        self.lab(d)

    def prologue(self):
        e = self.e
        e("s_cmp_ge_u32 s2, 256")
        e("s_cbranch_scc1 L_end")
        e("s_load_dwordx4 s[4:7], s[0:1], 0")
        e("s_load_dwordx2 s[8:9], s[0:1], 16")
        if self.o.prof or self.o.diag:
            e("s_memrealtime s[92:93]")
        if self.o.diag:
            e("s_memtime s[88:89]")
        self.stamp()
        if self.o.prof:
            e(f"v_mov_b32 v{PV}, 0")
        e("v_lshrrev_b32 v1, 6, v0")
        e("v_and_b32 v0, 63, v0")
        e(f"v_mov_b32 v3, {FLAGS}")
        e("v_readfirstlane_b32 s3, v1")
        e("v_xor_b32 v2, 4, v1")
        e("v_lshl_add_u32 v8, v2, 2, v3")
        e("v_mov_b32 v2, 0")
        e("ds_write_b32 v8, v2")
        e("v_and_b32 v2, 3, v0")
        e("v_lshl_add_u32 v9, v2, 2, v3")
        e("s_bfe_u32 s26, s2, 0x10005")
        e("s_cmp_lt_u32 s3, 4")
        e("s_cbranch_scc1 L_compute")

    def helper(self):
        e, o = self.e, self.o
        self.lab("L_helper")
        if o.prio_loader:
            e(f"s_setprio {o.prio_loader}")
        Wn = o.win
        assert Wn % 2 == 1
        e("s_and_b32 s10, s2, 1")
        e("s_lshl_b32 s10, s10, 2")
        e("s_bfe_u32 s11, s2, 0x20003")
        e("s_add_u32 s10, s10, s11")
        e("s_bfe_u32 s11, s2, 0x20001")
        e("s_lshl_b32 s11, s11, 3")
        e("s_lshr_b32 s24, s2, 5")
        e("s_add_u32 s11, s11, s24")
        e("s_mul_i32 s25, s11, 12")
        e("s_and_b32 s30, s3, 3")
        e("s_mul_i32 s28, s30, 14")
        e("s_add_u32 s28, s28, 2")
        e("v_lshrrev_b32 v1, 2, v0")
        e("v_add_u32 v2, s28, v1")
        e("v_mul_u32_u24 v2, 171, v2")
        e("v_bfe_u32 v2, v2, 11, 2")
        e("v_xor_b32 v2, v2, v0")
        e("s_mul_i32 s33, s30, 896")
        e("v_lshl_add_u32 v10, v2, 4, s33")
        e("s_cmp_eq_u32 s26, 0")
        e("s_cselect_b32 s27, 1, -1")
        e("s_cselect_b32 s29, -1, 12")
        e(f"s_mul_i32 s27, s27, {ROWB}")
        e("s_add_i32 s29, s29, s25")
        e(f"s_mul_i32 s29, s29, {ROWB}")
        e("s_mul_i32 s24, s10, 9216")
        if o.hflip:
            e("s_and_b32 s28, s10, 1")
        else:
            e("s_and_b32 s28, s10, 0")
        e("s_cselect_b32 s35, -1, 1")
        e("s_mulk_i32 s35, 3072")
        e("s_mulk_i32 s28, 6144")
        e("s_add_u32 s24, s24, s28")
        e("s_mov_b32 s36, s24")
        e("s_cmp_eq_u32 s30, 3")
        e("s_cselect_b32 s28, 40, 0")
        e("s_cselect_b32 s43, 70656, -1")
        e("v_subrev_u32 v2, s28, v0")
        e("s_cmp_eq_u32 s30, 0")
        e("v_cmp_gt_u32 vcc, 16, v2")
        e("s_cselect_b32 s43, 0, s43")
        e("v_bfrev_b32 v3, 1")
        e(f"v_mov_b32 v6, {-(Wn - 1)}")
        e("v_cndmask_b32 v11, v10, v3, vcc")
        e("s_mov_b32 s37, 0")
        if o.stag:
            e(f"s_bfe_u32 s44, s2, {hex((o.stagw << 16) | 3)}")
            e(f"s_mul_i32 s44, s44, {o.stag}")
            e(f"s_add_u32 s44, s44, {o.barpair}")
        else:
            e(f"s_mov_b32 s44, {o.barpair}")
        if o.eflag:
            e("v_mov_b32 v7, 0")
        e("s_mov_b32 exec_hi, 0xffffff")
        e("s_waitcnt lgkmcnt(0)")
        e("s_sub_u32 s12, s4, 256")
        e("s_subb_u32 s13, s5, 0")
        e(f"s_mov_b32 s14, {XBYTES + 256}")
        e("s_mov_b32 s15, 0x20000")
        self.stamp()
        self.diag_mark("karg")
        fl = o.ldflags
        if o.noload:
            e("s_barrier")
            e("v_mov_b32 v2, 64")
            e("ds_write_b32 v8, v2")
            self.stamp_flush()
            e("s_endpgm")
        self.lab("L_strip")
        e("s_cmp_eq_u32 s36, s43")
        e("s_cselect_b64 s[38:39], -1, 0")
        e("s_mov_b32 s31, s29")
        e("s_mov_b32 s32, 0")
        e("v_cndmask_b32 v12, v10, v11, s[38:39]")
        self.lab("L_ld_loop")
        e("s_add_u32 s34, s31, s36")
        e("s_cmp_lt_i32 s31, 0")
        e("s_cselect_b32 s34, 0x40000000, s34")
        e("s_mov_b32 m0, s33")
        e("s_add_i32 s31, s31, s27")
        e(f"s_waitcnt vmcnt({Wn - 1})")
        e("ds_write_b32 v8, v7" if o.eflag else "ds_write_b32 v8, v6")
        e(f"buffer_load_dwordx4 v12, s[12:15], s34 offen {fl} lds")
        e("s_add_u32 s34, s31, s36")
        e(f"s_add_u32 m0, s33, {P}")
        e("s_add_i32 s31, s31, s27")
        e(f"s_waitcnt vmcnt({Wn - 1})")
        e(f"buffer_load_dwordx4 v12, s[12:15], s34 offen {fl} lds")
        e("v_add_u32 v6, 2, v6")
        if o.eflag:
            e("v_max_i32 v7, v7, v6")
        e(f"s_add_u32 s33, s33, {2 * P}")
        e("s_add_u32 s32, s32, 1")
        if o.prof and not o.cstamp:
            e("s_mul_i32 s94, s37, 7")
            e("s_add_u32 s94, s94, s32")
            self.stamp_now(23, "s94")
        e("s_sub_u32 s44, s44, 1")
        e("s_cmp_lg_u32 s44, 0")
        e("s_cbranch_scc1 L_ld_nobar")
        e("s_barrier")
        if o.eflag:
            e("v_mov_b32 v2, 4")
            e(f"s_waitcnt vmcnt({2 * o.barpair - 4})")
            e("ds_write_b32 v8, v2")
            e("v_max_i32 v7, 4, v6")
        self.lab("L_ld_nobar")
        e("s_cmp_lt_u32 s32, 7")
        e("s_cbranch_scc1 L_ld_loop")
        e("s_add_u32 s36, s36, s35")
        e("s_add_u32 s37, s37, 1")
        e("s_cmp_lt_u32 s37, 2")
        e("s_cbranch_scc1 L_strip")
        e("s_cmp_eq_u32 s37, 3")
        e("s_cbranch_scc1 L_ld_tail")
        e("v_add_u32 v4, 16, v9")
        self.poll(4, 5, 1)
        e("s_branch L_strip")
        self.lab("L_ld_tail")
        if o.prio_loader:
            e("s_setprio 0")
        e("s_mul_i32 s28, s30, 12")
        e("s_add_u32 s28, s28, 3")
        e("v_add_u32 v2, s28, v1")
        e("v_mul_u32_u24 v2, 171, v2")
        e("v_bfe_u32 v2, v2, 11, 2")
        e("v_xor_b32 v2, v2, v0")
        e("s_mul_i32 s33, s30, 768")
        e("s_add_u32 s28, s33, 64")
        e("v_lshl_add_u32 v10, v2, 4, s28")
        e("v_lshl_add_u32 v11, v0, 4, s33")
        e("s_cmp_eq_u32 s26, 0")
        e("s_cselect_b32 s29, 0, 11")
        e("s_add_i32 s29, s29, s25")
        e(f"s_mul_i32 s29, s29, {ROWB}")
        e("s_add_u32 s29, s29, s24")
        e("s_mov_b32 s20, s8")
        e("s_mov_b32 s21, s9")
        e(f"s_mov_b32 s22, {XBYTES}")
        e("s_mov_b32 s23, 0x20000")
        e("s_mov_b32 exec_hi, 0xffff")
        for v in range(42 - (Wn - 1), 43, 2):
            val = v if v < 42 else 64
            e(f"v_mov_b32 v2, {val}")
            e(f"s_waitcnt vmcnt({42 - v})")
            e("ds_write_b32 v8, v2")
        self.stamp()
        self.diag_mark("ldone")
        self.stamp_now(58, 0, real=True)
        if o.stwait:
            self.poll(4, 5, o.stwait, sleep=o.sleep)
        e("s_mov_b32 s37, 2")
        self.lab("L_st_strip")
        e("s_mov_b32 s31, s29")
        e("s_mov_b32 s32, 0")
        self.lab("L_st_loop")
        if not o.nocomp:
            e("v_cmp_gt_i32 vcc, s37, v5")
            e("s_cbranch_vccz L_st_go")
            self.poll(4, 5, "s37", sleep=o.sleep)
            self.lab("L_st_go")
        e("ds_read_b128 v[16:19], v10")
        e(f"ds_read_b128 v[20:23], v10 offset:{P}")
        e("s_add_i32 s34, s31, s27")
        e(f"v_add_u32 v10, {2 * P}, v10")
        e("s_add_u32 s37, s37, 1")
        e("s_add_u32 s32, s32, 1")
        if o.stwin:
            e(f"s_waitcnt vmcnt({o.stwin})")
        e("s_waitcnt lgkmcnt(1)")
        e(f"buffer_store_dwordx4 v[16:19], v11, s[20:23], s31 offen {o.stflags}")
        e("s_add_i32 s31, s34, s27")
        e("s_waitcnt lgkmcnt(0)")
        e(f"buffer_store_dwordx4 v[20:23], v11, s[20:23], s34 offen {o.stflags}")
        if o.prof and o.cstamp:
            self.stamp_now(22 - 3, "s37")
            self.stamp_now(40 - 3, "s37", real=True)
        elif o.prof:
            e("s_cmp_lt_u32 s37, 14")
            e("s_cbranch_scc1 L_nost")
            self.stamp_now(45 - 14, "s37")
            self.lab("L_nost")
        e("s_cmp_lt_u32 s32, 6")
        e("s_cbranch_scc1 L_st_loop")
        e("s_add_u32 s29, s29, s35")
        e(f"v_add_u32 v10, {2 * P}, v10")
        e("s_cmp_lt_u32 s37, 20")
        e("s_cbranch_scc1 L_st_strip")
        self.diag_mark("stiss")
        if o.prof:
            self.stamp()
            e("s_waitcnt vmcnt(0)")
            self.stamp()
        self.stamp_flush()
        self.diag_end()
        e("s_endpgm")

    def compute(self):
        e, o = self.e, self.o
        ops = [("U0", 0), ("U0", 1), ("U1", 0), ("U1", 1), ("U2", 0), ("U2", 1), ("U2", 2), ("U3", 0), ("U3", 1), ("U3", 2),
               ("X", 0), ("X", 1), ("X", 2),
               ("L0", 0), ("L0", 1), ("L0", 2), ("L1", 0), ("L1", 1), ("L1", 2), ("L2", 1), ("L2", 2), ("L3", 1), ("L3", 2)]
        W = {k: 16 + 4 * i for i, k in enumerate(ops)}
        SET = [108, 124]
        XR = 140
        ACC = lambda s, t: 144 + 12 * s + 4 * t
        PK = 168
        A1, A2, AX = 174, 175, 176
        ST = [177, 178, 179]
        self.lab("L_compute")
        self.nstamp = 1
        if o.prio_comp:
            e(f"s_setprio {o.prio_comp}")
        e("s_mul_i32 s28, s3, 1152")
        e("v_lshl_add_u32 v108, v0, 4, s28")
        e("s_movk_i32 s29, 3456")
        for i in range(1, 4):
            e(f"v_add_u32 v2, {64 * i}, v0")
            e("v_mul_u32_u24 v2, 911, v2")
            e("v_lshrrev_b32 v2, 16, v2")
            e(f"v_mad_u32_u24 v{108 + i}, v2, s29, v108")
        e("v_cmp_lt_u32 vcc, 23, v0")
        e("v_bfrev_b32 v3, 1")
        e(f"s_mul_i32 s33, s3, {WSZ}")
        e(f"s_add_u32 s33, s33, {WREG}")
        e("v_cndmask_b32 v111, v111, v3, vcc")
        e("s_mul_i32 s34, s26, 27648")
        e("s_movk_i32 s35, 13824")
        e("s_sub_u32 s36, 27648, s34")
        e("s_waitcnt lgkmcnt(0)")
        e("s_barrier")
        e("s_mov_b32 s16, s6")
        e("s_mov_b32 s17, s7")
        e(f"s_mov_b32 s18, {WBYTES}")
        e("s_mov_b32 s19, 0x20000")
        for p in range(3):
            e(f"s_add_u32 m0, s33, {4096 * p}")
            e("s_nop 0")
            for i in range(4):
                if not o.now:
                    e(f"buffer_load_dwordx4 v{108 + i}, s[16:19], s{34 + p} offen offset:{1024 * i} {o.wflags} lds")
        self.stamp()
        e("v_and_b32 v1, 15, v0")
        e("v_lshrrev_b32 v2, 4, v0")
        e("s_mul_i32 s28, s3, 3")
        e("v_and_b32 v3, 1, v2")
        e("v_lshrrev_b32 v4, 1, v2")
        e("v_cmp_gt_u32 vcc, 2, v2")
        e("s_movk_i32 s29, 192")
        e("s_movk_i32 s30, 1152")

        def baddr(dst, vdx, vcc_, tmp1, tmp2, extra=None):
            e(f"v_add_u32 v{tmp1}, {vdx}, v1")
            e(f"v_add_u32 v{tmp2}, 1, v{tmp1}")
            e(f"v_bfe_u32 v{tmp2}, v{tmp2}, 2, 2")
            e(f"v_mad_u32_u24 v{tmp1}, v{tmp1}, s29, 64")
            e(f"v_add_u32 v{dst}, s28, {vcc_}")
            e(f"v_xor_b32 v{dst}, v{dst}, v{tmp2}")
            e(f"v_lshl_add_u32 v{dst}, v{dst}, 4, v{tmp1}")
            if extra:
                e(f"v_add_u32 v{dst}, {extra}, v{dst}")

        e("v_cndmask_b32 v6, 2, v2, vcc")
        e("v_cndmask_b32 v7, v3, 2, vcc")
        baddr(A1, "v3", "v4", 11, 12)
        baddr(A2, "v6", "v7", 11, 12)
        e(f"v_mul_u32_u24 v13, {P}, v2")
        e("v_mov_b32 v14, 2")
        baddr(AX, "2", "v14", 11, 12, "v13")
        e("v_add_u32 v12, 1, v1")
        e("v_bfe_u32 v12, v12, 2, 2")
        e("v_mad_u32_u24 v11, v1, s29, 64")
        e("v_lshl_add_u32 v11, v3, 3, v11")
        e(f"v_add_u32 v13, {P}, v11")
        e("v_add_u32 v14, s28, v4")
        e("v_xor_b32 v15, v14, v12")
        e(f"v_lshl_add_u32 v{ST[0]}, v15, 4, v11")
        e("v_add_u32 v14, 1, v14")
        e("v_xor_b32 v15, v14, v12")
        e(f"v_lshl_add_u32 v{ST[2]}, v15, 4, v13")
        e("v_cndmask_b32 v14, 0, 2, vcc")
        e("v_cndmask_b32 v13, v13, v11, vcc")
        e("v_add_u32 v14, s28, v14")
        e("v_xor_b32 v15, v14, v12")
        e(f"v_lshl_add_u32 v{ST[1]}, v15, 4, v13")
        E1, E2, F1, F2, F1z, F2z, F1y, F2y, G0, G1, G2, Z = range(144, 156)
        e("v_bfe_u32 v11, v0, 2, 2")
        e("v_mul_u32_u24 v11, 48, v11")
        e("v_add_u32 v11, s33, v11")
        e("v_and_b32 v12, 3, v0")
        e("v_lshl_add_u32 v11, v12, 3, v11")
        e("v_mul_u32_u24 v13, 384, v4")
        e("v_mad_u32_u24 v13, v3, s30, v13")
        e("v_mul_u32_u24 v14, 384, v7")
        e("v_mad_u32_u24 v14, v6, s30, v14")
        e(f"v_add_u32 v{E1}, v11, v13")
        e(f"v_add_u32 v{E2}, v11, v14")
        e("v_cmp_lt_u32 vcc, 1, v12")
        e("s_add_u32 s30, s33, 3456")
        e(f"v_mov_b32 v{Z}, s30")
        e("v_mov_b32 v13, 32")
        e("v_mov_b32 v14, -4112")
        e("v_cndmask_b32 v13, v13, v14, vcc")
        e("v_cndmask_b32 v15, 0, 1, vcc")
        e(f"v_add_u32 v{F1}, v{E1}, v13")
        e(f"v_add_u32 v{F2}, v{E2}, v13")
        e(f"v_cndmask_b32 v{F1z}, v{F1}, v{Z}, vcc")
        e(f"v_cndmask_b32 v{F2z}, v{F2}, v{Z}, vcc")
        e(f"v_add_u32 v{F1y}, 12288, v{F1}")
        e(f"v_add_u32 v{F2y}, 12288, v{F2}")
        e(f"v_cndmask_b32 v{F1y}, v{Z}, v{F1y}, vcc")
        e(f"v_cndmask_b32 v{F2y}, v{Z}, v{F2y}, vcc")
        e("v_lshl_add_u32 v11, v2, 12, v11")
        e("v_add_u32 v11, 3072, v11")
        e("v_sub_u32 v15, v2, v15")
        e("v_cmp_gt_u32 vcc, 3, v15")
        e(f"v_add_u32 v{G1}, v11, v13")
        e(f"v_add_u32 v{G2}, -4080, v11")
        e(f"v_cndmask_b32 v{G1}, v{Z}, v{G1}, vcc")
        e("v_cmp_gt_u32 vcc, 3, v2")
        e("s_mov_b32 s37, 0")
        e("s_nop 0")
        e(f"v_cndmask_b32 v{G0}, v{Z}, v11, vcc")
        e("v_cmp_lt_u32 vcc, 0, v2")
        e("s_nop 0")
        e("v_mov_b32 v10, 1")
        e(f"v_cndmask_b32 v{G2}, v{Z}, v{G2}, vcc")

        def tr(key, a, off):
            w = W[key]
            e(f"ds_read_b64_tr_b16 v[{w}:{w + 1}], v{a} offset:{off}")
            e(f"ds_read_b64_tr_b16 v[{w + 2}:{w + 3}], v{a} offset:{off + 192}")

        e("s_waitcnt vmcnt(8)")
        self.stamp()
        tr(("U0", 0), E1, 0); tr(("U1", 0), E2, 0); tr(("U0", 1), F1z, 0); tr(("U1", 1), F2z, 0)
        tr(("U2", 2), E1, 16); tr(("U3", 2), E2, 16)
        e("s_waitcnt vmcnt(4)")
        tr(("U2", 0), E1, 4096); tr(("U3", 0), E2, 4096); tr(("U2", 1), F1, 4096); tr(("U3", 1), F2, 4096)
        tr(("L0", 2), E1, 4112); tr(("L1", 2), E2, 4112)
        e("s_waitcnt vmcnt(0)")
        self.stamp()
        tr(("X", 0), G0, 0); tr(("X", 1), G1, 0); tr(("X", 2), G2, 0)
        tr(("L0", 0), E1, 8192); tr(("L1", 0), E2, 8192); tr(("L0", 1), F1, 8192); tr(("L1", 1), F2, 8192)
        tr(("L2", 1), F1y, 0); tr(("L3", 1), F2y, 0); tr(("L2", 2), E1, 8208); tr(("L3", 2), E2, 8208)
        e("ds_write_b32 v8, v10")
        self.stamp()
        if o.nocomp:
            self.stamp_flush()
            self.lab("L_end")
            e("s_endpgm")
            return
        if o.gate:
            self.poll(9, 5, o.gate, sleep=o.gsleep)
        if o.sched == "pipe":
            self.loop_pipe(ops, W, SET, XR, ACC, PK, A1, A2, AX, ST)
        else:
            self.loop_plain(ops, W, SET, XR, ACC, PK, A1, A2, AX, ST)

    def loop_plain(self, ops, W, SET, XR, ACC, PK, A1, A2, AX, ST):
        e, o = self.e, self.o
        def mf(k, b, seen):
            t = k[1]
            a = ACC(0, t)
            cin = f"v[{a}:{a + 3}]" if t in seen else "0"
            seen.add(t)
            e(f"v_mfma_f32_16x16x32_bf16 v[{a}:{a + 3}], v[{W[k]}:{W[k] + 3}], v[{b}:{b + 3}], {cin}")

        def pair_reads(st, off):
            b = SET[st]
            e(f"ds_read_b128 v[{b}:{b + 3}], v{A1} offset:{off}")
            e(f"ds_read_b128 v[{b + 4}:{b + 7}], v{A2} offset:{off}")
            e(f"ds_read_b128 v[{b + 8}:{b + 11}], v{A1} offset:{off + P}")
            e(f"ds_read_b128 v[{b + 12}:{b + 15}], v{A2} offset:{off + P}")

        e("s_mov_b32 s36, 4")
        if o.fpre:
            e("ds_read_b32 v5, v9")
        self.lab("L_c_loop")
        slow = []
        for s in range(6):
            if o.prof and o.cstamp:
                e("s_mul_i32 s94, s37, 6")
                self.stamp_now(22 + s, "s94")
                self.stamp_now(40 + s, "s94", real=True)
            U, Lo = s & 1, (s & 1) ^ 1
            if o.fpre:
                nw = (6 if o.wr == 32 else 3) + 1
                e(f"s_waitcnt lgkmcnt({0 if s == 0 else nw})")
                e("v_cmp_gt_i32 vcc, s36, v5")
                e(f"s_cbranch_vccnz L_c_slow{s}")
                self.lab(f"L_c_ready{s}")
                slow.append(s)
            else:
                self.poll(9, 5, "s36", sleep=o.csleep)
            if s == 0:
                if o.prof and not o.cstamp:
                    self.stamp_now(24, "s37")
                pair_reads(0, 0)
            mark = len(self.L)
            pair_reads(Lo, 2 * (s + 1) * P)
            e(f"ds_read_b128 v[{XR}:{XR + 3}], v{AX} offset:{2 * s * P}")
            e(f"s_add_u32 s36, s36, {4 if s == 5 else 2}")
            inter = []
            if o.rdint and s > 0:
                inter = self.L[mark:]
                del self.L[mark:]
            seen = set()
            if s == 0:
                e("s_waitcnt lgkmcnt(5)")
            for k in ops[:10]:
                mf(k, SET[U] + 4 * int(k[0][1]), seen)
                if inter:
                    self.L.append(inter.pop(0))
            e("s_waitcnt lgkmcnt(0)")
            for k in ops[13:]:
                mf(k, SET[Lo] + 4 * int(k[0][1]), seen)
            for k in ops[10:13]:
                mf(k, XR, seen)
            e("v_add_u32 v10, 1, v10")
            if o.fpre:
                e("ds_read_b32 v5, v9")
            if s == 5:
                for r in (A1, A2, AX):
                    e(f"v_add_u32 v{r}, {STRIP}, v{r}")
                e("s_add_u32 s37, s37, 1")
                e("s_cmp_lt_u32 s37, 3")
            else:
                e("s_nop 4" if not o.fpre else "s_nop 3")
            for t in range(3):
                a = ACC(0, t)
                e(f"v_cvt_pk_bf16_f32 v{PK + 2 * t}, v{a}, v{a + 1}")
                e(f"v_cvt_pk_bf16_f32 v{PK + 2 * t + 1}, v{a + 2}, v{a + 3}")
                if o.wr == 32:
                    e(f"ds_write_b32 v{ST[t]}, v{PK + 2 * t} offset:{2 * s * P}")
                    e(f"ds_write_b32 v{ST[t]}, v{PK + 2 * t + 1} offset:{2 * s * P + 4}")
                else:
                    e(f"ds_write_b64 v{ST[t]}, v[{PK + 2 * t}:{PK + 2 * t + 1}] offset:{2 * s * P}")
            e("ds_write_b32 v8, v10")
            if s == 5:
                for t in range(3):
                    e(f"v_add_u32 v{ST[t]}, {STRIP}, v{ST[t]}")
        e("s_cbranch_scc1 L_c_loop")
        self.stamp()
        self.stamp_flush()
        self.lab("L_end")
        e("s_endpgm")
        for s in slow:
            self.lab(f"L_c_slow{s}")
            self.poll(9, 5, "s36", sleep=o.csleep)
            e(f"s_branch L_c_ready{s}")

    def loop_pipe(self, ops, W, SET, XR, ACC, PK, A1, A2, AX, ST):
        e, o = self.e, self.o
        for t in range(3):
            e(f"v_add_u32 v{ST[t]}, {FREE - 10 * P}, v{ST[t]}")
        e("s_mov_b32 s36, 6")
        e(f"s_mov_b32 s35, {-(FREE - 10 * P)}")
        self.poll(9, 5, 4)
        self.stamp()

        q = []

        def ds(tag, s):
            e(s)
            q.append(tag)

        def wait_for(tags):
            idx = max(q.index(t) for t in tags if t in q) if any(t in q for t in tags) else None
            if idx is None:
                return
            e(f"s_waitcnt lgkmcnt({len(q) - 1 - idx})")
            del q[: idx + 1]

        def rd(tag, reg, a, off):
            return ("ds", tag, f"ds_read_b128 v[{reg}:{reg + 3}], v{a} offset:{off}")

        def pair_reads(k, st):
            b = SET[st]
            return [rd(("P", k, 0), b, A1, 2 * k * P), rd(("P", k, 1), b + 4, A2, 2 * k * P),
                    rd(("P", k, 2), b + 8, A1, (2 * k + 1) * P), rd(("P", k, 3), b + 12, A2, (2 * k + 1) * P)]

        def epilogue(s, row):
            r = []
            for t in range(3):
                a = ACC(s, t)
                r.append(("v", None, f"v_cvt_pk_bf16_f32 v{PK + 2 * t}, v{a}, v{a + 1}"))
                if o.wr == 32:
                    r.append(("dw", ("W",), f"ds_write_b32 v{ST[t]}, v{PK + 2 * t} offset:{row * P}"))
                r.append(("v", None, f"v_cvt_pk_bf16_f32 v{PK + 2 * t + 1}, v{a + 2}, v{a + 3}"))
                if o.wr == 32:
                    r.append(("dw", ("W",), f"ds_write_b32 v{ST[t]}, v{PK + 2 * t + 1} offset:{row * P + 4}"))
                else:
                    r.append(("dw", ("W",), f"ds_write_b64 v{ST[t]}, v[{PK + 2 * t}:{PK + 2 * t + 1}] offset:{row * P}"))
            return r

        def emit(it):
            kind, tag, s = it
            if kind in ("ds", "dw"):
                ds(tag, s)
            else:
                e(s)

        for it in pair_reads(0, 0) + [rd(("X", 0), XR, AX, 0)]:
            emit(it)
        wait_for([("P", 0, 3)])
        q0 = list(q)
        self.lab("L_c_loop")
        slow = []
        for s in range(6):
            if o.prof and o.cstamp:
                e("s_mul_i32 s94, s37, 6")
                self.stamp_now(22 + s, "s94")
                self.stamp_now(40 + s, "s94", real=True)
                q.clear()
            U, Lo = s & 1, (s & 1) ^ 1
            acc = s & 1
            bU = lambda i: SET[U] + 4 * i
            bL = lambda i: SET[Lo] + 4 * i
            up = [(k, bU(int(k[0][1]))) for k in ops[:10]]
            xs = [(k, XR) for k in ops[10:13]]
            lo = [(k, bL(int(k[0][1]))) for k in ops[13:]]
            seq = up + xs + lo if s < 5 else lo + xs + up
            pinned = {g: [] for g in range(23)}
            if s < 5:
                pr = pair_reads(s + 2, U)
                xr = rd(("X", s + 1), XR, AX, 2 * (s + 1) * P)
            else:
                pr = pair_reads(0, Lo)
                xr = rd(("X", 0), XR, AX, 0)
            for i, it in enumerate(pr):
                pinned[10 + i].append(it)
            pinned[14].append(xr)
            pinned[0].append(("ds", ("F",), "ds_read_b32 v5, v9"))
            if s == 0:
                for i, it in enumerate(pair_reads(1, 1)):
                    pinned[1 + i].append(it)
            flow = epilogue(acc ^ 1, 2 * s - 2 if s else 10)
            flow += [("dw", ("W",), "ds_write_b32 v8, v10"), ("v", None, "v_add_u32 v10, 1, v10")]
            if s == 0:
                flow += [("v", None, f"v_add_u32 v{ST[t]}, s35, v{ST[t]}") for t in range(3)]
                flow += [("s", None, f"s_mov_b32 s35, {STRIP}")]
            if s == 5:
                pinned[0] += [("v", None, f"v_add_u32 v{AX}, s34, v{AX}")]
                pinned[1] += [("v", None, f"v_add_u32 v{A1}, s34, v{A1}"), ("v", None, f"v_add_u32 v{A2}, s34, v{A2}")]
                pinned[16] += [("s", None, "s_add_u32 s37, s37, 1"), ("s", None, "s_cmp_lt_u32 s37, 3")]
            if s == 4:
                pinned[21] += [("s", None, "s_cmp_lt_u32 s37, 2"), ("s", None, f"s_cselect_b32 s34, {STRIP}, 0")]
            pinned[15].append(("s", None, f"s_add_u32 s36, s36, {4 if s == 4 else 2}"))
            seen = set()
            start = o.estart
            for g, (k, b) in enumerate(seq):
                t = k[1]
                a = ACC(acc, t)
                cin = f"v[{a}:{a + 3}]" if t in seen else "0"
                seen.add(t)
                e(f"v_mfma_f32_16x16x32_bf16 v[{a}:{a + 3}], v[{W[k]}:{W[k] + 3}], v[{b}:{b + 3}], {cin}")
                cap = 2
                if g == 8:
                    need = [("F",), ("X", s)] + ([("P", s + 1, 3)] if 0 < s < 5 else [])
                    wait_for(need)
                    e("v_cmp_gt_i32 vcc, s36, v5")
                    cap = 0
                if g == 9:
                    e(f"s_cbranch_vccnz L_c_slow{s}")
                    self.lab(f"L_c_ready{s}")
                    slow.append(s)
                    cap -= 1
                if s == 0 and g == 12:
                    wait_for([("P", 1, 3)])
                    cap -= 1
                if s in (4, 5) and g == 22:
                    wait_for([("P", 6, 3)] if s == 4 else [("P", 0, 3)])
                    cap -= 1
                for it in pinned[g]:
                    emit(it)
                    cap -= 1
                while flow and g >= start and cap > 0:
                    pick = None
                    ndw = sum(1 for f in flow if f[0] == "dw")
                    for idx, f in enumerate(flow):
                        if f[0] == "dw":
                            src = re.findall(r"v\[?(\d+)", f[2])[1:]
                            dep = any(h[0] == "v" and "v_cvt" in h[2] for h in flow[:idx])
                            older = any(h[0] == "dw" for h in flow[:idx])
                            if cap >= 2 and not older and not any("v_cvt" in h[2] and re.match(r"v_cvt\S+ v(\d+)", h[2]).group(1) in self.srcs(f[2]) for h in flow[:idx]) and not (dep and "v8" in f[2]):
                                pick = idx
                                break
                    if pick is None:
                        for idx, f in enumerate(flow):
                            if f[0] != "dw" and ("v_cvt" in f[2] or ndw == 0):
                                pick = idx
                                break
                    if pick is None:
                        break
                    it = flow.pop(pick)
                    emit(it)
                    cap -= 2 if it[0] == "dw" else 1
            assert not flow, (s, flow)
        assert set(q0) <= set(q) or o.cstamp, (q, q0)
        e("s_cbranch_scc1 L_c_loop")
        e("s_nop 5")
        for it in epilogue(1, 10):
            e(it[2])
        e("ds_write_b32 v8, v10")
        self.stamp()
        self.stamp_flush()
        self.lab("L_end")
        e("s_endpgm")
        for s in slow:
            self.lab(f"L_c_slow{s}")
            self.poll(9, 5, "s36")
            e(f"s_branch L_c_ready{s}")

    @staticmethod
    def srcs(txt):
        m = re.search(r", v\[(\d+):(\d+)\]", txt)
        if m:
            return [str(r) for r in range(int(m.group(1)), int(m.group(2)) + 1)]
        return [re.search(r", v(\d+)", txt).group(1)]

    def check_mfma_hazards(self):
        L = [l.strip() for l in self.L]
        if "L_c_loop:" not in L:
            return
        i = L.index("L_c_loop:")
        j = max(k for k, l in enumerate(L) if l.startswith("s_cbranch_scc1 L_c_loop"))
        k = L.index("L_end:")
        for seqn in (L[i:j + 1] + L[i:j + 1], L[i:k]):
            pend = {}
            pos = 0
            for l in seqn:
                if l.endswith(":"):
                    continue
                regs = set()
                for m in re.finditer(r"v\[(\d+):(\d+)\]|v(\d+)", l.split(None, 1)[1] if " " in l else ""):
                    if m.group(3):
                        regs.add(int(m.group(3)))
                    else:
                        regs.update(range(int(m.group(1)), int(m.group(2)) + 1))
                if l.startswith("v_mfma"):
                    m = re.match(r"v_mfma\S+ v\[(\d+):(\d+)\]", l)
                    for r in range(int(m.group(1)), int(m.group(2)) + 1):
                        pend[r] = pos
                else:
                    for r in regs:
                        if r in pend:
                            assert pos - pend[r] - 1 >= 8, (l, pos - pend[r] - 1)
                m = re.match(r"s_nop (\d+)", l)
                pos += int(m.group(1)) + 1 if m else 1

    def build(self):
        self.prologue()
        self.helper()
        self.compute()
        self.check_mfma_hazards()
        if self.o.padper:
            ks = [int(x) for x in self.o.padper.split(",")]
            i = self.L.index("L_c_loop:")
            j = max(k for k, l in enumerate(self.L) if "s_cbranch_scc1 L_c_loop" in l)
            body = []
            n = 0
            for l in self.L[i:j]:
                body.append(l)
                if "v_mfma" in l:
                    n += 1
                    m = sum(1 << t for t in range(3) if ks[t] and n % ks[t] == 0)
                    if m and n < 128 and n not in (113, 114):
                        body.append(f"    s_bitcmp1_b32 {m}, s37")
                        body.append(f"    s_cbranch_scc0 L_pad{n}")
                        body.append(f"    s_nop 15")
                        body.append(f"L_pad{n}:")
            self.L = self.L[:i] + body + self.L[j:]
        if self.o.drop:
            i = self.L.index("L_c_loop:")
            j = max(k for k, l in enumerate(self.L) if "s_cbranch_scc1 L_c_loop" in l)
            pats = self.o.drop.split(",")
            self.L = self.L[:i] + [l for l in self.L[i:j] if not any(l.strip().startswith(p) for p in pats)] + self.L[j:]
        return HEADER + "\n".join(self.L) + "\n" + FOOTER.format(vgpr=184, acc=184)


def main():
    p = argparse.ArgumentParser()
    p.add_argument("-o", default="-")
    p.add_argument("--prof", type=int, default=0)
    p.add_argument("--hflip", type=int, default=1)
    p.add_argument("--win", type=int, default=13)
    p.add_argument("--barpair", type=int, default=2)
    p.add_argument("--ldflags", default="nt")
    p.add_argument("--wflags", default="")
    p.add_argument("--stflags", default="sc0 sc1 nt")
    p.add_argument("--prio_loader", type=int, default=0)
    p.add_argument("--prio_comp", type=int, default=0)
    p.add_argument("--nocomp", type=int, default=0)
    p.add_argument("--noload", type=int, default=0)
    p.add_argument("--cstamp", type=int, default=0)
    p.add_argument("--drop", default="")
    p.add_argument("--wr", type=int, default=64)
    p.add_argument("--estart", type=int, default=2)
    p.add_argument("--diag", default="")
    p.add_argument("--now", type=int, default=0)
    p.add_argument("--stwait", type=int, default=0)
    p.add_argument("--stwin", type=int, default=0)
    p.add_argument("--pad", type=int, default=0)
    p.add_argument("--padk", type=int, default=1)
    p.add_argument("--padmask", type=int, default=7)
    p.add_argument("--fpre", type=int, default=0)
    p.add_argument("--csleep", type=int, default=1)
    p.add_argument("--eflag", type=int, default=0)
    p.add_argument("--rdint", type=int, default=0)
    p.add_argument("--sched", default="plain")
    p.add_argument("--stag", type=int, default=0)
    p.add_argument("--stagw", type=int, default=2)
    p.add_argument("--gate", type=int, default=0)
    p.add_argument("--gsleep", type=int, default=4)
    p.add_argument("--padper", default="")
    p.add_argument("--sleep", type=int, default=2)
    o = p.parse_args()
    s = Gen(o).build()
    if o.o == "-":
        sys.stdout.write(s)
    else:
        open(o.o, "w").write(s)


if __name__ == "__main__":
    main()
```

```python
import argparse
import re
import sys

ROWB = 73728
XBYTES = 28311552
WBYTES = 41472
P = 3584
STRIP = 14 * P
FREE = 3 * STRIP
LDS_TOTAL = 163840
FLAGS = LDS_TOTAL - 256
WREG = 2 * STRIP
WSZ = 12288

HEADER = """; Kernarg layout for this problem (40 bytes, ptrs only, base s[0:1]):
; @launch grid=(256,1,1) block=(512,1,1) lds=163840
.amdgcn_target "amdgcn-amd-amdhsa--gfx950"
.text
.globl standalone__grouped__vision_kernel
.p2align 8
.type standalone__grouped__vision_kernel,@function
standalone__grouped__vision_kernel:
"""

FOOTER = """.section .rodata,"a"
.p2align 6
.amdhsa_kernel standalone__grouped__vision_kernel
  .amdhsa_next_free_vgpr {vgpr}
  .amdhsa_next_free_sgpr 102
  .amdhsa_accum_offset {acc}
  .amdhsa_group_segment_fixed_size 0
  .amdhsa_kernarg_size 40
  .amdhsa_user_sgpr_count 2
  .amdhsa_user_sgpr_kernarg_segment_ptr 1
  .amdhsa_system_sgpr_workgroup_id_x 1
.end_amdhsa_kernel
"""

PV = 183


class Gen:
    def __init__(self, o):
        self.o = o
        self.L = []
        self.nstamp = 0
        self.nlab = 0

    def e(self, s):
        self.L.append("    " + s)

    def lab(self, s):
        self.L.append(s + ":")

    def newlab(self, p):
        self.nlab += 1
        return f"L_{p}{self.nlab}"

    def stamp(self):
        if not self.o.prof:
            return
        k = self.nstamp
        self.nstamp += 1
        assert k < 22
        self.e(f"s_mem{'real' if self.o.prof == 2 else ''}time s[{46 + 2 * k}:{47 + 2 * k}]")

    def stamp_now(self, base, ctr, real=False):
        if not self.o.prof:
            return
        self.e("s_memrealtime s[96:97]" if real else "s_memtime s[96:97]")
        self.e("s_waitcnt lgkmcnt(0)")
        self.e("s_mov_b32 s95, m0")
        if isinstance(ctr, str):
            self.e(f"s_add_u32 m0, {ctr}, {base}")
        else:
            self.e(f"s_mov_b32 m0, {base + ctr}")
        self.e(f"v_writelane_b32 v{PV}, s96, m0")
        self.e("s_mov_b32 m0, s95")

    def stamp_flush(self):
        if not self.o.prof:
            return
        e = self.e
        e("s_mov_b64 exec, -1")
        e("s_waitcnt lgkmcnt(0)")
        e("s_load_dwordx2 s[40:41], s[0:1], 32")
        e("s_lshl_b32 s42, s2, 3")
        e("s_add_u32 s42, s42, s3")
        e("s_lshl_b32 s42, s42, 8")
        e("v_lshl_add_u32 v1, v0, 2, s42")
        for k in range(self.nstamp):
            e(f"v_writelane_b32 v{PV}, s{46 + 2 * k}, {k}")
        e(f"s_mov_b32 s42, {self.nstamp}")
        e(f"v_writelane_b32 v{PV}, s42, 63")
        e("s_getreg_b32 s42, hwreg(HW_REG_XCC_ID)")
        e(f"v_writelane_b32 v{PV}, s42, 62")
        e(f"v_writelane_b32 v{PV}, s92, 60")
        e("s_memrealtime s[92:93]")
        e("s_waitcnt lgkmcnt(0)")
        e(f"v_writelane_b32 v{PV}, s92, 59")
        e(f"global_store_dword v1, v{PV}, s[40:41]")

    def diag_mark(self, name):
        d = self.o.diag
        if d == name:
            self.e("s_memrealtime s[90:91]")
        if d == "c" + name:
            self.e("s_memtime s[90:91]")

    def diag_end(self):
        o, e = self.o, self.e
        if not o.diag:
            return
        e("s_waitcnt vmcnt(0) lgkmcnt(0)")
        self.diag_mark("end")
        e("s_waitcnt lgkmcnt(0)")
        if o.diag == "rt":
            e("s_mov_b32 s42, 0")
        elif o.diag.startswith("c"):
            e("s_sub_u32 s42, s90, s88")
            e("s_lshr_b32 s42, s42, 2")
        else:
            e("s_sub_u32 s42, s90, s92")
            e("s_mul_i32 s42, s42, 4")
        e("s_add_u32 s42, s42, 4000")
        self.lab("L_dg")
        e("s_memrealtime s[40:41]")
        e("s_waitcnt lgkmcnt(0)")
        e("s_sub_u32 s40, s40, s92")
        e("s_cmp_lt_u32 s40, s42")
        e("s_cbranch_scc1 L_dg")

    def poll(self, vaddr, vtmp, sneed, sleep=1):
        e = self.e
        l = self.newlab("poll")
        d = self.newlab("pdone")
        self.lab(l)
        e(f"ds_read_b32 v{vtmp}, v{vaddr}")
        e("s_waitcnt lgkmcnt(0)")
        e(f"v_cmp_gt_i32 vcc, {sneed}, v{vtmp}")
        e(f"s_cbranch_vccz {d}")
        if sleep:
            e(f"s_sleep {sleep}")
        e(f"s_branch {l}")
        self.lab(d)

    def prologue(self):
        e = self.e
        e("s_cmp_ge_u32 s2, 256")
        e("s_cbranch_scc1 L_end")
        e("s_load_dwordx4 s[4:7], s[0:1], 0")
        e("s_load_dwordx2 s[8:9], s[0:1], 16")
        if self.o.prof or self.o.diag:
            e("s_memrealtime s[92:93]")
        if self.o.diag:
            e("s_memtime s[88:89]")
        self.stamp()
        if self.o.prof:
            e(f"v_mov_b32 v{PV}, 0")
        e("v_lshrrev_b32 v1, 6, v0")
        e("v_and_b32 v0, 63, v0")
        e(f"v_mov_b32 v3, {FLAGS}")
        e("v_readfirstlane_b32 s3, v1")
        e("v_xor_b32 v2, 4, v1")
        e("v_lshl_add_u32 v8, v2, 2, v3")
        e("v_mov_b32 v2, 0")
        e("ds_write_b32 v8, v2")
        e("v_and_b32 v2, 3, v0")
        e("v_lshl_add_u32 v9, v2, 2, v3")
        e("s_bfe_u32 s26, s2, 0x10005")
        e("s_cmp_lt_u32 s3, 4")
        e("s_cbranch_scc1 L_compute")

    def helper(self):
        e, o = self.e, self.o
        self.lab("L_helper")
        if o.prio_loader:
            e(f"s_setprio {o.prio_loader}")
        Wn = o.win
        assert Wn % 2 == 1
        e("s_and_b32 s10, s2, 1")
        e("s_lshl_b32 s10, s10, 2")
        e("s_bfe_u32 s11, s2, 0x20003")
        e("s_add_u32 s10, s10, s11")
        e("s_bfe_u32 s11, s2, 0x20001")
        e("s_lshl_b32 s11, s11, 3")
        e("s_lshr_b32 s24, s2, 5")
        e("s_add_u32 s11, s11, s24")
        e("s_mul_i32 s25, s11, 12")
        e("s_and_b32 s30, s3, 3")
        e("s_mul_i32 s28, s30, 14")
        e("s_add_u32 s28, s28, 2")
        e("v_lshrrev_b32 v1, 2, v0")
        e("v_add_u32 v2, s28, v1")
        e("v_mul_u32_u24 v2, 171, v2")
        e("v_bfe_u32 v2, v2, 11, 2")
        e("v_xor_b32 v2, v2, v0")
        e("s_mul_i32 s33, s30, 896")
        e("v_lshl_add_u32 v10, v2, 4, s33")
        e("s_cmp_eq_u32 s26, 0")
        e("s_cselect_b32 s27, 1, -1")
        e("s_cselect_b32 s29, -1, 12")
        e(f"s_mul_i32 s27, s27, {ROWB}")
        e("s_add_i32 s29, s29, s25")
        e(f"s_mul_i32 s29, s29, {ROWB}")
        e("s_mul_i32 s24, s10, 9216")
        if o.hflip:
            e("s_and_b32 s28, s10, 1")
        else:
            e("s_and_b32 s28, s10, 0")
        e("s_cselect_b32 s35, -1, 1")
        e("s_mulk_i32 s35, 3072")
        e("s_mulk_i32 s28, 6144")
        e("s_add_u32 s24, s24, s28")
        e("s_mov_b32 s36, s24")
        e("s_cmp_eq_u32 s30, 3")
        e("s_cselect_b32 s28, 40, 0")
        e("s_cselect_b32 s43, 70656, -1")
        e("v_subrev_u32 v2, s28, v0")
        e("s_cmp_eq_u32 s30, 0")
        e("v_cmp_gt_u32 vcc, 16, v2")
        e("s_cselect_b32 s43, 0, s43")
        e("v_bfrev_b32 v3, 1")
        e(f"v_mov_b32 v6, {-(Wn - 1)}")
        e("v_cndmask_b32 v11, v10, v3, vcc")
        e("s_mov_b32 s37, 0")
        if o.stag:
            e(f"s_bfe_u32 s44, s2, {hex((o.stagw << 16) | 3)}")
            e(f"s_mul_i32 s44, s44, {o.stag}")
            e(f"s_add_u32 s44, s44, {o.barpair}")
        else:
            e(f"s_mov_b32 s44, {o.barpair}")
        if o.eflag:
            e("v_mov_b32 v7, 0")
        e("s_mov_b32 exec_hi, 0xffffff")
        e("s_waitcnt lgkmcnt(0)")
        e("s_sub_u32 s12, s4, 256")
        e("s_subb_u32 s13, s5, 0")
        e(f"s_mov_b32 s14, {XBYTES + 256}")
        e("s_mov_b32 s15, 0x20000")
        self.stamp()
        self.diag_mark("karg")
        fl = o.ldflags
        if o.noload:
            e("s_barrier")
            e("v_mov_b32 v2, 64")
            e("ds_write_b32 v8, v2")
            self.stamp_flush()
            e("s_endpgm")
        self.lab("L_strip")
        e("s_cmp_eq_u32 s36, s43")
        e("s_cselect_b64 s[38:39], -1, 0")
        e("s_mov_b32 s31, s29")
        e("s_mov_b32 s32, 0")
        e("v_cndmask_b32 v12, v10, v11, s[38:39]")
        self.lab("L_ld_loop")
        e("s_add_u32 s34, s31, s36")
        e("s_cmp_lt_i32 s31, 0")
        e("s_cselect_b32 s34, 0x40000000, s34")
        e("s_mov_b32 m0, s33")
        e("s_add_i32 s31, s31, s27")
        e(f"s_waitcnt vmcnt({Wn - 1})")
        e("ds_write_b32 v8, v7" if o.eflag else "ds_write_b32 v8, v6")
        e(f"buffer_load_dwordx4 v12, s[12:15], s34 offen {fl} lds")
        e("s_add_u32 s34, s31, s36")
        e(f"s_add_u32 m0, s33, {P}")
        e("s_add_i32 s31, s31, s27")
        e(f"s_waitcnt vmcnt({Wn - 1})")
        e(f"buffer_load_dwordx4 v12, s[12:15], s34 offen {fl} lds")
        e("v_add_u32 v6, 2, v6")
        if o.eflag:
            e("v_max_i32 v7, v7, v6")
        e(f"s_add_u32 s33, s33, {2 * P}")
        e("s_add_u32 s32, s32, 1")
        if o.prof == 1 and not o.cstamp:
            e("s_mul_i32 s94, s37, 7")
            e("s_add_u32 s94, s94, s32")
            self.stamp_now(23, "s94")
        e("s_sub_u32 s44, s44, 1")
        e("s_cmp_lg_u32 s44, 0")
        e("s_cbranch_scc1 L_ld_nobar")
        e("s_barrier")
        if o.eflag:
            e("v_mov_b32 v2, 4")
            e(f"s_waitcnt vmcnt({2 * o.barpair - 4})")
            e("ds_write_b32 v8, v2")
            e("v_max_i32 v7, 4, v6")
        self.lab("L_ld_nobar")
        e("s_cmp_lt_u32 s32, 7")
        e("s_cbranch_scc1 L_ld_loop")
        e("s_add_u32 s36, s36, s35")
        e("s_add_u32 s37, s37, 1")
        e("s_cmp_lt_u32 s37, 2")
        e("s_cbranch_scc1 L_strip")
        e("s_cmp_eq_u32 s37, 3")
        e("s_cbranch_scc1 L_ld_tail")
        e("v_add_u32 v4, 16, v9")
        self.poll(4, 5, 1)
        e("s_branch L_strip")
        self.lab("L_ld_tail")
        if o.prio_loader:
            e("s_setprio 0")
        e("s_mul_i32 s28, s30, 12")
        e("s_add_u32 s28, s28, 3")
        e("v_add_u32 v2, s28, v1")
        e("v_mul_u32_u24 v2, 171, v2")
        e("v_bfe_u32 v2, v2, 11, 2")
        e("v_xor_b32 v2, v2, v0")
        e("s_mul_i32 s33, s30, 768")
        e("s_add_u32 s28, s33, 64")
        e("v_lshl_add_u32 v10, v2, 4, s28")
        e("v_lshl_add_u32 v11, v0, 4, s33")
        e("s_cmp_eq_u32 s26, 0")
        e("s_cselect_b32 s29, 0, 11")
        e("s_add_i32 s29, s29, s25")
        e(f"s_mul_i32 s29, s29, {ROWB}")
        e("s_add_u32 s29, s29, s24")
        e("s_mov_b32 s20, s8")
        e("s_mov_b32 s21, s9")
        e(f"s_mov_b32 s22, {XBYTES}")
        e("s_mov_b32 s23, 0x20000")
        e("s_mov_b32 exec_hi, 0xffff")
        for v in range(42 - (Wn - 1), 43, 2):
            val = v if v < 42 else 64
            e(f"v_mov_b32 v2, {val}")
            e(f"s_waitcnt vmcnt({42 - v})")
            e("ds_write_b32 v8, v2")
        self.stamp()
        self.diag_mark("ldone")
        self.stamp_now(58, 0, real=True)
        if o.nostore:
            self.stamp_flush()
            e("s_endpgm")
        if o.stwait:
            self.poll(4, 5, o.stwait, sleep=o.sleep)
        e("s_mov_b32 s37, 2")
        self.lab("L_st_strip")
        e("s_mov_b32 s31, s29")
        e("s_mov_b32 s32, 0")
        self.lab("L_st_loop")
        if not o.nocomp:
            e("v_cmp_gt_i32 vcc, s37, v5")
            e("s_cbranch_vccz L_st_go")
            self.poll(4, 5, "s37", sleep=o.sleep)
            self.lab("L_st_go")
        e("ds_read_b128 v[16:19], v10")
        e(f"ds_read_b128 v[20:23], v10 offset:{P}")
        e("s_add_i32 s34, s31, s27")
        e(f"v_add_u32 v10, {2 * P}, v10")
        e("s_add_u32 s37, s37, 1")
        e("s_add_u32 s32, s32, 1")
        if o.stwin:
            e(f"s_waitcnt vmcnt({o.stwin})")
        e("s_waitcnt lgkmcnt(1)")
        e(f"buffer_store_dwordx4 v[16:19], v11, s[20:23], s31 offen {o.stflags}")
        e("s_add_i32 s31, s34, s27")
        e("s_waitcnt lgkmcnt(0)")
        e(f"buffer_store_dwordx4 v[20:23], v11, s[20:23], s34 offen {o.stflags}")
        if o.prof and o.cstamp:
            self.stamp_now(22 - 3, "s37")
            self.stamp_now(40 - 3, "s37", real=True)
        elif o.prof == 1:
            e("s_cmp_lt_u32 s37, 14")
            e("s_cbranch_scc1 L_nost")
            self.stamp_now(45 - 14, "s37")
            self.lab("L_nost")
        e("s_cmp_lt_u32 s32, 6")
        e("s_cbranch_scc1 L_st_loop")
        e("s_add_u32 s29, s29, s35")
        e(f"v_add_u32 v10, {2 * P}, v10")
        e("s_cmp_lt_u32 s37, 20")
        e("s_cbranch_scc1 L_st_strip")
        self.diag_mark("stiss")
        if o.prof:
            self.stamp()
            e("s_waitcnt vmcnt(0)")
            self.stamp()
        self.stamp_flush()
        self.diag_end()
        e("s_endpgm")

    def compute(self):
        e, o = self.e, self.o
        ops = [("U0", 0), ("U0", 1), ("U1", 0), ("U1", 1), ("U2", 0), ("U2", 1), ("U2", 2), ("U3", 0), ("U3", 1), ("U3", 2),
               ("X", 0), ("X", 1), ("X", 2),
               ("L0", 0), ("L0", 1), ("L0", 2), ("L1", 0), ("L1", 1), ("L1", 2), ("L2", 1), ("L2", 2), ("L3", 1), ("L3", 2)]
        W = {k: 16 + 4 * i for i, k in enumerate(ops)}
        SET = [108, 124]
        XR = 140
        ACC = lambda s, t: 144 + 12 * s + 4 * t
        PK = 168
        A1, A2, AX = 174, 175, 176
        ST = [177, 178, 179]
        self.lab("L_compute")
        self.nstamp = 1
        if o.prio_comp:
            e(f"s_setprio {o.prio_comp}")
        e("s_mul_i32 s28, s3, 1152")
        e("v_lshl_add_u32 v108, v0, 4, s28")
        e("s_movk_i32 s29, 3456")
        for i in range(1, 4):
            e(f"v_add_u32 v2, {64 * i}, v0")
            e("v_mul_u32_u24 v2, 911, v2")
            e("v_lshrrev_b32 v2, 16, v2")
            e(f"v_mad_u32_u24 v{108 + i}, v2, s29, v108")
        e("v_cmp_lt_u32 vcc, 23, v0")
        e("v_bfrev_b32 v3, 1")
        e(f"s_mul_i32 s33, s3, {WSZ}")
        e(f"s_add_u32 s33, s33, {WREG}")
        e("v_cndmask_b32 v111, v111, v3, vcc")
        e("s_mul_i32 s34, s26, 27648")
        e("s_movk_i32 s35, 13824")
        e("s_sub_u32 s36, 27648, s34")
        e("s_waitcnt lgkmcnt(0)")
        e("s_barrier")
        e("s_mov_b32 s16, s6")
        e("s_mov_b32 s17, s7")
        e(f"s_mov_b32 s18, {WBYTES}")
        e("s_mov_b32 s19, 0x20000")
        for p in range(3):
            e(f"s_add_u32 m0, s33, {4096 * p}")
            e("s_nop 0")
            for i in range(4):
                if not o.now:
                    e(f"buffer_load_dwordx4 v{108 + i}, s[16:19], s{34 + p} offen offset:{1024 * i} {o.wflags} lds")
        self.stamp()
        e("v_and_b32 v1, 15, v0")
        e("v_lshrrev_b32 v2, 4, v0")
        e("s_mul_i32 s28, s3, 3")
        e("v_and_b32 v3, 1, v2")
        e("v_lshrrev_b32 v4, 1, v2")
        e("v_cmp_gt_u32 vcc, 2, v2")
        e("s_movk_i32 s29, 192")
        e("s_movk_i32 s30, 1152")

        def baddr(dst, vdx, vcc_, tmp1, tmp2, extra=None):
            e(f"v_add_u32 v{tmp1}, {vdx}, v1")
            e(f"v_add_u32 v{tmp2}, 1, v{tmp1}")
            e(f"v_bfe_u32 v{tmp2}, v{tmp2}, 2, 2")
            e(f"v_mad_u32_u24 v{tmp1}, v{tmp1}, s29, 64")
            e(f"v_add_u32 v{dst}, s28, {vcc_}")
            e(f"v_xor_b32 v{dst}, v{dst}, v{tmp2}")
            e(f"v_lshl_add_u32 v{dst}, v{dst}, 4, v{tmp1}")
            if extra:
                e(f"v_add_u32 v{dst}, {extra}, v{dst}")

        e("v_cndmask_b32 v6, 2, v2, vcc")
        e("v_cndmask_b32 v7, v3, 2, vcc")
        baddr(A1, "v3", "v4", 11, 12)
        baddr(A2, "v6", "v7", 11, 12)
        e(f"v_mul_u32_u24 v13, {P}, v2")
        e("v_mov_b32 v14, 2")
        baddr(AX, "2", "v14", 11, 12, "v13")
        e("v_add_u32 v12, 1, v1")
        e("v_bfe_u32 v12, v12, 2, 2")
        e("v_mad_u32_u24 v11, v1, s29, 64")
        e("v_lshl_add_u32 v11, v3, 3, v11")
        e(f"v_add_u32 v13, {P}, v11")
        e("v_add_u32 v14, s28, v4")
        e("v_xor_b32 v15, v14, v12")
        e(f"v_lshl_add_u32 v{ST[0]}, v15, 4, v11")
        e("v_add_u32 v14, 1, v14")
        e("v_xor_b32 v15, v14, v12")
        e(f"v_lshl_add_u32 v{ST[2]}, v15, 4, v13")
        e("v_cndmask_b32 v14, 0, 2, vcc")
        e("v_cndmask_b32 v13, v13, v11, vcc")
        e("v_add_u32 v14, s28, v14")
        e("v_xor_b32 v15, v14, v12")
        e(f"v_lshl_add_u32 v{ST[1]}, v15, 4, v13")
        E1, E2, F1, F2, F1z, F2z, F1y, F2y, G0, G1, G2, Z = range(144, 156)
        e("v_bfe_u32 v11, v0, 2, 2")
        e("v_mul_u32_u24 v11, 48, v11")
        e("v_add_u32 v11, s33, v11")
        e("v_and_b32 v12, 3, v0")
        e("v_lshl_add_u32 v11, v12, 3, v11")
        e("v_mul_u32_u24 v13, 384, v4")
        e("v_mad_u32_u24 v13, v3, s30, v13")
        e("v_mul_u32_u24 v14, 384, v7")
        e("v_mad_u32_u24 v14, v6, s30, v14")
        e(f"v_add_u32 v{E1}, v11, v13")
        e(f"v_add_u32 v{E2}, v11, v14")
        e("v_cmp_lt_u32 vcc, 1, v12")
        e("s_add_u32 s30, s33, 3456")
        e(f"v_mov_b32 v{Z}, s30")
        e("v_mov_b32 v13, 32")
        e("v_mov_b32 v14, -4112")
        e("v_cndmask_b32 v13, v13, v14, vcc")
        e("v_cndmask_b32 v15, 0, 1, vcc")
        e(f"v_add_u32 v{F1}, v{E1}, v13")
        e(f"v_add_u32 v{F2}, v{E2}, v13")
        e(f"v_cndmask_b32 v{F1z}, v{F1}, v{Z}, vcc")
        e(f"v_cndmask_b32 v{F2z}, v{F2}, v{Z}, vcc")
        e(f"v_add_u32 v{F1y}, 12288, v{F1}")
        e(f"v_add_u32 v{F2y}, 12288, v{F2}")
        e(f"v_cndmask_b32 v{F1y}, v{Z}, v{F1y}, vcc")
        e(f"v_cndmask_b32 v{F2y}, v{Z}, v{F2y}, vcc")
        e("v_lshl_add_u32 v11, v2, 12, v11")
        e("v_add_u32 v11, 3072, v11")
        e("v_sub_u32 v15, v2, v15")
        e("v_cmp_gt_u32 vcc, 3, v15")
        e(f"v_add_u32 v{G1}, v11, v13")
        e(f"v_add_u32 v{G2}, -4080, v11")
        e(f"v_cndmask_b32 v{G1}, v{Z}, v{G1}, vcc")
        e("v_cmp_gt_u32 vcc, 3, v2")
        e("s_mov_b32 s37, 0")
        e("s_nop 0")
        e(f"v_cndmask_b32 v{G0}, v{Z}, v11, vcc")
        e("v_cmp_lt_u32 vcc, 0, v2")
        e("s_nop 0")
        e("v_mov_b32 v10, 1")
        e(f"v_cndmask_b32 v{G2}, v{Z}, v{G2}, vcc")

        def tr(key, a, off):
            w = W[key]
            e(f"ds_read_b64_tr_b16 v[{w}:{w + 1}], v{a} offset:{off}")
            e(f"ds_read_b64_tr_b16 v[{w + 2}:{w + 3}], v{a} offset:{off + 192}")

        e("s_waitcnt vmcnt(8)")
        self.stamp()
        tr(("U0", 0), E1, 0); tr(("U1", 0), E2, 0); tr(("U0", 1), F1z, 0); tr(("U1", 1), F2z, 0)
        tr(("U2", 2), E1, 16); tr(("U3", 2), E2, 16)
        e("s_waitcnt vmcnt(4)")
        tr(("U2", 0), E1, 4096); tr(("U3", 0), E2, 4096); tr(("U2", 1), F1, 4096); tr(("U3", 1), F2, 4096)
        tr(("L0", 2), E1, 4112); tr(("L1", 2), E2, 4112)
        e("s_waitcnt vmcnt(0)")
        self.stamp()
        tr(("X", 0), G0, 0); tr(("X", 1), G1, 0); tr(("X", 2), G2, 0)
        tr(("L0", 0), E1, 8192); tr(("L1", 0), E2, 8192); tr(("L0", 1), F1, 8192); tr(("L1", 1), F2, 8192)
        tr(("L2", 1), F1y, 0); tr(("L3", 1), F2y, 0); tr(("L2", 2), E1, 8208); tr(("L3", 2), E2, 8208)
        e("ds_write_b32 v8, v10")
        self.stamp()
        if o.nocomp:
            self.stamp_flush()
            self.lab("L_end")
            e("s_endpgm")
            return
        if o.gate:
            self.poll(9, 5, o.gate, sleep=o.gsleep)
        if o.sched == "pipe":
            self.loop_pipe(ops, W, SET, XR, ACC, PK, A1, A2, AX, ST)
        else:
            self.loop_plain(ops, W, SET, XR, ACC, PK, A1, A2, AX, ST)

    def loop_plain(self, ops, W, SET, XR, ACC, PK, A1, A2, AX, ST):
        e, o = self.e, self.o
        def mf(k, b, seen):
            t = k[1]
            a = ACC(0, t)
            cin = f"v[{a}:{a + 3}]" if t in seen else "0"
            seen.add(t)
            e(f"v_mfma_f32_16x16x32_bf16 v[{a}:{a + 3}], v[{W[k]}:{W[k] + 3}], v[{b}:{b + 3}], {cin}")

        def pair_reads(st, off):
            b = SET[st]
            e(f"ds_read_b128 v[{b}:{b + 3}], v{A1} offset:{off}")
            e(f"ds_read_b128 v[{b + 4}:{b + 7}], v{A2} offset:{off}")
            e(f"ds_read_b128 v[{b + 8}:{b + 11}], v{A1} offset:{off + P}")
            e(f"ds_read_b128 v[{b + 12}:{b + 15}], v{A2} offset:{off + P}")

        e("s_mov_b32 s36, 4")
        if o.fpre:
            e("ds_read_b32 v5, v9")
        self.lab("L_c_loop")
        slow = []
        for s in range(6):
            if o.prof and o.cstamp:
                e("s_mul_i32 s94, s37, 6")
                self.stamp_now(22 + s, "s94")
                self.stamp_now(40 + s, "s94", real=True)
            U, Lo = s & 1, (s & 1) ^ 1
            if o.fpre:
                nw = (6 if o.wr == 32 else 3) + 1
                e(f"s_waitcnt lgkmcnt({0 if s == 0 else nw})")
                e("v_cmp_gt_i32 vcc, s36, v5")
                e(f"s_cbranch_vccnz L_c_slow{s}")
                self.lab(f"L_c_ready{s}")
                slow.append(s)
            else:
                self.poll(9, 5, "s36", sleep=o.csleep)
            if s == 0:
                if o.prof and not o.cstamp:
                    self.stamp_now(24, "s37", real=(o.prof == 2))
                pair_reads(0, 0)
            mark = len(self.L)
            pair_reads(Lo, 2 * (s + 1) * P)
            e(f"ds_read_b128 v[{XR}:{XR + 3}], v{AX} offset:{2 * s * P}")
            e(f"s_add_u32 s36, s36, {4 if s == 5 else 2}")
            inter = []
            if o.rdint and s > 0:
                inter = self.L[mark:]
                del self.L[mark:]
            seen = set()
            if s == 0:
                e("s_waitcnt lgkmcnt(5)")
            for k in ops[:10]:
                mf(k, SET[U] + 4 * int(k[0][1]), seen)
                if inter:
                    self.L.append(inter.pop(0))
            e("s_waitcnt lgkmcnt(0)")
            for k in ops[13:]:
                mf(k, SET[Lo] + 4 * int(k[0][1]), seen)
            for k in ops[10:13]:
                mf(k, XR, seen)
            e("v_add_u32 v10, 1, v10")
            if o.fpre:
                e("ds_read_b32 v5, v9")
            if s == 5:
                for r in (A1, A2, AX):
                    e(f"v_add_u32 v{r}, {STRIP}, v{r}")
                e("s_add_u32 s37, s37, 1")
                e("s_cmp_lt_u32 s37, 3")
            else:
                e("s_nop 4" if not o.fpre else "s_nop 3")
            for t in range(3):
                a = ACC(0, t)
                e(f"v_cvt_pk_bf16_f32 v{PK + 2 * t}, v{a}, v{a + 1}")
                e(f"v_cvt_pk_bf16_f32 v{PK + 2 * t + 1}, v{a + 2}, v{a + 3}")
                if o.wr == 32:
                    e(f"ds_write_b32 v{ST[t]}, v{PK + 2 * t} offset:{2 * s * P}")
                    e(f"ds_write_b32 v{ST[t]}, v{PK + 2 * t + 1} offset:{2 * s * P + 4}")
                else:
                    e(f"ds_write_b64 v{ST[t]}, v[{PK + 2 * t}:{PK + 2 * t + 1}] offset:{2 * s * P}")
            e("ds_write_b32 v8, v10")
            if s == 5:
                for t in range(3):
                    e(f"v_add_u32 v{ST[t]}, {STRIP}, v{ST[t]}")
        e("s_cbranch_scc1 L_c_loop")
        self.stamp()
        self.stamp_flush()
        self.lab("L_end")
        e("s_endpgm")
        for s in slow:
            self.lab(f"L_c_slow{s}")
            self.poll(9, 5, "s36", sleep=o.csleep)
            e(f"s_branch L_c_ready{s}")

    def loop_pipe(self, ops, W, SET, XR, ACC, PK, A1, A2, AX, ST):
        e, o = self.e, self.o
        for t in range(3):
            e(f"v_add_u32 v{ST[t]}, {FREE - 10 * P}, v{ST[t]}")
        e("s_mov_b32 s36, 6")
        e(f"s_mov_b32 s35, {-(FREE - 10 * P)}")
        self.poll(9, 5, 4)
        self.stamp()

        q = []

        def ds(tag, s):
            e(s)
            q.append(tag)

        def wait_for(tags):
            idx = max(q.index(t) for t in tags if t in q) if any(t in q for t in tags) else None
            if idx is None:
                return
            e(f"s_waitcnt lgkmcnt({len(q) - 1 - idx})")
            del q[: idx + 1]

        def rd(tag, reg, a, off):
            return ("ds", tag, f"ds_read_b128 v[{reg}:{reg + 3}], v{a} offset:{off}")

        def pair_reads(k, st):
            b = SET[st]
            return [rd(("P", k, 0), b, A1, 2 * k * P), rd(("P", k, 1), b + 4, A2, 2 * k * P),
                    rd(("P", k, 2), b + 8, A1, (2 * k + 1) * P), rd(("P", k, 3), b + 12, A2, (2 * k + 1) * P)]

        def epilogue(s, row):
            r = []
            for t in range(3):
                a = ACC(s, t)
                r.append(("v", None, f"v_cvt_pk_bf16_f32 v{PK + 2 * t}, v{a}, v{a + 1}"))
                if o.wr == 32:
                    r.append(("dw", ("W",), f"ds_write_b32 v{ST[t]}, v{PK + 2 * t} offset:{row * P}"))
                r.append(("v", None, f"v_cvt_pk_bf16_f32 v{PK + 2 * t + 1}, v{a + 2}, v{a + 3}"))
                if o.wr == 32:
                    r.append(("dw", ("W",), f"ds_write_b32 v{ST[t]}, v{PK + 2 * t + 1} offset:{row * P + 4}"))
                else:
                    r.append(("dw", ("W",), f"ds_write_b64 v{ST[t]}, v[{PK + 2 * t}:{PK + 2 * t + 1}] offset:{row * P}"))
            return r

        def emit(it):
            kind, tag, s = it
            if kind in ("ds", "dw"):
                ds(tag, s)
            else:
                e(s)

        for it in pair_reads(0, 0) + [rd(("X", 0), XR, AX, 0)]:
            emit(it)
        wait_for([("P", 0, 3)])
        q0 = list(q)
        self.lab("L_c_loop")
        slow = []
        for s in range(6):
            if o.prof and o.cstamp:
                e("s_mul_i32 s94, s37, 6")
                self.stamp_now(22 + s, "s94")
                self.stamp_now(40 + s, "s94", real=True)
                q.clear()
            U, Lo = s & 1, (s & 1) ^ 1
            acc = s & 1
            bU = lambda i: SET[U] + 4 * i
            bL = lambda i: SET[Lo] + 4 * i
            up = [(k, bU(int(k[0][1]))) for k in ops[:10]]
            xs = [(k, XR) for k in ops[10:13]]
            lo = [(k, bL(int(k[0][1]))) for k in ops[13:]]
            seq = up + xs + lo if s < 5 else lo + xs + up
            pinned = {g: [] for g in range(23)}
            if s < 5:
                pr = pair_reads(s + 2, U)
                xr = rd(("X", s + 1), XR, AX, 2 * (s + 1) * P)
            else:
                pr = pair_reads(0, Lo)
                xr = rd(("X", 0), XR, AX, 0)
            for i, it in enumerate(pr):
                pinned[10 + i].append(it)
            pinned[14].append(xr)
            pinned[0].append(("ds", ("F",), "ds_read_b32 v5, v9"))
            if s == 0:
                for i, it in enumerate(pair_reads(1, 1)):
                    pinned[1 + i].append(it)
            flow = epilogue(acc ^ 1, 2 * s - 2 if s else 10)
            flow += [("dw", ("W",), "ds_write_b32 v8, v10"), ("v", None, "v_add_u32 v10, 1, v10")]
            if s == 0:
                flow += [("v", None, f"v_add_u32 v{ST[t]}, s35, v{ST[t]}") for t in range(3)]
                flow += [("s", None, f"s_mov_b32 s35, {STRIP}")]
            if s == 5:
                pinned[0] += [("v", None, f"v_add_u32 v{AX}, s34, v{AX}")]
                pinned[1] += [("v", None, f"v_add_u32 v{A1}, s34, v{A1}"), ("v", None, f"v_add_u32 v{A2}, s34, v{A2}")]
                pinned[16] += [("s", None, "s_add_u32 s37, s37, 1"), ("s", None, "s_cmp_lt_u32 s37, 3")]
            if s == 4:
                pinned[21] += [("s", None, "s_cmp_lt_u32 s37, 2"), ("s", None, f"s_cselect_b32 s34, {STRIP}, 0")]
            pinned[15].append(("s", None, f"s_add_u32 s36, s36, {4 if s == 4 else 2}"))
            seen = set()
            start = o.estart
            for g, (k, b) in enumerate(seq):
                t = k[1]
                a = ACC(acc, t)
                cin = f"v[{a}:{a + 3}]" if t in seen else "0"
                seen.add(t)
                e(f"v_mfma_f32_16x16x32_bf16 v[{a}:{a + 3}], v[{W[k]}:{W[k] + 3}], v[{b}:{b + 3}], {cin}")
                cap = 2
                if g == 8:
                    need = [("F",), ("X", s)] + ([("P", s + 1, 3)] if 0 < s < 5 else [])
                    wait_for(need)
                    e("v_cmp_gt_i32 vcc, s36, v5")
                    cap = 0
                if g == 9:
                    e(f"s_cbranch_vccnz L_c_slow{s}")
                    self.lab(f"L_c_ready{s}")
                    slow.append(s)
                    cap -= 1
                if s == 0 and g == 12:
                    wait_for([("P", 1, 3)])
                    cap -= 1
                if s in (4, 5) and g == 22:
                    wait_for([("P", 6, 3)] if s == 4 else [("P", 0, 3)])
                    cap -= 1
                for it in pinned[g]:
                    emit(it)
                    cap -= 1
                while flow and g >= start and cap > 0:
                    pick = None
                    ndw = sum(1 for f in flow if f[0] == "dw")
                    for idx, f in enumerate(flow):
                        if f[0] == "dw":
                            src = re.findall(r"v\[?(\d+)", f[2])[1:]
                            dep = any(h[0] == "v" and "v_cvt" in h[2] for h in flow[:idx])
                            older = any(h[0] == "dw" for h in flow[:idx])
                            if cap >= 2 and not older and not any("v_cvt" in h[2] and re.match(r"v_cvt\S+ v(\d+)", h[2]).group(1) in self.srcs(f[2]) for h in flow[:idx]) and not (dep and "v8" in f[2]):
                                pick = idx
                                break
                    if pick is None:
                        for idx, f in enumerate(flow):
                            if f[0] != "dw" and ("v_cvt" in f[2] or ndw == 0):
                                pick = idx
                                break
                    if pick is None:
                        break
                    it = flow.pop(pick)
                    emit(it)
                    cap -= 2 if it[0] == "dw" else 1
            assert not flow, (s, flow)
        assert set(q0) <= set(q) or o.cstamp, (q, q0)
        e("s_cbranch_scc1 L_c_loop")
        e("s_nop 5")
        for it in epilogue(1, 10):
            e(it[2])
        e("ds_write_b32 v8, v10")
        self.stamp()
        self.stamp_flush()
        self.lab("L_end")
        e("s_endpgm")
        for s in slow:
            self.lab(f"L_c_slow{s}")
            self.poll(9, 5, "s36")
            e(f"s_branch L_c_ready{s}")

    @staticmethod
    def srcs(txt):
        m = re.search(r", v\[(\d+):(\d+)\]", txt)
        if m:
            return [str(r) for r in range(int(m.group(1)), int(m.group(2)) + 1)]
        return [re.search(r", v(\d+)", txt).group(1)]

    def check_mfma_hazards(self):
        L = [l.strip() for l in self.L]
        if "L_c_loop:" not in L:
            return
        i = L.index("L_c_loop:")
        j = max(k for k, l in enumerate(L) if l.startswith("s_cbranch_scc1 L_c_loop"))
        k = L.index("L_end:")
        for seqn in (L[i:j + 1] + L[i:j + 1], L[i:k]):
            pend = {}
            pos = 0
            for l in seqn:
                if l.endswith(":"):
                    continue
                regs = set()
                for m in re.finditer(r"v\[(\d+):(\d+)\]|v(\d+)", l.split(None, 1)[1] if " " in l else ""):
                    if m.group(3):
                        regs.add(int(m.group(3)))
                    else:
                        regs.update(range(int(m.group(1)), int(m.group(2)) + 1))
                if l.startswith("v_mfma"):
                    m = re.match(r"v_mfma\S+ v\[(\d+):(\d+)\]", l)
                    for r in range(int(m.group(1)), int(m.group(2)) + 1):
                        pend[r] = pos
                else:
                    for r in regs:
                        if r in pend:
                            assert pos - pend[r] - 1 >= 8, (l, pos - pend[r] - 1)
                m = re.match(r"s_nop (\d+)", l)
                pos += int(m.group(1)) + 1 if m else 1

    def build(self):
        self.prologue()
        self.helper()
        self.compute()
        self.check_mfma_hazards()
        if self.o.padper:
            ks = [int(x) for x in self.o.padper.split(",")]
            i = self.L.index("L_c_loop:")
            j = max(k for k, l in enumerate(self.L) if "s_cbranch_scc1 L_c_loop" in l)
            body = []
            n = 0
            for l in self.L[i:j]:
                body.append(l)
                if "v_mfma" in l:
                    n += 1
                    m = sum(1 << t for t in range(3) if ks[t] and n % ks[t] == 0)
                    if m and n < 128 and n not in (113, 114):
                        body.append(f"    s_bitcmp1_b32 {m}, s37")
                        body.append(f"    s_cbranch_scc0 L_pad{n}")
                        body.append(f"    s_nop 15")
                        body.append(f"L_pad{n}:")
            self.L = self.L[:i] + body + self.L[j:]
        if self.o.drop:
            i = self.L.index("L_c_loop:")
            j = max(k for k, l in enumerate(self.L) if "s_cbranch_scc1 L_c_loop" in l)
            pats = self.o.drop.split(",")
            self.L = self.L[:i] + [l for l in self.L[i:j] if not any(l.strip().startswith(p) for p in pats)] + self.L[j:]
        return HEADER + "\n".join(self.L) + "\n" + FOOTER.format(vgpr=184, acc=184)


def main():
    p = argparse.ArgumentParser()
    p.add_argument("-o", default="-")
    p.add_argument("--prof", type=int, default=0)
    p.add_argument("--hflip", type=int, default=1)
    p.add_argument("--win", type=int, default=13)
    p.add_argument("--barpair", type=int, default=2)
    p.add_argument("--ldflags", default="nt")
    p.add_argument("--wflags", default="")
    p.add_argument("--stflags", default="sc0 sc1 nt")
    p.add_argument("--prio_loader", type=int, default=0)
    p.add_argument("--prio_comp", type=int, default=0)
    p.add_argument("--nocomp", type=int, default=0)
    p.add_argument("--noload", type=int, default=0)
    p.add_argument("--cstamp", type=int, default=0)
    p.add_argument("--drop", default="")
    p.add_argument("--wr", type=int, default=64)
    p.add_argument("--estart", type=int, default=2)
    p.add_argument("--diag", default="")
    p.add_argument("--now", type=int, default=0)
    p.add_argument("--stwait", type=int, default=0)
    p.add_argument("--stwin", type=int, default=0)
    p.add_argument("--pad", type=int, default=0)
    p.add_argument("--padk", type=int, default=1)
    p.add_argument("--padmask", type=int, default=7)
    p.add_argument("--fpre", type=int, default=0)
    p.add_argument("--csleep", type=int, default=1)
    p.add_argument("--eflag", type=int, default=0)
    p.add_argument("--rdint", type=int, default=0)
    p.add_argument("--sched", default="plain")
    p.add_argument("--stag", type=int, default=0)
    p.add_argument("--stagw", type=int, default=2)
    p.add_argument("--gate", type=int, default=0)
    p.add_argument("--gsleep", type=int, default=4)
    p.add_argument("--padper", default="")
    p.add_argument("--nostore", type=int, default=0)
    p.add_argument("--sleep", type=int, default=2)
    o = p.parse_args()
    s = Gen(o).build()
    if o.o == "-":
        sys.stdout.write(s)
    else:
        open(o.o, "w").write(s)


if __name__ == "__main__":
    main()
```

```python
import argparse
import re
import sys

ROWB = 73728
XBYTES = 28311552
WBYTES = 41472
P = 9728
LDS_TOTAL = 163840
FLAGS = LDS_TOTAL - 256
WSZ = 12288
WREG = FLAGS - 4 * WSZ

HEADER = """; Kernarg layout for this problem (40 bytes, ptrs only, base s[0:1]):
; @launch grid=(256,1,1) block=(512,1,1) lds=163840
.amdgcn_target "amdgcn-amd-amdhsa--gfx950"
.text
.globl standalone__grouped__vision_kernel
.p2align 8
.type standalone__grouped__vision_kernel,@function
standalone__grouped__vision_kernel:
"""

FOOTER = """.section .rodata,"a"
.p2align 6
.amdhsa_kernel standalone__grouped__vision_kernel
  .amdhsa_next_free_vgpr {vgpr}
  .amdhsa_next_free_sgpr 102
  .amdhsa_accum_offset {acc}
  .amdhsa_group_segment_fixed_size 0
  .amdhsa_kernarg_size 40
  .amdhsa_user_sgpr_count 2
  .amdhsa_user_sgpr_kernarg_segment_ptr 1
  .amdhsa_system_sgpr_workgroup_id_x 1
.end_amdhsa_kernel
"""

PV = 187


class Gen:
    def __init__(self, o):
        self.o = o
        self.L = []
        self.nstamp = 0
        self.nlab = 0

    def e(self, s):
        self.L.append("    " + s)

    def lab(self, s):
        self.L.append(s + ":")

    def newlab(self, p):
        self.nlab += 1
        return f"L_{p}{self.nlab}"

    def stamp(self):
        if not self.o.prof:
            return
        k = self.nstamp
        self.nstamp += 1
        assert k < 22
        self.e(f"s_mem{'real' if self.o.prof == 2 else ''}time s[{46 + 2 * k}:{47 + 2 * k}]")

    def stamp_now(self, base, ctr, real=False):
        if not self.o.prof:
            return
        self.e("s_memrealtime s[96:97]" if real else "s_memtime s[96:97]")
        self.e("s_waitcnt lgkmcnt(0)")
        self.e("s_mov_b32 s95, m0")
        if isinstance(ctr, str):
            self.e(f"s_cselect_b32 s94, 1, 0")
            self.e(f"s_add_u32 m0, {ctr}, {base}")
            self.e(f"s_cmp_lg_u32 s94, 0")
        else:
            self.e(f"s_mov_b32 m0, {base + ctr}")
        self.e(f"v_writelane_b32 v{PV}, s96, m0")
        self.e("s_mov_b32 m0, s95")

    def stamp_flush(self):
        if not self.o.prof:
            return
        e = self.e
        e("s_mov_b64 exec, -1")
        e("s_waitcnt lgkmcnt(0)")
        e("s_load_dwordx2 s[40:41], s[0:1], 32")
        e("s_lshl_b32 s42, s2, 3")
        e("s_add_u32 s42, s42, s3")
        e("s_lshl_b32 s42, s42, 8")
        e("v_lshl_add_u32 v1, v0, 2, s42")
        for k in range(self.nstamp):
            e(f"v_writelane_b32 v{PV}, s{46 + 2 * k}, {k}")
        e(f"s_mov_b32 s42, {self.nstamp}")
        e(f"v_writelane_b32 v{PV}, s42, 63")
        e("s_getreg_b32 s42, hwreg(HW_REG_XCC_ID)")
        e(f"v_writelane_b32 v{PV}, s42, 62")
        e(f"v_writelane_b32 v{PV}, s92, 60")
        e("s_memrealtime s[92:93]")
        e("s_waitcnt lgkmcnt(0)")
        e(f"v_writelane_b32 v{PV}, s92, 59")
        e(f"global_store_dword v1, v{PV}, s[40:41]")

    def diag_mark(self, name):
        d = self.o.diag
        if d == name:
            self.e("s_memrealtime s[90:91]")
        if d == "c" + name:
            self.e("s_memtime s[90:91]")

    def diag_end(self):
        o, e = self.o, self.e
        if not o.diag:
            return
        e("s_waitcnt vmcnt(0) lgkmcnt(0)")
        self.diag_mark("end")
        e("s_waitcnt lgkmcnt(0)")
        if o.diag == "rt":
            e("s_mov_b32 s42, 0")
        elif o.diag.startswith("c"):
            e("s_sub_u32 s42, s90, s88")
            e("s_lshr_b32 s42, s42, 2")
        else:
            e("s_sub_u32 s42, s90, s92")
            e("s_mul_i32 s42, s42, 4")
        e("s_add_u32 s42, s42, 4000")
        self.lab("L_dg")
        e("s_memrealtime s[40:41]")
        e("s_waitcnt lgkmcnt(0)")
        e("s_sub_u32 s40, s40, s92")
        e("s_cmp_lt_u32 s40, s42")
        e("s_cbranch_scc1 L_dg")

    def poll(self, vaddr, vtmp, sneed, sleep=1):
        e = self.e
        l = self.newlab("poll")
        d = self.newlab("pdone")
        self.lab(l)
        e(f"ds_read_b32 v{vtmp}, v{vaddr}")
        e("s_waitcnt lgkmcnt(0)")
        e(f"v_cmp_gt_i32 vcc, {sneed}, v{vtmp}")
        e(f"s_cbranch_vccz {d}")
        if sleep:
            e(f"s_sleep {sleep}")
        e(f"s_branch {l}")
        self.lab(d)

    def prologue(self):
        e = self.e
        e("s_cmp_ge_u32 s2, 256")
        e("s_cbranch_scc1 L_end")
        e("s_load_dwordx4 s[4:7], s[0:1], 0")
        e("s_load_dwordx2 s[8:9], s[0:1], 16")
        if self.o.prof or self.o.diag:
            e("s_memrealtime s[92:93]")
        if self.o.diag:
            e("s_memtime s[88:89]")
        self.stamp()
        if self.o.prof:
            e(f"v_mov_b32 v{PV}, 0")
        e("v_lshrrev_b32 v1, 6, v0")
        e("v_and_b32 v0, 63, v0")
        e(f"v_mov_b32 v3, {FLAGS}")
        e("v_readfirstlane_b32 s3, v1")
        e("v_xor_b32 v2, 4, v1")
        e("v_lshl_add_u32 v8, v2, 2, v3")
        e("v_mov_b32 v2, 0")
        e("ds_write_b32 v8, v2")
        e("v_and_b32 v2, 3, v0")
        e("v_lshl_add_u32 v9, v2, 2, v3")
        e("s_bfe_u32 s26, s2, 0x10005")
        e("s_cmp_lt_u32 s3, 4")
        e("s_cbranch_scc1 L_compute")

    def helper(self):
        e, o = self.e, self.o
        self.lab("L_helper")
        if o.prio_loader:
            e(f"s_setprio {o.prio_loader}")
        Wn = o.win
        phases = {"A": [(0, 304, [64, 64, 64, 64, 48])],
                  "B": [(0, 224, [56] * 4), (448, 80, [40] * 2)]}[o.order]
        self.phases = phases
        ntot = 7 * sum(len(p[2]) for p in phases)
        e("s_and_b32 s10, s2, 1")
        e("s_lshl_b32 s10, s10, 2")
        e("s_bfe_u32 s11, s2, 0x20003")
        e("s_add_u32 s10, s10, s11")
        e("s_bfe_u32 s11, s2, 0x20001")
        e("s_lshl_b32 s11, s11, 3")
        e("s_lshr_b32 s24, s2, 5")
        e("s_add_u32 s11, s11, s24")
        e("s_mul_i32 s25, s11, 12")
        e("s_mul_i32 s24, s10, 9216")
        e("s_and_b32 s30, s3, 1")
        e("s_bfe_u32 s45, s3, 0x10001")
        e("v_lshrrev_b32 v1, 2, v0")
        e("v_bfrev_b32 v3, 1")

        def patterns(ph, first, last):
            st, half, lanes = ph
            e(f"s_mul_i32 s28, s45, {half // 4}")
            e(f"s_add_u32 s28, s28, {st // 4 + 2}")
            e("v_add_u32 v4, s28, v1")
            e(f"s_mul_i32 s33, s45, {half * 16}")
            if st:
                e(f"s_add_u32 s33, s33, {st * 16}")
            off = 0
            for k, ln in enumerate(lanes):
                if off:
                    e(f"v_add_u32 v2, {off // 4}, v4")
                    e("v_mul_u32_u24 v2, 171, v2")
                else:
                    e("v_mul_u32_u24 v2, 171, v4")
                e("v_bfe_u32 v2, v2, 11, 2")
                e("v_xor_b32 v2, v2, v0")
                e(f"v_lshl_add_u32 v{10 + k}, v2, 4, s33")
                off += ln
            if len(lanes) == 5:
                e("v_add_u32 v14, 4096, v14")
            if first:
                e("s_add_u32 s28, s45, s10")
                e("s_cmp_eq_u32 s28, 0")
                e("s_cselect_b32 s28, 16, 0")
                e("v_cmp_gt_u32 vcc, s28, v0")
                e(f"s_mul_i32 s28, s30, {P}")
                e("s_add_u32 s33, s33, s28")
                e("v_cndmask_b32 v10, v10, v3, vcc")
            else:
                e(f"s_mul_i32 s28, s30, {P}")
                e("s_add_u32 s33, s33, s28")
            if last:
                e("s_add_u32 s28, s45, s10")
                e("s_cmp_eq_u32 s28, 8")
                e(f"s_cselect_b32 s28, {lanes[-1] - 16}, 64")
                e("v_cmp_le_u32 vcc, s28, v0")
                e("s_nop 1")
                e(f"v_cndmask_b32 v{9 + len(lanes)}, v{9 + len(lanes)}, v3, vcc")

        patterns(phases[0], True, len(phases) == 1)
        e("s_cmp_eq_u32 s26, 0")
        e("s_cselect_b32 s27, 1, -1")
        e("s_cselect_b32 s29, -1, 12")
        e(f"s_mul_i32 s27, s27, {ROWB}")
        e("s_add_i32 s29, s29, s25")
        e(f"s_mul_i32 s29, s29, {ROWB}")
        e("s_mul_i32 s28, s30, s27")
        e("s_add_i32 s29, s29, s28")
        e("s_lshl_b32 s35, s27, 1")
        cl = [int(x) for x in o.cls.split(",")]
        assert max(cl) <= 5
        e("s_bfe_u32 s44, s2, 0x20003")
        e("s_lshl_b32 s44, s44, 3")
        e(f"s_lshr_b32 s44, {hex(sum(c << (8 * i) for i, c in enumerate(cl)))}, s44")
        e("s_and_b32 s44, s44, 255")
        e("v_add_u32 v7, 16, v9")
        e("s_waitcnt lgkmcnt(0)")
        e("s_sub_u32 s12, s4, 256")
        e("s_subb_u32 s13, s5, 0")
        e(f"s_mov_b32 s14, {XBYTES + 256}")
        e("s_mov_b32 s15, 0x20000")
        self.stamp()
        self.diag_mark("karg")
        fl = o.ldflags
        if 0 in cl:
            e("s_cmp_lg_u32 s44, 0")
            e("s_cbranch_scc1 L_ld_start")
            e("s_barrier")
            self.lab("L_ld_start")
        assert o.order == "A"
        lanes = phases[0][2]
        e("s_mov_b32 s31, s29")
        e("s_mov_b32 s32, 0")
        sides = [("l", o.winl), ("r", o.winr)] if o.winl != o.winr else [("l", o.winl)]
        if len(sides) == 2:
            e("s_cmp_lg_u32 s45, 0")
            e("s_cbranch_scc1 L_ld_pre_r")
        for sd, Wn in sides:
            self.lab(f"L_ld_pre_{sd}")
            e(f"v_mov_b32 v6, {-5 * ((Wn - 1) // 5)}")
            if sd == "l" and o.prio_left:
                e(f"s_setprio {o.prio_left}")
            self.lab(f"L_ld_loop_{sd}")
            e("s_add_u32 s34, s31, s24")
            e("s_cmp_lt_i32 s31, 0")
            e("s_cselect_b32 s34, 0x40000000, s34")
            e("s_mov_b32 m0, s33")
            e("s_add_i32 s31, s31, s35")
            for k in range(5):
                if k == 4:
                    e("s_add_u32 m0, s33, 4096")
                e(f"s_waitcnt vmcnt({Wn - 1})")
                if k == (Wn - 1) % 5:
                    e("ds_write_b32 v8, v6")
                if k == 4:
                    e("s_mov_b32 exec_hi, 0xffff")
                e(f"buffer_load_dwordx4 v{10 + k}, s[12:15], s34 offen offset:{1024 * (k % 4)} {fl} lds")
                if k == 4:
                    e("s_mov_b32 exec_hi, -1")
                if k == 0:
                    e(f"v_add_u32 v6, {(Wn - 1) % 5}, v6" if False else "s_add_u32 s32, s32, 1")
            e("v_add_u32 v6, 5, v6")
            e(f"s_add_u32 s33, s33, {2 * P}")
            e("s_cmp_lg_u32 s32, s44")
            e(f"s_cbranch_scc1 L_ld_nobar_{sd}")
            e("s_barrier")
            self.lab(f"L_ld_nobar_{sd}")
            e("s_cmp_lg_u32 s32, 5")
            e(f"s_cbranch_scc1 L_ld_nopoll_{sd}")
            self.poll(7, 5, 1)
            self.lab(f"L_ld_nopoll_{sd}")
            e("s_cmp_lt_u32 s32, 7")
            e(f"s_cbranch_scc1 L_ld_loop_{sd}")
            for v in range(35 - Wn + 1, 35):
                if v % 5 == 0:
                    e(f"v_mov_b32 v2, {v}")
                    e(f"s_waitcnt vmcnt({35 - v})")
                    e("ds_write_b32 v8, v2")
            if sd == "l" and len(sides) == 2:
                e("s_branch L_ld_tail")
        self.lab("L_ld_tail")
        if o.prio_loader or o.prio_left:
            e("s_setprio 0")
        e("s_mov_b64 exec, -1")
        e("s_and_b32 s30, s3, 3")
        e("s_mul_i32 s28, s30, 12")
        e("s_add_u32 s28, s28, 3")
        e("v_add_u32 v2, s28, v1")
        e("v_mul_u32_u24 v2, 171, v2")
        e("v_bfe_u32 v2, v2, 11, 2")
        e("v_xor_b32 v2, v2, v0")
        e("s_mul_i32 s33, s30, 768")
        e("s_add_u32 s28, s33, 64")
        e("v_lshl_add_u32 v10, v2, 4, s28")
        e("v_lshl_add_u32 v11, v0, 4, s33")
        if o.defer:
            e("s_mul_i32 s28, s30, 12")
            e("s_add_u32 s28, s28, 9")
            e("v_add_u32 v2, s28, v1")
            e("v_mul_u32_u24 v2, 171, v2")
            e("v_bfe_u32 v2, v2, 11, 2")
            e("v_xor_b32 v2, v2, v0")
            e("s_add_u32 s28, s33, 448")
            e("v_lshl_add_u32 v13, v2, 4, s28")
        e("s_cmp_eq_u32 s26, 0")
        e("s_cselect_b32 s29, 0, 11")
        e("s_add_i32 s29, s29, s25")
        e(f"s_mul_i32 s29, s29, {ROWB}")
        e("s_add_u32 s29, s29, s24")
        e("s_mov_b32 s20, s8")
        e("s_mov_b32 s21, s9")
        e(f"s_mov_b32 s22, {XBYTES}")
        e("s_mov_b32 s23, 0x20000")
        e("s_mov_b32 exec_hi, 0xffff")
        e("v_mov_b32 v2, 35")
        e("s_waitcnt vmcnt(0)")
        e("ds_write_b32 v8, v2")
        self.stamp()
        self.diag_mark("ldone")
        self.stamp_now(58, 0, real=True)
        if o.nostore:
            self.stamp_flush()
            e("s_endpgm")
        e("s_mov_b32 s37, 2")
        if o.defer:
            e("s_mov_b32 s31, s29")
            e(f"s_mov_b32 s32, {8 - o.defer}")
        else:
            self.lab("L_st_strip")
            e("s_mov_b32 s31, s29")
            e("s_mov_b32 s32, 0")
        self.lab("L_st_loop")
        if not o.nocomp:
            e("v_cmp_gt_i32 vcc, s37, v5")
            e("s_cbranch_vccz L_st_go")
            self.poll(7, 5, "s37", sleep=o.sleep)
            self.lab("L_st_go")
        e("ds_read_b128 v[16:19], v10")
        e(f"ds_read_b128 v[20:23], v10 offset:{P}")
        e("s_add_i32 s34, s31, s27")
        e(f"v_add_u32 v10, {2 * P}, v10")
        e("s_add_u32 s37, s37, 1")
        if not o.defer:
            e("s_add_u32 s32, s32, 1")
        e("s_waitcnt lgkmcnt(1)")
        e(f"buffer_store_dwordx4 v[16:19], v11, s[20:23], s31 offen {o.stflags}")
        e("s_add_i32 s31, s34, s27")
        e("s_waitcnt lgkmcnt(0)")
        e(f"buffer_store_dwordx4 v[20:23], v11, s[20:23], s34 offen {o.stflags}")
        if o.prof and o.cstamp:
            self.stamp_now(22 - 3, "s37")
            self.stamp_now(40 - 3, "s37", real=True)
        if o.defer:
            D = o.defer
            e("s_cmp_lt_u32 s37, s32")
            e("s_cbranch_scc1 L_st_loop")
            e("s_add_u32 s32, s32, 6")
            e(f"s_cmp_lg_u32 s37, {8 - D}")
            e("s_cbranch_scc1 L_st_s1")
            e("v_mov_b32 v12, v10")
            e("s_mov_b32 s43, s31")
            e("v_add_u32 v10, 6144, v13")
            e("s_add_u32 s31, s29, 6144")
            e("s_branch L_st_loop")
            self.lab("L_st_s1")
            e(f"s_cmp_lg_u32 s37, {14 - D}")
            e("s_cbranch_scc1 L_st_s2")
            e("v_add_u32 v10, 3072, v13")
            e("s_add_u32 s31, s29, 3072")
            e("s_branch L_st_loop")
            self.lab("L_st_s2")
            e("v_mov_b32 v10, v12")
            e("s_mov_b32 s31, s43")
            e("s_mov_b32 s32, 20")
            e("s_cmp_lt_u32 s37, 20")
            e("s_cbranch_scc1 L_st_loop")
        else:
            e("s_cmp_lt_u32 s32, 6")
            e("s_cbranch_scc1 L_st_loop")
            e("s_add_u32 s29, s29, 3072")
            e(f"v_add_u32 v10, {3072 - 12 * P}, v10")
            e("s_cmp_lt_u32 s37, 20")
            e("s_cbranch_scc1 L_st_strip")
        self.diag_mark("stiss")
        if o.prof:
            self.stamp()
            e("s_waitcnt vmcnt(0)")
            self.stamp()
        self.stamp_flush()
        self.diag_end()
        e("s_endpgm")

    def compute(self):
        e, o = self.e, self.o
        ops = [("U0", 0), ("U0", 1), ("U1", 0), ("U1", 1), ("U2", 0), ("U2", 1), ("U2", 2), ("U3", 0), ("U3", 1), ("U3", 2),
               ("X", 0), ("X", 1), ("X", 2),
               ("L0", 0), ("L0", 1), ("L0", 2), ("L1", 0), ("L1", 1), ("L1", 2), ("L2", 1), ("L2", 2), ("L3", 1), ("L3", 2)]
        W = {k: 16 + 4 * i for i, k in enumerate(ops)}
        SET = [108, 124]
        XR = 140
        ACC = lambda s, t: 144 + 12 * s + 4 * t
        PK = 168
        A1, A2, AX = 174, 175, 176
        ST = [177, 178, 179]
        self.lab("L_compute")
        self.nstamp = 1
        if o.prio_comp:
            e(f"s_setprio {o.prio_comp}")
        e("s_mul_i32 s28, s3, 1152")
        e("v_lshl_add_u32 v108, v0, 4, s28")
        e("s_movk_i32 s29, 3456")
        for i in range(1, 4):
            e(f"v_add_u32 v2, {64 * i}, v0")
            e("v_mul_u32_u24 v2, 911, v2")
            e("v_lshrrev_b32 v2, 16, v2")
            e(f"v_mad_u32_u24 v{108 + i}, v2, s29, v108")
        e("v_cmp_lt_u32 vcc, 23, v0")
        e("v_bfrev_b32 v3, 1")
        e(f"s_mul_i32 s33, s3, {WSZ}")
        e(f"s_add_u32 s33, s33, {WREG}")
        e("v_cndmask_b32 v111, v111, v3, vcc")
        e("s_mul_i32 s34, s26, 27648")
        e("s_movk_i32 s35, 13824")
        e("s_sub_u32 s36, 27648, s34")
        e("s_waitcnt lgkmcnt(0)")
        if o.tlbw:
            e("s_and_b32 s10, s2, 1")
            e("s_lshl_b32 s10, s10, 2")
            e("s_bfe_u32 s11, s2, 0x20003")
            e("s_add_u32 s10, s10, s11")
            e("s_mul_i32 s10, s10, 9216")
            e("s_bfe_u32 s11, s2, 0x20001")
            e("s_lshl_b32 s11, s11, 3")
            e("s_lshr_b32 s24, s2, 5")
            e("s_add_u32 s11, s11, s24")
            e(f"s_mul_i32 s11, s11, {12 * ROWB}")
            e("s_add_u32 s10, s10, s11")
            e("s_mov_b32 s20, s8")
            e("s_mov_b32 s21, s9")
            e(f"s_mov_b32 s22, {XBYTES}")
            e("s_mov_b32 s23, 0x20000")
            e(f"s_mov_b32 s11, {11 * ROWB}")
            e("v_mul_lo_u32 v2, v0, s11")
            e("s_cmp_lg_u32 s3, 0")
            e("s_cbranch_scc1 L_notouch")
            e("s_mov_b64 exec, 3")
            e(f"buffer_load_dword v186, v2, s[20:23], s10 offen {o.tlbf}")
            e("s_mov_b64 exec, -1")
            self.lab("L_notouch")
        e("s_barrier")
        e("s_mov_b32 s16, s6")
        e("s_mov_b32 s17, s7")
        e(f"s_mov_b32 s18, {WBYTES}")
        e("s_mov_b32 s19, 0x20000")
        for p in range(3):
            e(f"s_add_u32 m0, s33, {4096 * p}")
            e("s_nop 0")
            for i in range(4):
                if not o.now:
                    e(f"buffer_load_dwordx4 v{108 + i}, s[16:19], s{34 + p} offen offset:{1024 * i} {o.wflags} lds")
        self.stamp()
        e("v_and_b32 v1, 15, v0")
        e("v_lshrrev_b32 v2, 4, v0")
        e("s_mul_i32 s28, s3, 3")
        e("v_and_b32 v3, 1, v2")
        e("v_lshrrev_b32 v4, 1, v2")
        e("v_cmp_gt_u32 vcc, 2, v2")
        e("s_movk_i32 s29, 192")
        e("s_movk_i32 s30, 1152")

        def baddr(dst, vdx, vcc_, tmp1, tmp2, extra=None):
            e(f"v_add_u32 v{tmp1}, {vdx}, v1")
            e(f"v_add_u32 v{tmp2}, 1, v{tmp1}")
            e(f"v_bfe_u32 v{tmp2}, v{tmp2}, 2, 2")
            e(f"v_mad_u32_u24 v{tmp1}, v{tmp1}, s29, 64")
            e(f"v_add_u32 v{dst}, s28, {vcc_}")
            e(f"v_xor_b32 v{dst}, v{dst}, v{tmp2}")
            e(f"v_lshl_add_u32 v{dst}, v{dst}, 4, v{tmp1}")
            if extra:
                e(f"v_add_u32 v{dst}, {extra}, v{dst}")

        e("v_cndmask_b32 v6, 2, v2, vcc")
        e("v_cndmask_b32 v7, v3, 2, vcc")
        baddr(A1, "v3", "v4", 11, 12)
        baddr(A2, "v6", "v7", 11, 12)
        e(f"v_mul_u32_u24 v13, {P}, v2")
        e("v_mov_b32 v14, 2")
        baddr(AX, "2", "v14", 11, 12, "v13")
        e("v_add_u32 v12, 1, v1")
        e("v_bfe_u32 v12, v12, 2, 2")
        e("v_mad_u32_u24 v11, v1, s29, 64")
        e("v_lshl_add_u32 v11, v3, 3, v11")
        e(f"v_add_u32 v13, {P}, v11")
        e("v_add_u32 v14, s28, v4")
        e("v_xor_b32 v15, v14, v12")
        e(f"v_lshl_add_u32 v{ST[0]}, v15, 4, v11")
        e("v_add_u32 v14, 1, v14")
        e("v_xor_b32 v15, v14, v12")
        e(f"v_lshl_add_u32 v{ST[2]}, v15, 4, v13")
        e("v_cndmask_b32 v14, 0, 2, vcc")
        e("v_cndmask_b32 v13, v13, v11, vcc")
        e("v_add_u32 v14, s28, v14")
        e("v_xor_b32 v15, v14, v12")
        e(f"v_lshl_add_u32 v{ST[1]}, v15, 4, v13")
        if o.defer:
            e("v_add_u32 v12, 3, v1")
            e("v_bfe_u32 v12, v12, 2, 2")
            e(f"v_add_u32 v11, {384 + 6144}, v11")
            e(f"v_add_u32 v13, {384 + 6144}, v13")
            e("v_xor_b32 v15, v14, v12")
            e("v_lshl_add_u32 v181, v15, 4, v13")
            e("v_add_u32 v14, s28, v4")
            e("v_xor_b32 v15, v14, v12")
            e("v_lshl_add_u32 v180, v15, 4, v11")
            e("v_add_u32 v14, 1, v14")
            e("v_xor_b32 v15, v14, v12")
            e(f"v_add_u32 v11, {P}, v11")
            e("v_lshl_add_u32 v182, v15, 4, v11")
        E1, E2, F1, F2, F1z, F2z, F1y, F2y, G0, G1, G2, Z = range(144, 156)
        e("v_bfe_u32 v11, v0, 2, 2")
        e("v_mul_u32_u24 v11, 48, v11")
        e("v_add_u32 v11, s33, v11")
        e("v_and_b32 v12, 3, v0")
        e("v_lshl_add_u32 v11, v12, 3, v11")
        e("v_mul_u32_u24 v13, 384, v4")
        e("v_mad_u32_u24 v13, v3, s30, v13")
        e("v_mul_u32_u24 v14, 384, v7")
        e("v_mad_u32_u24 v14, v6, s30, v14")
        e(f"v_add_u32 v{E1}, v11, v13")
        e(f"v_add_u32 v{E2}, v11, v14")
        e("v_cmp_lt_u32 vcc, 1, v12")
        e("s_add_u32 s30, s33, 3456")
        e(f"v_mov_b32 v{Z}, s30")
        e("v_mov_b32 v13, 32")
        e("v_mov_b32 v14, -4112")
        e("v_cndmask_b32 v13, v13, v14, vcc")
        e("v_cndmask_b32 v15, 0, 1, vcc")
        e(f"v_add_u32 v{F1}, v{E1}, v13")
        e(f"v_add_u32 v{F2}, v{E2}, v13")
        e(f"v_cndmask_b32 v{F1z}, v{F1}, v{Z}, vcc")
        e(f"v_cndmask_b32 v{F2z}, v{F2}, v{Z}, vcc")
        e(f"v_add_u32 v{F1y}, 12288, v{F1}")
        e(f"v_add_u32 v{F2y}, 12288, v{F2}")
        e(f"v_cndmask_b32 v{F1y}, v{Z}, v{F1y}, vcc")
        e(f"v_cndmask_b32 v{F2y}, v{Z}, v{F2y}, vcc")
        e("v_lshl_add_u32 v11, v2, 12, v11")
        e("v_add_u32 v11, 3072, v11")
        e("v_sub_u32 v15, v2, v15")
        e("v_cmp_gt_u32 vcc, 3, v15")
        e(f"v_add_u32 v{G1}, v11, v13")
        e(f"v_add_u32 v{G2}, -4080, v11")
        e(f"v_cndmask_b32 v{G1}, v{Z}, v{G1}, vcc")
        e("v_cmp_gt_u32 vcc, 3, v2")
        e("s_nop 1")
        e(f"v_cndmask_b32 v{G0}, v{Z}, v11, vcc")
        e("v_cmp_lt_u32 vcc, 0, v2")
        e("s_nop 0")
        e("v_mov_b32 v10, 1")
        e(f"v_cndmask_b32 v{G2}, v{Z}, v{G2}, vcc")

        def tr(key, a, off):
            w = W[key]
            e(f"ds_read_b64_tr_b16 v[{w}:{w + 1}], v{a} offset:{off}")
            e(f"ds_read_b64_tr_b16 v[{w + 2}:{w + 3}], v{a} offset:{off + 192}")

        e("s_waitcnt vmcnt(8)")
        self.stamp()
        tr(("U0", 0), E1, 0); tr(("U1", 0), E2, 0); tr(("U0", 1), F1z, 0); tr(("U1", 1), F2z, 0)
        tr(("U2", 2), E1, 16); tr(("U3", 2), E2, 16)
        e("s_waitcnt vmcnt(4)")
        tr(("U2", 0), E1, 4096); tr(("U3", 0), E2, 4096); tr(("U2", 1), F1, 4096); tr(("U3", 1), F2, 4096)
        tr(("L0", 2), E1, 4112); tr(("L1", 2), E2, 4112)
        e("s_waitcnt vmcnt(0)")
        self.stamp()
        tr(("X", 0), G0, 0); tr(("X", 1), G1, 0); tr(("X", 2), G2, 0)
        tr(("L0", 0), E1, 8192); tr(("L1", 0), E2, 8192); tr(("L0", 1), F1, 8192); tr(("L1", 1), F2, 8192)
        tr(("L2", 1), F1y, 0); tr(("L3", 1), F2y, 0); tr(("L2", 2), E1, 8208); tr(("L3", 2), E2, 8208)
        e("ds_write_b32 v8, v10")
        self.stamp()
        if o.nocomp:
            self.stamp_flush()
            self.lab("L_end")
            e("s_endpgm")
            return
        self.lab("L_c_loop")
        slow = []
        c1 = len(self.phases[0][2])
        ntot = 7 * sum(len(p[2]) for p in self.phases)

        def need(T, s):
            if o.order == "A" or T < 2:
                return c1 * (s + 2)
            return 7 * c1 + 2 * (s + 2)

        def pair_reads(st, off):
            b = SET[st]
            return [f"ds_read_b128 v[{b}:{b + 3}], v{A1} offset:{off}",
                    f"ds_read_b128 v[{b + 4}:{b + 7}], v{A2} offset:{off}",
                    f"ds_read_b128 v[{b + 8}:{b + 11}], v{A1} offset:{off + P}",
                    f"ds_read_b128 v[{b + 12}:{b + 15}], v{A2} offset:{off + P}"]

        def epilogue(acc, off, wr):
            r = []
            for t in range(3):
                a = ACC(acc, t)
                r.append(f"v_cvt_pk_bf16_f32 v{PK + 2 * t}, v{a}, v{a + 1}")
                r.append(f"v_cvt_pk_bf16_f32 v{PK + 2 * t + 1}, v{a + 2}, v{a + 3}")
                if wr == 32:
                    r.append(f"ds_write_b32 v{ST[t]}, v{PK + 2 * t} offset:{off}")
                    r.append(f"ds_write_b32 v{ST[t]}, v{PK + 2 * t + 1} offset:{off + 4}")
                else:
                    r.append(f"ds_write_b64 v{ST[t]}, v[{PK + 2 * t}:{PK + 2 * t + 1}] offset:{off}")
            r.append("ds_write_b32 v8, v10")
            return r

        seen_upto = 0
        fpending = None
        modes = o.modes.split(",")
        loop = o.loop
        if loop:
            assert o.order == "A"
            del self.L[-1]
            e("s_mov_b32 s37, 0")
            e("v_and_b32 v11, -9, v9")
            e("v_mov_b32 v5, 0")
            self.lab("L_c_loop")
        for T in range(1 if loop else 3):
            md = modes[T]
            for s in range(6):
                u = 6 * T + s
                if o.prof and o.cstamp:
                    self.stamp_now(22, u)
                    self.stamp_now(40, u, real=True)
                U, Lo = s & 1, (s & 1) ^ 1
                acc = s & 1 if md == "n" else 0
                nd = need(T, s)
                if loop:
                    e(f"v_cmp_gt_i32 vcc, {nd}, v5")
                    e(f"s_cbranch_vccnz L_c_slow{u}")
                    self.lab(f"L_c_ready{u}")
                    slow.append((u, nd))
                    seen_upto = 99
                elif nd > seen_upto:
                    if fpending is not None:
                        e(f"s_waitcnt lgkmcnt({fpending})")
                        if loop:
                            nd_ = "s36"
                        else:
                            nd_ = nd
                        e(f"v_cmp_gt_i32 vcc, {nd_}, v5")
                        e(f"s_cbranch_vccnz L_c_slow{u}")
                        self.lab(f"L_c_ready{u}")
                        slow.append((u, nd_))
                    else:
                        self.poll(9, 5, nd, sleep=o.csleep)
                    seen_upto = nd
                fpending = None
                if s == 0 and o.prof and not o.cstamp:
                    self.stamp_now(24, "s37" if loop else T, real=(o.prof == 2))
                ro = (s & 1) * 2 * P
                rd = (pair_reads(0, 0) if s == 0 else []) + pair_reads(Lo, ro + 2 * P)
                rd.append(f"ds_read_b128 v[{XR}:{XR + 3}], v{AX} offset:{ro}")
                post = []
                if s & 1:
                    adv = 4 * P if s < 5 else (-3072 if o.defer else 3072) - 8 * P
                    post = [f"v_add_u32 v{r}, {adv}, v{r}" for r in (A1, A2, AX)] if u < 17 else []
                inter = []
                if md in ("r", "n") and s > 0:
                    inter = [[x] for x in rd]
                else:
                    for x in rd:
                        e(x)
                    if s == 0:
                        e("s_waitcnt lgkmcnt(5)")
                nxt_need = need(T, s + 1) if s < 5 else (need(T + 1, 0) if T < 2 else 0)
                want_f = md != "p" and nxt_need > seen_upto
                if loop:
                    if o.defer:
                        assert md == "n"
                        if s == o.defer - 1:
                            post = post + ["s_cmp_eq_u32 s37, 3"]
                        if s == 5 - o.defer:
                            post = post + ["s_cmp_eq_u32 s37, 0"]
                        if s == 5:
                            post = post + ["s_add_u32 s37, s37, 1", "s_cmp_eq_u32 s37, 2"]
                    elif s == 5:
                        post = post + ["s_add_u32 s37, s37, 1", "v_mov_b32 v11, v9", "s_cmp_eq_u32 s37, 1", "s_cselect_b32 s36, 0, -1",
                                       "v_and_b32 v5, s36, v5", "s_cmp_lt_u32 s37, 3"]
                defer = []
                if md == "n" and s > 0:
                    defer = ["v_add_u32 v10, 1, v10"] + epilogue(acc ^ 1, ((s - 1) & 1) * 2 * P, 32)
                    if not s & 1:
                        defer += [f"v_add_u32 v{r}, {4 * P}, v{r}" for r in ST]
                seen = set()
                seq = [(k, SET[U] + 4 * int(k[0][1])) for k in ops[:10]] + [(k, SET[Lo] + 4 * int(k[0][1])) for k in ops[13:]] + [(k, XR) for k in ops[10:13]]
                behind = 0
                for g, (k, b) in enumerate(seq):
                    if g == 10:
                        e(f"s_waitcnt lgkmcnt({behind})")
                    t = k[1]
                    a = ACC(acc, t)
                    cin = f"v[{a}:{a + 3}]" if t in seen else "0"
                    seen.add(t)
                    e(f"v_mfma_f32_16x16x32_bf16 v[{a}:{a + 3}], v[{W[k]}:{W[k] + 3}], v[{b}:{b + 3}], {cin}")
                    cap = 2
                    if inter:
                        e(inter.pop(0)[0])
                        cap -= 1
                    elif post and not defer:
                        while post and cap:
                            e(post.pop(0))
                            cap -= 1
                    while defer and cap and g >= 2 and g != 9:
                        isw = defer[0].startswith("ds_write")
                        if isw and cap < 2:
                            break
                        x = defer.pop(0)
                        e(x)
                        cap -= 2 if isw else 1
                        if isw and g < 10:
                            behind += 1
                assert not defer and not inter, (u, defer)
                fill = list(post)
                if md != "n" or s == 5:
                    fill.append("v_add_u32 v10, 1, v10")
                    if want_f:
                        fill.append("ds_read_b32 v5, v9")
                    for x in fill:
                        e(x)
                    if len(fill) < 6:
                        e(f"s_nop {5 - len(fill)}")
                    ep = epilogue(acc, (s & 1) * 2 * P, o.wr)
                    for x in ep:
                        e(x)
                    if want_f:
                        fpending = sum(1 for x in ep if x.startswith("ds_"))
                    if s & 1 and u < 17:
                        adv = 4 * P if s < 5 else (-3072 if o.defer else 3072) - 8 * P
                        for r in ST:
                            e(f"v_add_u32 v{r}, {adv}, v{r}")
                else:
                    for x in fill:
                        e(x)
                    if want_f:
                        e("ds_read_b32 v5, v9")
                        fpending = 0
                    if o.defer and s in (o.defer - 1, 5 - o.defer):
                        e("s_cbranch_scc1 L_c_stub")
        if loop:
            e("s_cbranch_scc1 L_c_loop")
        if o.defer:
            D = o.defer
            for r in (A1, A2, AX):
                e(f"v_add_u32 v{r}, {(12 - 2 * D) * P}, v{r}")
            for t in range(3):
                e(f"v_add_u32 v{ST[t]}, {2 * D * P}, v{180 + t}")
            e("s_branch L_c_loop")
            self.lab("L_c_stub")
            e("v_add_u32 v10, 1, v10")
            e("s_cmp_eq_u32 s37, 0")
            e("s_mov_b32 s37, 1")
            e("v_mov_b32 v11, v9")
            e("v_mov_b32 v5, 0")
            for x in epilogue((D - 1) & 1, ((D - 1) & 1) * 2 * P, o.wr):
                e(x)
            for r in (A1, A2, AX):
                e(f"v_add_u32 v{r}, {6144 - 8 * P}, v{r}")
            for t in range(3):
                e(f"v_swap_b32 v{ST[t]}, v{180 + t}")
            e("s_cbranch_scc1 L_c_loop")
        self.stamp()
        self.stamp_flush()
        self.lab("L_end")
        e("s_endpgm")
        for u, nd in slow:
            self.lab(f"L_c_slow{u}")
            self.poll(11 if loop else 9, 5, nd, sleep=o.csleep)
            e(f"s_branch L_c_ready{u}")

    @staticmethod
    def srcs(txt):
        m = re.search(r", v\[(\d+):(\d+)\]", txt)
        if m:
            return [str(r) for r in range(int(m.group(1)), int(m.group(2)) + 1)]
        return [re.search(r", v(\d+)", txt).group(1)]

    def check_mfma_hazards(self):
        L = [l.strip() for l in self.L]
        if "L_c_loop:" not in L:
            return
        i = L.index("L_c_loop:")
        k = L.index("L_end:")
        for seqn in (L[i:k],):
            pend = {}
            pos = 0
            for l in seqn:
                if l.endswith(":"):
                    continue
                regs = set()
                for m in re.finditer(r"v\[(\d+):(\d+)\]|v(\d+)", l.split(None, 1)[1] if " " in l else ""):
                    if m.group(3):
                        regs.add(int(m.group(3)))
                    else:
                        regs.update(range(int(m.group(1)), int(m.group(2)) + 1))
                if l.startswith("v_mfma"):
                    m = re.match(r"v_mfma\S+ v\[(\d+):(\d+)\]", l)
                    for r in range(int(m.group(1)), int(m.group(2)) + 1):
                        pend[r] = pos
                else:
                    for r in regs:
                        if r in pend:
                            assert pos - pend[r] - 1 >= 8, (l, pos - pend[r] - 1)
                m = re.match(r"s_nop (\d+)", l)
                pos += int(m.group(1)) + 1 if m else 1

    def build(self):
        self.prologue()
        self.helper()
        self.compute()
        self.check_mfma_hazards()
        if self.o.drop:
            i = self.L.index("L_c_loop:")
            j = self.L.index("L_end:")
            pats = self.o.drop.split(",")
            self.L = self.L[:i] + [l for l in self.L[i:j] if not any(l.strip().startswith(p) for p in pats)] + self.L[j:]
        return HEADER + "\n".join(self.L) + "\n" + FOOTER.format(vgpr=188, acc=188)


def main():
    p = argparse.ArgumentParser()
    p.add_argument("-o", default="-")
    p.add_argument("--prof", type=int, default=0)
    p.add_argument("--hflip", type=int, default=1)
    p.add_argument("--win", type=int, default=11)
    p.add_argument("--barpair", type=int, default=2)
    p.add_argument("--ldflags", default="nt")
    p.add_argument("--wflags", default="")
    p.add_argument("--stflags", default="sc0 sc1 nt")
    p.add_argument("--prio_loader", type=int, default=0)
    p.add_argument("--prio_comp", type=int, default=0)
    p.add_argument("--nocomp", type=int, default=0)
    p.add_argument("--noload", type=int, default=0)
    p.add_argument("--cstamp", type=int, default=0)
    p.add_argument("--drop", default="")
    p.add_argument("--wr", type=int, default=64)
    p.add_argument("--estart", type=int, default=2)
    p.add_argument("--diag", default="")
    p.add_argument("--now", type=int, default=0)
    p.add_argument("--stwait", type=int, default=0)
    p.add_argument("--stwin", type=int, default=0)
    p.add_argument("--pad", type=int, default=0)
    p.add_argument("--padk", type=int, default=1)
    p.add_argument("--padmask", type=int, default=7)
    p.add_argument("--fpre", type=int, default=0)
    p.add_argument("--csleep", type=int, default=1)
    p.add_argument("--eflag", type=int, default=0)
    p.add_argument("--rdint", type=int, default=0)
    p.add_argument("--sched", default="plain")
    p.add_argument("--stag", type=int, default=0)
    p.add_argument("--stagw", type=int, default=2)
    p.add_argument("--gate", type=int, default=0)
    p.add_argument("--gsleep", type=int, default=4)
    p.add_argument("--padper", default="")
    p.add_argument("--nostore", type=int, default=0)
    p.add_argument("--jmask", type=int, default=0)
    p.add_argument("--cls", default="1,2,3,4")
    p.add_argument("--order", default="A")
    p.add_argument("--modes", default="n")
    p.add_argument("--loop", type=int, default=1)
    p.add_argument("--winl", type=int, default=11)
    p.add_argument("--winr", type=int, default=11)
    p.add_argument("--prio_left", type=int, default=0)
    p.add_argument("--tlbw", type=int, default=0)
    p.add_argument("--tlbf", default="nt")
    p.add_argument("--defer", type=int, default=1)
    p.add_argument("--fevery", type=int, default=0)
    p.add_argument("--two", type=int, default=0)
    p.add_argument("--rdint2", type=int, default=1)
    p.add_argument("--sleep", type=int, default=2)
    o = p.parse_args()
    s = Gen(o).build()
    if o.o == "-":
        sys.stdout.write(s)
    else:
        open(o.o, "w").write(s)


if __name__ == "__main__":
    main()
```

```python
import argparse
import re
import sys

ROWB = 73728
XBYTES = 28311552
WBYTES = 41472
P = 9728
LDS_TOTAL = 163840
FLAGS = LDS_TOTAL - 256
WSZ = 12288
WREG = FLAGS - 4 * WSZ

HEADER = """; Kernarg layout for this problem (40 bytes, ptrs only, base s[0:1]):
; @launch grid=(256,1,1) block=(512,1,1) lds=163840
.amdgcn_target "amdgcn-amd-amdhsa--gfx950"
.text
.globl standalone__grouped__vision_kernel
.p2align 8
.type standalone__grouped__vision_kernel,@function
standalone__grouped__vision_kernel:
"""

FOOTER = """.section .rodata,"a"
.p2align 6
.amdhsa_kernel standalone__grouped__vision_kernel
  .amdhsa_next_free_vgpr {vgpr}
  .amdhsa_next_free_sgpr 102
  .amdhsa_accum_offset {acc}
  .amdhsa_group_segment_fixed_size 0
  .amdhsa_kernarg_size 40
  .amdhsa_user_sgpr_count 2
  .amdhsa_user_sgpr_kernarg_segment_ptr 1
  .amdhsa_system_sgpr_workgroup_id_x 1
.end_amdhsa_kernel
"""

PV = 187


class Gen:
    def __init__(self, o):
        self.o = o
        self.L = []
        self.nstamp = 0
        self.nlab = 0

    def e(self, s):
        self.L.append("    " + s)

    def lab(self, s):
        self.L.append(s + ":")

    def newlab(self, p):
        self.nlab += 1
        return f"L_{p}{self.nlab}"

    def stamp(self):
        if not self.o.prof:
            return
        k = self.nstamp
        self.nstamp += 1
        assert k < 22
        self.e(f"s_mem{'real' if self.o.prof == 2 else ''}time s[{46 + 2 * k}:{47 + 2 * k}]")

    def stamp_now(self, base, ctr, real=False):
        if not self.o.prof:
            return
        self.e("s_memrealtime s[96:97]" if real else "s_memtime s[96:97]")
        self.e("s_waitcnt lgkmcnt(0)")
        self.e("s_mov_b32 s95, m0")
        if isinstance(ctr, str):
            self.e(f"s_cselect_b32 s94, 1, 0")
            self.e(f"s_add_u32 m0, {ctr}, {base}")
            self.e(f"s_cmp_lg_u32 s94, 0")
        else:
            self.e(f"s_mov_b32 m0, {base + ctr}")
        self.e(f"v_writelane_b32 v{PV}, s96, m0")
        self.e("s_mov_b32 m0, s95")

    def stamp_flush(self):
        if not self.o.prof:
            return
        e = self.e
        e("s_mov_b64 exec, -1")
        e("s_waitcnt lgkmcnt(0)")
        e("s_load_dwordx2 s[40:41], s[0:1], 32")
        e("s_lshl_b32 s42, s2, 3")
        e("s_add_u32 s42, s42, s3")
        e("s_lshl_b32 s42, s42, 8")
        e("v_lshl_add_u32 v1, v0, 2, s42")
        for k in range(self.nstamp):
            e(f"v_writelane_b32 v{PV}, s{46 + 2 * k}, {k}")
        e(f"s_mov_b32 s42, {self.nstamp}")
        e(f"v_writelane_b32 v{PV}, s42, 63")
        e("s_getreg_b32 s42, hwreg(HW_REG_XCC_ID)")
        e(f"v_writelane_b32 v{PV}, s42, 62")
        e(f"v_writelane_b32 v{PV}, s92, 60")
        e("s_memrealtime s[92:93]")
        e("s_waitcnt lgkmcnt(0)")
        e(f"v_writelane_b32 v{PV}, s92, 59")
        e(f"global_store_dword v1, v{PV}, s[40:41]")

    def diag_mark(self, name):
        d = self.o.diag
        if d == name:
            self.e("s_memrealtime s[90:91]")
        if d == "c" + name:
            self.e("s_memtime s[90:91]")

    def diag_end(self):
        o, e = self.o, self.e
        if not o.diag:
            return
        e("s_waitcnt vmcnt(0) lgkmcnt(0)")
        self.diag_mark("end")
        e("s_waitcnt lgkmcnt(0)")
        if o.diag == "rt":
            e("s_mov_b32 s42, 0")
        elif o.diag.startswith("c"):
            e("s_sub_u32 s42, s90, s88")
            e("s_lshr_b32 s42, s42, 2")
        else:
            e("s_sub_u32 s42, s90, s92")
            e("s_mul_i32 s42, s42, 4")
        e("s_add_u32 s42, s42, 4000")
        self.lab("L_dg")
        e("s_memrealtime s[40:41]")
        e("s_waitcnt lgkmcnt(0)")
        e("s_sub_u32 s40, s40, s92")
        e("s_cmp_lt_u32 s40, s42")
        e("s_cbranch_scc1 L_dg")

    def poll(self, vaddr, vtmp, sneed, sleep=1):
        e = self.e
        l = self.newlab("poll")
        d = self.newlab("pdone")
        self.lab(l)
        e(f"ds_read_b32 v{vtmp}, v{vaddr}")
        e("s_waitcnt lgkmcnt(0)")
        e(f"v_cmp_gt_i32 vcc, {sneed}, v{vtmp}")
        e(f"s_cbranch_vccz {d}")
        if sleep:
            e(f"s_sleep {sleep}")
        e(f"s_branch {l}")
        self.lab(d)

    def prologue(self):
        e = self.e
        e("s_cmp_ge_u32 s2, 256")
        e("s_cbranch_scc1 L_end")
        e("s_load_dwordx4 s[4:7], s[0:1], 0")
        e("s_load_dwordx2 s[8:9], s[0:1], 16")
        if self.o.prof or self.o.diag:
            e("s_memrealtime s[92:93]")
        if self.o.diag:
            e("s_memtime s[88:89]")
        self.stamp()
        if self.o.prof:
            e(f"v_mov_b32 v{PV}, 0")
        e("v_lshrrev_b32 v1, 6, v0")
        e("v_and_b32 v0, 63, v0")
        e(f"v_mov_b32 v3, {FLAGS}")
        e("v_readfirstlane_b32 s3, v1")
        e("v_xor_b32 v2, 4, v1")
        e("v_lshl_add_u32 v8, v2, 2, v3")
        e("v_mov_b32 v2, 0")
        e("ds_write_b32 v8, v2")
        e("v_and_b32 v2, 3, v0")
        e("v_lshl_add_u32 v9, v2, 2, v3")
        e("s_bfe_u32 s26, s2, 0x10005")
        e("s_bfe_u32 s43, s2, 0x10003" if self.o.hf else "s_mov_b32 s43, 0")
        e("s_cmp_lt_u32 s3, 4")
        e("s_cbranch_scc1 L_compute")

    def helper(self):
        e, o = self.e, self.o
        self.lab("L_helper")
        if o.prio_loader:
            e(f"s_setprio {o.prio_loader}")
        Wn = o.win
        phases = {"A": [(0, 304, [64, 64, 64, 64, 48])],
                  "B": [(0, 224, [56] * 4), (448, 80, [40] * 2)],
                  "C": [(0, 256, [64] * 4), (512, 48, [48])]}[o.order]
        self.phases = phases
        ntot = 7 * sum(len(p[2]) for p in phases)
        e("s_and_b32 s10, s2, 1")
        e("s_lshl_b32 s10, s10, 2")
        e("s_bfe_u32 s11, s2, 0x20003")
        e("s_add_u32 s10, s10, s11")
        e("s_bfe_u32 s11, s2, 0x20001")
        e("s_lshl_b32 s11, s11, 3")
        e("s_lshr_b32 s24, s2, 5")
        e("s_add_u32 s11, s11, s24")
        e("s_mul_i32 s25, s11, 12")
        e("s_mul_i32 s24, s10, 9216")
        e("s_and_b32 s30, s3, 1")
        e("s_bfe_u32 s45, s3, 0x10001")
        e("v_lshrrev_b32 v1, 2, v0")
        e("v_bfrev_b32 v3, 1")

        def patterns(ph, first, last):
            st, half, lanes = ph
            mir = (608 - st - 2 * half) - st if len(phases) == 2 else 0
            e(f"s_mul_i32 s33, s45, {half}")
            if mir:
                e(f"s_mul_i32 s28, s43, {mir}")
                e("s_add_u32 s33, s33, s28")
            if st:
                e(f"s_add_u32 s33, s33, {st}")
            e("s_lshr_b32 s28, s33, 2")
            e("s_add_u32 s28, s28, 2")
            e("v_add_u32 v4, s28, v1")
            e("s_lshl_b32 s33, s33, 4")
            off = 0
            for k, ln in enumerate(lanes):
                if off:
                    e(f"v_add_u32 v2, {off // 4}, v4")
                    e("v_mul_u32_u24 v2, 171, v2")
                else:
                    e("v_mul_u32_u24 v2, 171, v4")
                e("v_bfe_u32 v2, v2, 11, 2")
                e("v_xor_b32 v2, v2, v0")
                e(f"v_lshl_add_u32 v{10 + k}, v2, 4, s33")
                off += ln
            if len(lanes) == 5:
                e("v_add_u32 v14, 4096, v14")
            if first:
                e("s_add_u32 s28, s45, s10")
                e("s_cmp_eq_u32 s28, 0")
                e("s_cselect_b32 s32, 16, 0")
                e("v_cmp_gt_u32 vcc, s32, v0")
            e(f"s_mul_i32 s32, s30, {P}")
            e("s_add_u32 s33, s33, s32")
            if first:
                e("v_cndmask_b32 v10, v10, v3, vcc")
            if (first if o.hf else last):
                if not first:
                    e("s_add_u32 s28, s45, s10")
                e("s_cmp_eq_u32 s28, 8")
                e(f"s_cselect_b32 s28, {lanes[-1] - 16}, 64")
                e("v_cmp_le_u32 vcc, s28, v0")
                e("s_nop 1")
                e(f"v_cndmask_b32 v{9 + len(lanes)}, v{9 + len(lanes)}, v3, vcc")

        patterns(phases[0], True, len(phases) == 1)
        e("s_cmp_eq_u32 s26, 0")
        e("s_cselect_b32 s27, 1, -1")
        e("s_cselect_b32 s29, -1, 12")
        e(f"s_mul_i32 s27, s27, {ROWB}")
        e("s_add_i32 s29, s29, s25")
        e(f"s_mul_i32 s29, s29, {ROWB}")
        e("s_mul_i32 s28, s30, s27")
        e("s_add_i32 s29, s29, s28")
        e("s_lshl_b32 s35, s27, 1")
        cl = [int(x) for x in o.cls.split(",")]
        assert max(cl) <= 5
        e("s_bfe_u32 s44, s2, 0x20003")
        e("s_lshl_b32 s44, s44, 3")
        e(f"s_lshr_b32 s44, {hex(sum(c << (8 * i) for i, c in enumerate(cl)))}, s44")
        e("s_and_b32 s44, s44, 255")
        e("v_add_u32 v7, 16, v9")
        e("s_waitcnt lgkmcnt(0)")
        e("s_sub_u32 s12, s4, 256")
        e("s_subb_u32 s13, s5, 0")
        e(f"s_mov_b32 s14, {XBYTES + 256}")
        e("s_mov_b32 s15, 0x20000")
        self.stamp()
        self.diag_mark("karg")
        fl = o.ldflags
        if 0 in cl:
            e("s_cmp_lg_u32 s44, 0")
            e("s_cbranch_scc1 L_ld_start")
            e("s_barrier")
            self.lab("L_ld_start")
        if o.order == "A":
            self.load_A(phases, fl)
        else:
            Wn = o.winl
            n = 0
            c1, c2 = len(phases[0][2]), len(phases[1][2])
            e(f"v_mov_b32 v6, {-c1 * ((Wn - 1) // c1)}")
            for pi, ph in enumerate(phases):
                st, half, lanes = ph
                c = len(lanes)
                if pi:
                    e("s_mov_b64 exec, -1")
                    patterns(ph, False, True)
                    e(f"v_mov_b32 v6, {7 * c1 - (Wn - 1) + (Wn - 1) % c}")
                e("s_mov_b32 s31, s29")
                e("s_mov_b32 s32, 0")
                if lanes[0] < 64:
                    e(f"s_mov_b32 exec_hi, {hex((1 << (lanes[0] - 32)) - 1)}")
                self.lab(f"L_ld_loop{pi}")
                e("s_add_u32 s34, s31, s24")
                e("s_cmp_lt_i32 s31, 0")
                e("s_cselect_b32 s34, 0x40000000, s34")
                e("s_mov_b32 m0, s33")
                e("s_add_i32 s31, s31, s35")
                off = 0
                for k, ln in enumerate(lanes):
                    e(f"s_waitcnt vmcnt({Wn - 1})")
                    if k == (Wn - 1) % c:
                        e("ds_write_b32 v8, v6")
                    e(f"buffer_load_dwordx4 v{10 + k}, s[12:15], s34 offen offset:{off * 16} {fl} lds")
                    off += ln
                e(f"v_add_u32 v6, {c}, v6")
                e(f"s_add_u32 s33, s33, {2 * P}")
                e("s_add_u32 s32, s32, 1")
                if pi == 0:
                    e("s_cmp_lg_u32 s32, s44")
                    e("s_cbranch_scc1 L_ld_nobar")
                    e("s_barrier")
                    self.lab("L_ld_nobar")
                    e("s_cmp_lg_u32 s32, 5")
                    e("s_cbranch_scc1 L_ld_nopoll")
                    self.poll(7, 5, 1)
                    self.lab("L_ld_nopoll")
                e("s_cmp_lt_u32 s32, 7")
                e(f"s_cbranch_scc1 L_ld_loop{pi}")
            for v in range(ntot - Wn + 1, ntot):
                if v == 7 * c1 or (v < 7 * c1 and v % c1 == 0) or (v > 7 * c1 and (v - 7 * c1) % (2 * c2) == 0):
                    e(f"v_mov_b32 v2, {v}")
                    e(f"s_waitcnt vmcnt({ntot - v})")
                    e("ds_write_b32 v8, v2")
        self.lab("L_ld_tail")
        if o.prio_loader or o.prio_left:
            e("s_setprio 0")
        e("s_mov_b64 exec, -1")
        e("s_and_b32 s30, s3, 3")
        e("s_mul_i32 s28, s30, 12")
        e("s_add_u32 s28, s28, 3")
        if o.hf:
            e("s_mul_i32 s32, s43, 6")
            e("s_add_u32 s28, s28, s32")
        e("v_add_u32 v2, s28, v1")
        e("v_mul_u32_u24 v2, 171, v2")
        e("v_bfe_u32 v2, v2, 11, 2")
        e("v_xor_b32 v2, v2, v0")
        e("s_mul_i32 s33, s30, 768")
        e("s_add_u32 s28, s33, 64")
        if o.hf:
            e("s_mul_i32 s32, s43, 6528")
            e("s_add_u32 s28, s28, s32")
            e("s_mul_i32 s32, s43, 6144")
            e("s_add_u32 s24, s24, s32")
            e("s_sub_u32 s36, 3072, s32")
            e(f"s_sub_u32 s38, s36, {12 * P}")
        e("v_lshl_add_u32 v10, v2, 4, s28")
        e("v_lshl_add_u32 v11, v0, 4, s33")
        if o.defer:
            e("s_mul_i32 s28, s30, 12")
            e("s_add_u32 s28, s28, 9")
            e("v_add_u32 v2, s28, v1")
            e("v_mul_u32_u24 v2, 171, v2")
            e("v_bfe_u32 v2, v2, 11, 2")
            e("v_xor_b32 v2, v2, v0")
            e("s_add_u32 s28, s33, 448")
            e("v_lshl_add_u32 v13, v2, 4, s28")
        e("s_cmp_eq_u32 s26, 0")
        e("s_cselect_b32 s29, 0, 11")
        e("s_add_i32 s29, s29, s25")
        e(f"s_mul_i32 s29, s29, {ROWB}")
        e("s_add_u32 s29, s29, s24")
        e("s_mov_b32 s20, s8")
        e("s_mov_b32 s21, s9")
        e(f"s_mov_b32 s22, {XBYTES}")
        e("s_mov_b32 s23, 0x20000")
        e("s_mov_b32 exec_hi, 0xffff")
        e(f"v_mov_b32 v2, {ntot}")
        e("s_waitcnt vmcnt(0)")
        e("ds_write_b32 v8, v2")
        self.stamp()
        self.diag_mark("ldone")
        self.stamp_now(58, 0, real=True)
        if o.nostore:
            self.stamp_flush()
            e("s_endpgm")
        e("s_mov_b32 s37, 2")
        if o.defer:
            e("s_mov_b32 s31, s29")
            e(f"s_mov_b32 s32, {8 - o.defer}")
        else:
            self.lab("L_st_strip")
            e("s_mov_b32 s31, s29")
            e("s_mov_b32 s32, 0")
        self.lab("L_st_loop")
        if not o.nocomp:
            e("v_cmp_gt_i32 vcc, s37, v5")
            e("s_cbranch_vccz L_st_go")
            self.poll(7, 5, "s37", sleep=o.sleep)
            self.lab("L_st_go")
        e("ds_read_b128 v[16:19], v10")
        e(f"ds_read_b128 v[20:23], v10 offset:{P}")
        e("s_add_i32 s34, s31, s27")
        e(f"v_add_u32 v10, {2 * P}, v10")
        e("s_add_u32 s37, s37, 1")
        if not o.defer:
            e("s_add_u32 s32, s32, 1")
        e("s_waitcnt lgkmcnt(1)")
        e(f"buffer_store_dwordx4 v[16:19], v11, s[20:23], s31 offen {o.stflags}")
        e("s_add_i32 s31, s34, s27")
        e("s_waitcnt lgkmcnt(0)")
        e(f"buffer_store_dwordx4 v[20:23], v11, s[20:23], s34 offen {o.stflags}")
        if o.prof and o.cstamp:
            self.stamp_now(22 - 3, "s37")
            self.stamp_now(40 - 3, "s37", real=True)
        if o.defer:
            D = o.defer
            e("s_cmp_lt_u32 s37, s32")
            e("s_cbranch_scc1 L_st_loop")
            e("s_add_u32 s32, s32, 6")
            e(f"s_cmp_lg_u32 s37, {8 - D}")
            e("s_cbranch_scc1 L_st_s1")
            e("v_mov_b32 v12, v10")
            e("s_mov_b32 s43, s31")
            e("v_add_u32 v10, 6144, v13")
            e("s_add_u32 s31, s29, 6144")
            e("s_branch L_st_loop")
            self.lab("L_st_s1")
            e(f"s_cmp_lg_u32 s37, {14 - D}")
            e("s_cbranch_scc1 L_st_s2")
            e("v_add_u32 v10, 3072, v13")
            e("s_add_u32 s31, s29, 3072")
            e("s_branch L_st_loop")
            self.lab("L_st_s2")
            e("v_mov_b32 v10, v12")
            e("s_mov_b32 s31, s43")
            e("s_mov_b32 s32, 20")
            e("s_cmp_lt_u32 s37, 20")
            e("s_cbranch_scc1 L_st_loop")
        else:
            e("s_cmp_lt_u32 s32, 6")
            e("s_cbranch_scc1 L_st_loop")
            if o.hf:
                e("s_add_u32 s29, s29, s36")
                e("v_add_u32 v10, s38, v10")
            else:
                e("s_add_u32 s29, s29, 3072")
                e(f"v_add_u32 v10, {3072 - 12 * P}, v10")
            e("s_cmp_lt_u32 s37, 20")
            e("s_cbranch_scc1 L_st_strip")
        self.diag_mark("stiss")
        if o.prof:
            self.stamp()
            e("s_waitcnt vmcnt(0)")
            self.stamp()
        self.stamp_flush()
        self.diag_end()
        e("s_endpgm")

    def load_A(self, phases, fl):
        e, o = self.e, self.o
        lanes = phases[0][2]
        e("s_mov_b32 s31, s29")
        e("s_mov_b32 s32, 0")
        sides = [("l", o.winl), ("r", o.winr)] if o.winl != o.winr else [("l", o.winl)]
        if len(sides) == 2:
            e("s_cmp_lg_u32 s45, 0")
            e("s_cbranch_scc1 L_ld_pre_r")
        for sd, Wn in sides:
            self.lab(f"L_ld_pre_{sd}")
            e(f"v_mov_b32 v6, {-5 * ((Wn - 1) // 5)}")
            if sd == "l" and o.prio_left:
                e(f"s_setprio {o.prio_left}")
            self.lab(f"L_ld_loop_{sd}")
            e("s_add_u32 s34, s31, s24")
            e("s_cmp_lt_i32 s31, 0")
            e("s_cselect_b32 s34, 0x40000000, s34")
            e("s_mov_b32 m0, s33")
            e("s_add_i32 s31, s31, s35")
            for k in range(5):
                if k == 4:
                    e("s_add_u32 m0, s33, 4096")
                e(f"s_waitcnt vmcnt({Wn - 1})")
                if k == (Wn - 1) % 5:
                    e("ds_write_b32 v8, v6")
                if k == 4:
                    e("s_mov_b32 exec_hi, 0xffff")
                e(f"buffer_load_dwordx4 v{10 + k}, s[12:15], s34 offen offset:{1024 * (k % 4)} {fl} lds")
                if k == 4:
                    e("s_mov_b32 exec_hi, -1")
                if k == 0:
                    e(f"v_add_u32 v6, {(Wn - 1) % 5}, v6" if False else "s_add_u32 s32, s32, 1")
            e("v_add_u32 v6, 5, v6")
            e(f"s_add_u32 s33, s33, {2 * P}")
            e("s_cmp_lg_u32 s32, s44")
            e(f"s_cbranch_scc1 L_ld_nobar_{sd}")
            e("s_barrier")
            self.lab(f"L_ld_nobar_{sd}")
            e("s_cmp_lg_u32 s32, 5")
            e(f"s_cbranch_scc1 L_ld_nopoll_{sd}")
            self.poll(7, 5, 1)
            self.lab(f"L_ld_nopoll_{sd}")
            e("s_cmp_lt_u32 s32, 7")
            e(f"s_cbranch_scc1 L_ld_loop_{sd}")
            for v in range(35 - Wn + 1, 35):
                if v % 5 == 0:
                    e(f"v_mov_b32 v2, {v}")
                    e(f"s_waitcnt vmcnt({35 - v})")
                    e("ds_write_b32 v8, v2")
            if sd == "l" and len(sides) == 2:
                e("s_branch L_ld_tail")

    def compute(self):
        e, o = self.e, self.o
        ops = [("U0", 0), ("U0", 1), ("U1", 0), ("U1", 1), ("U2", 0), ("U2", 1), ("U2", 2), ("U3", 0), ("U3", 1), ("U3", 2),
               ("X", 0), ("X", 1), ("X", 2),
               ("L0", 0), ("L0", 1), ("L0", 2), ("L1", 0), ("L1", 1), ("L1", 2), ("L2", 1), ("L2", 2), ("L3", 1), ("L3", 2)]
        W = {k: 16 + 4 * i for i, k in enumerate(ops)}
        SET = [108, 124]
        XR = 140
        ACC = lambda s, t: 144 + 12 * s + 4 * t
        PK = 168
        A1, A2, AX = 174, 175, 176
        ST = [177, 178, 179]
        self.lab("L_compute")
        self.nstamp = 1
        if o.prio_comp:
            e(f"s_setprio {o.prio_comp}")
        e("s_mul_i32 s28, s3, 1152")
        e("v_lshl_add_u32 v108, v0, 4, s28")
        e("s_movk_i32 s29, 3456")
        for i in range(1, 4):
            e(f"v_add_u32 v2, {64 * i}, v0")
            e("v_mul_u32_u24 v2, 911, v2")
            e("v_lshrrev_b32 v2, 16, v2")
            e(f"v_mad_u32_u24 v{108 + i}, v2, s29, v108")
        e("v_cmp_lt_u32 vcc, 23, v0")
        e("v_bfrev_b32 v3, 1")
        e(f"s_mul_i32 s33, s3, {WSZ}")
        e(f"s_add_u32 s33, s33, {WREG}")
        e("v_cndmask_b32 v111, v111, v3, vcc")
        e("s_mul_i32 s34, s26, 27648")
        e("s_movk_i32 s35, 13824")
        e("s_sub_u32 s36, 27648, s34")
        e("s_waitcnt lgkmcnt(0)")
        if o.tlbw:
            e("s_and_b32 s10, s2, 1")
            e("s_lshl_b32 s10, s10, 2")
            e("s_bfe_u32 s11, s2, 0x20003")
            e("s_add_u32 s10, s10, s11")
            e("s_mul_i32 s10, s10, 9216")
            e("s_bfe_u32 s11, s2, 0x20001")
            e("s_lshl_b32 s11, s11, 3")
            e("s_lshr_b32 s24, s2, 5")
            e("s_add_u32 s11, s11, s24")
            e(f"s_mul_i32 s11, s11, {12 * ROWB}")
            e("s_add_u32 s10, s10, s11")
            e("s_mov_b32 s20, s8")
            e("s_mov_b32 s21, s9")
            e(f"s_mov_b32 s22, {XBYTES}")
            e("s_mov_b32 s23, 0x20000")
            e(f"s_mov_b32 s11, {11 * ROWB}")
            e("v_mul_lo_u32 v2, v0, s11")
            e("s_cmp_lg_u32 s3, 0")
            e("s_cbranch_scc1 L_notouch")
            e("s_mov_b64 exec, 3")
            e(f"buffer_load_dword v186, v2, s[20:23], s10 offen {o.tlbf}")
            e("s_mov_b64 exec, -1")
            self.lab("L_notouch")
        e("s_barrier")
        e("s_mov_b32 s16, s6")
        e("s_mov_b32 s17, s7")
        e(f"s_mov_b32 s18, {WBYTES}")
        e("s_mov_b32 s19, 0x20000")
        for p in range(3):
            e(f"s_add_u32 m0, s33, {4096 * p}")
            e("s_nop 0")
            for i in range(4):
                if not o.now:
                    e(f"buffer_load_dwordx4 v{108 + i}, s[16:19], s{34 + p} offen offset:{1024 * i} {o.wflags} lds")
        self.stamp()
        e("v_and_b32 v1, 15, v0")
        e("v_lshrrev_b32 v2, 4, v0")
        e("s_mul_i32 s28, s3, 3")
        e("v_and_b32 v3, 1, v2")
        e("v_lshrrev_b32 v4, 1, v2")
        e("v_cmp_gt_u32 vcc, 2, v2")
        e("s_movk_i32 s29, 192")
        e("s_movk_i32 s30, 1152")

        def baddr(dst, vdx, vcc_, tmp1, tmp2, extra=None):
            e(f"v_add_u32 v{tmp1}, {vdx}, v1")
            e(f"v_add_u32 v{tmp2}, 1, v{tmp1}")
            e(f"v_bfe_u32 v{tmp2}, v{tmp2}, 2, 2")
            e(f"v_mad_u32_u24 v{tmp1}, v{tmp1}, s29, v15" if o.hf else f"v_mad_u32_u24 v{tmp1}, v{tmp1}, s29, 64")
            e(f"v_add_u32 v{dst}, s28, {vcc_}")
            e(f"v_xor_b32 v{dst}, v{dst}, v{tmp2}")
            e(f"v_lshl_add_u32 v{dst}, v{dst}, 4, v{tmp1}")
            if extra:
                e(f"v_add_u32 v{dst}, {extra}, v{dst}")

        if o.hf:
            e("s_mul_i32 s31, s43, 6144")
            e("s_add_u32 s32, s31, 64")
            e("v_mov_b32 v15, s32")
            e("s_sub_u32 s38, 3072, s31")
            e(f"s_sub_u32 s38, s38, {8 * P}")
        e("v_cndmask_b32 v6, 2, v2, vcc")
        e("v_cndmask_b32 v7, v3, 2, vcc")
        baddr(A1, "v3", "v4", 11, 12)
        baddr(A2, "v6", "v7", 11, 12)
        e(f"v_mul_u32_u24 v13, {P}, v2")
        e("v_mov_b32 v14, 2")
        baddr(AX, "2", "v14", 11, 12, "v13")
        if o.hf:
            e("v_lshl_add_u32 v1, s43, 1, v1")
        e("v_add_u32 v12, 1, v1")
        e("v_bfe_u32 v12, v12, 2, 2")
        e("v_mad_u32_u24 v11, v1, s29, v15" if o.hf else "v_mad_u32_u24 v11, v1, s29, 64")
        e("v_lshl_add_u32 v11, v3, 3, v11")
        e(f"v_add_u32 v13, {P}, v11")
        e("v_add_u32 v14, s28, v4")
        e("v_xor_b32 v15, v14, v12")
        e(f"v_lshl_add_u32 v{ST[0]}, v15, 4, v11")
        e("v_add_u32 v14, 1, v14")
        e("v_xor_b32 v15, v14, v12")
        e(f"v_lshl_add_u32 v{ST[2]}, v15, 4, v13")
        e("v_cndmask_b32 v14, 0, 2, vcc")
        e("v_cndmask_b32 v13, v13, v11, vcc")
        e("v_add_u32 v14, s28, v14")
        e("v_xor_b32 v15, v14, v12")
        e(f"v_lshl_add_u32 v{ST[1]}, v15, 4, v13")
        if o.defer:
            e("v_add_u32 v12, 3, v1")
            e("v_bfe_u32 v12, v12, 2, 2")
            e(f"v_add_u32 v11, {384 + 6144}, v11")
            e(f"v_add_u32 v13, {384 + 6144}, v13")
            e("v_xor_b32 v15, v14, v12")
            e("v_lshl_add_u32 v181, v15, 4, v13")
            e("v_add_u32 v14, s28, v4")
            e("v_xor_b32 v15, v14, v12")
            e("v_lshl_add_u32 v180, v15, 4, v11")
            e("v_add_u32 v14, 1, v14")
            e("v_xor_b32 v15, v14, v12")
            e(f"v_add_u32 v11, {P}, v11")
            e("v_lshl_add_u32 v182, v15, 4, v11")
        E1, E2, F1, F2, F1z, F2z, F1y, F2y, G0, G1, G2, Z = range(144, 156)
        e("v_bfe_u32 v11, v0, 2, 2")
        e("v_mul_u32_u24 v11, 48, v11")
        e("v_add_u32 v11, s33, v11")
        e("v_and_b32 v12, 3, v0")
        e("v_lshl_add_u32 v11, v12, 3, v11")
        e("v_mul_u32_u24 v13, 384, v4")
        e("v_mad_u32_u24 v13, v3, s30, v13")
        e("v_mul_u32_u24 v14, 384, v7")
        e("v_mad_u32_u24 v14, v6, s30, v14")
        e(f"v_add_u32 v{E1}, v11, v13")
        e(f"v_add_u32 v{E2}, v11, v14")
        e("v_cmp_lt_u32 vcc, 1, v12")
        e("s_add_u32 s30, s33, 3456")
        e(f"v_mov_b32 v{Z}, s30")
        e("v_mov_b32 v13, 32")
        e("v_mov_b32 v14, -4112")
        e("v_cndmask_b32 v13, v13, v14, vcc")
        e("v_cndmask_b32 v15, 0, 1, vcc")
        e(f"v_add_u32 v{F1}, v{E1}, v13")
        e(f"v_add_u32 v{F2}, v{E2}, v13")
        e(f"v_cndmask_b32 v{F1z}, v{F1}, v{Z}, vcc")
        e(f"v_cndmask_b32 v{F2z}, v{F2}, v{Z}, vcc")
        e(f"v_add_u32 v{F1y}, 12288, v{F1}")
        e(f"v_add_u32 v{F2y}, 12288, v{F2}")
        e(f"v_cndmask_b32 v{F1y}, v{Z}, v{F1y}, vcc")
        e(f"v_cndmask_b32 v{F2y}, v{Z}, v{F2y}, vcc")
        e("v_lshl_add_u32 v11, v2, 12, v11")
        e("v_add_u32 v11, 3072, v11")
        e("v_sub_u32 v15, v2, v15")
        e("v_cmp_gt_u32 vcc, 3, v15")
        e(f"v_add_u32 v{G1}, v11, v13")
        e(f"v_add_u32 v{G2}, -4080, v11")
        e(f"v_cndmask_b32 v{G1}, v{Z}, v{G1}, vcc")
        e("v_cmp_gt_u32 vcc, 3, v2")
        e("s_nop 1")
        e(f"v_cndmask_b32 v{G0}, v{Z}, v11, vcc")
        e("v_cmp_lt_u32 vcc, 0, v2")
        e("s_nop 0")
        e("v_mov_b32 v10, 1")
        e(f"v_cndmask_b32 v{G2}, v{Z}, v{G2}, vcc")

        def tr(key, a, off):
            w = W[key]
            e(f"ds_read_b64_tr_b16 v[{w}:{w + 1}], v{a} offset:{off}")
            e(f"ds_read_b64_tr_b16 v[{w + 2}:{w + 3}], v{a} offset:{off + 192}")

        e("s_waitcnt vmcnt(8)")
        self.stamp()
        tr(("U0", 0), E1, 0); tr(("U1", 0), E2, 0); tr(("U0", 1), F1z, 0); tr(("U1", 1), F2z, 0)
        tr(("U2", 2), E1, 16); tr(("U3", 2), E2, 16)
        e("s_waitcnt vmcnt(4)")
        tr(("U2", 0), E1, 4096); tr(("U3", 0), E2, 4096); tr(("U2", 1), F1, 4096); tr(("U3", 1), F2, 4096)
        tr(("L0", 2), E1, 4112); tr(("L1", 2), E2, 4112)
        e("s_waitcnt vmcnt(0)")
        self.stamp()
        tr(("X", 0), G0, 0); tr(("X", 1), G1, 0); tr(("X", 2), G2, 0)
        tr(("L0", 0), E1, 8192); tr(("L1", 0), E2, 8192); tr(("L0", 1), F1, 8192); tr(("L1", 1), F2, 8192)
        tr(("L2", 1), F1y, 0); tr(("L3", 1), F2y, 0); tr(("L2", 2), E1, 8208); tr(("L3", 2), E2, 8208)
        e("ds_write_b32 v8, v10")
        self.stamp()
        if o.nocomp:
            self.stamp_flush()
            self.lab("L_end")
            e("s_endpgm")
            return
        if o.cstamp == 2:
            e("s_waitcnt lgkmcnt(0)")
            e("s_mov_b32 s94, s46")
        self.lab("L_c_loop")
        slow = []
        c1 = len(self.phases[0][2])
        ntot = 7 * sum(len(p[2]) for p in self.phases)

        def need(T, s):
            if o.order == "A" or T < 2:
                return c1 * (s + 2)
            return 7 * c1 + len(self.phases[1][2]) * (s + 2)

        def pair_reads(st, off):
            b = SET[st]
            return [f"ds_read_b128 v[{b}:{b + 3}], v{A1} offset:{off}",
                    f"ds_read_b128 v[{b + 4}:{b + 7}], v{A2} offset:{off}",
                    f"ds_read_b128 v[{b + 8}:{b + 11}], v{A1} offset:{off + P}",
                    f"ds_read_b128 v[{b + 12}:{b + 15}], v{A2} offset:{off + P}"]

        def epilogue(acc, off, wr):
            r = []
            for t in range(3):
                a = ACC(acc, t)
                r.append(f"v_cvt_pk_bf16_f32 v{PK + 2 * t}, v{a}, v{a + 1}")
                r.append(f"v_cvt_pk_bf16_f32 v{PK + 2 * t + 1}, v{a + 2}, v{a + 3}")
                if wr == 32:
                    r.append(f"ds_write_b32 v{ST[t]}, v{PK + 2 * t} offset:{off}")
                    r.append(f"ds_write_b32 v{ST[t]}, v{PK + 2 * t + 1} offset:{off + 4}")
                else:
                    r.append(f"ds_write_b64 v{ST[t]}, v[{PK + 2 * t}:{PK + 2 * t + 1}] offset:{off}")
            r.append("ds_write_b32 v8, v10")
            return r

        seen_upto = 0
        fpending = None
        modes = o.modes.split(",")
        loop = o.loop
        if loop:
            del self.L[-1]
            e("s_mov_b32 s37, 0")
            e("v_and_b32 v11, -9, v9")
            if o.hf:
                e("v_lshl_add_u32 v11, s43, 3, v11")
            e("v_mov_b32 v5, 0")
            if o.order != "A":
                e(f"s_mov_b32 s35, {2 * c1}")
                e(f"s_mov_b32 s34, {2 * c1}")
            self.lab("L_c_loop")
        for T in range(1 if loop else 3):
            md = modes[T]
            for s in range(6):
                u = 6 * T + s
                if o.prof and o.cstamp == 2:
                    e(f"s_memtime s[{16 + 4 * u}:{17 + 4 * u}]")
                    e(f"s_memrealtime s[{18 + 4 * u}:{19 + 4 * u}]")
                elif o.prof and o.cstamp:
                    self.stamp_now(22, u)
                    self.stamp_now(40, u, real=True)
                U, Lo = s & 1, (s & 1) ^ 1
                acc = s & 1 if md == "n" else 0
                nd = need(T, s)
                if loop and o.order != "A" and s == 0:
                    e("v_cmp_gt_i32 vcc, s35, v5")
                    e(f"s_cbranch_vccnz L_c_slow{u}")
                    self.lab(f"L_c_ready{u}")
                    slow.append((u, "s35"))
                    e("s_mov_b32 s35, s34")
                    e(f"s_mov_b32 s34, {ntot}")
                    seen_upto = 99
                elif loop:
                    e(f"v_cmp_gt_i32 vcc, {nd}, v5")
                    e(f"s_cbranch_vccnz L_c_slow{u}")
                    self.lab(f"L_c_ready{u}")
                    slow.append((u, nd))
                    seen_upto = 99
                elif nd > seen_upto:
                    if fpending is not None:
                        e(f"s_waitcnt lgkmcnt({fpending})")
                        if loop:
                            nd_ = "s36"
                        else:
                            nd_ = nd
                        e(f"v_cmp_gt_i32 vcc, {nd_}, v5")
                        e(f"s_cbranch_vccnz L_c_slow{u}")
                        self.lab(f"L_c_ready{u}")
                        slow.append((u, nd_))
                    else:
                        self.poll(9, 5, nd, sleep=o.csleep)
                    seen_upto = nd
                fpending = None
                if s == 0 and o.prof and not o.cstamp:
                    self.stamp_now(24, "s37" if loop else T, real=(o.prof == 2))
                ro = (s & 1) * 2 * P
                rd = (pair_reads(0, 0) if s == 0 else []) + pair_reads(Lo, ro + 2 * P)
                rd.append(f"ds_read_b128 v[{XR}:{XR + 3}], v{AX} offset:{ro}")
                post = []
                if s & 1:
                    adv = 4 * P if s < 5 else "s38" if o.hf else (-3072 if o.defer else 3072) - 8 * P
                    post = [f"v_add_u32 v{r}, {adv}, v{r}" for r in (A1, A2, AX)] if u < 17 else []
                inter = []
                if md in ("r", "n") and s > 0:
                    inter = [[x] for x in rd]
                else:
                    for x in rd:
                        e(x)
                    if s == 0:
                        e("s_waitcnt lgkmcnt(5)")
                nxt_need = need(T, s + 1) if s < 5 else (need(T + 1, 0) if T < 2 else 0)
                want_f = md != "p" and nxt_need > seen_upto
                if loop:
                    if o.defer:
                        if s == o.defer - 1:
                            post = post + ["s_cmp_eq_u32 s37, 3"]
                        if s == 5 - o.defer:
                            post = post + ["s_cmp_eq_u32 s37, 0"]
                        if s == 5:
                            post = post + ["s_add_u32 s37, s37, 1", "s_cmp_eq_u32 s37, 2"]
                    elif s == 5:
                        post = post + ["s_add_u32 s37, s37, 1", "v_mov_b32 v11, v9", "s_cmp_eq_u32 s37, 1", "s_cselect_b32 s36, 0, -1",
                                       "v_and_b32 v5, s36, v5", "s_cmp_lt_u32 s37, 3"]
                    if o.order != "A" and s == 0:
                        pre0 = True
                defer = []
                if md == "n" and s > 0:
                    defer = ["v_add_u32 v10, 1, v10"] + epilogue(acc ^ 1, ((s - 1) & 1) * 2 * P, o.wrn)
                    if not s & 1:
                        defer += [f"v_add_u32 v{r}, {4 * P}, v{r}" for r in ST]
                seen = set()
                seq = [(k, SET[U] + 4 * int(k[0][1])) for k in ops[:10]] + [(k, SET[Lo] + 4 * int(k[0][1])) for k in ops[13:]] + [(k, XR) for k in ops[10:13]]
                behind = 0
                for g, (k, b) in enumerate(seq):
                    if g == 10:
                        e(f"s_waitcnt lgkmcnt({behind})")
                    t = k[1]
                    a = ACC(acc, t)
                    cin = f"v[{a}:{a + 3}]" if t in seen else "0"
                    seen.add(t)
                    e(f"v_mfma_f32_16x16x32_bf16 v[{a}:{a + 3}], v[{W[k]}:{W[k] + 3}], v[{b}:{b + 3}], {cin}")
                    cap = 2
                    if inter:
                        e(inter.pop(0)[0])
                        cap -= 1
                    elif post and not defer:
                        while post and cap:
                            e(post.pop(0))
                            cap -= 1
                    while defer and cap and g >= 2 and g != 9:
                        isw = defer[0].startswith("ds_write")
                        if isw and cap < 2:
                            break
                        x = defer.pop(0)
                        e(x)
                        cap -= 2 if isw else 1
                        if isw and g < 10:
                            behind += 1
                assert not defer and not inter, (u, defer)
                fill = list(post)
                if md != "n" or s == 5:
                    fill.append("v_add_u32 v10, 1, v10")
                    if want_f:
                        fill.append("ds_read_b32 v5, v9")
                    for x in fill:
                        e(x)
                    if len(fill) < 6:
                        e(f"s_nop {5 - len(fill)}")
                    ep = epilogue(acc, (s & 1) * 2 * P, o.wr)
                    for x in ep:
                        e(x)
                    if want_f:
                        fpending = sum(1 for x in ep if x.startswith("ds_"))
                    if s & 1 and u < 17:
                        adv = 4 * P if s < 5 else "s38" if o.hf else (-3072 if o.defer else 3072) - 8 * P
                        for r in ST:
                            e(f"v_add_u32 v{r}, {adv}, v{r}")
                    if o.defer and s in (o.defer - 1, 5 - o.defer):
                        e("s_cbranch_scc1 L_c_stub")
                else:
                    for x in fill:
                        e(x)
                    if want_f:
                        e("ds_read_b32 v5, v9")
                        fpending = 0
                    if o.defer and s in (o.defer - 1, 5 - o.defer):
                        e("s_cbranch_scc1 L_c_stub")
        if loop:
            e("s_cbranch_scc1 L_c_loop")
        if o.defer:
            D = o.defer
            for r in (A1, A2, AX):
                e(f"v_add_u32 v{r}, {(12 - 2 * D) * P}, v{r}")
            for t in range(3):
                back = 2 * D * P if md == "n" else (2 * P if D == 1 else 0)
                e(f"v_add_u32 v{ST[t]}, {back}, v{180 + t}")
            e("s_branch L_c_loop")
            self.lab("L_c_stub")
            if md == "n":
                e("v_add_u32 v10, 1, v10")
            e("s_cmp_eq_u32 s37, 0")
            e("s_mov_b32 s37, 1")
            e("v_mov_b32 v11, v9")
            e("v_mov_b32 v5, 0")
            if md == "n":
                for x in epilogue((D - 1) & 1, ((D - 1) & 1) * 2 * P, o.wr):
                    e(x)
            for r in (A1, A2, AX):
                e(f"v_add_u32 v{r}, {6144 - 8 * P}, v{r}")
            for t in range(3):
                e(f"v_swap_b32 v{ST[t]}, v{180 + t}")
            e("s_cbranch_scc1 L_c_loop")
        if o.cstamp == 2:
            e("s_memtime s[88:89]")
            e("s_waitcnt lgkmcnt(0)")
            for u in range(18):
                e(f"v_writelane_b32 v{PV}, s{16 + 4 * u}, {22 + u}")
                e(f"v_writelane_b32 v{PV}, s{18 + 4 * u}, {40 + u}")
            e("s_mov_b32 s46, s94")
            e("s_mov_b32 s48, s88")
            self.nstamp = 2
        else:
            self.stamp()
        self.stamp_flush()
        self.lab("L_end")
        e("s_endpgm")
        for u, nd in slow:
            self.lab(f"L_c_slow{u}")
            self.poll(11 if loop else 9, 5, nd, sleep=o.csleep)
            e(f"s_branch L_c_ready{u}")

    @staticmethod
    def srcs(txt):
        m = re.search(r", v\[(\d+):(\d+)\]", txt)
        if m:
            return [str(r) for r in range(int(m.group(1)), int(m.group(2)) + 1)]
        return [re.search(r", v(\d+)", txt).group(1)]

    def check_mfma_hazards(self):
        L = [l.strip() for l in self.L]
        if "L_c_loop:" not in L:
            return
        i = L.index("L_c_loop:")
        k = L.index("L_end:")
        for seqn in (L[i:k],):
            pend = {}
            pos = 0
            for l in seqn:
                if l.endswith(":"):
                    continue
                regs = set()
                for m in re.finditer(r"v\[(\d+):(\d+)\]|v(\d+)", l.split(None, 1)[1] if " " in l else ""):
                    if m.group(3):
                        regs.add(int(m.group(3)))
                    else:
                        regs.update(range(int(m.group(1)), int(m.group(2)) + 1))
                if l.startswith("v_mfma"):
                    m = re.match(r"v_mfma\S+ v\[(\d+):(\d+)\]", l)
                    for r in range(int(m.group(1)), int(m.group(2)) + 1):
                        pend[r] = pos
                else:
                    for r in regs:
                        if r in pend:
                            assert pos - pend[r] - 1 >= 8, (l, pos - pend[r] - 1)
                m = re.match(r"s_nop (\d+)", l)
                pos += int(m.group(1)) + 1 if m else 1

    def build(self):
        self.prologue()
        self.helper()
        self.compute()
        self.check_mfma_hazards()
        if self.o.drop:
            i = self.L.index("L_c_loop:")
            j = self.L.index("L_end:")
            pats = self.o.drop.split(",")
            self.L = self.L[:i] + [l for l in self.L[i:j] if not any(l.strip().startswith(p) for p in pats)] + self.L[j:]
        return HEADER + "\n".join(self.L) + "\n" + FOOTER.format(vgpr=188, acc=188)


def main():
    p = argparse.ArgumentParser()
    p.add_argument("-o", default="-")
    p.add_argument("--prof", type=int, default=0)
    p.add_argument("--hflip", type=int, default=1)
    p.add_argument("--win", type=int, default=11)
    p.add_argument("--barpair", type=int, default=2)
    p.add_argument("--ldflags", default="nt")
    p.add_argument("--wflags", default="")
    p.add_argument("--stflags", default="sc0 sc1 nt")
    p.add_argument("--prio_loader", type=int, default=0)
    p.add_argument("--prio_comp", type=int, default=0)
    p.add_argument("--nocomp", type=int, default=0)
    p.add_argument("--noload", type=int, default=0)
    p.add_argument("--cstamp", type=int, default=0)
    p.add_argument("--drop", default="")
    p.add_argument("--wr", type=int, default=64)
    p.add_argument("--estart", type=int, default=2)
    p.add_argument("--diag", default="")
    p.add_argument("--now", type=int, default=0)
    p.add_argument("--stwait", type=int, default=0)
    p.add_argument("--stwin", type=int, default=0)
    p.add_argument("--pad", type=int, default=0)
    p.add_argument("--padk", type=int, default=1)
    p.add_argument("--padmask", type=int, default=7)
    p.add_argument("--fpre", type=int, default=0)
    p.add_argument("--csleep", type=int, default=1)
    p.add_argument("--eflag", type=int, default=0)
    p.add_argument("--rdint", type=int, default=0)
    p.add_argument("--sched", default="plain")
    p.add_argument("--stag", type=int, default=0)
    p.add_argument("--stagw", type=int, default=2)
    p.add_argument("--gate", type=int, default=0)
    p.add_argument("--gsleep", type=int, default=4)
    p.add_argument("--padper", default="")
    p.add_argument("--nostore", type=int, default=0)
    p.add_argument("--jmask", type=int, default=0)
    p.add_argument("--cls", default="1,2,3,4")
    p.add_argument("--order", default="C")
    p.add_argument("--modes", default="n")
    p.add_argument("--loop", type=int, default=1)
    p.add_argument("--winl", type=int, default=9)
    p.add_argument("--winr", type=int, default=11)
    p.add_argument("--prio_left", type=int, default=0)
    p.add_argument("--tlbw", type=int, default=0)
    p.add_argument("--tlbf", default="nt")
    p.add_argument("--defer", type=int, default=0)
    p.add_argument("--wrn", type=int, default=32)
    p.add_argument("--hf", type=int, default=1)
    p.add_argument("--fevery", type=int, default=0)
    p.add_argument("--two", type=int, default=0)
    p.add_argument("--rdint2", type=int, default=1)
    p.add_argument("--sleep", type=int, default=2)
    o = p.parse_args()
    s = Gen(o).build()
    if o.o == "-":
        sys.stdout.write(s)
    else:
        open(o.o, "w").write(s)


if __name__ == "__main__":
    main()
```

```python
import argparse
import re
import sys

ROWB = 73728
XBYTES = 28311552
WBYTES = 41472
P = 9728
LDS_TOTAL = 163840
FLAGS = LDS_TOTAL - 256
WSZ = 12288
WREG = FLAGS - 4 * WSZ

HEADER = """; Kernarg layout for this problem (40 bytes, ptrs only, base s[0:1]):
; @launch grid=(256,1,1) block=(512,1,1) lds=163840
.amdgcn_target "amdgcn-amd-amdhsa--gfx950"
.text
.globl standalone__grouped__vision_kernel
.p2align 8
.type standalone__grouped__vision_kernel,@function
standalone__grouped__vision_kernel:
"""

FOOTER = """.section .rodata,"a"
.p2align 6
.amdhsa_kernel standalone__grouped__vision_kernel
  .amdhsa_next_free_vgpr {vgpr}
  .amdhsa_next_free_sgpr 102
  .amdhsa_accum_offset {acc}
  .amdhsa_group_segment_fixed_size 0
  .amdhsa_kernarg_size 40
  .amdhsa_user_sgpr_count 2
  .amdhsa_user_sgpr_kernarg_segment_ptr 1
  .amdhsa_system_sgpr_workgroup_id_x 1
.end_amdhsa_kernel
"""

PV = 187


class Gen:
    def __init__(self, o):
        self.o = o
        self.L = []
        self.nstamp = 0
        self.nlab = 0

    def e(self, s):
        self.L.append("    " + s)

    def lab(self, s):
        self.L.append(s + ":")

    def newlab(self, p):
        self.nlab += 1
        return f"L_{p}{self.nlab}"

    def stamp(self):
        if not self.o.prof:
            return
        k = self.nstamp
        self.nstamp += 1
        assert k < 22
        self.e(f"s_mem{'real' if self.o.prof == 2 else ''}time s[{46 + 2 * k}:{47 + 2 * k}]")

    def stamp_now(self, base, ctr, real=False):
        if not self.o.prof:
            return
        self.e("s_memrealtime s[96:97]" if real else "s_memtime s[96:97]")
        self.e("s_waitcnt lgkmcnt(0)")
        self.e("s_mov_b32 s95, m0")
        if isinstance(ctr, str):
            self.e(f"s_cselect_b32 s94, 1, 0")
            self.e(f"s_add_u32 m0, {ctr}, {base}")
            self.e(f"s_cmp_lg_u32 s94, 0")
        else:
            self.e(f"s_mov_b32 m0, {base + ctr}")
        self.e(f"v_writelane_b32 v{PV}, s96, m0")
        self.e("s_mov_b32 m0, s95")

    def stamp_flush(self):
        if not self.o.prof:
            return
        e = self.e
        e("s_mov_b64 exec, -1")
        e("s_waitcnt lgkmcnt(0)")
        e("s_load_dwordx2 s[40:41], s[0:1], 32")
        e("s_lshl_b32 s42, s2, 3")
        e("s_add_u32 s42, s42, s3")
        e("s_lshl_b32 s42, s42, 8")
        e("v_lshl_add_u32 v1, v0, 2, s42")
        for k in range(self.nstamp):
            e(f"v_writelane_b32 v{PV}, s{46 + 2 * k}, {k}")
        e(f"s_mov_b32 s42, {self.nstamp}")
        e(f"v_writelane_b32 v{PV}, s42, 63")
        e("s_getreg_b32 s42, hwreg(HW_REG_XCC_ID)")
        e(f"v_writelane_b32 v{PV}, s42, 62")
        e(f"v_writelane_b32 v{PV}, s92, 60")
        e("s_memrealtime s[92:93]")
        e("s_waitcnt lgkmcnt(0)")
        e(f"v_writelane_b32 v{PV}, s92, 59")
        e(f"global_store_dword v1, v{PV}, s[40:41]")

    def diag_mark(self, name):
        d = self.o.diag
        if d == name:
            self.e("s_memrealtime s[90:91]")
        if d == "c" + name:
            self.e("s_memtime s[90:91]")

    def diag_end(self):
        o, e = self.o, self.e
        if not o.diag:
            return
        e("s_waitcnt vmcnt(0) lgkmcnt(0)")
        self.diag_mark("end")
        e("s_waitcnt lgkmcnt(0)")
        if o.diag == "rt":
            e("s_mov_b32 s42, 0")
        elif o.diag.startswith("c"):
            e("s_sub_u32 s42, s90, s88")
            e("s_lshr_b32 s42, s42, 2")
        else:
            e("s_sub_u32 s42, s90, s92")
            e("s_mul_i32 s42, s42, 4")
        e("s_add_u32 s42, s42, 4000")
        self.lab("L_dg")
        e("s_memrealtime s[40:41]")
        e("s_waitcnt lgkmcnt(0)")
        e("s_sub_u32 s40, s40, s92")
        e("s_cmp_lt_u32 s40, s42")
        e("s_cbranch_scc1 L_dg")

    def poll(self, vaddr, vtmp, sneed, sleep=1):
        e = self.e
        l = self.newlab("poll")
        d = self.newlab("pdone")
        self.lab(l)
        e(f"ds_read_b32 v{vtmp}, v{vaddr}")
        e("s_waitcnt lgkmcnt(0)")
        e(f"v_cmp_gt_i32 vcc, {sneed}, v{vtmp}")
        e(f"s_cbranch_vccz {d}")
        if sleep:
            e(f"s_sleep {sleep}")
        e(f"s_branch {l}")
        self.lab(d)

    def prologue(self):
        e = self.e
        e("s_cmp_ge_u32 s2, 256")
        e("s_cbranch_scc1 L_end")
        e("s_load_dwordx4 s[4:7], s[0:1], 0")
        e("s_load_dwordx2 s[8:9], s[0:1], 16")
        if self.o.prof or self.o.diag:
            e("s_memrealtime s[92:93]")
        if self.o.diag:
            e("s_memtime s[88:89]")
        self.stamp()
        if self.o.prof:
            e(f"v_mov_b32 v{PV}, 0")
        e("v_lshrrev_b32 v1, 6, v0")
        e("v_and_b32 v0, 63, v0")
        e(f"v_mov_b32 v3, {FLAGS}")
        e("v_readfirstlane_b32 s3, v1")
        e("v_xor_b32 v2, 4, v1")
        e("v_lshl_add_u32 v8, v2, 2, v3")
        e("v_mov_b32 v2, 0")
        e("ds_write_b32 v8, v2")
        e("v_and_b32 v2, 3, v0")
        e("v_lshl_add_u32 v9, v2, 2, v3")
        e("s_bfe_u32 s26, s2, 0x10005")
        e("s_cmp_lt_u32 s3, 4")
        e("s_cbranch_scc1 L_compute")

    def helper(self):
        e, o = self.e, self.o
        self.lab("L_helper")
        if o.prio_loader:
            e(f"s_setprio {o.prio_loader}")
        Wn = o.win
        phases = {"A": [(0, 304, [64, 64, 64, 64, 48])],
                  "B": [(0, 224, [56] * 4), (448, 80, [40] * 2)]}[o.order]
        self.phases = phases
        ntot = 7 * sum(len(p[2]) for p in phases)
        e("s_and_b32 s10, s2, 1")
        e("s_lshl_b32 s10, s10, 2")
        e("s_bfe_u32 s11, s2, 0x20003")
        e("s_add_u32 s10, s10, s11")
        e("s_bfe_u32 s11, s2, 0x20001")
        e("s_lshl_b32 s11, s11, 3")
        e("s_lshr_b32 s24, s2, 5")
        e("s_add_u32 s11, s11, s24")
        e("s_mul_i32 s25, s11, 12")
        e("s_mul_i32 s24, s10, 9216")
        e("s_and_b32 s30, s3, 1")
        e("s_bfe_u32 s45, s3, 0x10001")
        e("v_lshrrev_b32 v1, 2, v0")
        e("v_bfrev_b32 v3, 1")

        def patterns(ph, first, last):
            st, half, lanes = ph
            e(f"s_mul_i32 s28, s45, {half // 4}")
            e(f"s_add_u32 s28, s28, {st // 4 + 2}")
            e("v_add_u32 v4, s28, v1")
            e(f"s_mul_i32 s33, s45, {half * 16}")
            if st:
                e(f"s_add_u32 s33, s33, {st * 16}")
            off = 0
            for k, ln in enumerate(lanes):
                if off:
                    e(f"v_add_u32 v2, {off // 4}, v4")
                    e("v_mul_u32_u24 v2, 171, v2")
                else:
                    e("v_mul_u32_u24 v2, 171, v4")
                e("v_bfe_u32 v2, v2, 11, 2")
                e("v_xor_b32 v2, v2, v0")
                e(f"v_lshl_add_u32 v{10 + k}, v2, 4, s33")
                off += ln
            if len(lanes) == 5:
                e("v_add_u32 v14, 4096, v14")
            if first:
                e("s_add_u32 s28, s45, s10")
                e("s_cmp_eq_u32 s28, 0")
                e("s_cselect_b32 s28, 16, 0")
                e("v_cmp_gt_u32 vcc, s28, v0")
                e(f"s_mul_i32 s28, s30, {P}")
                e("s_add_u32 s33, s33, s28")
                e("v_cndmask_b32 v10, v10, v3, vcc")
            else:
                e(f"s_mul_i32 s28, s30, {P}")
                e("s_add_u32 s33, s33, s28")
            if last:
                e("s_add_u32 s28, s45, s10")
                e("s_cmp_eq_u32 s28, 8")
                e(f"s_cselect_b32 s28, {lanes[-1] - 16}, 64")
                e("v_cmp_le_u32 vcc, s28, v0")
                e("s_nop 1")
                e(f"v_cndmask_b32 v{9 + len(lanes)}, v{9 + len(lanes)}, v3, vcc")

        patterns(phases[0], True, len(phases) == 1)
        e("s_cmp_eq_u32 s26, 0")
        e("s_cselect_b32 s27, 1, -1")
        e("s_cselect_b32 s29, -1, 12")
        e(f"s_mul_i32 s27, s27, {ROWB}")
        e("s_add_i32 s29, s29, s25")
        e(f"s_mul_i32 s29, s29, {ROWB}")
        e("s_mul_i32 s28, s30, s27")
        e("s_add_i32 s29, s29, s28")
        e("s_lshl_b32 s35, s27, 1")
        cl = [int(x) for x in o.cls.split(",")]
        assert max(cl) <= 5
        e("s_bfe_u32 s44, s2, 0x20003")
        e("s_lshl_b32 s44, s44, 3")
        e(f"s_lshr_b32 s44, {hex(sum(c << (8 * i) for i, c in enumerate(cl)))}, s44")
        e("s_and_b32 s44, s44, 255")
        e("v_add_u32 v7, 16, v9")
        e("s_waitcnt lgkmcnt(0)")
        e("s_sub_u32 s12, s4, 256")
        e("s_subb_u32 s13, s5, 0")
        e(f"s_mov_b32 s14, {XBYTES + 256}")
        e("s_mov_b32 s15, 0x20000")
        self.stamp()
        self.diag_mark("karg")
        fl = o.ldflags
        if 0 in cl:
            e("s_cmp_lg_u32 s44, 0")
            e("s_cbranch_scc1 L_ld_start")
            e("s_barrier")
            self.lab("L_ld_start")
        assert o.order == "A"
        lanes = phases[0][2]
        e("s_mov_b32 s31, s29")
        e("s_mov_b32 s32, 0")
        sides = [("l", o.winl), ("r", o.winr)] if o.winl != o.winr else [("l", o.winl)]
        if len(sides) == 2:
            e("s_cmp_lg_u32 s45, 0")
            e("s_cbranch_scc1 L_ld_pre_r")
        for sd, Wn in sides:
            self.lab(f"L_ld_pre_{sd}")
            e(f"v_mov_b32 v6, {-5 * ((Wn - 1) // 5)}")
            if sd == "l" and o.prio_left:
                e(f"s_setprio {o.prio_left}")
            self.lab(f"L_ld_loop_{sd}")
            e("s_add_u32 s34, s31, s24")
            e("s_cmp_lt_i32 s31, 0")
            e("s_cselect_b32 s34, 0x40000000, s34")
            e("s_mov_b32 m0, s33")
            e("s_add_i32 s31, s31, s35")
            for k in range(5):
                if k == 4:
                    e("s_add_u32 m0, s33, 4096")
                e(f"s_waitcnt vmcnt({Wn - 1})")
                if k == (Wn - 1) % 5:
                    e("ds_write_b32 v8, v6")
                if k == 4:
                    e("s_mov_b32 exec_hi, 0xffff")
                e(f"buffer_load_dwordx4 v{10 + k}, s[12:15], s34 offen offset:{1024 * (k % 4)} {fl} lds")
                if k == 4:
                    e("s_mov_b32 exec_hi, -1")
                if k == 0:
                    e(f"v_add_u32 v6, {(Wn - 1) % 5}, v6" if False else "s_add_u32 s32, s32, 1")
            e("v_add_u32 v6, 5, v6")
            e(f"s_add_u32 s33, s33, {2 * P}")
            e("s_cmp_lg_u32 s32, s44")
            e(f"s_cbranch_scc1 L_ld_nobar_{sd}")
            e("s_barrier")
            self.lab(f"L_ld_nobar_{sd}")
            e("s_cmp_lg_u32 s32, 5")
            e(f"s_cbranch_scc1 L_ld_nopoll_{sd}")
            self.poll(7, 5, 1)
            self.lab(f"L_ld_nopoll_{sd}")
            e("s_cmp_lt_u32 s32, 7")
            e(f"s_cbranch_scc1 L_ld_loop_{sd}")
            for v in range(35 - Wn + 1, 35):
                if v % 5 == 0:
                    e(f"v_mov_b32 v2, {v}")
                    e(f"s_waitcnt vmcnt({35 - v})")
                    e("ds_write_b32 v8, v2")
            if sd == "l" and len(sides) == 2:
                e("s_branch L_ld_tail")
        self.lab("L_ld_tail")
        if o.prio_loader or o.prio_left:
            e("s_setprio 0")
        e("s_mov_b64 exec, -1")
        e("s_and_b32 s30, s3, 3")
        e("s_mul_i32 s28, s30, 12")
        e("s_add_u32 s28, s28, 3")
        e("v_add_u32 v2, s28, v1")
        e("v_mul_u32_u24 v2, 171, v2")
        e("v_bfe_u32 v2, v2, 11, 2")
        e("v_xor_b32 v2, v2, v0")
        e("s_mul_i32 s33, s30, 768")
        e("s_add_u32 s28, s33, 64")
        e("v_lshl_add_u32 v10, v2, 4, s28")
        e("v_lshl_add_u32 v11, v0, 4, s33")
        if o.defer:
            e("s_mul_i32 s28, s30, 12")
            e("s_add_u32 s28, s28, 9")
            e("v_add_u32 v2, s28, v1")
            e("v_mul_u32_u24 v2, 171, v2")
            e("v_bfe_u32 v2, v2, 11, 2")
            e("v_xor_b32 v2, v2, v0")
            e("s_add_u32 s28, s33, 448")
            e("v_lshl_add_u32 v13, v2, 4, s28")
        e("s_cmp_eq_u32 s26, 0")
        e("s_cselect_b32 s29, 0, 11")
        e("s_add_i32 s29, s29, s25")
        e(f"s_mul_i32 s29, s29, {ROWB}")
        e("s_add_u32 s29, s29, s24")
        e("s_mov_b32 s20, s8")
        e("s_mov_b32 s21, s9")
        e(f"s_mov_b32 s22, {XBYTES}")
        e("s_mov_b32 s23, 0x20000")
        e("s_mov_b32 exec_hi, 0xffff")
        e("v_mov_b32 v2, 35")
        e("s_waitcnt vmcnt(0)")
        e("ds_write_b32 v8, v2")
        self.stamp()
        self.diag_mark("ldone")
        self.stamp_now(58, 0, real=True)
        if o.nostore:
            self.stamp_flush()
            e("s_endpgm")
        e("s_mov_b32 s37, 2")
        if o.defer:
            e("s_mov_b32 s31, s29")
            e(f"s_mov_b32 s32, {8 - o.defer}")
        else:
            self.lab("L_st_strip")
            e("s_mov_b32 s31, s29")
            e("s_mov_b32 s32, 0")
        self.lab("L_st_loop")
        if not o.nocomp:
            e("v_cmp_gt_i32 vcc, s37, v5")
            e("s_cbranch_vccz L_st_go")
            self.poll(7, 5, "s37", sleep=o.sleep)
            self.lab("L_st_go")
        e("ds_read_b128 v[16:19], v10")
        e(f"ds_read_b128 v[20:23], v10 offset:{P}")
        e("s_add_i32 s34, s31, s27")
        e(f"v_add_u32 v10, {2 * P}, v10")
        e("s_add_u32 s37, s37, 1")
        if not o.defer:
            e("s_add_u32 s32, s32, 1")
        e("s_waitcnt lgkmcnt(1)")
        e(f"buffer_store_dwordx4 v[16:19], v11, s[20:23], s31 offen {o.stflags}")
        e("s_add_i32 s31, s34, s27")
        e("s_waitcnt lgkmcnt(0)")
        e(f"buffer_store_dwordx4 v[20:23], v11, s[20:23], s34 offen {o.stflags}")
        if o.prof and o.cstamp:
            self.stamp_now(22 - 3, "s37")
            self.stamp_now(40 - 3, "s37", real=True)
        if o.defer:
            D = o.defer
            e("s_cmp_lt_u32 s37, s32")
            e("s_cbranch_scc1 L_st_loop")
            e("s_add_u32 s32, s32, 6")
            e(f"s_cmp_lg_u32 s37, {8 - D}")
            e("s_cbranch_scc1 L_st_s1")
            e("v_mov_b32 v12, v10")
            e("s_mov_b32 s43, s31")
            e("v_add_u32 v10, 6144, v13")
            e("s_add_u32 s31, s29, 6144")
            e("s_branch L_st_loop")
            self.lab("L_st_s1")
            e(f"s_cmp_lg_u32 s37, {14 - D}")
            e("s_cbranch_scc1 L_st_s2")
            e("v_add_u32 v10, 3072, v13")
            e("s_add_u32 s31, s29, 3072")
            e("s_branch L_st_loop")
            self.lab("L_st_s2")
            e("v_mov_b32 v10, v12")
            e("s_mov_b32 s31, s43")
            e("s_mov_b32 s32, 20")
            e("s_cmp_lt_u32 s37, 20")
            e("s_cbranch_scc1 L_st_loop")
        else:
            e("s_cmp_lt_u32 s32, 6")
            e("s_cbranch_scc1 L_st_loop")
            e("s_add_u32 s29, s29, 3072")
            e(f"v_add_u32 v10, {3072 - 12 * P}, v10")
            e("s_cmp_lt_u32 s37, 20")
            e("s_cbranch_scc1 L_st_strip")
        self.diag_mark("stiss")
        if o.prof:
            self.stamp()
            e("s_waitcnt vmcnt(0)")
            self.stamp()
        self.stamp_flush()
        self.diag_end()
        e("s_endpgm")

    def compute(self):
        e, o = self.e, self.o
        ops = [("U0", 0), ("U0", 1), ("U1", 0), ("U1", 1), ("U2", 0), ("U2", 1), ("U2", 2), ("U3", 0), ("U3", 1), ("U3", 2),
               ("X", 0), ("X", 1), ("X", 2),
               ("L0", 0), ("L0", 1), ("L0", 2), ("L1", 0), ("L1", 1), ("L1", 2), ("L2", 1), ("L2", 2), ("L3", 1), ("L3", 2)]
        W = {k: 16 + 4 * i for i, k in enumerate(ops)}
        SET = [108, 124]
        XR = 140
        ACC = lambda s, t: 144 + 12 * s + 4 * t
        PK = 168
        A1, A2, AX = 174, 175, 176
        ST = [177, 178, 179]
        self.lab("L_compute")
        self.nstamp = 1
        if o.prio_comp:
            e(f"s_setprio {o.prio_comp}")
        e("s_mul_i32 s28, s3, 1152")
        e("v_lshl_add_u32 v108, v0, 4, s28")
        e("s_movk_i32 s29, 3456")
        for i in range(1, 4):
            e(f"v_add_u32 v2, {64 * i}, v0")
            e("v_mul_u32_u24 v2, 911, v2")
            e("v_lshrrev_b32 v2, 16, v2")
            e(f"v_mad_u32_u24 v{108 + i}, v2, s29, v108")
        e("v_cmp_lt_u32 vcc, 23, v0")
        e("v_bfrev_b32 v3, 1")
        e(f"s_mul_i32 s33, s3, {WSZ}")
        e(f"s_add_u32 s33, s33, {WREG}")
        e("v_cndmask_b32 v111, v111, v3, vcc")
        e("s_mul_i32 s34, s26, 27648")
        e("s_movk_i32 s35, 13824")
        e("s_sub_u32 s36, 27648, s34")
        e("s_waitcnt lgkmcnt(0)")
        if o.tlbw:
            e("s_and_b32 s10, s2, 1")
            e("s_lshl_b32 s10, s10, 2")
            e("s_bfe_u32 s11, s2, 0x20003")
            e("s_add_u32 s10, s10, s11")
            e("s_mul_i32 s10, s10, 9216")
            e("s_bfe_u32 s11, s2, 0x20001")
            e("s_lshl_b32 s11, s11, 3")
            e("s_lshr_b32 s24, s2, 5")
            e("s_add_u32 s11, s11, s24")
            e(f"s_mul_i32 s11, s11, {12 * ROWB}")
            e("s_add_u32 s10, s10, s11")
            e("s_mov_b32 s20, s8")
            e("s_mov_b32 s21, s9")
            e(f"s_mov_b32 s22, {XBYTES}")
            e("s_mov_b32 s23, 0x20000")
            e(f"s_mov_b32 s11, {11 * ROWB}")
            e("v_mul_lo_u32 v2, v0, s11")
            e("s_cmp_lg_u32 s3, 0")
            e("s_cbranch_scc1 L_notouch")
            e("s_mov_b64 exec, 3")
            e(f"buffer_load_dword v186, v2, s[20:23], s10 offen {o.tlbf}")
            e("s_mov_b64 exec, -1")
            self.lab("L_notouch")
        e("s_barrier")
        e("s_mov_b32 s16, s6")
        e("s_mov_b32 s17, s7")
        e(f"s_mov_b32 s18, {WBYTES}")
        e("s_mov_b32 s19, 0x20000")
        for p in range(3):
            e(f"s_add_u32 m0, s33, {4096 * p}")
            e("s_nop 0")
            for i in range(4):
                if not o.now:
                    e(f"buffer_load_dwordx4 v{108 + i}, s[16:19], s{34 + p} offen offset:{1024 * i} {o.wflags} lds")
        self.stamp()
        e("v_and_b32 v1, 15, v0")
        e("v_lshrrev_b32 v2, 4, v0")
        e("s_mul_i32 s28, s3, 3")
        e("v_and_b32 v3, 1, v2")
        e("v_lshrrev_b32 v4, 1, v2")
        e("v_cmp_gt_u32 vcc, 2, v2")
        e("s_movk_i32 s29, 192")
        e("s_movk_i32 s30, 1152")

        def baddr(dst, vdx, vcc_, tmp1, tmp2, extra=None):
            e(f"v_add_u32 v{tmp1}, {vdx}, v1")
            e(f"v_add_u32 v{tmp2}, 1, v{tmp1}")
            e(f"v_bfe_u32 v{tmp2}, v{tmp2}, 2, 2")
            e(f"v_mad_u32_u24 v{tmp1}, v{tmp1}, s29, 64")
            e(f"v_add_u32 v{dst}, s28, {vcc_}")
            e(f"v_xor_b32 v{dst}, v{dst}, v{tmp2}")
            e(f"v_lshl_add_u32 v{dst}, v{dst}, 4, v{tmp1}")
            if extra:
                e(f"v_add_u32 v{dst}, {extra}, v{dst}")

        e("v_cndmask_b32 v6, 2, v2, vcc")
        e("v_cndmask_b32 v7, v3, 2, vcc")
        baddr(A1, "v3", "v4", 11, 12)
        baddr(A2, "v6", "v7", 11, 12)
        e(f"v_mul_u32_u24 v13, {P}, v2")
        e("v_mov_b32 v14, 2")
        baddr(AX, "2", "v14", 11, 12, "v13")
        e("v_add_u32 v12, 1, v1")
        e("v_bfe_u32 v12, v12, 2, 2")
        e("v_mad_u32_u24 v11, v1, s29, 64")
        e("v_lshl_add_u32 v11, v3, 3, v11")
        e(f"v_add_u32 v13, {P}, v11")
        e("v_add_u32 v14, s28, v4")
        e("v_xor_b32 v15, v14, v12")
        e(f"v_lshl_add_u32 v{ST[0]}, v15, 4, v11")
        e("v_add_u32 v14, 1, v14")
        e("v_xor_b32 v15, v14, v12")
        e(f"v_lshl_add_u32 v{ST[2]}, v15, 4, v13")
        e("v_cndmask_b32 v14, 0, 2, vcc")
        e("v_cndmask_b32 v13, v13, v11, vcc")
        e("v_add_u32 v14, s28, v14")
        e("v_xor_b32 v15, v14, v12")
        e(f"v_lshl_add_u32 v{ST[1]}, v15, 4, v13")
        if o.defer:
            e("v_add_u32 v12, 3, v1")
            e("v_bfe_u32 v12, v12, 2, 2")
            e(f"v_add_u32 v11, {384 + 6144}, v11")
            e(f"v_add_u32 v13, {384 + 6144}, v13")
            e("v_xor_b32 v15, v14, v12")
            e("v_lshl_add_u32 v181, v15, 4, v13")
            e("v_add_u32 v14, s28, v4")
            e("v_xor_b32 v15, v14, v12")
            e("v_lshl_add_u32 v180, v15, 4, v11")
            e("v_add_u32 v14, 1, v14")
            e("v_xor_b32 v15, v14, v12")
            e(f"v_add_u32 v11, {P}, v11")
            e("v_lshl_add_u32 v182, v15, 4, v11")
        E1, E2, F1, F2, F1z, F2z, F1y, F2y, G0, G1, G2, Z = range(144, 156)
        e("v_bfe_u32 v11, v0, 2, 2")
        e("v_mul_u32_u24 v11, 48, v11")
        e("v_add_u32 v11, s33, v11")
        e("v_and_b32 v12, 3, v0")
        e("v_lshl_add_u32 v11, v12, 3, v11")
        e("v_mul_u32_u24 v13, 384, v4")
        e("v_mad_u32_u24 v13, v3, s30, v13")
        e("v_mul_u32_u24 v14, 384, v7")
        e("v_mad_u32_u24 v14, v6, s30, v14")
        e(f"v_add_u32 v{E1}, v11, v13")
        e(f"v_add_u32 v{E2}, v11, v14")
        e("v_cmp_lt_u32 vcc, 1, v12")
        e("s_add_u32 s30, s33, 3456")
        e(f"v_mov_b32 v{Z}, s30")
        e("v_mov_b32 v13, 32")
        e("v_mov_b32 v14, -4112")
        e("v_cndmask_b32 v13, v13, v14, vcc")
        e("v_cndmask_b32 v15, 0, 1, vcc")
        e(f"v_add_u32 v{F1}, v{E1}, v13")
        e(f"v_add_u32 v{F2}, v{E2}, v13")
        e(f"v_cndmask_b32 v{F1z}, v{F1}, v{Z}, vcc")
        e(f"v_cndmask_b32 v{F2z}, v{F2}, v{Z}, vcc")
        e(f"v_add_u32 v{F1y}, 12288, v{F1}")
        e(f"v_add_u32 v{F2y}, 12288, v{F2}")
        e(f"v_cndmask_b32 v{F1y}, v{Z}, v{F1y}, vcc")
        e(f"v_cndmask_b32 v{F2y}, v{Z}, v{F2y}, vcc")
        e("v_lshl_add_u32 v11, v2, 12, v11")
        e("v_add_u32 v11, 3072, v11")
        e("v_sub_u32 v15, v2, v15")
        e("v_cmp_gt_u32 vcc, 3, v15")
        e(f"v_add_u32 v{G1}, v11, v13")
        e(f"v_add_u32 v{G2}, -4080, v11")
        e(f"v_cndmask_b32 v{G1}, v{Z}, v{G1}, vcc")
        e("v_cmp_gt_u32 vcc, 3, v2")
        e("s_nop 1")
        e(f"v_cndmask_b32 v{G0}, v{Z}, v11, vcc")
        e("v_cmp_lt_u32 vcc, 0, v2")
        e("s_nop 0")
        e("v_mov_b32 v10, 1")
        e(f"v_cndmask_b32 v{G2}, v{Z}, v{G2}, vcc")

        def tr(key, a, off):
            w = W[key]
            e(f"ds_read_b64_tr_b16 v[{w}:{w + 1}], v{a} offset:{off}")
            e(f"ds_read_b64_tr_b16 v[{w + 2}:{w + 3}], v{a} offset:{off + 192}")

        e("s_waitcnt vmcnt(8)")
        self.stamp()
        tr(("U0", 0), E1, 0); tr(("U1", 0), E2, 0); tr(("U0", 1), F1z, 0); tr(("U1", 1), F2z, 0)
        tr(("U2", 2), E1, 16); tr(("U3", 2), E2, 16)
        e("s_waitcnt vmcnt(4)")
        tr(("U2", 0), E1, 4096); tr(("U3", 0), E2, 4096); tr(("U2", 1), F1, 4096); tr(("U3", 1), F2, 4096)
        tr(("L0", 2), E1, 4112); tr(("L1", 2), E2, 4112)
        e("s_waitcnt vmcnt(0)")
        self.stamp()
        tr(("X", 0), G0, 0); tr(("X", 1), G1, 0); tr(("X", 2), G2, 0)
        tr(("L0", 0), E1, 8192); tr(("L1", 0), E2, 8192); tr(("L0", 1), F1, 8192); tr(("L1", 1), F2, 8192)
        tr(("L2", 1), F1y, 0); tr(("L3", 1), F2y, 0); tr(("L2", 2), E1, 8208); tr(("L3", 2), E2, 8208)
        e("ds_write_b32 v8, v10")
        self.stamp()
        if o.nocomp:
            self.stamp_flush()
            self.lab("L_end")
            e("s_endpgm")
            return
        self.lab("L_c_loop")
        slow = []
        c1 = len(self.phases[0][2])
        ntot = 7 * sum(len(p[2]) for p in self.phases)

        def need(T, s):
            if o.order == "A" or T < 2:
                return c1 * (s + 2)
            return 7 * c1 + 2 * (s + 2)

        def pair_reads(st, off):
            b = SET[st]
            return [f"ds_read_b128 v[{b}:{b + 3}], v{A1} offset:{off}",
                    f"ds_read_b128 v[{b + 4}:{b + 7}], v{A2} offset:{off}",
                    f"ds_read_b128 v[{b + 8}:{b + 11}], v{A1} offset:{off + P}",
                    f"ds_read_b128 v[{b + 12}:{b + 15}], v{A2} offset:{off + P}"]

        def epilogue(acc, off, wr):
            r = []
            for t in range(3):
                a = ACC(acc, t)
                r.append(f"v_cvt_pk_bf16_f32 v{PK + 2 * t}, v{a}, v{a + 1}")
                r.append(f"v_cvt_pk_bf16_f32 v{PK + 2 * t + 1}, v{a + 2}, v{a + 3}")
                if wr == 32:
                    r.append(f"ds_write_b32 v{ST[t]}, v{PK + 2 * t} offset:{off}")
                    r.append(f"ds_write_b32 v{ST[t]}, v{PK + 2 * t + 1} offset:{off + 4}")
                else:
                    r.append(f"ds_write_b64 v{ST[t]}, v[{PK + 2 * t}:{PK + 2 * t + 1}] offset:{off}")
            r.append("ds_write_b32 v8, v10")
            return r

        seen_upto = 0
        fpending = None
        modes = o.modes.split(",")
        loop = o.loop
        if loop:
            assert o.order == "A"
            del self.L[-1]
            e("s_mov_b32 s37, 0")
            e("v_and_b32 v11, -9, v9")
            e("v_mov_b32 v5, 0")
            self.lab("L_c_loop")
        for T in range(1 if loop else 3):
            md = modes[T]
            for s in range(6):
                u = 6 * T + s
                if o.prof and o.cstamp:
                    self.stamp_now(22, u)
                    self.stamp_now(40, u, real=True)
                U, Lo = s & 1, (s & 1) ^ 1
                acc = s & 1 if md == "n" else 0
                nd = need(T, s)
                if loop:
                    e(f"v_cmp_gt_i32 vcc, {nd}, v5")
                    e(f"s_cbranch_vccnz L_c_slow{u}")
                    self.lab(f"L_c_ready{u}")
                    slow.append((u, nd))
                    seen_upto = 99
                elif nd > seen_upto:
                    if fpending is not None:
                        e(f"s_waitcnt lgkmcnt({fpending})")
                        if loop:
                            nd_ = "s36"
                        else:
                            nd_ = nd
                        e(f"v_cmp_gt_i32 vcc, {nd_}, v5")
                        e(f"s_cbranch_vccnz L_c_slow{u}")
                        self.lab(f"L_c_ready{u}")
                        slow.append((u, nd_))
                    else:
                        self.poll(9, 5, nd, sleep=o.csleep)
                    seen_upto = nd
                fpending = None
                if s == 0 and o.prof and not o.cstamp:
                    self.stamp_now(24, "s37" if loop else T, real=(o.prof == 2))
                ro = (s & 1) * 2 * P
                rd = (pair_reads(0, 0) if s == 0 else []) + pair_reads(Lo, ro + 2 * P)
                rd.append(f"ds_read_b128 v[{XR}:{XR + 3}], v{AX} offset:{ro}")
                post = []
                if s & 1:
                    adv = 4 * P if s < 5 else (-3072 if o.defer else 3072) - 8 * P
                    post = [f"v_add_u32 v{r}, {adv}, v{r}" for r in (A1, A2, AX)] if u < 17 else []
                inter = []
                if md in ("r", "n") and s > 0:
                    inter = [[x] for x in rd]
                else:
                    for x in rd:
                        e(x)
                    if s == 0:
                        e("s_waitcnt lgkmcnt(5)")
                nxt_need = need(T, s + 1) if s < 5 else (need(T + 1, 0) if T < 2 else 0)
                want_f = md != "p" and nxt_need > seen_upto
                if loop:
                    if o.defer:
                        if s == o.defer - 1:
                            post = post + ["s_cmp_eq_u32 s37, 3"]
                        if s == 5 - o.defer:
                            post = post + ["s_cmp_eq_u32 s37, 0"]
                        if s == 5:
                            post = post + ["s_add_u32 s37, s37, 1", "s_cmp_eq_u32 s37, 2"]
                    elif s == 5:
                        post = post + ["s_add_u32 s37, s37, 1", "v_mov_b32 v11, v9", "s_cmp_eq_u32 s37, 1", "s_cselect_b32 s36, 0, -1",
                                       "v_and_b32 v5, s36, v5", "s_cmp_lt_u32 s37, 3"]
                defer = []
                if md == "n" and s > 0:
                    defer = ["v_add_u32 v10, 1, v10"] + epilogue(acc ^ 1, ((s - 1) & 1) * 2 * P, o.wrn)
                    if not s & 1:
                        defer += [f"v_add_u32 v{r}, {4 * P}, v{r}" for r in ST]
                seen = set()
                seq = [(k, SET[U] + 4 * int(k[0][1])) for k in ops[:10]] + [(k, SET[Lo] + 4 * int(k[0][1])) for k in ops[13:]] + [(k, XR) for k in ops[10:13]]
                behind = 0
                for g, (k, b) in enumerate(seq):
                    if g == 10:
                        e(f"s_waitcnt lgkmcnt({behind})")
                    t = k[1]
                    a = ACC(acc, t)
                    cin = f"v[{a}:{a + 3}]" if t in seen else "0"
                    seen.add(t)
                    e(f"v_mfma_f32_16x16x32_bf16 v[{a}:{a + 3}], v[{W[k]}:{W[k] + 3}], v[{b}:{b + 3}], {cin}")
                    cap = 2
                    if inter:
                        e(inter.pop(0)[0])
                        cap -= 1
                    elif post and not defer:
                        while post and cap:
                            e(post.pop(0))
                            cap -= 1
                    while defer and cap and g >= 2 and g != 9:
                        isw = defer[0].startswith("ds_write")
                        if isw and cap < 2:
                            break
                        x = defer.pop(0)
                        e(x)
                        cap -= 2 if isw else 1
                        if isw and g < 10:
                            behind += 1
                assert not defer and not inter, (u, defer)
                fill = list(post)
                if md != "n" or s == 5:
                    fill.append("v_add_u32 v10, 1, v10")
                    if want_f:
                        fill.append("ds_read_b32 v5, v9")
                    for x in fill:
                        e(x)
                    if len(fill) < 6:
                        e(f"s_nop {5 - len(fill)}")
                    ep = epilogue(acc, (s & 1) * 2 * P, o.wr)
                    for x in ep:
                        e(x)
                    if want_f:
                        fpending = sum(1 for x in ep if x.startswith("ds_"))
                    if s & 1 and u < 17:
                        adv = 4 * P if s < 5 else (-3072 if o.defer else 3072) - 8 * P
                        for r in ST:
                            e(f"v_add_u32 v{r}, {adv}, v{r}")
                    if o.defer and s in (o.defer - 1, 5 - o.defer):
                        e("s_cbranch_scc1 L_c_stub")
                else:
                    for x in fill:
                        e(x)
                    if want_f:
                        e("ds_read_b32 v5, v9")
                        fpending = 0
                    if o.defer and s in (o.defer - 1, 5 - o.defer):
                        e("s_cbranch_scc1 L_c_stub")
        if loop:
            e("s_cbranch_scc1 L_c_loop")
        if o.defer:
            D = o.defer
            for r in (A1, A2, AX):
                e(f"v_add_u32 v{r}, {(12 - 2 * D) * P}, v{r}")
            for t in range(3):
                back = 2 * D * P if md == "n" else (2 * P if D == 1 else 0)
                e(f"v_add_u32 v{ST[t]}, {back}, v{180 + t}")
            e("s_branch L_c_loop")
            self.lab("L_c_stub")
            if md == "n":
                e("v_add_u32 v10, 1, v10")
            e("s_cmp_eq_u32 s37, 0")
            e("s_mov_b32 s37, 1")
            e("v_mov_b32 v11, v9")
            e("v_mov_b32 v5, 0")
            if md == "n":
                for x in epilogue((D - 1) & 1, ((D - 1) & 1) * 2 * P, o.wr):
                    e(x)
            for r in (A1, A2, AX):
                e(f"v_add_u32 v{r}, {6144 - 8 * P}, v{r}")
            for t in range(3):
                e(f"v_swap_b32 v{ST[t]}, v{180 + t}")
            e("s_cbranch_scc1 L_c_loop")
        self.stamp()
        self.stamp_flush()
        self.lab("L_end")
        e("s_endpgm")
        for u, nd in slow:
            self.lab(f"L_c_slow{u}")
            self.poll(11 if loop else 9, 5, nd, sleep=o.csleep)
            e(f"s_branch L_c_ready{u}")

    @staticmethod
    def srcs(txt):
        m = re.search(r", v\[(\d+):(\d+)\]", txt)
        if m:
            return [str(r) for r in range(int(m.group(1)), int(m.group(2)) + 1)]
        return [re.search(r", v(\d+)", txt).group(1)]

    def check_mfma_hazards(self):
        L = [l.strip() for l in self.L]
        if "L_c_loop:" not in L:
            return
        i = L.index("L_c_loop:")
        k = L.index("L_end:")
        for seqn in (L[i:k],):
            pend = {}
            pos = 0
            for l in seqn:
                if l.endswith(":"):
                    continue
                regs = set()
                for m in re.finditer(r"v\[(\d+):(\d+)\]|v(\d+)", l.split(None, 1)[1] if " " in l else ""):
                    if m.group(3):
                        regs.add(int(m.group(3)))
                    else:
                        regs.update(range(int(m.group(1)), int(m.group(2)) + 1))
                if l.startswith("v_mfma"):
                    m = re.match(r"v_mfma\S+ v\[(\d+):(\d+)\]", l)
                    for r in range(int(m.group(1)), int(m.group(2)) + 1):
                        pend[r] = pos
                else:
                    for r in regs:
                        if r in pend:
                            assert pos - pend[r] - 1 >= 8, (l, pos - pend[r] - 1)
                m = re.match(r"s_nop (\d+)", l)
                pos += int(m.group(1)) + 1 if m else 1

    def build(self):
        self.prologue()
        self.helper()
        self.compute()
        self.check_mfma_hazards()
        if self.o.drop:
            i = self.L.index("L_c_loop:")
            j = self.L.index("L_end:")
            pats = self.o.drop.split(",")
            self.L = self.L[:i] + [l for l in self.L[i:j] if not any(l.strip().startswith(p) for p in pats)] + self.L[j:]
        return HEADER + "\n".join(self.L) + "\n" + FOOTER.format(vgpr=188, acc=188)


def main():
    p = argparse.ArgumentParser()
    p.add_argument("-o", default="-")
    p.add_argument("--prof", type=int, default=0)
    p.add_argument("--hflip", type=int, default=1)
    p.add_argument("--win", type=int, default=11)
    p.add_argument("--barpair", type=int, default=2)
    p.add_argument("--ldflags", default="nt")
    p.add_argument("--wflags", default="")
    p.add_argument("--stflags", default="sc0 sc1 nt")
    p.add_argument("--prio_loader", type=int, default=0)
    p.add_argument("--prio_comp", type=int, default=0)
    p.add_argument("--nocomp", type=int, default=0)
    p.add_argument("--noload", type=int, default=0)
    p.add_argument("--cstamp", type=int, default=0)
    p.add_argument("--drop", default="")
    p.add_argument("--wr", type=int, default=64)
    p.add_argument("--estart", type=int, default=2)
    p.add_argument("--diag", default="")
    p.add_argument("--now", type=int, default=0)
    p.add_argument("--stwait", type=int, default=0)
    p.add_argument("--stwin", type=int, default=0)
    p.add_argument("--pad", type=int, default=0)
    p.add_argument("--padk", type=int, default=1)
    p.add_argument("--padmask", type=int, default=7)
    p.add_argument("--fpre", type=int, default=0)
    p.add_argument("--csleep", type=int, default=1)
    p.add_argument("--eflag", type=int, default=0)
    p.add_argument("--rdint", type=int, default=0)
    p.add_argument("--sched", default="plain")
    p.add_argument("--stag", type=int, default=0)
    p.add_argument("--stagw", type=int, default=2)
    p.add_argument("--gate", type=int, default=0)
    p.add_argument("--gsleep", type=int, default=4)
    p.add_argument("--padper", default="")
    p.add_argument("--nostore", type=int, default=0)
    p.add_argument("--jmask", type=int, default=0)
    p.add_argument("--cls", default="1,2,3,4")
    p.add_argument("--order", default="A")
    p.add_argument("--modes", default="n")
    p.add_argument("--loop", type=int, default=1)
    p.add_argument("--winl", type=int, default=11)
    p.add_argument("--winr", type=int, default=11)
    p.add_argument("--prio_left", type=int, default=0)
    p.add_argument("--tlbw", type=int, default=0)
    p.add_argument("--tlbf", default="nt")
    p.add_argument("--defer", type=int, default=1)
    p.add_argument("--wrn", type=int, default=32)
    p.add_argument("--fevery", type=int, default=0)
    p.add_argument("--two", type=int, default=0)
    p.add_argument("--rdint2", type=int, default=1)
    p.add_argument("--sleep", type=int, default=2)
    o = p.parse_args()
    s = Gen(o).build()
    if o.o == "-":
        sys.stdout.write(s)
    else:
        open(o.o, "w").write(s)


if __name__ == "__main__":
    main()
```

```python
import argparse
import re
import sys

ROWB = 73728
XBYTES = 28311552
WBYTES = 41472
P = 9728
LDS_TOTAL = 163840
FLAGS = LDS_TOTAL - 256
WSZ = 12288
WREG = FLAGS - 4 * WSZ

HEADER = """; Kernarg layout for this problem (40 bytes, ptrs only, base s[0:1]):
; @launch grid=(256,1,1) block=(512,1,1) lds=163840
.amdgcn_target "amdgcn-amd-amdhsa--gfx950"
.text
.globl standalone__grouped__vision_kernel
.p2align 8
.type standalone__grouped__vision_kernel,@function
standalone__grouped__vision_kernel:
"""

FOOTER = """.section .rodata,"a"
.p2align 6
.amdhsa_kernel standalone__grouped__vision_kernel
  .amdhsa_next_free_vgpr {vgpr}
  .amdhsa_next_free_sgpr 102
  .amdhsa_accum_offset {acc}
  .amdhsa_group_segment_fixed_size 0
  .amdhsa_kernarg_size 40
  .amdhsa_user_sgpr_count 2
  .amdhsa_user_sgpr_kernarg_segment_ptr 1
  .amdhsa_system_sgpr_workgroup_id_x 1
.end_amdhsa_kernel
"""

PV = 187


class Gen:
    def __init__(self, o):
        self.o = o
        self.L = []
        self.nstamp = 0
        self.nlab = 0

    def e(self, s):
        self.L.append("    " + s)

    def lab(self, s):
        self.L.append(s + ":")

    def newlab(self, p):
        self.nlab += 1
        return f"L_{p}{self.nlab}"

    def stamp(self):
        if not self.o.prof:
            return
        k = self.nstamp
        self.nstamp += 1
        assert k < 22
        self.e(f"s_mem{'real' if self.o.prof == 2 else ''}time s[{46 + 2 * k}:{47 + 2 * k}]")

    def stamp_now(self, base, ctr, real=False):
        if not self.o.prof:
            return
        self.e("s_memrealtime s[96:97]" if real else "s_memtime s[96:97]")
        self.e("s_waitcnt lgkmcnt(0)")
        self.e("s_mov_b32 s95, m0")
        if isinstance(ctr, str):
            self.e(f"s_cselect_b32 s94, 1, 0")
            self.e(f"s_add_u32 m0, {ctr}, {base}")
            self.e(f"s_cmp_lg_u32 s94, 0")
        else:
            self.e(f"s_mov_b32 m0, {base + ctr}")
        self.e(f"v_writelane_b32 v{PV}, s96, m0")
        self.e("s_mov_b32 m0, s95")

    def stamp_flush(self):
        if not self.o.prof:
            return
        e = self.e
        e("s_mov_b64 exec, -1")
        e("s_waitcnt lgkmcnt(0)")
        e("s_load_dwordx2 s[40:41], s[0:1], 32")
        e("s_lshl_b32 s42, s2, 3")
        e("s_add_u32 s42, s42, s3")
        e("s_lshl_b32 s42, s42, 8")
        e("v_lshl_add_u32 v1, v0, 2, s42")
        for k in range(self.nstamp):
            e(f"v_writelane_b32 v{PV}, s{46 + 2 * k}, {k}")
        e(f"s_mov_b32 s42, {self.nstamp}")
        e(f"v_writelane_b32 v{PV}, s42, 63")
        e("s_getreg_b32 s42, hwreg(HW_REG_XCC_ID)")
        e(f"v_writelane_b32 v{PV}, s42, 62")
        e(f"v_writelane_b32 v{PV}, s92, 60")
        e("s_memrealtime s[92:93]")
        e("s_waitcnt lgkmcnt(0)")
        e(f"v_writelane_b32 v{PV}, s92, 59")
        e(f"global_store_dword v1, v{PV}, s[40:41]")

    def diag_mark(self, name):
        d = self.o.diag
        if d == name:
            self.e("s_memrealtime s[90:91]")
        if d == "c" + name:
            self.e("s_memtime s[90:91]")

    def diag_end(self):
        o, e = self.o, self.e
        if not o.diag:
            return
        e("s_waitcnt vmcnt(0) lgkmcnt(0)")
        self.diag_mark("end")
        e("s_waitcnt lgkmcnt(0)")
        if o.diag == "rt":
            e("s_mov_b32 s42, 0")
        elif o.diag.startswith("c"):
            e("s_sub_u32 s42, s90, s88")
            e("s_lshr_b32 s42, s42, 2")
        else:
            e("s_sub_u32 s42, s90, s92")
            e("s_mul_i32 s42, s42, 4")
        e("s_add_u32 s42, s42, 4000")
        self.lab("L_dg")
        e("s_memrealtime s[40:41]")
        e("s_waitcnt lgkmcnt(0)")
        e("s_sub_u32 s40, s40, s92")
        e("s_cmp_lt_u32 s40, s42")
        e("s_cbranch_scc1 L_dg")

    def poll(self, vaddr, vtmp, sneed, sleep=1):
        e = self.e
        l = self.newlab("poll")
        d = self.newlab("pdone")
        self.lab(l)
        e(f"ds_read_b32 v{vtmp}, v{vaddr}")
        e("s_waitcnt lgkmcnt(0)")
        e(f"v_cmp_gt_i32 vcc, {sneed}, v{vtmp}")
        e(f"s_cbranch_vccz {d}")
        if sleep:
            e(f"s_sleep {sleep}")
        e(f"s_branch {l}")
        self.lab(d)

    def prologue(self):
        e = self.e
        e("s_cmp_ge_u32 s2, 256")
        e("s_cbranch_scc1 L_end")
        e("s_load_dwordx4 s[4:7], s[0:1], 0")
        e("s_load_dwordx2 s[8:9], s[0:1], 16")
        if self.o.prof or self.o.diag:
            e("s_memrealtime s[92:93]")
        if self.o.diag:
            e("s_memtime s[88:89]")
        self.stamp()
        if self.o.prof:
            e(f"v_mov_b32 v{PV}, 0")
        e("v_lshrrev_b32 v1, 6, v0")
        e("v_and_b32 v0, 63, v0")
        e(f"v_mov_b32 v3, {FLAGS}")
        e("v_readfirstlane_b32 s3, v1")
        e("v_xor_b32 v2, 4, v1")
        e("v_lshl_add_u32 v8, v2, 2, v3")
        e("v_mov_b32 v2, 0")
        e("ds_write_b32 v8, v2")
        e("v_and_b32 v2, 3, v0")
        e("v_lshl_add_u32 v9, v2, 2, v3")
        e("s_bfe_u32 s26, s2, 0x10005")
        e("s_bfe_u32 s43, s2, 0x10003" if self.o.hf else "s_mov_b32 s43, 0")
        e("s_cmp_lt_u32 s3, 4")
        e("s_cbranch_scc1 L_compute")

    def helper(self):
        e, o = self.e, self.o
        self.lab("L_helper")
        if o.prio_loader:
            e(f"s_setprio {o.prio_loader}")
        Wn = o.win
        phases = {"A": [(0, 304, [64, 64, 64, 64, 48])],
                  "B": [(0, 224, [56] * 4), (448, 80, [40] * 2)],
                  "C": [(0, 256, [64] * 4), (512, 48, [48])]}[o.order]
        self.phases = phases
        ntot = 7 * sum(len(p[2]) for p in phases)
        e("s_and_b32 s10, s2, 1")
        e("s_lshl_b32 s10, s10, 2")
        e("s_bfe_u32 s11, s2, 0x20003")
        e("s_add_u32 s10, s10, s11")
        e("s_bfe_u32 s11, s2, 0x20001")
        e("s_lshl_b32 s11, s11, 3")
        e("s_lshr_b32 s24, s2, 5")
        e("s_add_u32 s11, s11, s24")
        e("s_mul_i32 s25, s11, 12")
        e("s_mul_i32 s24, s10, 9216")
        e("s_and_b32 s30, s3, 1")
        e("s_bfe_u32 s45, s3, 0x10001")
        e("v_lshrrev_b32 v1, 2, v0")
        e("v_bfrev_b32 v3, 1")

        def patterns(ph, first, last):
            st, half, lanes = ph
            mir = (608 - st - 2 * half) - st if len(phases) == 2 else 0
            e(f"s_mul_i32 s33, s45, {half}")
            if mir:
                e(f"s_mul_i32 s28, s43, {mir}")
                e("s_add_u32 s33, s33, s28")
            if st:
                e(f"s_add_u32 s33, s33, {st}")
            e("s_lshr_b32 s28, s33, 2")
            e("s_add_u32 s28, s28, 2")
            e("v_add_u32 v4, s28, v1")
            e("s_lshl_b32 s33, s33, 4")
            off = 0
            for k, ln in enumerate(lanes):
                if off:
                    e(f"v_add_u32 v2, {off // 4}, v4")
                    e("v_mul_u32_u24 v2, 171, v2")
                else:
                    e("v_mul_u32_u24 v2, 171, v4")
                e("v_bfe_u32 v2, v2, 11, 2")
                e("v_xor_b32 v2, v2, v0")
                e(f"v_lshl_add_u32 v{10 + k}, v2, 4, s33")
                off += ln
            if len(lanes) == 5:
                e("v_add_u32 v14, 4096, v14")
            if first:
                e("s_add_u32 s28, s45, s10")
                e("s_cmp_eq_u32 s28, 0")
                e("s_cselect_b32 s32, 16, 0")
                e("v_cmp_gt_u32 vcc, s32, v0")
            e(f"s_mul_i32 s32, s30, {P}")
            e("s_add_u32 s33, s33, s32")
            if first:
                e("v_cndmask_b32 v10, v10, v3, vcc")
            if (first if o.hf else last):
                if not first:
                    e("s_add_u32 s28, s45, s10")
                e("s_cmp_eq_u32 s28, 8")
                e(f"s_cselect_b32 s28, {lanes[-1] - 16}, 64")
                e("v_cmp_le_u32 vcc, s28, v0")
                e("s_nop 1")
                e(f"v_cndmask_b32 v{9 + len(lanes)}, v{9 + len(lanes)}, v3, vcc")

        patterns(phases[0], True, len(phases) == 1)
        e("s_cmp_eq_u32 s26, 0")
        e("s_cselect_b32 s27, 1, -1")
        e("s_cselect_b32 s29, -1, 12")
        e(f"s_mul_i32 s27, s27, {ROWB}")
        e("s_add_i32 s29, s29, s25")
        e(f"s_mul_i32 s29, s29, {ROWB}")
        e("s_mul_i32 s28, s30, s27")
        e("s_add_i32 s29, s29, s28")
        e("s_lshl_b32 s35, s27, 1")
        cl = [int(x) for x in o.cls.split(",")]
        assert max(cl) <= 5
        e("s_bfe_u32 s44, s2, 0x20003")
        e("s_lshl_b32 s44, s44, 3")
        e(f"s_lshr_b32 s44, {hex(sum(c << (8 * i) for i, c in enumerate(cl)))}, s44")
        e("s_and_b32 s44, s44, 255")
        e("v_add_u32 v7, 16, v9")
        e("s_waitcnt lgkmcnt(0)")
        e("s_sub_u32 s12, s4, 256")
        e("s_subb_u32 s13, s5, 0")
        e(f"s_mov_b32 s14, {XBYTES + 256}")
        e("s_mov_b32 s15, 0x20000")
        self.stamp()
        self.diag_mark("karg")
        fl = o.ldflags
        if 0 in cl:
            e("s_cmp_lg_u32 s44, 0")
            e("s_cbranch_scc1 L_ld_start")
            e("s_barrier")
            self.lab("L_ld_start")
        if o.order == "A":
            self.load_A(phases, fl)
        else:
            Wn = o.winl
            n = 0
            c1, c2 = len(phases[0][2]), len(phases[1][2])
            e(f"v_mov_b32 v6, {-c1 * ((Wn - 1) // c1)}")
            for pi, ph in enumerate(phases):
                st, half, lanes = ph
                c = len(lanes)
                if pi:
                    e("s_mov_b64 exec, -1")
                    patterns(ph, False, True)
                    e(f"v_mov_b32 v6, {7 * c1 - (Wn - 1) + (Wn - 1) % c}")
                e("s_mov_b32 s31, s29")
                e("s_mov_b32 s32, 0")
                if lanes[0] < 64:
                    e(f"s_mov_b32 exec_hi, {hex((1 << (lanes[0] - 32)) - 1)}")
                self.lab(f"L_ld_loop{pi}")
                e("s_add_u32 s34, s31, s24")
                e("s_cmp_lt_i32 s31, 0")
                e("s_cselect_b32 s34, 0x40000000, s34")
                e("s_mov_b32 m0, s33")
                e("s_add_i32 s31, s31, s35")
                off = 0
                for k, ln in enumerate(lanes):
                    e(f"s_waitcnt vmcnt({Wn - 1})")
                    if k == (Wn - 1) % c:
                        e("ds_write_b32 v8, v6")
                    e(f"buffer_load_dwordx4 v{10 + k}, s[12:15], s34 offen offset:{off * 16} {fl} lds")
                    off += ln
                e(f"v_add_u32 v6, {c}, v6")
                e(f"s_add_u32 s33, s33, {2 * P}")
                e("s_add_u32 s32, s32, 1")
                if pi == 0:
                    e("s_cmp_lg_u32 s32, s44")
                    e("s_cbranch_scc1 L_ld_nobar")
                    e("s_barrier")
                    self.lab("L_ld_nobar")
                    e("s_cmp_lg_u32 s32, 5")
                    e("s_cbranch_scc1 L_ld_nopoll")
                    self.poll(7, 5, 1)
                    self.lab("L_ld_nopoll")
                e("s_cmp_lt_u32 s32, 7")
                e(f"s_cbranch_scc1 L_ld_loop{pi}")
            for v in range(ntot - Wn + 1, ntot):
                if v == 7 * c1 or (v < 7 * c1 and v % c1 == 0) or (v > 7 * c1 and (v - 7 * c1) % (2 * c2) == 0):
                    e(f"v_mov_b32 v2, {v}")
                    e(f"s_waitcnt vmcnt({ntot - v})")
                    e("ds_write_b32 v8, v2")
        self.lab("L_ld_tail")
        if o.prio_loader or o.prio_left:
            e("s_setprio 0")
        e("s_mov_b64 exec, -1")
        e("s_and_b32 s30, s3, 3")
        e("s_mul_i32 s28, s30, 12")
        e("s_add_u32 s28, s28, 3")
        if o.hf:
            e("s_mul_i32 s32, s43, 6")
            e("s_add_u32 s28, s28, s32")
        e("v_add_u32 v2, s28, v1")
        e("v_mul_u32_u24 v2, 171, v2")
        e("v_bfe_u32 v2, v2, 11, 2")
        e("v_xor_b32 v2, v2, v0")
        e("s_mul_i32 s33, s30, 768")
        e("s_add_u32 s28, s33, 64")
        if o.hf:
            e("s_mul_i32 s32, s43, 6528")
            e("s_add_u32 s28, s28, s32")
            e("s_mul_i32 s32, s43, 6144")
            e("s_add_u32 s24, s24, s32")
            e("s_sub_u32 s36, 3072, s32")
            e(f"s_sub_u32 s38, s36, {12 * P}")
        e("v_lshl_add_u32 v10, v2, 4, s28")
        e("v_lshl_add_u32 v11, v0, 4, s33")
        if o.defer:
            e("s_mul_i32 s28, s30, 12")
            e("s_add_u32 s28, s28, 9")
            e("v_add_u32 v2, s28, v1")
            e("v_mul_u32_u24 v2, 171, v2")
            e("v_bfe_u32 v2, v2, 11, 2")
            e("v_xor_b32 v2, v2, v0")
            e("s_add_u32 s28, s33, 448")
            e("v_lshl_add_u32 v13, v2, 4, s28")
        e("s_cmp_eq_u32 s26, 0")
        e("s_cselect_b32 s29, 0, 11")
        e("s_add_i32 s29, s29, s25")
        e(f"s_mul_i32 s29, s29, {ROWB}")
        e("s_add_u32 s29, s29, s24")
        e("s_mov_b32 s20, s8")
        e("s_mov_b32 s21, s9")
        e(f"s_mov_b32 s22, {XBYTES}")
        e("s_mov_b32 s23, 0x20000")
        e("s_mov_b32 exec_hi, 0xffff")
        e(f"v_mov_b32 v2, {ntot}")
        e("s_waitcnt vmcnt(0)")
        e("ds_write_b32 v8, v2")
        self.stamp()
        self.diag_mark("ldone")
        self.stamp_now(58, 0, real=True)
        if o.nostore:
            self.stamp_flush()
            e("s_endpgm")
        e("s_mov_b32 s37, 2")
        if o.defer:
            e("s_mov_b32 s31, s29")
            e(f"s_mov_b32 s32, {8 - o.defer}")
        else:
            self.lab("L_st_strip")
            e("s_mov_b32 s31, s29")
            e("s_mov_b32 s32, 0")
        self.lab("L_st_loop")
        if not o.nocomp:
            e("v_cmp_gt_i32 vcc, s37, v5")
            e("s_cbranch_vccz L_st_go")
            self.poll(7, 5, "s37", sleep=o.sleep)
            self.lab("L_st_go")
        e("ds_read_b128 v[16:19], v10")
        e(f"ds_read_b128 v[20:23], v10 offset:{P}")
        e("s_add_i32 s34, s31, s27")
        e(f"v_add_u32 v10, {2 * P}, v10")
        e("s_add_u32 s37, s37, 1")
        if not o.defer:
            e("s_add_u32 s32, s32, 1")
        e("s_waitcnt lgkmcnt(1)")
        e(f"buffer_store_dwordx4 v[16:19], v11, s[20:23], s31 offen {o.stflags}")
        e("s_add_i32 s31, s34, s27")
        e("s_waitcnt lgkmcnt(0)")
        e(f"buffer_store_dwordx4 v[20:23], v11, s[20:23], s34 offen {o.stflags}")
        if o.prof and o.cstamp:
            self.stamp_now(22 - 3, "s37")
            self.stamp_now(40 - 3, "s37", real=True)
        if o.defer:
            D = o.defer
            e("s_cmp_lt_u32 s37, s32")
            e("s_cbranch_scc1 L_st_loop")
            e("s_add_u32 s32, s32, 6")
            e(f"s_cmp_lg_u32 s37, {8 - D}")
            e("s_cbranch_scc1 L_st_s1")
            e("v_mov_b32 v12, v10")
            e("s_mov_b32 s43, s31")
            e("v_add_u32 v10, 6144, v13")
            e("s_add_u32 s31, s29, 6144")
            e("s_branch L_st_loop")
            self.lab("L_st_s1")
            e(f"s_cmp_lg_u32 s37, {14 - D}")
            e("s_cbranch_scc1 L_st_s2")
            e("v_add_u32 v10, 3072, v13")
            e("s_add_u32 s31, s29, 3072")
            e("s_branch L_st_loop")
            self.lab("L_st_s2")
            e("v_mov_b32 v10, v12")
            e("s_mov_b32 s31, s43")
            e("s_mov_b32 s32, 20")
            e("s_cmp_lt_u32 s37, 20")
            e("s_cbranch_scc1 L_st_loop")
        else:
            e("s_cmp_lt_u32 s32, 6")
            e("s_cbranch_scc1 L_st_loop")
            if o.hf:
                e("s_add_u32 s29, s29, s36")
                e("v_add_u32 v10, s38, v10")
            else:
                e("s_add_u32 s29, s29, 3072")
                e(f"v_add_u32 v10, {3072 - 12 * P}, v10")
            e("s_cmp_lt_u32 s37, 20")
            e("s_cbranch_scc1 L_st_strip")
        self.diag_mark("stiss")
        if o.prof:
            self.stamp()
            e("s_waitcnt vmcnt(0)")
            self.stamp()
        self.stamp_flush()
        self.diag_end()
        e("s_endpgm")

    def load_A(self, phases, fl):
        e, o = self.e, self.o
        lanes = phases[0][2]
        e("s_mov_b32 s31, s29")
        e("s_mov_b32 s32, 0")
        sides = [("l", o.winl), ("r", o.winr)] if o.winl != o.winr else [("l", o.winl)]
        if len(sides) == 2:
            e("s_cmp_lg_u32 s45, 0")
            e("s_cbranch_scc1 L_ld_pre_r")
        for sd, Wn in sides:
            self.lab(f"L_ld_pre_{sd}")
            e(f"v_mov_b32 v6, {-5 * ((Wn - 1) // 5)}")
            if sd == "l" and o.prio_left:
                e(f"s_setprio {o.prio_left}")
            self.lab(f"L_ld_loop_{sd}")
            e("s_add_u32 s34, s31, s24")
            e("s_cmp_lt_i32 s31, 0")
            e("s_cselect_b32 s34, 0x40000000, s34")
            e("s_mov_b32 m0, s33")
            e("s_add_i32 s31, s31, s35")
            for k in range(5):
                if k == 4:
                    e("s_add_u32 m0, s33, 4096")
                e(f"s_waitcnt vmcnt({Wn - 1})")
                if k == (Wn - 1) % 5:
                    e("ds_write_b32 v8, v6")
                if k == 4:
                    e("s_mov_b32 exec_hi, 0xffff")
                e(f"buffer_load_dwordx4 v{10 + k}, s[12:15], s34 offen offset:{1024 * (k % 4)} {fl} lds")
                if k == 4:
                    e("s_mov_b32 exec_hi, -1")
                if k == 0:
                    e(f"v_add_u32 v6, {(Wn - 1) % 5}, v6" if False else "s_add_u32 s32, s32, 1")
            e("v_add_u32 v6, 5, v6")
            e(f"s_add_u32 s33, s33, {2 * P}")
            e("s_cmp_lg_u32 s32, s44")
            e(f"s_cbranch_scc1 L_ld_nobar_{sd}")
            e("s_barrier")
            self.lab(f"L_ld_nobar_{sd}")
            e("s_cmp_lg_u32 s32, 5")
            e(f"s_cbranch_scc1 L_ld_nopoll_{sd}")
            self.poll(7, 5, 1)
            self.lab(f"L_ld_nopoll_{sd}")
            e("s_cmp_lt_u32 s32, 7")
            e(f"s_cbranch_scc1 L_ld_loop_{sd}")
            for v in range(35 - Wn + 1, 35):
                if v % 5 == 0:
                    e(f"v_mov_b32 v2, {v}")
                    e(f"s_waitcnt vmcnt({35 - v})")
                    e("ds_write_b32 v8, v2")
            if sd == "l" and len(sides) == 2:
                e("s_branch L_ld_tail")

    def compute(self):
        e, o = self.e, self.o
        ops = [("U0", 0), ("U0", 1), ("U1", 0), ("U1", 1), ("U2", 0), ("U2", 1), ("U2", 2), ("U3", 0), ("U3", 1), ("U3", 2),
               ("X", 0), ("X", 1), ("X", 2),
               ("L0", 0), ("L0", 1), ("L0", 2), ("L1", 0), ("L1", 1), ("L1", 2), ("L2", 1), ("L2", 2), ("L3", 1), ("L3", 2)]
        W = {k: 16 + 4 * i for i, k in enumerate(ops)}
        SET = [108, 124]
        XR = 140
        ACC = lambda s, t: 144 + 12 * s + 4 * t
        PK = 168
        A1, A2, AX = 174, 175, 176
        ST = [177, 178, 179]
        self.lab("L_compute")
        self.nstamp = 1
        if o.prio_comp:
            e(f"s_setprio {o.prio_comp}")
        e("s_mul_i32 s28, s3, 1152")
        e("v_lshl_add_u32 v108, v0, 4, s28")
        e("s_movk_i32 s29, 3456")
        for i in range(1, 4):
            e(f"v_add_u32 v2, {64 * i}, v0")
            e("v_mul_u32_u24 v2, 911, v2")
            e("v_lshrrev_b32 v2, 16, v2")
            e(f"v_mad_u32_u24 v{108 + i}, v2, s29, v108")
        e("v_cmp_lt_u32 vcc, 23, v0")
        e("v_bfrev_b32 v3, 1")
        e(f"s_mul_i32 s33, s3, {WSZ}")
        e(f"s_add_u32 s33, s33, {WREG}")
        e("v_cndmask_b32 v111, v111, v3, vcc")
        e("s_mul_i32 s34, s26, 27648")
        e("s_movk_i32 s35, 13824")
        e("s_sub_u32 s36, 27648, s34")
        e("s_waitcnt lgkmcnt(0)")
        if o.tlbw:
            e("s_and_b32 s10, s2, 1")
            e("s_lshl_b32 s10, s10, 2")
            e("s_bfe_u32 s11, s2, 0x20003")
            e("s_add_u32 s10, s10, s11")
            e("s_mul_i32 s10, s10, 9216")
            e("s_bfe_u32 s11, s2, 0x20001")
            e("s_lshl_b32 s11, s11, 3")
            e("s_lshr_b32 s24, s2, 5")
            e("s_add_u32 s11, s11, s24")
            e(f"s_mul_i32 s11, s11, {12 * ROWB}")
            e("s_add_u32 s10, s10, s11")
            e("s_mov_b32 s20, s8")
            e("s_mov_b32 s21, s9")
            e(f"s_mov_b32 s22, {XBYTES}")
            e("s_mov_b32 s23, 0x20000")
            e(f"s_mov_b32 s11, {11 * ROWB}")
            e("v_mul_lo_u32 v2, v0, s11")
            e("s_cmp_lg_u32 s3, 0")
            e("s_cbranch_scc1 L_notouch")
            e("s_mov_b64 exec, 3")
            e(f"buffer_load_dword v186, v2, s[20:23], s10 offen {o.tlbf}")
            e("s_mov_b64 exec, -1")
            self.lab("L_notouch")
        e("s_barrier")
        e("s_mov_b32 s16, s6")
        e("s_mov_b32 s17, s7")
        e(f"s_mov_b32 s18, {WBYTES}")
        e("s_mov_b32 s19, 0x20000")
        for p in range(3):
            e(f"s_add_u32 m0, s33, {4096 * p}")
            e("s_nop 0")
            for i in range(4):
                if not o.now:
                    e(f"buffer_load_dwordx4 v{108 + i}, s[16:19], s{34 + p} offen offset:{1024 * i} {o.wflags} lds")
        self.stamp()
        e("v_and_b32 v1, 15, v0")
        e("v_lshrrev_b32 v2, 4, v0")
        e("s_mul_i32 s28, s3, 3")
        e("v_and_b32 v3, 1, v2")
        e("v_lshrrev_b32 v4, 1, v2")
        e("v_cmp_gt_u32 vcc, 2, v2")
        e("s_movk_i32 s29, 192")
        e("s_movk_i32 s30, 1152")

        def baddr(dst, vdx, vcc_, tmp1, tmp2, extra=None):
            e(f"v_add_u32 v{tmp1}, {vdx}, v1")
            e(f"v_add_u32 v{tmp2}, 1, v{tmp1}")
            e(f"v_bfe_u32 v{tmp2}, v{tmp2}, 2, 2")
            e(f"v_mad_u32_u24 v{tmp1}, v{tmp1}, s29, v15" if o.hf else f"v_mad_u32_u24 v{tmp1}, v{tmp1}, s29, 64")
            e(f"v_add_u32 v{dst}, s28, {vcc_}")
            e(f"v_xor_b32 v{dst}, v{dst}, v{tmp2}")
            e(f"v_lshl_add_u32 v{dst}, v{dst}, 4, v{tmp1}")
            if extra:
                e(f"v_add_u32 v{dst}, {extra}, v{dst}")

        if o.hf:
            e("s_mul_i32 s31, s43, 6144")
            e("s_add_u32 s32, s31, 64")
            e("v_mov_b32 v15, s32")
            e("s_sub_u32 s38, 3072, s31")
            e(f"s_sub_u32 s38, s38, {8 * P}")
        e("v_cndmask_b32 v6, 2, v2, vcc")
        e("v_cndmask_b32 v7, v3, 2, vcc")
        baddr(A1, "v3", "v4", 11, 12)
        baddr(A2, "v6", "v7", 11, 12)
        e(f"v_mul_u32_u24 v13, {P}, v2")
        e("v_mov_b32 v14, 2")
        baddr(AX, "2", "v14", 11, 12, "v13")
        if o.hf:
            e("v_lshl_add_u32 v1, s43, 1, v1")
        e("v_add_u32 v12, 1, v1")
        e("v_bfe_u32 v12, v12, 2, 2")
        e("v_mad_u32_u24 v11, v1, s29, v15" if o.hf else "v_mad_u32_u24 v11, v1, s29, 64")
        e("v_lshl_add_u32 v11, v3, 3, v11")
        e(f"v_add_u32 v13, {P}, v11")
        e("v_add_u32 v14, s28, v4")
        e("v_xor_b32 v15, v14, v12")
        e(f"v_lshl_add_u32 v{ST[0]}, v15, 4, v11")
        e("v_add_u32 v14, 1, v14")
        e("v_xor_b32 v15, v14, v12")
        e(f"v_lshl_add_u32 v{ST[2]}, v15, 4, v13")
        e("v_cndmask_b32 v14, 0, 2, vcc")
        e("v_cndmask_b32 v13, v13, v11, vcc")
        e("v_add_u32 v14, s28, v14")
        e("v_xor_b32 v15, v14, v12")
        e(f"v_lshl_add_u32 v{ST[1]}, v15, 4, v13")
        if o.defer:
            e("v_add_u32 v12, 3, v1")
            e("v_bfe_u32 v12, v12, 2, 2")
            e(f"v_add_u32 v11, {384 + 6144}, v11")
            e(f"v_add_u32 v13, {384 + 6144}, v13")
            e("v_xor_b32 v15, v14, v12")
            e("v_lshl_add_u32 v181, v15, 4, v13")
            e("v_add_u32 v14, s28, v4")
            e("v_xor_b32 v15, v14, v12")
            e("v_lshl_add_u32 v180, v15, 4, v11")
            e("v_add_u32 v14, 1, v14")
            e("v_xor_b32 v15, v14, v12")
            e(f"v_add_u32 v11, {P}, v11")
            e("v_lshl_add_u32 v182, v15, 4, v11")
        E1, E2, F1, F2, F1z, F2z, F1y, F2y, G0, G1, G2, Z = range(144, 156)
        e("v_bfe_u32 v11, v0, 2, 2")
        e("v_mul_u32_u24 v11, 48, v11")
        e("v_add_u32 v11, s33, v11")
        e("v_and_b32 v12, 3, v0")
        e("v_lshl_add_u32 v11, v12, 3, v11")
        e("v_mul_u32_u24 v13, 384, v4")
        e("v_mad_u32_u24 v13, v3, s30, v13")
        e("v_mul_u32_u24 v14, 384, v7")
        e("v_mad_u32_u24 v14, v6, s30, v14")
        e(f"v_add_u32 v{E1}, v11, v13")
        e(f"v_add_u32 v{E2}, v11, v14")
        e("v_cmp_lt_u32 vcc, 1, v12")
        e("s_add_u32 s30, s33, 3456")
        e(f"v_mov_b32 v{Z}, s30")
        e("v_mov_b32 v13, 32")
        e("v_mov_b32 v14, -4112")
        e("v_cndmask_b32 v13, v13, v14, vcc")
        e("v_cndmask_b32 v15, 0, 1, vcc")
        e(f"v_add_u32 v{F1}, v{E1}, v13")
        e(f"v_add_u32 v{F2}, v{E2}, v13")
        e(f"v_cndmask_b32 v{F1z}, v{F1}, v{Z}, vcc")
        e(f"v_cndmask_b32 v{F2z}, v{F2}, v{Z}, vcc")
        e(f"v_add_u32 v{F1y}, 12288, v{F1}")
        e(f"v_add_u32 v{F2y}, 12288, v{F2}")
        e(f"v_cndmask_b32 v{F1y}, v{Z}, v{F1y}, vcc")
        e(f"v_cndmask_b32 v{F2y}, v{Z}, v{F2y}, vcc")
        e("v_lshl_add_u32 v11, v2, 12, v11")
        e("v_add_u32 v11, 3072, v11")
        e("v_sub_u32 v15, v2, v15")
        e("v_cmp_gt_u32 vcc, 3, v15")
        e(f"v_add_u32 v{G1}, v11, v13")
        e(f"v_add_u32 v{G2}, -4080, v11")
        e(f"v_cndmask_b32 v{G1}, v{Z}, v{G1}, vcc")
        e("v_cmp_gt_u32 vcc, 3, v2")
        e("s_nop 1")
        e(f"v_cndmask_b32 v{G0}, v{Z}, v11, vcc")
        e("v_cmp_lt_u32 vcc, 0, v2")
        e("s_nop 0")
        e("v_mov_b32 v10, 1")
        e(f"v_cndmask_b32 v{G2}, v{Z}, v{G2}, vcc")

        def tr(key, a, off):
            w = W[key]
            e(f"ds_read_b64_tr_b16 v[{w}:{w + 1}], v{a} offset:{off}")
            e(f"ds_read_b64_tr_b16 v[{w + 2}:{w + 3}], v{a} offset:{off + 192}")

        e("s_waitcnt vmcnt(8)")
        self.stamp()
        tr(("U0", 0), E1, 0); tr(("U1", 0), E2, 0); tr(("U0", 1), F1z, 0); tr(("U1", 1), F2z, 0)
        tr(("U2", 2), E1, 16); tr(("U3", 2), E2, 16)
        e("s_waitcnt vmcnt(4)")
        tr(("U2", 0), E1, 4096); tr(("U3", 0), E2, 4096); tr(("U2", 1), F1, 4096); tr(("U3", 1), F2, 4096)
        tr(("L0", 2), E1, 4112); tr(("L1", 2), E2, 4112)
        e("s_waitcnt vmcnt(0)")
        self.stamp()
        tr(("X", 0), G0, 0); tr(("X", 1), G1, 0); tr(("X", 2), G2, 0)
        tr(("L0", 0), E1, 8192); tr(("L1", 0), E2, 8192); tr(("L0", 1), F1, 8192); tr(("L1", 1), F2, 8192)
        tr(("L2", 1), F1y, 0); tr(("L3", 1), F2y, 0); tr(("L2", 2), E1, 8208); tr(("L3", 2), E2, 8208)
        e("ds_write_b32 v8, v10")
        self.stamp()
        if o.nocomp:
            self.stamp_flush()
            self.lab("L_end")
            e("s_endpgm")
            return
        if o.cstamp == 2:
            e("s_waitcnt lgkmcnt(0)")
            e("s_mov_b32 s94, s46")
        self.lab("L_c_loop")
        slow = []
        c1 = len(self.phases[0][2])
        ntot = 7 * sum(len(p[2]) for p in self.phases)

        def need(T, s):
            if o.order == "A" or T < 2:
                return c1 * (s + 2)
            return 7 * c1 + len(self.phases[1][2]) * (s + 2)

        def pair_reads(st, off):
            b = SET[st]
            return [f"ds_read_b128 v[{b}:{b + 3}], v{A1} offset:{off}",
                    f"ds_read_b128 v[{b + 4}:{b + 7}], v{A2} offset:{off}",
                    f"ds_read_b128 v[{b + 8}:{b + 11}], v{A1} offset:{off + P}",
                    f"ds_read_b128 v[{b + 12}:{b + 15}], v{A2} offset:{off + P}"]

        def epilogue(acc, off, wr):
            r = []
            for t in range(3):
                a = ACC(acc, t)
                r.append(f"v_cvt_pk_bf16_f32 v{PK + 2 * t}, v{a}, v{a + 1}")
                r.append(f"v_cvt_pk_bf16_f32 v{PK + 2 * t + 1}, v{a + 2}, v{a + 3}")
                if wr == 32:
                    r.append(f"ds_write_b32 v{ST[t]}, v{PK + 2 * t} offset:{off}")
                    r.append(f"ds_write_b32 v{ST[t]}, v{PK + 2 * t + 1} offset:{off + 4}")
                else:
                    r.append(f"ds_write_b64 v{ST[t]}, v[{PK + 2 * t}:{PK + 2 * t + 1}] offset:{off}")
            r.append("ds_write_b32 v8, v10")
            return r

        seen_upto = 0
        fpending = None
        modes = o.modes.split(",")
        loop = o.loop
        if loop:
            del self.L[-1]
            e("s_mov_b32 s37, 0")
            e("v_and_b32 v11, -9, v9")
            if o.hf:
                e("v_lshl_add_u32 v11, s43, 3, v11")
            e("v_mov_b32 v5, 0")
            if o.order != "A":
                e(f"s_mov_b32 s35, {2 * c1}")
                e(f"s_mov_b32 s34, {2 * c1}")
            self.lab("L_c_loop")
        nb = len(modes) if loop else 3
        seq = o.seq
        for T in range(nb):
            md = modes[T]
            if loop and T:
                self.lab(f"L_c_loop{T}")
            for s in range(6):
                u = 6 * T + s
                if o.prof and o.cstamp == 2:
                    e(f"s_memtime s[{16 + 4 * u}:{17 + 4 * u}]")
                    e(f"s_memrealtime s[{18 + 4 * u}:{19 + 4 * u}]")
                elif o.prof and o.cstamp:
                    self.stamp_now(22, u)
                    self.stamp_now(40, u, real=True)
                U, Lo = s & 1, (s & 1) ^ 1
                acc = s & 1 if md == "n" else 0
                nd = need(0 if loop else T, s)
                if loop and o.order != "A" and s == 0:
                    e("v_cmp_gt_i32 vcc, s35, v5")
                    e(f"s_cbranch_vccnz L_c_slow{u}")
                    self.lab(f"L_c_ready{u}")
                    slow.append((u, "s35"))
                    e("s_mov_b32 s35, s34")
                    e(f"s_mov_b32 s34, {ntot}")
                    seen_upto = 99
                elif loop:
                    e(f"v_cmp_gt_i32 vcc, {nd}, v5")
                    e(f"s_cbranch_vccnz L_c_slow{u}")
                    self.lab(f"L_c_ready{u}")
                    slow.append((u, nd))
                    seen_upto = 99
                elif nd > seen_upto:
                    if fpending is not None:
                        e(f"s_waitcnt lgkmcnt({fpending})")
                        if loop:
                            nd_ = "s36"
                        else:
                            nd_ = nd
                        e(f"v_cmp_gt_i32 vcc, {nd_}, v5")
                        e(f"s_cbranch_vccnz L_c_slow{u}")
                        self.lab(f"L_c_ready{u}")
                        slow.append((u, nd_))
                    else:
                        self.poll(9, 5, nd, sleep=o.csleep)
                    seen_upto = nd
                fpending = None
                if s == 0 and o.prof and not o.cstamp:
                    self.stamp_now(24, "s37" if loop else T, real=(o.prof == 2))
                ro = (s & 1) * 2 * P
                rd = (pair_reads(0, 0) if s == 0 else []) + pair_reads(Lo, ro + 2 * P)
                rd.append(f"ds_read_b128 v[{XR}:{XR + 3}], v{AX} offset:{ro}")
                post = []
                if s & 1:
                    adv = 4 * P if s < 5 else "s38" if o.hf else (-3072 if o.defer else 3072) - 8 * P
                    post = [f"v_add_u32 v{r}, {adv}, v{r}" for r in (A1, A2, AX)] if (u < 17 or loop) else []
                inter = []
                if md in ("r", "n") and s > 0:
                    inter = [[x] for x in rd]
                else:
                    for x in rd:
                        e(x)
                    if s == 0:
                        e("s_waitcnt lgkmcnt(5)")
                nxt_need = need(T, s + 1) if s < 5 else (need(T + 1, 0) if T < 2 else 0)
                want_f = md != "p" and nxt_need > seen_upto
                if loop:
                    if o.defer:
                        if s == o.defer - 1:
                            post = post + ["s_cmp_eq_u32 s37, 3"]
                        if s == 5 - o.defer:
                            post = post + ["s_cmp_eq_u32 s37, 0"]
                        if s == 5:
                            post = post + ["s_add_u32 s37, s37, 1", "s_cmp_eq_u32 s37, 2"]
                    elif s == 5:
                        post = post + ["s_add_u32 s37, s37, 1", "v_mov_b32 v11, v9", "s_cmp_eq_u32 s37, 1", "s_cselect_b32 s36, 0, -1",
                                       "v_and_b32 v5, s36, v5", "s_cmp_lt_u32 s37, 3"]
                        if nb == 2:
                            post[-1] = f"s_bitcmp1_b32 {sum(1 << k for k in range(3) if seq[k] == '0')}, s37"
                    if o.order != "A" and s == 0:
                        pre0 = True
                defer = []
                if md == "n" and s > 0:
                    defer = ["v_add_u32 v10, 1, v10"] + epilogue(acc ^ 1, ((s - 1) & 1) * 2 * P, o.wrn)
                    if not s & 1:
                        defer += [f"v_add_u32 v{r}, {4 * P}, v{r}" for r in ST]
                seen = set()
                seq = [(k, SET[U] + 4 * int(k[0][1])) for k in ops[:10]] + [(k, SET[Lo] + 4 * int(k[0][1])) for k in ops[13:]] + [(k, XR) for k in ops[10:13]]
                behind = 0
                for g, (k, b) in enumerate(seq):
                    if g == 10:
                        e(f"s_waitcnt lgkmcnt({behind})")
                    t = k[1]
                    a = ACC(acc, t)
                    cin = f"v[{a}:{a + 3}]" if t in seen else "0"
                    seen.add(t)
                    e(f"v_mfma_f32_16x16x32_bf16 v[{a}:{a + 3}], v[{W[k]}:{W[k] + 3}], v[{b}:{b + 3}], {cin}")
                    cap = 2
                    if inter:
                        e(inter.pop(0)[0])
                        cap -= 1
                    elif post and not defer:
                        while post and cap:
                            e(post.pop(0))
                            cap -= 1
                    while defer and cap and g >= 2 and g != 9:
                        isw = defer[0].startswith("ds_write")
                        if isw and cap < 2:
                            break
                        x = defer.pop(0)
                        e(x)
                        cap -= 2 if isw else 1
                        if isw and g < 10:
                            behind += 1
                assert not defer and not inter, (u, defer)
                fill = list(post)
                if md != "n" or s == 5:
                    fill.append("v_add_u32 v10, 1, v10")
                    if want_f:
                        fill.append("ds_read_b32 v5, v9")
                    for x in fill:
                        e(x)
                    if len(fill) < 6:
                        e(f"s_nop {5 - len(fill)}")
                    ep = epilogue(acc, (s & 1) * 2 * P, o.wr)
                    for x in ep:
                        e(x)
                    if want_f:
                        fpending = sum(1 for x in ep if x.startswith("ds_"))
                    if s & 1 and (u < 17 or loop):
                        adv = 4 * P if s < 5 else "s38" if o.hf else (-3072 if o.defer else 3072) - 8 * P
                        for r in ST:
                            e(f"v_add_u32 v{r}, {adv}, v{r}")
                    if o.defer and s in (o.defer - 1, 5 - o.defer):
                        e("s_cbranch_scc1 L_c_stub")
                    if loop and nb == 2 and s == 5:
                        e("s_cbranch_scc1 L_c_loop")
                        e("s_cmp_lt_u32 s37, 3")
                        if T == 0:
                            e("s_cbranch_scc0 L_c_done")
                        else:
                            e("s_cbranch_scc1 L_c_loop1")
                            self.lab("L_c_done")
                else:
                    for x in fill:
                        e(x)
                    if want_f:
                        e("ds_read_b32 v5, v9")
                        fpending = 0
                    if o.defer and s in (o.defer - 1, 5 - o.defer):
                        e("s_cbranch_scc1 L_c_stub")
        if loop and nb == 1:
            e("s_cbranch_scc1 L_c_loop")
        if o.defer:
            D = o.defer
            for r in (A1, A2, AX):
                e(f"v_add_u32 v{r}, {(12 - 2 * D) * P}, v{r}")
            for t in range(3):
                back = 2 * D * P if md == "n" else (2 * P if D == 1 else 0)
                e(f"v_add_u32 v{ST[t]}, {back}, v{180 + t}")
            e("s_branch L_c_loop")
            self.lab("L_c_stub")
            if md == "n":
                e("v_add_u32 v10, 1, v10")
            e("s_cmp_eq_u32 s37, 0")
            e("s_mov_b32 s37, 1")
            e("v_mov_b32 v11, v9")
            e("v_mov_b32 v5, 0")
            if md == "n":
                for x in epilogue((D - 1) & 1, ((D - 1) & 1) * 2 * P, o.wr):
                    e(x)
            for r in (A1, A2, AX):
                e(f"v_add_u32 v{r}, {6144 - 8 * P}, v{r}")
            for t in range(3):
                e(f"v_swap_b32 v{ST[t]}, v{180 + t}")
            e("s_cbranch_scc1 L_c_loop")
        if o.cstamp == 2:
            e("s_memtime s[88:89]")
            e("s_waitcnt lgkmcnt(0)")
            for u in range(18):
                e(f"v_writelane_b32 v{PV}, s{16 + 4 * u}, {22 + u}")
                e(f"v_writelane_b32 v{PV}, s{18 + 4 * u}, {40 + u}")
            e("s_mov_b32 s46, s94")
            e("s_mov_b32 s48, s88")
            self.nstamp = 2
        else:
            self.stamp()
        self.stamp_flush()
        self.lab("L_end")
        e("s_endpgm")
        for u, nd in slow:
            self.lab(f"L_c_slow{u}")
            self.poll(11 if loop else 9, 5, nd, sleep=o.csleep)
            e(f"s_branch L_c_ready{u}")

    @staticmethod
    def srcs(txt):
        m = re.search(r", v\[(\d+):(\d+)\]", txt)
        if m:
            return [str(r) for r in range(int(m.group(1)), int(m.group(2)) + 1)]
        return [re.search(r", v(\d+)", txt).group(1)]

    def check_mfma_hazards(self):
        L = [l.strip() for l in self.L]
        if "L_c_loop:" not in L:
            return
        i = L.index("L_c_loop:")
        k = L.index("L_end:")
        for seqn in (L[i:k],):
            pend = {}
            pos = 0
            for l in seqn:
                if l.endswith(":"):
                    continue
                regs = set()
                for m in re.finditer(r"v\[(\d+):(\d+)\]|v(\d+)", l.split(None, 1)[1] if " " in l else ""):
                    if m.group(3):
                        regs.add(int(m.group(3)))
                    else:
                        regs.update(range(int(m.group(1)), int(m.group(2)) + 1))
                if l.startswith("v_mfma"):
                    m = re.match(r"v_mfma\S+ v\[(\d+):(\d+)\]", l)
                    for r in range(int(m.group(1)), int(m.group(2)) + 1):
                        pend[r] = pos
                else:
                    for r in regs:
                        if r in pend:
                            assert pos - pend[r] - 1 >= 8, (l, pos - pend[r] - 1)
                m = re.match(r"s_nop (\d+)", l)
                pos += int(m.group(1)) + 1 if m else 1

    def build(self):
        self.prologue()
        self.helper()
        self.compute()
        self.check_mfma_hazards()
        if self.o.drop:
            i = self.L.index("L_c_loop:")
            j = self.L.index("L_end:")
            pats = self.o.drop.split(",")
            self.L = self.L[:i] + [l for l in self.L[i:j] if not any(l.strip().startswith(p) for p in pats)] + self.L[j:]
        return HEADER + "\n".join(self.L) + "\n" + FOOTER.format(vgpr=188, acc=188)


def main():
    p = argparse.ArgumentParser()
    p.add_argument("-o", default="-")
    p.add_argument("--prof", type=int, default=0)
    p.add_argument("--hflip", type=int, default=1)
    p.add_argument("--win", type=int, default=11)
    p.add_argument("--barpair", type=int, default=2)
    p.add_argument("--ldflags", default="nt")
    p.add_argument("--wflags", default="")
    p.add_argument("--stflags", default="sc0 sc1 nt")
    p.add_argument("--prio_loader", type=int, default=0)
    p.add_argument("--prio_comp", type=int, default=0)
    p.add_argument("--nocomp", type=int, default=0)
    p.add_argument("--noload", type=int, default=0)
    p.add_argument("--cstamp", type=int, default=0)
    p.add_argument("--drop", default="")
    p.add_argument("--wr", type=int, default=64)
    p.add_argument("--estart", type=int, default=2)
    p.add_argument("--diag", default="")
    p.add_argument("--now", type=int, default=0)
    p.add_argument("--stwait", type=int, default=0)
    p.add_argument("--stwin", type=int, default=0)
    p.add_argument("--pad", type=int, default=0)
    p.add_argument("--padk", type=int, default=1)
    p.add_argument("--padmask", type=int, default=7)
    p.add_argument("--fpre", type=int, default=0)
    p.add_argument("--csleep", type=int, default=1)
    p.add_argument("--eflag", type=int, default=0)
    p.add_argument("--rdint", type=int, default=0)
    p.add_argument("--sched", default="plain")
    p.add_argument("--stag", type=int, default=0)
    p.add_argument("--stagw", type=int, default=2)
    p.add_argument("--gate", type=int, default=0)
    p.add_argument("--gsleep", type=int, default=4)
    p.add_argument("--padper", default="")
    p.add_argument("--nostore", type=int, default=0)
    p.add_argument("--jmask", type=int, default=0)
    p.add_argument("--cls", default="1,2,3,4")
    p.add_argument("--order", default="C")
    p.add_argument("--modes", default="n")
    p.add_argument("--loop", type=int, default=1)
    p.add_argument("--winl", type=int, default=9)
    p.add_argument("--winr", type=int, default=11)
    p.add_argument("--prio_left", type=int, default=0)
    p.add_argument("--tlbw", type=int, default=0)
    p.add_argument("--tlbf", default="nt")
    p.add_argument("--defer", type=int, default=0)
    p.add_argument("--wrn", type=int, default=64)
    p.add_argument("--hf", type=int, default=1)
    p.add_argument("--seq", default="010")
    p.add_argument("--fevery", type=int, default=0)
    p.add_argument("--two", type=int, default=0)
    p.add_argument("--rdint2", type=int, default=1)
    p.add_argument("--sleep", type=int, default=2)
    o = p.parse_args()
    s = Gen(o).build()
    if o.o == "-":
        sys.stdout.write(s)
    else:
        open(o.o, "w").write(s)


if __name__ == "__main__":
    main()
```

```python
import argparse
import re
import sys

ROWB = 73728
XBYTES = 28311552
WBYTES = 41472
P = 9728
LDS_TOTAL = 163840
FLAGS = LDS_TOTAL - 256
WSZ = 12288
WREG = FLAGS - 4 * WSZ

HEADER = """; Kernarg layout for this problem (40 bytes, ptrs only, base s[0:1]):
; @launch grid=(256,1,1) block=(512,1,1) lds=163840
.amdgcn_target "amdgcn-amd-amdhsa--gfx950"
.text
.globl standalone__grouped__vision_kernel
.p2align 8
.type standalone__grouped__vision_kernel,@function
standalone__grouped__vision_kernel:
"""

FOOTER = """.section .rodata,"a"
.p2align 6
.amdhsa_kernel standalone__grouped__vision_kernel
  .amdhsa_next_free_vgpr {vgpr}
  .amdhsa_next_free_sgpr 102
  .amdhsa_accum_offset {acc}
  .amdhsa_group_segment_fixed_size 0
  .amdhsa_kernarg_size 40
  .amdhsa_user_sgpr_count 2
  .amdhsa_user_sgpr_kernarg_segment_ptr 1
  .amdhsa_system_sgpr_workgroup_id_x 1
.end_amdhsa_kernel
"""

PV = 187


class Gen:
    def __init__(self, o):
        self.o = o
        self.L = []
        self.nstamp = 0
        self.nlab = 0

    def e(self, s):
        self.L.append("    " + s)

    def lab(self, s):
        self.L.append(s + ":")

    def newlab(self, p):
        self.nlab += 1
        return f"L_{p}{self.nlab}"

    def stamp(self):
        if not self.o.prof:
            return
        k = self.nstamp
        self.nstamp += 1
        assert k < 22
        self.e(f"s_mem{'real' if self.o.prof == 2 else ''}time s[{46 + 2 * k}:{47 + 2 * k}]")

    def stamp_now(self, base, ctr, real=False):
        if not self.o.prof:
            return
        self.e("s_memrealtime s[96:97]" if real else "s_memtime s[96:97]")
        self.e("s_waitcnt lgkmcnt(0)")
        self.e("s_mov_b32 s95, m0")
        if isinstance(ctr, str):
            self.e(f"s_cselect_b32 s94, 1, 0")
            self.e(f"s_add_u32 m0, {ctr}, {base}")
            self.e(f"s_cmp_lg_u32 s94, 0")
        else:
            self.e(f"s_mov_b32 m0, {base + ctr}")
        self.e(f"v_writelane_b32 v{PV}, s96, m0")
        self.e("s_mov_b32 m0, s95")

    def stamp_flush(self):
        if not self.o.prof:
            return
        e = self.e
        e("s_mov_b64 exec, -1")
        e("s_waitcnt lgkmcnt(0)")
        e("s_load_dwordx2 s[40:41], s[0:1], 32")
        e("s_lshl_b32 s42, s2, 3")
        e("s_add_u32 s42, s42, s3")
        e("s_lshl_b32 s42, s42, 8")
        e("v_lshl_add_u32 v1, v0, 2, s42")
        for k in range(self.nstamp):
            e(f"v_writelane_b32 v{PV}, s{46 + 2 * k}, {k}")
        e(f"s_mov_b32 s42, {self.nstamp}")
        e(f"v_writelane_b32 v{PV}, s42, 63")
        e("s_getreg_b32 s42, hwreg(HW_REG_XCC_ID)")
        e(f"v_writelane_b32 v{PV}, s42, 62")
        e(f"v_writelane_b32 v{PV}, s92, 60")
        e("s_memrealtime s[92:93]")
        e("s_waitcnt lgkmcnt(0)")
        e(f"v_writelane_b32 v{PV}, s92, 59")
        e(f"global_store_dword v1, v{PV}, s[40:41]")

    def diag_mark(self, name):
        d = self.o.diag
        if d == name:
            self.e("s_memrealtime s[90:91]")
        if d == "c" + name:
            self.e("s_memtime s[90:91]")

    def diag_end(self):
        o, e = self.o, self.e
        if not o.diag:
            return
        e("s_waitcnt vmcnt(0) lgkmcnt(0)")
        self.diag_mark("end")
        e("s_waitcnt lgkmcnt(0)")
        if o.diag == "rt":
            e("s_mov_b32 s42, 0")
        elif o.diag.startswith("c"):
            e("s_sub_u32 s42, s90, s88")
            e("s_lshr_b32 s42, s42, 2")
        else:
            e("s_sub_u32 s42, s90, s92")
            e("s_mul_i32 s42, s42, 4")
        e("s_add_u32 s42, s42, 4000")
        self.lab("L_dg")
        e("s_memrealtime s[40:41]")
        e("s_waitcnt lgkmcnt(0)")
        e("s_sub_u32 s40, s40, s92")
        e("s_cmp_lt_u32 s40, s42")
        e("s_cbranch_scc1 L_dg")

    def poll(self, vaddr, vtmp, sneed, sleep=1):
        e = self.e
        l = self.newlab("poll")
        d = self.newlab("pdone")
        self.lab(l)
        e(f"ds_read_b32 v{vtmp}, v{vaddr}")
        e("s_waitcnt lgkmcnt(0)")
        e(f"v_cmp_gt_i32 vcc, {sneed}, v{vtmp}")
        e(f"s_cbranch_vccz {d}")
        if sleep:
            e(f"s_sleep {sleep}")
        e(f"s_branch {l}")
        self.lab(d)

    def prologue(self):
        e = self.e
        e("s_cmp_ge_u32 s2, 256")
        e("s_cbranch_scc1 L_end")
        e("s_load_dwordx4 s[4:7], s[0:1], 0")
        e("s_load_dwordx2 s[8:9], s[0:1], 16")
        if self.o.prof or self.o.diag:
            e("s_memrealtime s[92:93]")
        if self.o.diag:
            e("s_memtime s[88:89]")
        self.stamp()
        if self.o.prof:
            e(f"v_mov_b32 v{PV}, 0")
        e("v_lshrrev_b32 v1, 6, v0")
        e("v_and_b32 v0, 63, v0")
        e(f"v_mov_b32 v3, {FLAGS}")
        e("v_readfirstlane_b32 s3, v1")
        e("v_xor_b32 v2, 4, v1")
        e("v_lshl_add_u32 v8, v2, 2, v3")
        e("v_mov_b32 v2, 0")
        e("ds_write_b32 v8, v2")
        e("v_and_b32 v2, 3, v0")
        e("v_lshl_add_u32 v9, v2, 2, v3")
        e("s_bfe_u32 s26, s2, 0x10005")
        e("s_bfe_u32 s43, s2, 0x10003" if self.o.hf else "s_mov_b32 s43, 0")
        e("s_cmp_lt_u32 s3, 4")
        e("s_cbranch_scc1 L_compute")

    def helper(self):
        e, o = self.e, self.o
        self.lab("L_helper")
        if o.prio_loader:
            e(f"s_setprio {o.prio_loader}")
        Wn = o.win
        phases = {"A": [(0, 304, [64, 64, 64, 64, 48])],
                  "B": [(0, 224, [56] * 4), (448, 80, [40] * 2)],
                  "C": [(0, 256, [64] * 4), (512, 48, [48])]}[o.order]
        self.phases = phases
        ntot = 7 * sum(len(p[2]) for p in phases)
        e("s_and_b32 s10, s2, 1")
        e("s_lshl_b32 s10, s10, 2")
        e("s_bfe_u32 s11, s2, 0x20003")
        e("s_add_u32 s10, s10, s11")
        e("s_bfe_u32 s11, s2, 0x20001")
        e("s_lshl_b32 s11, s11, 3")
        e("s_lshr_b32 s24, s2, 5")
        e("s_add_u32 s11, s11, s24")
        e("s_mul_i32 s25, s11, 12")
        e("s_mul_i32 s24, s10, 9216")
        e("s_and_b32 s30, s3, 1")
        e("s_bfe_u32 s45, s3, 0x10001")
        e("v_lshrrev_b32 v1, 2, v0")
        e("v_bfrev_b32 v3, 1")

        def patterns(ph, first, last):
            st, half, lanes = ph
            mir = (608 - st - 2 * half) - st if len(phases) == 2 else 0
            e(f"s_mul_i32 s33, s45, {half}")
            if mir:
                e(f"s_mul_i32 s28, s43, {mir}")
                e("s_add_u32 s33, s33, s28")
            if st:
                e(f"s_add_u32 s33, s33, {st}")
            e("s_lshr_b32 s28, s33, 2")
            e("s_add_u32 s28, s28, 2")
            e("v_add_u32 v4, s28, v1")
            e("s_lshl_b32 s33, s33, 4")
            off = 0
            for k, ln in enumerate(lanes):
                if off:
                    e(f"v_add_u32 v2, {off // 4}, v4")
                    e("v_mul_u32_u24 v2, 171, v2")
                else:
                    e("v_mul_u32_u24 v2, 171, v4")
                e("v_bfe_u32 v2, v2, 11, 2")
                e("v_xor_b32 v2, v2, v0")
                e(f"v_lshl_add_u32 v{10 + k}, v2, 4, s33")
                off += ln
            if len(lanes) == 5:
                e("v_add_u32 v14, 4096, v14")
            if first:
                e("s_add_u32 s28, s45, s10")
                e("s_cmp_eq_u32 s28, 0")
                e("s_cselect_b32 s32, 16, 0")
                e("v_cmp_gt_u32 vcc, s32, v0")
            e(f"s_mul_i32 s32, s30, {P}")
            e("s_add_u32 s33, s33, s32")
            if first:
                e("v_cndmask_b32 v10, v10, v3, vcc")
            if (first if o.hf else last):
                if not first:
                    e("s_add_u32 s28, s45, s10")
                e("s_cmp_eq_u32 s28, 8")
                e(f"s_cselect_b32 s28, {lanes[-1] - 16}, 64")
                e("v_cmp_le_u32 vcc, s28, v0")
                e("s_nop 1")
                e(f"v_cndmask_b32 v{9 + len(lanes)}, v{9 + len(lanes)}, v3, vcc")

        patterns(phases[0], True, len(phases) == 1)
        e("s_cmp_eq_u32 s26, 0")
        e("s_cselect_b32 s27, 1, -1")
        e("s_cselect_b32 s29, -1, 12")
        e(f"s_mul_i32 s27, s27, {ROWB}")
        e("s_add_i32 s29, s29, s25")
        e(f"s_mul_i32 s29, s29, {ROWB}")
        e("s_mul_i32 s28, s30, s27")
        e("s_add_i32 s29, s29, s28")
        e("s_lshl_b32 s35, s27, 1")
        cl = [int(x) for x in o.cls.split(",")]
        assert max(cl) <= 5
        e("s_bfe_u32 s44, s2, 0x20003")
        e("s_lshl_b32 s44, s44, 3")
        e(f"s_lshr_b32 s44, {hex(sum(c << (8 * i) for i, c in enumerate(cl)))}, s44")
        e("s_and_b32 s44, s44, 255")
        e("v_add_u32 v7, 16, v9")
        e("s_waitcnt lgkmcnt(0)")
        e("s_sub_u32 s12, s4, 256")
        e("s_subb_u32 s13, s5, 0")
        e(f"s_mov_b32 s14, {XBYTES + 256}")
        e("s_mov_b32 s15, 0x20000")
        self.stamp()
        self.diag_mark("karg")
        fl = o.ldflags
        if 0 in cl:
            e("s_cmp_lg_u32 s44, 0")
            e("s_cbranch_scc1 L_ld_start")
            e("s_barrier")
            self.lab("L_ld_start")
        if o.order == "A":
            self.load_A(phases, fl)
        else:
            Wn = o.winl
            n = 0
            c1, c2 = len(phases[0][2]), len(phases[1][2])
            e(f"v_mov_b32 v6, {-c1 * ((Wn - 1) // c1)}")
            for pi, ph in enumerate(phases):
                st, half, lanes = ph
                c = len(lanes)
                if pi:
                    e("s_mov_b64 exec, -1")
                    patterns(ph, False, True)
                    e(f"v_mov_b32 v6, {7 * c1 - (Wn - 1) + (Wn - 1) % c}")
                e("s_mov_b32 s31, s29")
                e("s_mov_b32 s32, 0")
                if lanes[0] < 64:
                    e(f"s_mov_b32 exec_hi, {hex((1 << (lanes[0] - 32)) - 1)}")
                self.lab(f"L_ld_loop{pi}")
                e("s_add_u32 s34, s31, s24")
                e("s_cmp_lt_i32 s31, 0")
                e("s_cselect_b32 s34, 0x40000000, s34")
                e("s_mov_b32 m0, s33")
                e("s_add_i32 s31, s31, s35")
                off = 0
                for k, ln in enumerate(lanes):
                    e(f"s_waitcnt vmcnt({Wn - 1})")
                    if k == (Wn - 1) % c:
                        e("ds_write_b32 v8, v6")
                    e(f"buffer_load_dwordx4 v{10 + k}, s[12:15], s34 offen offset:{off * 16} {fl} lds")
                    off += ln
                e(f"v_add_u32 v6, {c}, v6")
                e(f"s_add_u32 s33, s33, {2 * P}")
                e("s_add_u32 s32, s32, 1")
                if pi == 0:
                    e("s_cmp_lg_u32 s32, s44")
                    e("s_cbranch_scc1 L_ld_nobar")
                    e("s_barrier")
                    self.lab("L_ld_nobar")
                    e("s_cmp_lg_u32 s32, 5")
                    e("s_cbranch_scc1 L_ld_nopoll")
                    self.poll(7, 5, 1)
                    self.lab("L_ld_nopoll")
                e("s_cmp_lt_u32 s32, 7")
                e(f"s_cbranch_scc1 L_ld_loop{pi}")
            for v in range(ntot - Wn + 1, ntot):
                if v == 7 * c1 or (v < 7 * c1 and v % c1 == 0) or (v > 7 * c1 and (v - 7 * c1) % (2 * c2) == 0):
                    e(f"v_mov_b32 v2, {v}")
                    e(f"s_waitcnt vmcnt({ntot - v})")
                    e("ds_write_b32 v8, v2")
        self.lab("L_ld_tail")
        if o.prio_loader or o.prio_left:
            e("s_setprio 0")
        e("s_mov_b64 exec, -1")
        e("s_and_b32 s30, s3, 3")
        e("s_mul_i32 s28, s30, 12")
        e("s_add_u32 s28, s28, 3")
        if o.hf:
            e("s_mul_i32 s32, s43, 6")
            e("s_add_u32 s28, s28, s32")
        e("v_add_u32 v2, s28, v1")
        e("v_mul_u32_u24 v2, 171, v2")
        e("v_bfe_u32 v2, v2, 11, 2")
        e("v_xor_b32 v2, v2, v0")
        e("s_mul_i32 s33, s30, 768")
        e("s_add_u32 s28, s33, 64")
        if o.hf:
            e("s_mul_i32 s32, s43, 6528")
            e("s_add_u32 s28, s28, s32")
            e("s_mul_i32 s32, s43, 6144")
            e("s_add_u32 s24, s24, s32")
            e("s_sub_u32 s36, 3072, s32")
            e(f"s_sub_u32 s38, s36, {12 * P}")
        e("v_lshl_add_u32 v10, v2, 4, s28")
        e("v_lshl_add_u32 v11, v0, 4, s33")
        if o.defer:
            e("s_mul_i32 s28, s30, 12")
            e("s_add_u32 s28, s28, 9")
            e("v_add_u32 v2, s28, v1")
            e("v_mul_u32_u24 v2, 171, v2")
            e("v_bfe_u32 v2, v2, 11, 2")
            e("v_xor_b32 v2, v2, v0")
            e("s_add_u32 s28, s33, 448")
            e("v_lshl_add_u32 v13, v2, 4, s28")
        e("s_cmp_eq_u32 s26, 0")
        e("s_cselect_b32 s29, 0, 11")
        e("s_add_i32 s29, s29, s25")
        e(f"s_mul_i32 s29, s29, {ROWB}")
        e("s_add_u32 s29, s29, s24")
        e("s_mov_b32 s20, s8")
        e("s_mov_b32 s21, s9")
        e(f"s_mov_b32 s22, {XBYTES}")
        e("s_mov_b32 s23, 0x20000")
        e("s_mov_b32 exec_hi, 0xffff")
        e(f"v_mov_b32 v2, {ntot}")
        e("s_waitcnt vmcnt(0)")
        e("ds_write_b32 v8, v2")
        self.stamp()
        self.diag_mark("ldone")
        self.stamp_now(58, 0, real=True)
        if o.nostore:
            self.stamp_flush()
            e("s_endpgm")
        e("s_mov_b32 s37, 2")
        if o.defer:
            e("s_mov_b32 s31, s29")
            e(f"s_mov_b32 s32, {8 - o.defer}")
        else:
            self.lab("L_st_strip")
            e("s_mov_b32 s31, s29")
            e("s_mov_b32 s32, 0")
        self.lab("L_st_loop")
        if not o.nocomp:
            e("v_cmp_gt_i32 vcc, s37, v5")
            e("s_cbranch_vccz L_st_go")
            self.poll(7, 5, "s37", sleep=o.sleep)
            self.lab("L_st_go")
        e("ds_read_b128 v[16:19], v10")
        e(f"ds_read_b128 v[20:23], v10 offset:{P}")
        e("s_add_i32 s34, s31, s27")
        e(f"v_add_u32 v10, {2 * P}, v10")
        e("s_add_u32 s37, s37, 1")
        if not o.defer:
            e("s_add_u32 s32, s32, 1")
        e("s_waitcnt lgkmcnt(1)")
        e(f"buffer_store_dwordx4 v[16:19], v11, s[20:23], s31 offen {o.stflags}")
        e("s_add_i32 s31, s34, s27")
        e("s_waitcnt lgkmcnt(0)")
        e(f"buffer_store_dwordx4 v[20:23], v11, s[20:23], s34 offen {o.stflags}")
        if o.prof and o.cstamp:
            self.stamp_now(22 - 3, "s37")
            self.stamp_now(40 - 3, "s37", real=True)
        if o.defer:
            D = o.defer
            e("s_cmp_lt_u32 s37, s32")
            e("s_cbranch_scc1 L_st_loop")
            e("s_add_u32 s32, s32, 6")
            e(f"s_cmp_lg_u32 s37, {8 - D}")
            e("s_cbranch_scc1 L_st_s1")
            e("v_mov_b32 v12, v10")
            e("s_mov_b32 s43, s31")
            e("v_add_u32 v10, 6144, v13")
            e("s_add_u32 s31, s29, 6144")
            e("s_branch L_st_loop")
            self.lab("L_st_s1")
            e(f"s_cmp_lg_u32 s37, {14 - D}")
            e("s_cbranch_scc1 L_st_s2")
            e("v_add_u32 v10, 3072, v13")
            e("s_add_u32 s31, s29, 3072")
            e("s_branch L_st_loop")
            self.lab("L_st_s2")
            e("v_mov_b32 v10, v12")
            e("s_mov_b32 s31, s43")
            e("s_mov_b32 s32, 20")
            e("s_cmp_lt_u32 s37, 20")
            e("s_cbranch_scc1 L_st_loop")
        else:
            e("s_cmp_lt_u32 s32, 6")
            e("s_cbranch_scc1 L_st_loop")
            if o.hf:
                e("s_add_u32 s29, s29, s36")
                e("v_add_u32 v10, s38, v10")
            else:
                e("s_add_u32 s29, s29, 3072")
                e(f"v_add_u32 v10, {3072 - 12 * P}, v10")
            e("s_cmp_lt_u32 s37, 20")
            e("s_cbranch_scc1 L_st_strip")
        self.diag_mark("stiss")
        if o.prof:
            self.stamp()
            e("s_waitcnt vmcnt(0)")
            self.stamp()
        self.stamp_flush()
        self.diag_end()
        e("s_endpgm")

    def load_A(self, phases, fl):
        e, o = self.e, self.o
        lanes = phases[0][2]
        e("s_mov_b32 s31, s29")
        e("s_mov_b32 s32, 0")
        sides = [("l", o.winl), ("r", o.winr)] if o.winl != o.winr else [("l", o.winl)]
        if len(sides) == 2:
            e("s_cmp_lg_u32 s45, 0")
            e("s_cbranch_scc1 L_ld_pre_r")
        for sd, Wn in sides:
            self.lab(f"L_ld_pre_{sd}")
            e(f"v_mov_b32 v6, {-5 * ((Wn - 1) // 5)}")
            if sd == "l" and o.prio_left:
                e(f"s_setprio {o.prio_left}")
            self.lab(f"L_ld_loop_{sd}")
            e("s_add_u32 s34, s31, s24")
            e("s_cmp_lt_i32 s31, 0")
            e("s_cselect_b32 s34, 0x40000000, s34")
            e("s_mov_b32 m0, s33")
            e("s_add_i32 s31, s31, s35")
            for k in range(5):
                if k == 4:
                    e("s_add_u32 m0, s33, 4096")
                e(f"s_waitcnt vmcnt({Wn - 1})")
                if k == (Wn - 1) % 5:
                    e("ds_write_b32 v8, v6")
                if k == 4:
                    e("s_mov_b32 exec_hi, 0xffff")
                e(f"buffer_load_dwordx4 v{10 + k}, s[12:15], s34 offen offset:{1024 * (k % 4)} {fl} lds")
                if k == 4:
                    e("s_mov_b32 exec_hi, -1")
                if k == 0:
                    e(f"v_add_u32 v6, {(Wn - 1) % 5}, v6" if False else "s_add_u32 s32, s32, 1")
            e("v_add_u32 v6, 5, v6")
            e(f"s_add_u32 s33, s33, {2 * P}")
            e("s_cmp_lg_u32 s32, s44")
            e(f"s_cbranch_scc1 L_ld_nobar_{sd}")
            e("s_barrier")
            self.lab(f"L_ld_nobar_{sd}")
            e("s_cmp_lg_u32 s32, 5")
            e(f"s_cbranch_scc1 L_ld_nopoll_{sd}")
            self.poll(7, 5, 1)
            self.lab(f"L_ld_nopoll_{sd}")
            e("s_cmp_lt_u32 s32, 7")
            e(f"s_cbranch_scc1 L_ld_loop_{sd}")
            for v in range(35 - Wn + 1, 35):
                if v % 5 == 0:
                    e(f"v_mov_b32 v2, {v}")
                    e(f"s_waitcnt vmcnt({35 - v})")
                    e("ds_write_b32 v8, v2")
            if sd == "l" and len(sides) == 2:
                e("s_branch L_ld_tail")

    def compute(self):
        e, o = self.e, self.o
        ops = [("U0", 0), ("U0", 1), ("U1", 0), ("U1", 1), ("U2", 0), ("U2", 1), ("U2", 2), ("U3", 0), ("U3", 1), ("U3", 2),
               ("X", 0), ("X", 1), ("X", 2),
               ("L0", 0), ("L0", 1), ("L0", 2), ("L1", 0), ("L1", 1), ("L1", 2), ("L2", 1), ("L2", 2), ("L3", 1), ("L3", 2)]
        W = {k: 16 + 4 * i for i, k in enumerate(ops)}
        SET = [108, 124]
        XR = 140
        ACC = lambda s, t: 144 + 12 * s + 4 * t
        PK = 168
        A1, A2, AX = 174, 175, 176
        ST = [177, 178, 179]
        self.lab("L_compute")
        self.nstamp = 1
        if o.ipf:
            e("s_getpc_b64 s[38:39]")
            self.lab("L_pc")
            e("s_sub_u32 s38, s38, L_pc-standalone__grouped__vision_kernel")
            e("s_subb_u32 s39, s39, 0")
            e(f"v_lshlrev_b32 v2, {o.ipf}, v0")
            e("v_lshl_add_u32 v2, s3, 13, v2" if o.ipf == 7 else "v_lshl_add_u32 v2, s3, 12, v2")
            e("v_min_u32 v2, L_code_end-standalone__grouped__vision_kernel-4, v2")
            e("v_mov_b32 v3, s39")
            e("v_add_co_u32 v2, vcc, s38, v2")
            e("s_nop 1")
            e("v_addc_co_u32 v3, vcc, 0, v3, vcc")
            e("global_load_dword v185, v[2:3], off")
        if o.prio_comp:
            e(f"s_setprio {o.prio_comp}")
        e("s_mul_i32 s28, s3, 1152")
        e("v_lshl_add_u32 v108, v0, 4, s28")
        e("s_movk_i32 s29, 3456")
        for i in range(1, 4):
            e(f"v_add_u32 v2, {64 * i}, v0")
            e("v_mul_u32_u24 v2, 911, v2")
            e("v_lshrrev_b32 v2, 16, v2")
            e(f"v_mad_u32_u24 v{108 + i}, v2, s29, v108")
        e("v_cmp_lt_u32 vcc, 23, v0")
        e("v_bfrev_b32 v3, 1")
        e(f"s_mul_i32 s33, s3, {WSZ}")
        e(f"s_add_u32 s33, s33, {WREG}")
        e("v_cndmask_b32 v111, v111, v3, vcc")
        e("s_mul_i32 s34, s26, 27648")
        e("s_movk_i32 s35, 13824")
        e("s_sub_u32 s36, 27648, s34")
        e("s_waitcnt lgkmcnt(0)")
        if o.tlbw:
            e("s_and_b32 s10, s2, 1")
            e("s_lshl_b32 s10, s10, 2")
            e("s_bfe_u32 s11, s2, 0x20003")
            e("s_add_u32 s10, s10, s11")
            e("s_mul_i32 s10, s10, 9216")
            e("s_bfe_u32 s11, s2, 0x20001")
            e("s_lshl_b32 s11, s11, 3")
            e("s_lshr_b32 s24, s2, 5")
            e("s_add_u32 s11, s11, s24")
            e(f"s_mul_i32 s11, s11, {12 * ROWB}")
            e("s_add_u32 s10, s10, s11")
            e("s_mov_b32 s20, s8")
            e("s_mov_b32 s21, s9")
            e(f"s_mov_b32 s22, {XBYTES}")
            e("s_mov_b32 s23, 0x20000")
            e(f"s_mov_b32 s11, {11 * ROWB}")
            e("v_mul_lo_u32 v2, v0, s11")
            e("s_cmp_lg_u32 s3, 0")
            e("s_cbranch_scc1 L_notouch")
            e("s_mov_b64 exec, 3")
            e(f"buffer_load_dword v186, v2, s[20:23], s10 offen {o.tlbf}")
            e("s_mov_b64 exec, -1")
            self.lab("L_notouch")
        e("s_barrier")
        e("s_mov_b32 s16, s6")
        e("s_mov_b32 s17, s7")
        e(f"s_mov_b32 s18, {WBYTES}")
        e("s_mov_b32 s19, 0x20000")
        for p in range(3):
            e(f"s_add_u32 m0, s33, {4096 * p}")
            e("s_nop 0")
            for i in range(4):
                if not o.now:
                    e(f"buffer_load_dwordx4 v{108 + i}, s[16:19], s{34 + p} offen offset:{1024 * i} {o.wflags} lds")
        self.stamp()
        e("v_and_b32 v1, 15, v0")
        e("v_lshrrev_b32 v2, 4, v0")
        e("s_mul_i32 s28, s3, 3")
        e("v_and_b32 v3, 1, v2")
        e("v_lshrrev_b32 v4, 1, v2")
        e("v_cmp_gt_u32 vcc, 2, v2")
        e("s_movk_i32 s29, 192")
        e("s_movk_i32 s30, 1152")

        def baddr(dst, vdx, vcc_, tmp1, tmp2, extra=None):
            e(f"v_add_u32 v{tmp1}, {vdx}, v1")
            e(f"v_add_u32 v{tmp2}, 1, v{tmp1}")
            e(f"v_bfe_u32 v{tmp2}, v{tmp2}, 2, 2")
            e(f"v_mad_u32_u24 v{tmp1}, v{tmp1}, s29, v15" if o.hf else f"v_mad_u32_u24 v{tmp1}, v{tmp1}, s29, 64")
            e(f"v_add_u32 v{dst}, s28, {vcc_}")
            e(f"v_xor_b32 v{dst}, v{dst}, v{tmp2}")
            e(f"v_lshl_add_u32 v{dst}, v{dst}, 4, v{tmp1}")
            if extra:
                e(f"v_add_u32 v{dst}, {extra}, v{dst}")

        if o.hf:
            e("s_mul_i32 s31, s43, 6144")
            e("s_add_u32 s32, s31, 64")
            e("v_mov_b32 v15, s32")
            e("s_sub_u32 s38, 3072, s31")
            e(f"s_sub_u32 s38, s38, {8 * P}")
        e("v_cndmask_b32 v6, 2, v2, vcc")
        e("v_cndmask_b32 v7, v3, 2, vcc")
        baddr(A1, "v3", "v4", 11, 12)
        baddr(A2, "v6", "v7", 11, 12)
        e(f"v_mul_u32_u24 v13, {P}, v2")
        e("v_mov_b32 v14, 2")
        baddr(AX, "2", "v14", 11, 12, "v13")
        if o.hf:
            e("v_lshl_add_u32 v1, s43, 1, v1")
        e("v_add_u32 v12, 1, v1")
        e("v_bfe_u32 v12, v12, 2, 2")
        e("v_mad_u32_u24 v11, v1, s29, v15" if o.hf else "v_mad_u32_u24 v11, v1, s29, 64")
        e("v_lshl_add_u32 v11, v3, 3, v11")
        e(f"v_add_u32 v13, {P}, v11")
        e("v_add_u32 v14, s28, v4")
        e("v_xor_b32 v15, v14, v12")
        e(f"v_lshl_add_u32 v{ST[0]}, v15, 4, v11")
        e("v_add_u32 v14, 1, v14")
        e("v_xor_b32 v15, v14, v12")
        e(f"v_lshl_add_u32 v{ST[2]}, v15, 4, v13")
        e("v_cndmask_b32 v14, 0, 2, vcc")
        e("v_cndmask_b32 v13, v13, v11, vcc")
        e("v_add_u32 v14, s28, v14")
        e("v_xor_b32 v15, v14, v12")
        e(f"v_lshl_add_u32 v{ST[1]}, v15, 4, v13")
        if o.defer:
            e("v_add_u32 v12, 3, v1")
            e("v_bfe_u32 v12, v12, 2, 2")
            e(f"v_add_u32 v11, {384 + 6144}, v11")
            e(f"v_add_u32 v13, {384 + 6144}, v13")
            e("v_xor_b32 v15, v14, v12")
            e("v_lshl_add_u32 v181, v15, 4, v13")
            e("v_add_u32 v14, s28, v4")
            e("v_xor_b32 v15, v14, v12")
            e("v_lshl_add_u32 v180, v15, 4, v11")
            e("v_add_u32 v14, 1, v14")
            e("v_xor_b32 v15, v14, v12")
            e(f"v_add_u32 v11, {P}, v11")
            e("v_lshl_add_u32 v182, v15, 4, v11")
        E1, E2, F1, F2, F1z, F2z, F1y, F2y, G0, G1, G2, Z = range(144, 156)
        e("v_bfe_u32 v11, v0, 2, 2")
        e("v_mul_u32_u24 v11, 48, v11")
        e("v_add_u32 v11, s33, v11")
        e("v_and_b32 v12, 3, v0")
        e("v_lshl_add_u32 v11, v12, 3, v11")
        e("v_mul_u32_u24 v13, 384, v4")
        e("v_mad_u32_u24 v13, v3, s30, v13")
        e("v_mul_u32_u24 v14, 384, v7")
        e("v_mad_u32_u24 v14, v6, s30, v14")
        e(f"v_add_u32 v{E1}, v11, v13")
        e(f"v_add_u32 v{E2}, v11, v14")
        e("v_cmp_lt_u32 vcc, 1, v12")
        e("s_add_u32 s30, s33, 3456")
        e(f"v_mov_b32 v{Z}, s30")
        e("v_mov_b32 v13, 32")
        e("v_mov_b32 v14, -4112")
        e("v_cndmask_b32 v13, v13, v14, vcc")
        e("v_cndmask_b32 v15, 0, 1, vcc")
        e(f"v_add_u32 v{F1}, v{E1}, v13")
        e(f"v_add_u32 v{F2}, v{E2}, v13")
        e(f"v_cndmask_b32 v{F1z}, v{F1}, v{Z}, vcc")
        e(f"v_cndmask_b32 v{F2z}, v{F2}, v{Z}, vcc")
        e(f"v_add_u32 v{F1y}, 12288, v{F1}")
        e(f"v_add_u32 v{F2y}, 12288, v{F2}")
        e(f"v_cndmask_b32 v{F1y}, v{Z}, v{F1y}, vcc")
        e(f"v_cndmask_b32 v{F2y}, v{Z}, v{F2y}, vcc")
        e("v_lshl_add_u32 v11, v2, 12, v11")
        e("v_add_u32 v11, 3072, v11")
        e("v_sub_u32 v15, v2, v15")
        e("v_cmp_gt_u32 vcc, 3, v15")
        e(f"v_add_u32 v{G1}, v11, v13")
        e(f"v_add_u32 v{G2}, -4080, v11")
        e(f"v_cndmask_b32 v{G1}, v{Z}, v{G1}, vcc")
        e("v_cmp_gt_u32 vcc, 3, v2")
        e("s_nop 1")
        e(f"v_cndmask_b32 v{G0}, v{Z}, v11, vcc")
        e("v_cmp_lt_u32 vcc, 0, v2")
        e("s_nop 0")
        e("v_mov_b32 v10, 1")
        e(f"v_cndmask_b32 v{G2}, v{Z}, v{G2}, vcc")

        def tr(key, a, off):
            w = W[key]
            e(f"ds_read_b64_tr_b16 v[{w}:{w + 1}], v{a} offset:{off}")
            e(f"ds_read_b64_tr_b16 v[{w + 2}:{w + 3}], v{a} offset:{off + 192}")

        e("s_waitcnt vmcnt(8)")
        self.stamp()
        tr(("U0", 0), E1, 0); tr(("U1", 0), E2, 0); tr(("U0", 1), F1z, 0); tr(("U1", 1), F2z, 0)
        tr(("U2", 2), E1, 16); tr(("U3", 2), E2, 16)
        e("s_waitcnt vmcnt(4)")
        tr(("U2", 0), E1, 4096); tr(("U3", 0), E2, 4096); tr(("U2", 1), F1, 4096); tr(("U3", 1), F2, 4096)
        tr(("L0", 2), E1, 4112); tr(("L1", 2), E2, 4112)
        e("s_waitcnt vmcnt(0)")
        self.stamp()
        tr(("X", 0), G0, 0); tr(("X", 1), G1, 0); tr(("X", 2), G2, 0)
        tr(("L0", 0), E1, 8192); tr(("L1", 0), E2, 8192); tr(("L0", 1), F1, 8192); tr(("L1", 1), F2, 8192)
        tr(("L2", 1), F1y, 0); tr(("L3", 1), F2y, 0); tr(("L2", 2), E1, 8208); tr(("L3", 2), E2, 8208)
        e("ds_write_b32 v8, v10")
        self.stamp()
        if o.nocomp:
            self.stamp_flush()
            self.lab("L_end")
            e("s_endpgm")
            return
        if o.cstamp == 2:
            e("s_waitcnt lgkmcnt(0)")
            e("s_mov_b32 s94, s46")
        self.lab("L_c_loop")
        slow = []
        c1 = len(self.phases[0][2])
        ntot = 7 * sum(len(p[2]) for p in self.phases)

        def need(T, s):
            if o.order == "A" or T < 2:
                return c1 * (s + 2)
            return 7 * c1 + len(self.phases[1][2]) * (s + 2)

        def pair_reads(st, off):
            b = SET[st]
            return [f"ds_read_b128 v[{b}:{b + 3}], v{A1} offset:{off}",
                    f"ds_read_b128 v[{b + 4}:{b + 7}], v{A2} offset:{off}",
                    f"ds_read_b128 v[{b + 8}:{b + 11}], v{A1} offset:{off + P}",
                    f"ds_read_b128 v[{b + 12}:{b + 15}], v{A2} offset:{off + P}"]

        def epilogue(acc, off, wr):
            r = []
            for t in range(3):
                a = ACC(acc, t)
                r.append(f"v_cvt_pk_bf16_f32 v{PK + 2 * t}, v{a}, v{a + 1}")
                r.append(f"v_cvt_pk_bf16_f32 v{PK + 2 * t + 1}, v{a + 2}, v{a + 3}")
                if wr == 32:
                    r.append(f"ds_write_b32 v{ST[t]}, v{PK + 2 * t} offset:{off}")
                    r.append(f"ds_write_b32 v{ST[t]}, v{PK + 2 * t + 1} offset:{off + 4}")
                else:
                    r.append(f"ds_write_b64 v{ST[t]}, v[{PK + 2 * t}:{PK + 2 * t + 1}] offset:{off}")
            r.append("ds_write_b32 v8, v10")
            return r

        seen_upto = 0
        fpending = None
        modes = o.modes.split(",")
        loop = o.loop
        if loop:
            del self.L[-1]
            e("s_mov_b32 s37, 0")
            e("v_and_b32 v11, -9, v9")
            if o.hf:
                e("v_lshl_add_u32 v11, s43, 3, v11")
            e("v_mov_b32 v5, 0")
            if o.order != "A":
                e(f"s_mov_b32 s35, {2 * c1}")
                e(f"s_mov_b32 s34, {2 * c1}")
            self.lab("L_c_loop")
        nb = len(modes) if loop else 3
        seq = o.seq
        for T in range(nb):
            md = modes[T]
            if loop and T:
                self.lab(f"L_c_loop{T}")
            for s in range(6):
                u = 6 * T + s
                if o.prof and o.cstamp == 2:
                    e(f"s_memtime s[{16 + 4 * u}:{17 + 4 * u}]")
                    e(f"s_memrealtime s[{18 + 4 * u}:{19 + 4 * u}]")
                elif o.prof and o.cstamp:
                    self.stamp_now(22, u)
                    self.stamp_now(40, u, real=True)
                U, Lo = s & 1, (s & 1) ^ 1
                acc = s & 1 if md == "n" else 0
                nd = need(0 if loop else T, s)
                if loop and o.order != "A" and s == 0:
                    e("v_cmp_gt_i32 vcc, s35, v5")
                    e(f"s_cbranch_vccnz L_c_slow{u}")
                    self.lab(f"L_c_ready{u}")
                    slow.append((u, "s35"))
                    e("s_mov_b32 s35, s34")
                    e(f"s_mov_b32 s34, {ntot}")
                    seen_upto = 99
                elif loop:
                    e(f"v_cmp_gt_i32 vcc, {nd}, v5")
                    e(f"s_cbranch_vccnz L_c_slow{u}")
                    self.lab(f"L_c_ready{u}")
                    slow.append((u, nd))
                    seen_upto = 99
                elif nd > seen_upto:
                    if fpending is not None:
                        e(f"s_waitcnt lgkmcnt({fpending})")
                        if loop:
                            nd_ = "s36"
                        else:
                            nd_ = nd
                        e(f"v_cmp_gt_i32 vcc, {nd_}, v5")
                        e(f"s_cbranch_vccnz L_c_slow{u}")
                        self.lab(f"L_c_ready{u}")
                        slow.append((u, nd_))
                    else:
                        self.poll(9, 5, nd, sleep=o.csleep)
                    seen_upto = nd
                fpending = None
                if s == 0 and o.prof and not o.cstamp:
                    self.stamp_now(24, "s37" if loop else T, real=(o.prof == 2))
                ro = (s & 1) * 2 * P
                rd = (pair_reads(0, 0) if s == 0 else []) + pair_reads(Lo, ro + 2 * P)
                rd.append(f"ds_read_b128 v[{XR}:{XR + 3}], v{AX} offset:{ro}")
                post = []
                if s & 1:
                    adv = 4 * P if s < 5 else "s38" if o.hf else (-3072 if o.defer else 3072) - 8 * P
                    post = [f"v_add_u32 v{r}, {adv}, v{r}" for r in (A1, A2, AX)] if (u < 17 or loop) else []
                inter = []
                if md in ("r", "n") and s > 0:
                    inter = [[x] for x in rd]
                else:
                    for x in rd:
                        e(x)
                    if s == 0:
                        e("s_waitcnt lgkmcnt(5)")
                nxt_need = need(T, s + 1) if s < 5 else (need(T + 1, 0) if T < 2 else 0)
                want_f = md != "p" and nxt_need > seen_upto
                if loop:
                    if o.defer:
                        if s == o.defer - 1:
                            post = post + ["s_cmp_eq_u32 s37, 3"]
                        if s == 5 - o.defer:
                            post = post + ["s_cmp_eq_u32 s37, 0"]
                        if s == 5:
                            post = post + ["s_add_u32 s37, s37, 1", "s_cmp_eq_u32 s37, 2"]
                    elif s == 5:
                        post = post + ["s_add_u32 s37, s37, 1", "v_mov_b32 v11, v9", "s_cmp_eq_u32 s37, 1", "s_cselect_b32 s36, 0, -1",
                                       "v_and_b32 v5, s36, v5", "s_cmp_lt_u32 s37, 3"]
                        if nb == 2:
                            post[-1] = f"s_bitcmp1_b32 {sum(1 << k for k in range(3) if o.seq[k] == '0')}, s37"
                    if o.order != "A" and s == 0:
                        pre0 = True
                defer = []
                if md == "n" and s > 0:
                    defer = ["v_add_u32 v10, 1, v10"] + epilogue(acc ^ 1, ((s - 1) & 1) * 2 * P, o.wrn)
                    if not s & 1:
                        defer += [f"v_add_u32 v{r}, {4 * P}, v{r}" for r in ST]
                seen = set()
                seq = [(k, SET[U] + 4 * int(k[0][1])) for k in ops[:10]] + [(k, SET[Lo] + 4 * int(k[0][1])) for k in ops[13:]] + [(k, XR) for k in ops[10:13]]
                behind = 0
                for g, (k, b) in enumerate(seq):
                    if g == 10:
                        e(f"s_waitcnt lgkmcnt({behind})")
                    t = k[1]
                    a = ACC(acc, t)
                    cin = f"v[{a}:{a + 3}]" if t in seen else "0"
                    seen.add(t)
                    e(f"v_mfma_f32_16x16x32_bf16 v[{a}:{a + 3}], v[{W[k]}:{W[k] + 3}], v[{b}:{b + 3}], {cin}")
                    cap = 2
                    if inter:
                        e(inter.pop(0)[0])
                        cap -= 1
                    elif post and not defer:
                        while post and cap:
                            e(post.pop(0))
                            cap -= 1
                    while defer and cap and g >= 2 and g != 9:
                        isw = defer[0].startswith("ds_write")
                        if isw and cap < 2:
                            break
                        x = defer.pop(0)
                        e(x)
                        cap -= 2 if isw else 1
                        if isw and g < 10:
                            behind += 1
                assert not defer and not inter, (u, defer)
                fill = list(post)
                if md != "n" or s == 5:
                    fill.append("v_add_u32 v10, 1, v10")
                    if want_f:
                        fill.append("ds_read_b32 v5, v9")
                    for x in fill:
                        e(x)
                    if len(fill) < 6:
                        e(f"s_nop {5 - len(fill)}")
                    ep = epilogue(acc, (s & 1) * 2 * P, o.wr)
                    for x in ep:
                        e(x)
                    if want_f:
                        fpending = sum(1 for x in ep if x.startswith("ds_"))
                    if s & 1 and (u < 17 or loop):
                        adv = 4 * P if s < 5 else "s38" if o.hf else (-3072 if o.defer else 3072) - 8 * P
                        for r in ST:
                            e(f"v_add_u32 v{r}, {adv}, v{r}")
                    if o.defer and s in (o.defer - 1, 5 - o.defer):
                        e("s_cbranch_scc1 L_c_stub")
                    if loop and nb == 2 and s == 5:
                        e("s_cbranch_scc1 L_c_loop")
                        e("s_cmp_lt_u32 s37, 3")
                        if T == 0:
                            e("s_cbranch_scc0 L_c_done")
                        else:
                            e("s_cbranch_scc1 L_c_loop1")
                            self.lab("L_c_done")
                else:
                    for x in fill:
                        e(x)
                    if want_f:
                        e("ds_read_b32 v5, v9")
                        fpending = 0
                    if o.defer and s in (o.defer - 1, 5 - o.defer):
                        e("s_cbranch_scc1 L_c_stub")
        if loop and nb == 1:
            e("s_cbranch_scc1 L_c_loop")
        if o.defer:
            D = o.defer
            for r in (A1, A2, AX):
                e(f"v_add_u32 v{r}, {(12 - 2 * D) * P}, v{r}")
            for t in range(3):
                back = 2 * D * P if md == "n" else (2 * P if D == 1 else 0)
                e(f"v_add_u32 v{ST[t]}, {back}, v{180 + t}")
            e("s_branch L_c_loop")
            self.lab("L_c_stub")
            if md == "n":
                e("v_add_u32 v10, 1, v10")
            e("s_cmp_eq_u32 s37, 0")
            e("s_mov_b32 s37, 1")
            e("v_mov_b32 v11, v9")
            e("v_mov_b32 v5, 0")
            if md == "n":
                for x in epilogue((D - 1) & 1, ((D - 1) & 1) * 2 * P, o.wr):
                    e(x)
            for r in (A1, A2, AX):
                e(f"v_add_u32 v{r}, {6144 - 8 * P}, v{r}")
            for t in range(3):
                e(f"v_swap_b32 v{ST[t]}, v{180 + t}")
            e("s_cbranch_scc1 L_c_loop")
        if o.cstamp == 2:
            e("s_memtime s[88:89]")
            e("s_waitcnt lgkmcnt(0)")
            for u in range(18):
                e(f"v_writelane_b32 v{PV}, s{16 + 4 * u}, {22 + u}")
                e(f"v_writelane_b32 v{PV}, s{18 + 4 * u}, {40 + u}")
            e("s_mov_b32 s46, s94")
            e("s_mov_b32 s48, s88")
            self.nstamp = 2
        else:
            self.stamp()
        self.stamp_flush()
        self.lab("L_end")
        e("s_endpgm")
        for u, nd in slow:
            self.lab(f"L_c_slow{u}")
            self.poll(11 if loop else 9, 5, nd, sleep=o.csleep)
            e(f"s_branch L_c_ready{u}")

        self.lab("L_code_end")

    @staticmethod
    def srcs(txt):
        m = re.search(r", v\[(\d+):(\d+)\]", txt)
        if m:
            return [str(r) for r in range(int(m.group(1)), int(m.group(2)) + 1)]
        return [re.search(r", v(\d+)", txt).group(1)]

    def check_mfma_hazards(self):
        L = [l.strip() for l in self.L]
        if "L_c_loop:" not in L:
            return
        i = L.index("L_c_loop:")
        k = L.index("L_end:")
        for seqn in (L[i:k],):
            pend = {}
            pos = 0
            for l in seqn:
                if l.endswith(":"):
                    continue
                regs = set()
                for m in re.finditer(r"v\[(\d+):(\d+)\]|v(\d+)", l.split(None, 1)[1] if " " in l else ""):
                    if m.group(3):
                        regs.add(int(m.group(3)))
                    else:
                        regs.update(range(int(m.group(1)), int(m.group(2)) + 1))
                if l.startswith("v_mfma"):
                    m = re.match(r"v_mfma\S+ v\[(\d+):(\d+)\]", l)
                    for r in range(int(m.group(1)), int(m.group(2)) + 1):
                        pend[r] = pos
                else:
                    for r in regs:
                        if r in pend:
                            assert pos - pend[r] - 1 >= 8, (l, pos - pend[r] - 1)
                m = re.match(r"s_nop (\d+)", l)
                pos += int(m.group(1)) + 1 if m else 1

    def build(self):
        self.prologue()
        self.helper()
        self.compute()
        self.check_mfma_hazards()
        if self.o.drop:
            i = self.L.index("L_c_loop:")
            j = self.L.index("L_end:")
            pats = self.o.drop.split(",")
            self.L = self.L[:i] + [l for l in self.L[i:j] if not any(l.strip().startswith(p) for p in pats)] + self.L[j:]
        return HEADER + "\n".join(self.L) + "\n" + FOOTER.format(vgpr=188, acc=188)


def main():
    p = argparse.ArgumentParser()
    p.add_argument("-o", default="-")
    p.add_argument("--prof", type=int, default=0)
    p.add_argument("--hflip", type=int, default=1)
    p.add_argument("--win", type=int, default=11)
    p.add_argument("--barpair", type=int, default=2)
    p.add_argument("--ldflags", default="nt")
    p.add_argument("--wflags", default="")
    p.add_argument("--stflags", default="sc0 sc1 nt")
    p.add_argument("--prio_loader", type=int, default=0)
    p.add_argument("--prio_comp", type=int, default=0)
    p.add_argument("--nocomp", type=int, default=0)
    p.add_argument("--noload", type=int, default=0)
    p.add_argument("--cstamp", type=int, default=0)
    p.add_argument("--drop", default="")
    p.add_argument("--wr", type=int, default=64)
    p.add_argument("--estart", type=int, default=2)
    p.add_argument("--diag", default="")
    p.add_argument("--now", type=int, default=0)
    p.add_argument("--stwait", type=int, default=0)
    p.add_argument("--stwin", type=int, default=0)
    p.add_argument("--pad", type=int, default=0)
    p.add_argument("--padk", type=int, default=1)
    p.add_argument("--padmask", type=int, default=7)
    p.add_argument("--fpre", type=int, default=0)
    p.add_argument("--csleep", type=int, default=1)
    p.add_argument("--eflag", type=int, default=0)
    p.add_argument("--rdint", type=int, default=0)
    p.add_argument("--sched", default="plain")
    p.add_argument("--stag", type=int, default=0)
    p.add_argument("--stagw", type=int, default=2)
    p.add_argument("--gate", type=int, default=0)
    p.add_argument("--gsleep", type=int, default=4)
    p.add_argument("--padper", default="")
    p.add_argument("--nostore", type=int, default=0)
    p.add_argument("--jmask", type=int, default=0)
    p.add_argument("--cls", default="1,2,3,4")
    p.add_argument("--order", default="C")
    p.add_argument("--modes", default="n")
    p.add_argument("--loop", type=int, default=1)
    p.add_argument("--winl", type=int, default=9)
    p.add_argument("--winr", type=int, default=11)
    p.add_argument("--prio_left", type=int, default=0)
    p.add_argument("--tlbw", type=int, default=0)
    p.add_argument("--tlbf", default="nt")
    p.add_argument("--defer", type=int, default=0)
    p.add_argument("--wrn", type=int, default=64)
    p.add_argument("--hf", type=int, default=1)
    p.add_argument("--seq", default="010")
    p.add_argument("--ipf", type=int, default=0)
    p.add_argument("--fevery", type=int, default=0)
    p.add_argument("--two", type=int, default=0)
    p.add_argument("--rdint2", type=int, default=1)
    p.add_argument("--sleep", type=int, default=2)
    o = p.parse_args()
    s = Gen(o).build()
    if o.o == "-":
        sys.stdout.write(s)
    else:
        open(o.o, "w").write(s)


if __name__ == "__main__":
    main()
```

```python
import argparse
import re
import sys

ROWB = 73728
XBYTES = 28311552
WBYTES = 41472
P = 9728
LDS_TOTAL = 163840
FLAGS = LDS_TOTAL - 256
WSZ = 12288
WREG = FLAGS - 4 * WSZ

HEADER = """; Kernarg layout for this problem (40 bytes, ptrs only, base s[0:1]):
; @launch grid=(256,1,1) block=(512,1,1) lds=163840
.amdgcn_target "amdgcn-amd-amdhsa--gfx950"
.text
.globl standalone__grouped__vision_kernel
.p2align 8
.type standalone__grouped__vision_kernel,@function
standalone__grouped__vision_kernel:
"""

FOOTER = """.section .rodata,"a"
.p2align 6
.amdhsa_kernel standalone__grouped__vision_kernel
  .amdhsa_next_free_vgpr {vgpr}
  .amdhsa_next_free_sgpr 102
  .amdhsa_accum_offset {acc}
  .amdhsa_group_segment_fixed_size 0
  .amdhsa_kernarg_size 40
  .amdhsa_user_sgpr_count 2
  .amdhsa_user_sgpr_kernarg_segment_ptr 1
  .amdhsa_system_sgpr_workgroup_id_x 1
.end_amdhsa_kernel
"""

PV = 187


class Gen:
    def __init__(self, o):
        self.o = o
        self.L = []
        self.nstamp = 0
        self.nlab = 0

    def e(self, s):
        self.L.append("    " + s)

    def lab(self, s):
        self.L.append(s + ":")

    def newlab(self, p):
        self.nlab += 1
        return f"L_{p}{self.nlab}"

    def stamp(self):
        if not self.o.prof:
            return
        k = self.nstamp
        self.nstamp += 1
        assert k < 22
        self.e(f"s_mem{'real' if self.o.prof == 2 else ''}time s[{46 + 2 * k}:{47 + 2 * k}]")

    def stamp_now(self, base, ctr, real=False):
        if not self.o.prof:
            return
        self.e("s_memrealtime s[96:97]" if real else "s_memtime s[96:97]")
        self.e("s_waitcnt lgkmcnt(0)")
        self.e("s_mov_b32 s95, m0")
        if isinstance(ctr, str):
            self.e(f"s_cselect_b32 s94, 1, 0")
            self.e(f"s_add_u32 m0, {ctr}, {base}")
            self.e(f"s_cmp_lg_u32 s94, 0")
        else:
            self.e(f"s_mov_b32 m0, {base + ctr}")
        self.e(f"v_writelane_b32 v{PV}, s96, m0")
        self.e("s_mov_b32 m0, s95")

    def stamp_flush(self):
        if not self.o.prof:
            return
        e = self.e
        e("s_mov_b64 exec, -1")
        e("s_waitcnt lgkmcnt(0)")
        e("s_load_dwordx2 s[40:41], s[0:1], 32")
        e("s_lshl_b32 s42, s2, 3")
        e("s_add_u32 s42, s42, s3")
        e("s_lshl_b32 s42, s42, 8")
        e("v_lshl_add_u32 v1, v0, 2, s42")
        for k in range(self.nstamp):
            e(f"v_writelane_b32 v{PV}, s{46 + 2 * k}, {k}")
        e(f"s_mov_b32 s42, {self.nstamp}")
        e(f"v_writelane_b32 v{PV}, s42, 63")
        e("s_getreg_b32 s42, hwreg(HW_REG_XCC_ID)")
        e(f"v_writelane_b32 v{PV}, s42, 62")
        e(f"v_writelane_b32 v{PV}, s92, 60")
        if self.o.prof == 2:
            e(f"v_writelane_b32 v{PV}, s86, 57")
            e(f"v_writelane_b32 v{PV}, s84, 56")
            e(f"v_writelane_b32 v{PV}, s82, 55")
        e("s_memrealtime s[92:93]")
        e("s_waitcnt lgkmcnt(0)")
        e(f"v_writelane_b32 v{PV}, s92, 59")
        e(f"global_store_dword v1, v{PV}, s[40:41]")

    def diag_mark(self, name):
        d = self.o.diag
        if d == name:
            self.e("s_memrealtime s[90:91]")
        if d == "c" + name:
            self.e("s_memtime s[90:91]")

    def diag_end(self):
        o, e = self.o, self.e
        if not o.diag:
            return
        e("s_waitcnt vmcnt(0) lgkmcnt(0)")
        self.diag_mark("end")
        e("s_waitcnt lgkmcnt(0)")
        if o.diag == "rt":
            e("s_mov_b32 s42, 0")
        elif o.diag.startswith("c"):
            e("s_sub_u32 s42, s90, s88")
            e("s_lshr_b32 s42, s42, 2")
        else:
            e("s_sub_u32 s42, s90, s92")
            e("s_mul_i32 s42, s42, 4")
        e("s_add_u32 s42, s42, 4000")
        self.lab("L_dg")
        e("s_memrealtime s[40:41]")
        e("s_waitcnt lgkmcnt(0)")
        e("s_sub_u32 s40, s40, s92")
        e("s_cmp_lt_u32 s40, s42")
        e("s_cbranch_scc1 L_dg")

    def poll(self, vaddr, vtmp, sneed, sleep=1):
        e = self.e
        l = self.newlab("poll")
        d = self.newlab("pdone")
        self.lab(l)
        e(f"ds_read_b32 v{vtmp}, v{vaddr}")
        e("s_waitcnt lgkmcnt(0)")
        e(f"v_cmp_gt_i32 vcc, {sneed}, v{vtmp}")
        e(f"s_cbranch_vccz {d}")
        if sleep:
            e(f"s_sleep {sleep}")
        e(f"s_branch {l}")
        self.lab(d)

    def prologue(self):
        e = self.e
        e("s_cmp_ge_u32 s2, 256")
        e("s_cbranch_scc1 L_end")
        e("s_load_dwordx4 s[4:7], s[0:1], 0")
        e("s_load_dwordx2 s[8:9], s[0:1], 16")
        if self.o.prof or self.o.diag:
            e("s_memrealtime s[92:93]")
        if self.o.diag:
            e("s_memtime s[88:89]")
        self.stamp()
        if self.o.prof:
            e(f"v_mov_b32 v{PV}, 0")
        e("v_lshrrev_b32 v1, 6, v0")
        e("v_and_b32 v0, 63, v0")
        e(f"v_mov_b32 v3, {FLAGS}")
        e("v_readfirstlane_b32 s3, v1")
        e("v_xor_b32 v2, 4, v1")
        e("v_lshl_add_u32 v8, v2, 2, v3")
        e("v_mov_b32 v2, 0")
        e("ds_write_b32 v8, v2")
        e("v_and_b32 v2, 3, v0")
        e("v_lshl_add_u32 v9, v2, 2, v3")
        e("s_bfe_u32 s26, s2, 0x10005")
        e("s_bfe_u32 s43, s2, 0x10003" if self.o.hf else "s_mov_b32 s43, 0")
        e("s_cmp_lt_u32 s3, 4")
        e("s_cbranch_scc1 L_compute")

    def helper(self):
        e, o = self.e, self.o
        self.lab("L_helper")
        if o.prio_loader:
            e(f"s_setprio {o.prio_loader}")
        Wn = o.win
        phases = {"A": [(0, 304, [64, 64, 64, 64, 48])],
                  "B": [(0, 224, [56] * 4), (448, 80, [40] * 2)],
                  "C": [(0, 256, [64] * 4), (512, 48, [48])]}[o.order]
        self.phases = phases
        ntot = 7 * sum(len(p[2]) for p in phases)
        e("s_and_b32 s10, s2, 1")
        e("s_lshl_b32 s10, s10, 2")
        e("s_bfe_u32 s11, s2, 0x20003")
        e("s_add_u32 s10, s10, s11")
        e("s_bfe_u32 s11, s2, 0x20001")
        e("s_lshl_b32 s11, s11, 3")
        e("s_lshr_b32 s24, s2, 5")
        e("s_add_u32 s11, s11, s24")
        e("s_mul_i32 s25, s11, 12")
        e("s_mul_i32 s24, s10, 9216")
        e("s_and_b32 s30, s3, 1")
        e("s_bfe_u32 s45, s3, 0x10001")
        e("v_lshrrev_b32 v1, 2, v0")
        e("v_bfrev_b32 v3, 1")

        def patterns(ph, first, last):
            st, half, lanes = ph
            mir = (608 - st - 2 * half) - st if len(phases) == 2 else 0
            e(f"s_mul_i32 s33, s45, {half}")
            if mir:
                e(f"s_mul_i32 s28, s43, {mir}")
                e("s_add_u32 s33, s33, s28")
            if st:
                e(f"s_add_u32 s33, s33, {st}")
            e("s_lshr_b32 s28, s33, 2")
            e("s_add_u32 s28, s28, 2")
            e("v_add_u32 v4, s28, v1")
            e("s_lshl_b32 s33, s33, 4")
            off = 0
            for k, ln in enumerate(lanes):
                if off:
                    e(f"v_add_u32 v2, {off // 4}, v4")
                    e("v_mul_u32_u24 v2, 171, v2")
                else:
                    e("v_mul_u32_u24 v2, 171, v4")
                e("v_bfe_u32 v2, v2, 11, 2")
                e("v_xor_b32 v2, v2, v0")
                e(f"v_lshl_add_u32 v{10 + k}, v2, 4, s33")
                off += ln
            if len(lanes) == 5:
                e("v_add_u32 v14, 4096, v14")
            if first:
                e("s_add_u32 s28, s45, s10")
                e("s_cmp_eq_u32 s28, 0")
                e("s_cselect_b32 s32, 16, 0")
                e("v_cmp_gt_u32 vcc, s32, v0")
            e(f"s_mul_i32 s32, s30, {P}")
            e("s_add_u32 s33, s33, s32")
            if first:
                e("v_cndmask_b32 v10, v10, v3, vcc")
            if (first if o.hf else last):
                if not first:
                    e("s_add_u32 s28, s45, s10")
                e("s_cmp_eq_u32 s28, 8")
                e(f"s_cselect_b32 s28, {lanes[-1] - 16}, 64")
                e("v_cmp_le_u32 vcc, s28, v0")
                e("s_nop 1")
                e(f"v_cndmask_b32 v{9 + len(lanes)}, v{9 + len(lanes)}, v3, vcc")

        patterns(phases[0], True, len(phases) == 1)
        e("s_cmp_eq_u32 s26, 0")
        e("s_cselect_b32 s27, 1, -1")
        e("s_cselect_b32 s29, -1, 12")
        e(f"s_mul_i32 s27, s27, {ROWB}")
        e("s_add_i32 s29, s29, s25")
        e(f"s_mul_i32 s29, s29, {ROWB}")
        e("s_mul_i32 s28, s30, s27")
        e("s_add_i32 s29, s29, s28")
        e("s_lshl_b32 s35, s27, 1")
        cl = [int(x) for x in o.cls.split(",")]
        assert max(cl) <= 5
        e("s_bfe_u32 s44, s2, 0x20003")
        e("s_lshl_b32 s44, s44, 3")
        e(f"s_lshr_b32 s44, {hex(sum(c << (8 * i) for i, c in enumerate(cl)))}, s44")
        e("s_and_b32 s44, s44, 255")
        e("v_add_u32 v7, 16, v9")
        e("s_waitcnt lgkmcnt(0)")
        e("s_sub_u32 s12, s4, 256")
        e("s_subb_u32 s13, s5, 0")
        e(f"s_mov_b32 s14, {XBYTES + 256}")
        e("s_mov_b32 s15, 0x20000")
        self.stamp()
        self.diag_mark("karg")
        fl = o.ldflags
        if 0 in cl:
            e("s_cmp_lg_u32 s44, 0")
            e("s_cbranch_scc1 L_ld_start")
            e("s_barrier")
            self.lab("L_ld_start")
        if o.order == "A":
            self.load_A(phases, fl)
        else:
            Wn = o.winl
            n = 0
            c1, c2 = len(phases[0][2]), len(phases[1][2])
            e(f"v_mov_b32 v6, {-c1 * ((Wn - 1) // c1)}")
            for pi, ph in enumerate(phases):
                st, half, lanes = ph
                c = len(lanes)
                if pi:
                    if o.prof == 2:
                        e("s_memrealtime s[82:83]")
                    e("s_mov_b64 exec, -1")
                    patterns(ph, False, True)
                    e(f"v_mov_b32 v6, {7 * c1 - (Wn - 1) + (Wn - 1) % c}")
                e("s_mov_b32 s31, s29")
                e("s_mov_b32 s32, 0")
                if lanes[0] < 64:
                    e(f"s_mov_b32 exec_hi, {hex((1 << (lanes[0] - 32)) - 1)}")
                self.lab(f"L_ld_loop{pi}")
                e("s_add_u32 s34, s31, s24")
                e("s_cmp_lt_i32 s31, 0")
                e("s_cselect_b32 s34, 0x40000000, s34")
                e("s_mov_b32 m0, s33")
                e("s_add_i32 s31, s31, s35")
                off = 0
                for k, ln in enumerate(lanes):
                    e(f"s_waitcnt vmcnt({Wn - 1})")
                    if k == (Wn - 1) % c:
                        e("ds_write_b32 v8, v6")
                    e(f"buffer_load_dwordx4 v{10 + k}, s[12:15], s34 offen offset:{off * 16} {fl} lds")
                    off += ln
                e(f"v_add_u32 v6, {c}, v6")
                e(f"s_add_u32 s33, s33, {2 * P}")
                e("s_add_u32 s32, s32, 1")
                if pi == 0:
                    e("s_cmp_lg_u32 s32, s44")
                    e("s_cbranch_scc1 L_ld_nobar")
                    e("s_barrier")
                    self.lab("L_ld_nobar")
                    e("s_cmp_lg_u32 s32, 5")
                    e("s_cbranch_scc1 L_ld_nopoll")
                    self.poll(7, 5, 1)
                    self.lab("L_ld_nopoll")
                e("s_cmp_lt_u32 s32, 7")
                e(f"s_cbranch_scc1 L_ld_loop{pi}")
            for v in range(ntot - Wn + 1, ntot):
                if (v == 7 * c1 and o.early < 2) or (v < 7 * c1 and v % c1 == 0):
                    e(f"v_mov_b32 v2, {v}")
                    e(f"s_waitcnt vmcnt({ntot - v})")
                    e("ds_write_b32 v8, v2")
        self.lab("L_ld_tail")
        if o.prof == 2:
            e("s_memrealtime s[84:85]")
        if o.prio_loader or o.prio_left:
            e("s_setprio 0")
        e("s_mov_b64 exec, -1")
        e("s_and_b32 s30, s3, 3")
        e("s_mul_i32 s28, s30, 12")
        e("s_add_u32 s28, s28, 3")
        if o.hf:
            e("s_mul_i32 s32, s43, 6")
            e("s_add_u32 s28, s28, s32")
        e("v_add_u32 v2, s28, v1")
        e("v_mul_u32_u24 v2, 171, v2")
        e("v_bfe_u32 v2, v2, 11, 2")
        e("v_xor_b32 v2, v2, v0")
        e("s_mul_i32 s33, s30, 768")
        e("s_add_u32 s28, s33, 64")
        if o.hf:
            e("s_mul_i32 s32, s43, 6528")
            e("s_add_u32 s28, s28, s32")
            e("s_mul_i32 s32, s43, 6144")
            e("s_add_u32 s24, s24, s32")
            e("s_sub_u32 s36, 3072, s32")
            e(f"s_sub_u32 s38, s36, {12 * P}")
        e("v_lshl_add_u32 v10, v2, 4, s28")
        e("v_lshl_add_u32 v11, v0, 4, s33")
        if o.defer:
            e("s_mul_i32 s28, s30, 12")
            e("s_add_u32 s28, s28, 9")
            e("v_add_u32 v2, s28, v1")
            e("v_mul_u32_u24 v2, 171, v2")
            e("v_bfe_u32 v2, v2, 11, 2")
            e("v_xor_b32 v2, v2, v0")
            e("s_add_u32 s28, s33, 448")
            e("v_lshl_add_u32 v13, v2, 4, s28")
        e("s_cmp_eq_u32 s26, 0")
        e("s_cselect_b32 s29, 0, 11")
        e("s_add_i32 s29, s29, s25")
        e(f"s_mul_i32 s29, s29, {ROWB}")
        e("s_add_u32 s29, s29, s24")
        e("s_mov_b32 s20, s8")
        e("s_mov_b32 s21, s9")
        e(f"s_mov_b32 s22, {XBYTES}")
        e("s_mov_b32 s23, 0x20000")
        e("s_mov_b32 exec_hi, 0xffff")
        if not o.early:
            e(f"v_mov_b32 v2, {ntot}")
            e("s_waitcnt vmcnt(0)")
            e("ds_write_b32 v8, v2")
        self.stamp()
        self.diag_mark("ldone")
        self.stamp_now(58, 0, real=True)
        if o.nostore:
            self.stamp_flush()
            e("s_endpgm")
        e("s_mov_b32 s37, 2")
        if o.defer:
            e("s_mov_b32 s31, s29")
            e(f"s_mov_b32 s32, {8 - o.defer}")
        else:
            self.lab("L_st_strip")
            e("s_mov_b32 s31, s29")
            e("s_mov_b32 s32, 0")
        self.lab("L_st_loop")
        if not o.nocomp:
            e("v_cmp_gt_i32 vcc, s37, v5")
            e("s_cbranch_vccz L_st_go")
            self.poll(7, 5, "s37", sleep=o.sleep)
            self.lab("L_st_go")
        e("ds_read_b128 v[16:19], v10")
        e(f"ds_read_b128 v[20:23], v10 offset:{P}")
        e("s_add_i32 s34, s31, s27")
        e(f"v_add_u32 v10, {2 * P}, v10")
        e("s_add_u32 s37, s37, 1")
        if not o.defer:
            e("s_add_u32 s32, s32, 1")
        e("s_waitcnt lgkmcnt(1)")
        e(f"buffer_store_dwordx4 v[16:19], v11, s[20:23], s31 offen {o.stflags}")
        e("s_add_i32 s31, s34, s27")
        e("s_waitcnt lgkmcnt(0)")
        e(f"buffer_store_dwordx4 v[20:23], v11, s[20:23], s34 offen {o.stflags}")
        if o.early:
            ev = [(2 + o.early, ntot, 2 * o.early)]
            if o.early >= 2:
                ev.insert(0, (3, 28, ntot - 28 + 2))
            for sv, val, cnt in ev:
                e(f"s_cmp_lg_u32 s37, {sv}")
                e(f"s_cbranch_scc1 L_st_nf{val}")
                e(f"v_mov_b32 v2, {val}")
                e(f"s_waitcnt vmcnt({cnt})")
                e("ds_write_b32 v8, v2")
                self.lab(f"L_st_nf{val}")
        if o.prof == 2:
            e("s_cmp_lg_u32 s37, 3")
            e("s_cbranch_scc1 L_nofs")
            e("s_memrealtime s[86:87]")
            self.lab("L_nofs")
        if o.prof and o.cstamp:
            self.stamp_now(22 - 3, "s37")
            self.stamp_now(40 - 3, "s37", real=True)
        if o.defer:
            D = o.defer
            e("s_cmp_lt_u32 s37, s32")
            e("s_cbranch_scc1 L_st_loop")
            e("s_add_u32 s32, s32, 6")
            e(f"s_cmp_lg_u32 s37, {8 - D}")
            e("s_cbranch_scc1 L_st_s1")
            e("v_mov_b32 v12, v10")
            e("s_mov_b32 s43, s31")
            e("v_add_u32 v10, 6144, v13")
            e("s_add_u32 s31, s29, 6144")
            e("s_branch L_st_loop")
            self.lab("L_st_s1")
            e(f"s_cmp_lg_u32 s37, {14 - D}")
            e("s_cbranch_scc1 L_st_s2")
            e("v_add_u32 v10, 3072, v13")
            e("s_add_u32 s31, s29, 3072")
            e("s_branch L_st_loop")
            self.lab("L_st_s2")
            e("v_mov_b32 v10, v12")
            e("s_mov_b32 s31, s43")
            e("s_mov_b32 s32, 20")
            e("s_cmp_lt_u32 s37, 20")
            e("s_cbranch_scc1 L_st_loop")
        else:
            e("s_cmp_lt_u32 s32, 6")
            e("s_cbranch_scc1 L_st_loop")
            if o.hf:
                e("s_add_u32 s29, s29, s36")
                e("v_add_u32 v10, s38, v10")
            else:
                e("s_add_u32 s29, s29, 3072")
                e(f"v_add_u32 v10, {3072 - 12 * P}, v10")
            e("s_cmp_lt_u32 s37, 20")
            e("s_cbranch_scc1 L_st_strip")
        self.diag_mark("stiss")
        if o.prof:
            self.stamp()
            e("s_waitcnt vmcnt(0)")
            self.stamp()
        self.stamp_flush()
        self.diag_end()
        e("s_endpgm")

    def load_A(self, phases, fl):
        e, o = self.e, self.o
        lanes = phases[0][2]
        e("s_mov_b32 s31, s29")
        e("s_mov_b32 s32, 0")
        sides = [("l", o.winl), ("r", o.winr)] if o.winl != o.winr else [("l", o.winl)]
        if len(sides) == 2:
            e("s_cmp_lg_u32 s45, 0")
            e("s_cbranch_scc1 L_ld_pre_r")
        for sd, Wn in sides:
            self.lab(f"L_ld_pre_{sd}")
            e(f"v_mov_b32 v6, {-5 * ((Wn - 1) // 5)}")
            if sd == "l" and o.prio_left:
                e(f"s_setprio {o.prio_left}")
            self.lab(f"L_ld_loop_{sd}")
            e("s_add_u32 s34, s31, s24")
            e("s_cmp_lt_i32 s31, 0")
            e("s_cselect_b32 s34, 0x40000000, s34")
            e("s_mov_b32 m0, s33")
            e("s_add_i32 s31, s31, s35")
            for k in range(5):
                if k == 4:
                    e("s_add_u32 m0, s33, 4096")
                e(f"s_waitcnt vmcnt({Wn - 1})")
                if k == (Wn - 1) % 5:
                    e("ds_write_b32 v8, v6")
                if k == 4:
                    e("s_mov_b32 exec_hi, 0xffff")
                e(f"buffer_load_dwordx4 v{10 + k}, s[12:15], s34 offen offset:{1024 * (k % 4)} {fl} lds")
                if k == 4:
                    e("s_mov_b32 exec_hi, -1")
                if k == 0:
                    e(f"v_add_u32 v6, {(Wn - 1) % 5}, v6" if False else "s_add_u32 s32, s32, 1")
            e("v_add_u32 v6, 5, v6")
            e(f"s_add_u32 s33, s33, {2 * P}")
            e("s_cmp_lg_u32 s32, s44")
            e(f"s_cbranch_scc1 L_ld_nobar_{sd}")
            e("s_barrier")
            self.lab(f"L_ld_nobar_{sd}")
            e("s_cmp_lg_u32 s32, 5")
            e(f"s_cbranch_scc1 L_ld_nopoll_{sd}")
            self.poll(7, 5, 1)
            self.lab(f"L_ld_nopoll_{sd}")
            e("s_cmp_lt_u32 s32, 7")
            e(f"s_cbranch_scc1 L_ld_loop_{sd}")
            for v in range(35 - Wn + 1, 35):
                if v % 5 == 0:
                    e(f"v_mov_b32 v2, {v}")
                    e(f"s_waitcnt vmcnt({35 - v})")
                    e("ds_write_b32 v8, v2")
            if sd == "l" and len(sides) == 2:
                e("s_branch L_ld_tail")

    def compute(self):
        e, o = self.e, self.o
        ops = [("U0", 0), ("U0", 1), ("U1", 0), ("U1", 1), ("U2", 0), ("U2", 1), ("U2", 2), ("U3", 0), ("U3", 1), ("U3", 2),
               ("X", 0), ("X", 1), ("X", 2),
               ("L0", 0), ("L0", 1), ("L0", 2), ("L1", 0), ("L1", 1), ("L1", 2), ("L2", 1), ("L2", 2), ("L3", 1), ("L3", 2)]
        W = {k: 16 + 4 * i for i, k in enumerate(ops)}
        SET = [108, 124]
        XR = 140
        ACC = lambda s, t: 144 + 12 * s + 4 * t
        PK = 168
        A1, A2, AX = 174, 175, 176
        ST = [177, 178, 179]
        self.lab("L_compute")
        self.nstamp = 1
        if o.ipf:
            e("s_getpc_b64 s[38:39]")
            self.lab("L_pc")
            e("s_sub_u32 s38, s38, L_pc-standalone__grouped__vision_kernel")
            e("s_subb_u32 s39, s39, 0")
            e(f"v_lshlrev_b32 v2, {o.ipf}, v0")
            e("v_lshl_add_u32 v2, s3, 13, v2" if o.ipf == 7 else "v_lshl_add_u32 v2, s3, 12, v2")
            e(f"v_min_u32 v2, {'L_compute' if o.ipfh else 'L_code_end'}-standalone__grouped__vision_kernel-4, v2")
            e("v_mov_b32 v3, s39")
            e("v_add_co_u32 v2, vcc, s38, v2")
            e("s_nop 1")
            e("v_addc_co_u32 v3, vcc, 0, v3, vcc")
            e("global_load_dword v185, v[2:3], off")
        if o.prio_comp:
            e(f"s_setprio {o.prio_comp}")
        e("s_mul_i32 s28, s3, 1152")
        e("v_lshl_add_u32 v108, v0, 4, s28")
        e("s_movk_i32 s29, 3456")
        for i in range(1, 4):
            e(f"v_add_u32 v2, {64 * i}, v0")
            e("v_mul_u32_u24 v2, 911, v2")
            e("v_lshrrev_b32 v2, 16, v2")
            e(f"v_mad_u32_u24 v{108 + i}, v2, s29, v108")
        e("v_cmp_lt_u32 vcc, 23, v0")
        e("v_bfrev_b32 v3, 1")
        e(f"s_mul_i32 s33, s3, {WSZ}")
        e(f"s_add_u32 s33, s33, {WREG}")
        e("v_cndmask_b32 v111, v111, v3, vcc")
        e("s_mul_i32 s34, s26, 27648")
        e("s_movk_i32 s35, 13824")
        e("s_sub_u32 s36, 27648, s34")
        e("s_waitcnt lgkmcnt(0)")
        if o.tlbw:
            e("s_and_b32 s10, s2, 1")
            e("s_lshl_b32 s10, s10, 2")
            e("s_bfe_u32 s11, s2, 0x20003")
            e("s_add_u32 s10, s10, s11")
            e("s_mul_i32 s10, s10, 9216")
            e("s_bfe_u32 s11, s2, 0x20001")
            e("s_lshl_b32 s11, s11, 3")
            e("s_lshr_b32 s24, s2, 5")
            e("s_add_u32 s11, s11, s24")
            e(f"s_mul_i32 s11, s11, {12 * ROWB}")
            e("s_add_u32 s10, s10, s11")
            e("s_mov_b32 s20, s8")
            e("s_mov_b32 s21, s9")
            e(f"s_mov_b32 s22, {XBYTES}")
            e("s_mov_b32 s23, 0x20000")
            e(f"s_mov_b32 s11, {11 * ROWB}")
            e("v_mul_lo_u32 v2, v0, s11")
            e("s_cmp_lg_u32 s3, 0")
            e("s_cbranch_scc1 L_notouch")
            e("s_mov_b64 exec, 3")
            e(f"buffer_load_dword v186, v2, s[20:23], s10 offen {o.tlbf}")
            e("s_mov_b64 exec, -1")
            self.lab("L_notouch")
        e("s_barrier")
        e("s_mov_b32 s16, s6")
        e("s_mov_b32 s17, s7")
        e(f"s_mov_b32 s18, {WBYTES}")
        e("s_mov_b32 s19, 0x20000")
        for p in range(3):
            e(f"s_add_u32 m0, s33, {4096 * p}")
            e("s_nop 0")
            for i in range(4):
                if not o.now:
                    e(f"buffer_load_dwordx4 v{108 + i}, s[16:19], s{34 + p} offen offset:{1024 * i} {o.wflags} lds")
        self.stamp()
        e("v_and_b32 v1, 15, v0")
        e("v_lshrrev_b32 v2, 4, v0")
        e("s_mul_i32 s28, s3, 3")
        e("v_and_b32 v3, 1, v2")
        e("v_lshrrev_b32 v4, 1, v2")
        e("v_cmp_gt_u32 vcc, 2, v2")
        e("s_movk_i32 s29, 192")
        e("s_movk_i32 s30, 1152")

        def baddr(dst, vdx, vcc_, tmp1, tmp2, extra=None):
            e(f"v_add_u32 v{tmp1}, {vdx}, v1")
            e(f"v_add_u32 v{tmp2}, 1, v{tmp1}")
            e(f"v_bfe_u32 v{tmp2}, v{tmp2}, 2, 2")
            e(f"v_mad_u32_u24 v{tmp1}, v{tmp1}, s29, v15" if o.hf else f"v_mad_u32_u24 v{tmp1}, v{tmp1}, s29, 64")
            e(f"v_add_u32 v{dst}, s28, {vcc_}")
            e(f"v_xor_b32 v{dst}, v{dst}, v{tmp2}")
            e(f"v_lshl_add_u32 v{dst}, v{dst}, 4, v{tmp1}")
            if extra:
                e(f"v_add_u32 v{dst}, {extra}, v{dst}")

        if o.hf:
            e("s_mul_i32 s31, s43, 6144")
            e("s_add_u32 s32, s31, 64")
            e("v_mov_b32 v15, s32")
            e("s_sub_u32 s38, 3072, s31")
            e(f"s_sub_u32 s38, s38, {8 * P}")
        e("v_cndmask_b32 v6, 2, v2, vcc")
        e("v_cndmask_b32 v7, v3, 2, vcc")
        baddr(A1, "v3", "v4", 11, 12)
        baddr(A2, "v6", "v7", 11, 12)
        e(f"v_mul_u32_u24 v13, {P}, v2")
        e("v_mov_b32 v14, 2")
        baddr(AX, "2", "v14", 11, 12, "v13")
        if o.hf:
            e("v_lshl_add_u32 v1, s43, 1, v1")
        e("v_add_u32 v12, 1, v1")
        e("v_bfe_u32 v12, v12, 2, 2")
        e("v_mad_u32_u24 v11, v1, s29, v15" if o.hf else "v_mad_u32_u24 v11, v1, s29, 64")
        e("v_lshl_add_u32 v11, v3, 3, v11")
        e(f"v_add_u32 v13, {P}, v11")
        e("v_add_u32 v14, s28, v4")
        e("v_xor_b32 v15, v14, v12")
        e(f"v_lshl_add_u32 v{ST[0]}, v15, 4, v11")
        e("v_add_u32 v14, 1, v14")
        e("v_xor_b32 v15, v14, v12")
        e(f"v_lshl_add_u32 v{ST[2]}, v15, 4, v13")
        e("v_cndmask_b32 v14, 0, 2, vcc")
        e("v_cndmask_b32 v13, v13, v11, vcc")
        e("v_add_u32 v14, s28, v14")
        e("v_xor_b32 v15, v14, v12")
        e(f"v_lshl_add_u32 v{ST[1]}, v15, 4, v13")
        if o.defer:
            e("v_add_u32 v12, 3, v1")
            e("v_bfe_u32 v12, v12, 2, 2")
            e(f"v_add_u32 v11, {384 + 6144}, v11")
            e(f"v_add_u32 v13, {384 + 6144}, v13")
            e("v_xor_b32 v15, v14, v12")
            e("v_lshl_add_u32 v181, v15, 4, v13")
            e("v_add_u32 v14, s28, v4")
            e("v_xor_b32 v15, v14, v12")
            e("v_lshl_add_u32 v180, v15, 4, v11")
            e("v_add_u32 v14, 1, v14")
            e("v_xor_b32 v15, v14, v12")
            e(f"v_add_u32 v11, {P}, v11")
            e("v_lshl_add_u32 v182, v15, 4, v11")
        E1, E2, F1, F2, F1z, F2z, F1y, F2y, G0, G1, G2, Z = range(144, 156)
        e("v_bfe_u32 v11, v0, 2, 2")
        e("v_mul_u32_u24 v11, 48, v11")
        e("v_add_u32 v11, s33, v11")
        e("v_and_b32 v12, 3, v0")
        e("v_lshl_add_u32 v11, v12, 3, v11")
        e("v_mul_u32_u24 v13, 384, v4")
        e("v_mad_u32_u24 v13, v3, s30, v13")
        e("v_mul_u32_u24 v14, 384, v7")
        e("v_mad_u32_u24 v14, v6, s30, v14")
        e(f"v_add_u32 v{E1}, v11, v13")
        e(f"v_add_u32 v{E2}, v11, v14")
        e("v_cmp_lt_u32 vcc, 1, v12")
        e("s_add_u32 s30, s33, 3456")
        e(f"v_mov_b32 v{Z}, s30")
        e("v_mov_b32 v13, 32")
        e("v_mov_b32 v14, -4112")
        e("v_cndmask_b32 v13, v13, v14, vcc")
        e("v_cndmask_b32 v15, 0, 1, vcc")
        e(f"v_add_u32 v{F1}, v{E1}, v13")
        e(f"v_add_u32 v{F2}, v{E2}, v13")
        e(f"v_cndmask_b32 v{F1z}, v{F1}, v{Z}, vcc")
        e(f"v_cndmask_b32 v{F2z}, v{F2}, v{Z}, vcc")
        e(f"v_add_u32 v{F1y}, 12288, v{F1}")
        e(f"v_add_u32 v{F2y}, 12288, v{F2}")
        e(f"v_cndmask_b32 v{F1y}, v{Z}, v{F1y}, vcc")
        e(f"v_cndmask_b32 v{F2y}, v{Z}, v{F2y}, vcc")
        e("v_lshl_add_u32 v11, v2, 12, v11")
        e("v_add_u32 v11, 3072, v11")
        e("v_sub_u32 v15, v2, v15")
        e("v_cmp_gt_u32 vcc, 3, v15")
        e(f"v_add_u32 v{G1}, v11, v13")
        e(f"v_add_u32 v{G2}, -4080, v11")
        e(f"v_cndmask_b32 v{G1}, v{Z}, v{G1}, vcc")
        e("v_cmp_gt_u32 vcc, 3, v2")
        e("s_nop 1")
        e(f"v_cndmask_b32 v{G0}, v{Z}, v11, vcc")
        e("v_cmp_lt_u32 vcc, 0, v2")
        e("s_nop 0")
        e("v_mov_b32 v10, 1")
        e(f"v_cndmask_b32 v{G2}, v{Z}, v{G2}, vcc")

        def tr(key, a, off):
            w = W[key]
            e(f"ds_read_b64_tr_b16 v[{w}:{w + 1}], v{a} offset:{off}")
            e(f"ds_read_b64_tr_b16 v[{w + 2}:{w + 3}], v{a} offset:{off + 192}")

        e("s_waitcnt vmcnt(8)")
        self.stamp()
        tr(("U0", 0), E1, 0); tr(("U1", 0), E2, 0); tr(("U0", 1), F1z, 0); tr(("U1", 1), F2z, 0)
        tr(("U2", 2), E1, 16); tr(("U3", 2), E2, 16)
        e("s_waitcnt vmcnt(4)")
        tr(("U2", 0), E1, 4096); tr(("U3", 0), E2, 4096); tr(("U2", 1), F1, 4096); tr(("U3", 1), F2, 4096)
        tr(("L0", 2), E1, 4112); tr(("L1", 2), E2, 4112)
        e("s_waitcnt vmcnt(0)")
        self.stamp()
        tr(("X", 0), G0, 0); tr(("X", 1), G1, 0); tr(("X", 2), G2, 0)
        tr(("L0", 0), E1, 8192); tr(("L1", 0), E2, 8192); tr(("L0", 1), F1, 8192); tr(("L1", 1), F2, 8192)
        tr(("L2", 1), F1y, 0); tr(("L3", 1), F2y, 0); tr(("L2", 2), E1, 8208); tr(("L3", 2), E2, 8208)
        e("ds_write_b32 v8, v10")
        self.stamp()
        if o.nocomp:
            self.stamp_flush()
            self.lab("L_end")
            e("s_endpgm")
            return
        if o.cstamp == 2:
            e("s_waitcnt lgkmcnt(0)")
            e("s_mov_b32 s94, s46")
        self.lab("L_c_loop")
        slow = []
        c1 = len(self.phases[0][2])
        ntot = 7 * sum(len(p[2]) for p in self.phases)

        def need(T, s):
            if o.order == "A" or T < 2:
                return c1 * (s + 2)
            return 7 * c1 + len(self.phases[1][2]) * (s + 2)

        def pair_reads(st, off):
            b = SET[st]
            return [f"ds_read_b128 v[{b}:{b + 3}], v{A1} offset:{off}",
                    f"ds_read_b128 v[{b + 4}:{b + 7}], v{A2} offset:{off}",
                    f"ds_read_b128 v[{b + 8}:{b + 11}], v{A1} offset:{off + P}",
                    f"ds_read_b128 v[{b + 12}:{b + 15}], v{A2} offset:{off + P}"]

        def epilogue(acc, off, wr):
            r = []
            for t in range(3):
                a = ACC(acc, t)
                r.append(f"v_cvt_pk_bf16_f32 v{PK + 2 * t}, v{a}, v{a + 1}")
                r.append(f"v_cvt_pk_bf16_f32 v{PK + 2 * t + 1}, v{a + 2}, v{a + 3}")
                if wr == 32:
                    r.append(f"ds_write_b32 v{ST[t]}, v{PK + 2 * t} offset:{off}")
                    r.append(f"ds_write_b32 v{ST[t]}, v{PK + 2 * t + 1} offset:{off + 4}")
                else:
                    r.append(f"ds_write_b64 v{ST[t]}, v[{PK + 2 * t}:{PK + 2 * t + 1}] offset:{off}")
            r.append("ds_write_b32 v8, v10")
            return r

        if o.modes == "q":
            return self.loop_q(ops, W, SET, XR, ACC, PK, A1, A2, AX, ST, c1, ntot)
        seen_upto = 0
        fpending = None
        modes = o.modes.split(",")
        loop = o.loop
        if loop:
            del self.L[-1]
            e("s_mov_b32 s37, 0")
            e("v_and_b32 v11, -9, v9")
            if o.hf:
                e("v_lshl_add_u32 v11, s43, 3, v11")
            e("v_mov_b32 v5, 0")
            if o.order != "A":
                e(f"s_mov_b32 s35, {2 * c1}")
                e(f"s_mov_b32 s34, {2 * c1}")
            self.lab("L_c_loop")
        nb = len(modes) if loop else 3
        seq = o.seq
        for T in range(nb):
            md = modes[T]
            if loop and T:
                self.lab(f"L_c_loop{T}")
            for s in range(6):
                u = 6 * T + s
                if o.prof and o.cstamp == 2:
                    e(f"s_memtime s[{16 + 4 * u}:{17 + 4 * u}]")
                    e(f"s_memrealtime s[{18 + 4 * u}:{19 + 4 * u}]")
                elif o.prof and o.cstamp:
                    self.stamp_now(22, u)
                    self.stamp_now(40, u, real=True)
                U, Lo = s & 1, (s & 1) ^ 1
                acc = s & 1 if md == "n" else 0
                nd = need(0 if loop else T, s)
                if loop and o.order != "A" and s == 0:
                    e("v_cmp_gt_i32 vcc, s35, v5")
                    e(f"s_cbranch_vccnz L_c_slow{u}")
                    self.lab(f"L_c_ready{u}")
                    slow.append((u, "s35"))
                    e("s_mov_b32 s35, s34")
                    e(f"s_mov_b32 s34, {ntot}")
                    seen_upto = 99
                elif loop:
                    e(f"v_cmp_gt_i32 vcc, {nd}, v5")
                    e(f"s_cbranch_vccnz L_c_slow{u}")
                    self.lab(f"L_c_ready{u}")
                    slow.append((u, nd))
                    seen_upto = 99
                elif nd > seen_upto:
                    if fpending is not None:
                        e(f"s_waitcnt lgkmcnt({fpending})")
                        if loop:
                            nd_ = "s36"
                        else:
                            nd_ = nd
                        e(f"v_cmp_gt_i32 vcc, {nd_}, v5")
                        e(f"s_cbranch_vccnz L_c_slow{u}")
                        self.lab(f"L_c_ready{u}")
                        slow.append((u, nd_))
                    else:
                        self.poll(9, 5, nd, sleep=o.csleep)
                    seen_upto = nd
                fpending = None
                if s == 0 and o.prof and not o.cstamp:
                    self.stamp_now(24, "s37" if loop else T, real=(o.prof == 2))
                ro = (s & 1) * 2 * P
                rd = (pair_reads(0, 0) if s == 0 else []) + pair_reads(Lo, ro + 2 * P)
                rd.append(f"ds_read_b128 v[{XR}:{XR + 3}], v{AX} offset:{ro}")
                post = []
                if s & 1:
                    adv = 4 * P if s < 5 else "s38" if o.hf else (-3072 if o.defer else 3072) - 8 * P
                    post = [f"v_add_u32 v{r}, {adv}, v{r}" for r in (A1, A2, AX)] if (u < 17 or loop) else []
                inter = []
                if md in ("r", "n") and s > 0:
                    inter = [[x] for x in rd]
                else:
                    for x in rd:
                        e(x)
                    if s == 0:
                        e("s_waitcnt lgkmcnt(5)")
                nxt_need = need(T, s + 1) if s < 5 else (need(T + 1, 0) if T < 2 else 0)
                want_f = md != "p" and nxt_need > seen_upto
                if loop:
                    if o.defer:
                        if s == o.defer - 1:
                            post = post + ["s_cmp_eq_u32 s37, 3"]
                        if s == 5 - o.defer:
                            post = post + ["s_cmp_eq_u32 s37, 0"]
                        if s == 5:
                            post = post + ["s_add_u32 s37, s37, 1", "s_cmp_eq_u32 s37, 2"]
                    elif s == 5:
                        post = post + ["s_add_u32 s37, s37, 1", "v_mov_b32 v11, v9", "s_cmp_eq_u32 s37, 1", "s_cselect_b32 s36, 0, -1",
                                       "v_and_b32 v5, s36, v5", "s_cmp_lt_u32 s37, 3"]
                        if nb == 2:
                            post[-1] = f"s_bitcmp1_b32 {sum(1 << k for k in range(3) if o.seq[k] == '0')}, s37"
                    if o.order != "A" and s == 0:
                        pre0 = True
                defer = []
                if md == "n" and s > 0:
                    defer = ["v_add_u32 v10, 1, v10"] + epilogue(acc ^ 1, ((s - 1) & 1) * 2 * P, o.wrn)
                    if not s & 1:
                        defer += [f"v_add_u32 v{r}, {4 * P}, v{r}" for r in ST]
                seen = set()
                seq = [(k, SET[U] + 4 * int(k[0][1])) for k in ops[:10]] + [(k, SET[Lo] + 4 * int(k[0][1])) for k in ops[13:]] + [(k, XR) for k in ops[10:13]]
                behind = 0
                for g, (k, b) in enumerate(seq):
                    if g == 10:
                        e(f"s_waitcnt lgkmcnt({behind})")
                    t = k[1]
                    a = ACC(acc, t)
                    cin = f"v[{a}:{a + 3}]" if t in seen else "0"
                    seen.add(t)
                    e(f"v_mfma_f32_16x16x32_bf16 v[{a}:{a + 3}], v[{W[k]}:{W[k] + 3}], v[{b}:{b + 3}], {cin}")
                    cap = 2
                    if inter:
                        e(inter.pop(0)[0])
                        cap -= 1
                    elif post and not defer:
                        while post and cap:
                            e(post.pop(0))
                            cap -= 1
                    while defer and cap and g >= 2 and g != 9:
                        isw = defer[0].startswith("ds_write")
                        if isw and cap < 2:
                            break
                        x = defer.pop(0)
                        e(x)
                        cap -= 2 if isw else 1
                        if isw and g < 10:
                            behind += 1
                assert not defer and not inter, (u, defer)
                fill = list(post)
                if md != "n" or s == 5:
                    fill.append("v_add_u32 v10, 1, v10")
                    if want_f:
                        fill.append("ds_read_b32 v5, v9")
                    for x in fill:
                        e(x)
                    if len(fill) < 6:
                        e(f"s_nop {5 - len(fill)}")
                    ep = epilogue(acc, (s & 1) * 2 * P, o.wr)
                    for x in ep:
                        e(x)
                    if want_f:
                        fpending = sum(1 for x in ep if x.startswith("ds_"))
                    if s & 1 and (u < 17 or loop):
                        adv = 4 * P if s < 5 else "s38" if o.hf else (-3072 if o.defer else 3072) - 8 * P
                        for r in ST:
                            e(f"v_add_u32 v{r}, {adv}, v{r}")
                    if o.defer and s in (o.defer - 1, 5 - o.defer):
                        e("s_cbranch_scc1 L_c_stub")
                    if loop and nb == 2 and s == 5:
                        e("s_cbranch_scc1 L_c_loop")
                        e("s_cmp_lt_u32 s37, 3")
                        if T == 0:
                            e("s_cbranch_scc0 L_c_done")
                        else:
                            e("s_cbranch_scc1 L_c_loop1")
                            self.lab("L_c_done")
                else:
                    for x in fill:
                        e(x)
                    if want_f:
                        e("ds_read_b32 v5, v9")
                        fpending = 0
                    if o.defer and s in (o.defer - 1, 5 - o.defer):
                        e("s_cbranch_scc1 L_c_stub")
        if loop and nb == 1:
            e("s_cbranch_scc1 L_c_loop")
        if o.defer:
            D = o.defer
            for r in (A1, A2, AX):
                e(f"v_add_u32 v{r}, {(12 - 2 * D) * P}, v{r}")
            for t in range(3):
                back = 2 * D * P if md == "n" else (2 * P if D == 1 else 0)
                e(f"v_add_u32 v{ST[t]}, {back}, v{180 + t}")
            e("s_branch L_c_loop")
            self.lab("L_c_stub")
            if md == "n":
                e("v_add_u32 v10, 1, v10")
            e("s_cmp_eq_u32 s37, 0")
            e("s_mov_b32 s37, 1")
            e("v_mov_b32 v11, v9")
            e("v_mov_b32 v5, 0")
            if md == "n":
                for x in epilogue((D - 1) & 1, ((D - 1) & 1) * 2 * P, o.wr):
                    e(x)
            for r in (A1, A2, AX):
                e(f"v_add_u32 v{r}, {6144 - 8 * P}, v{r}")
            for t in range(3):
                e(f"v_swap_b32 v{ST[t]}, v{180 + t}")
            e("s_cbranch_scc1 L_c_loop")
        if o.cstamp == 2:
            e("s_memtime s[88:89]")
            e("s_waitcnt lgkmcnt(0)")
            for u in range(18):
                e(f"v_writelane_b32 v{PV}, s{16 + 4 * u}, {22 + u}")
                e(f"v_writelane_b32 v{PV}, s{18 + 4 * u}, {40 + u}")
            e("s_mov_b32 s46, s94")
            e("s_mov_b32 s48, s88")
            self.nstamp = 2
        else:
            self.stamp()
        self.stamp_flush()
        self.lab("L_end")
        e("s_endpgm")
        for u, nd in slow:
            self.lab(f"L_c_slow{u}")
            self.poll(11 if loop else 9, 5, nd, sleep=o.csleep)
            e(f"s_branch L_c_ready{u}")

        self.lab("L_code_end")

    def loop_q(self, ops, W, SET, XR, ACC, PK, A1, A2, AX, ST, c1, ntot):
        e, o = self.e, self.o
        assert o.hf or o.order == "A"
        del self.L[-1]
        q = []

        def rd(tag, reg, a, off):
            return ("ds", tag, f"ds_read_b128 v[{reg}:{reg + 3}], v{a} offset:{off}")

        def pair(k, st, off):
            b = SET[st]
            return [rd(("P", k, 0), b, A1, off), rd(("P", k, 1), b + 4, A2, off),
                    rd(("P", k, 2), b + 8, A1, off + P), rd(("P", k, 3), b + 12, A2, off + P)]

        def emit(it):
            e(it[2])
            if it[0] in ("ds", "dw"):
                q.append(it[1])

        def wait_for(tags):
            ix = [q.index(t) for t in tags if t in q]
            if not ix:
                return 0
            e(f"s_waitcnt lgkmcnt({len(q) - 1 - max(ix)})")
            del q[: max(ix) + 1]
            return 1

        def epilogue(acc, off, wr):
            r = []
            for t in range(3):
                a = ACC(acc, t)
                r.append(("v", None, f"v_cvt_pk_bf16_f32 v{PK + 2 * t}, v{a}, v{a + 1}"))
                r.append(("v", None, f"v_cvt_pk_bf16_f32 v{PK + 2 * t + 1}, v{a + 2}, v{a + 3}"))
                if wr == 32:
                    r.append(("dw", ("W",), f"ds_write_b32 v{ST[t]}, v{PK + 2 * t} offset:{off}"))
                    r.append(("dw", ("W",), f"ds_write_b32 v{ST[t]}, v{PK + 2 * t + 1} offset:{off + 4}"))
                else:
                    r.append(("dw", ("W",), f"ds_write_b64 v{ST[t]}, v[{PK + 2 * t}:{PK + 2 * t + 1}] offset:{off}"))
            r.append(("dw", ("W",), "ds_write_b32 v8, v10"))
            return r

        e("s_mov_b32 s37, 0")
        e("v_and_b32 v11, -9, v9")
        if o.hf:
            e("v_lshl_add_u32 v11, s43, 3, v11")
            e(f"s_sub_u32 s39, s38, {4 * P}")
        else:
            e(f"s_mov_b32 s39, {3072 - 12 * P}")
        e("s_mov_b32 s33, 0")
        e(f"s_add_u32 s32, s39, {12 * P}")
        for t in range(3):
            e(f"v_mov_b32 v{180 + t}, v{ST[t]}")
            e(f"v_mov_b32 v{ST[t]}, {FLAGS + 64 - 2 * P}")
        e(f"s_mov_b32 s35, {2 * c1}")
        e(f"s_mov_b32 s34, {ntot if o.order != 'A' else 2 * c1}")
        self.poll(11, 5, 2 * c1, sleep=o.csleep)
        for it in pair(0, 0, 0) + [rd(("X", 0), XR, AX, 0)]:
            emit(it)
        for r in (A1, A2, AX):
            e(f"v_add_u32 v{r}, {2 * P}, v{r}")
        wait_for([("P", 0, 3)])
        self.lab("L_c_loop")
        slow = []
        for s in range(6):
            if s == 0 and o.prof:
                self.stamp_now(24, "s37", real=(o.prof == 2))
                q.clear()
            U, Lo = s & 1, (s & 1) ^ 1
            acc = s & 1
            up = [(k, SET[U] + 4 * int(k[0][1])) for k in ops[:10]]
            xs = [(k, XR) for k in ops[10:13]]
            lo = [(k, SET[Lo] + 4 * int(k[0][1])) for k in ops[13:]]
            sq = up + xs + lo if s < 5 else lo + xs + up
            pin = {g: [] for g in range(23)}
            if s < 5:
                pr, xr = pair(s + 2, U, 2 * P), rd(("X", s + 1), XR, AX, 0)
            else:
                pr, xr = pair(0, Lo, 0), rd(("X", 0), XR, AX, 0)
                pin[0] += [("v", None, f"v_add_u32 v{AX}, s39, v{AX}"), ("v", None, f"v_add_u32 v{A1}, s39, v{A1}")]
                pin[1] += [("v", None, f"v_add_u32 v{A2}, s39, v{A2}"), ("s", None, "s_add_u32 s37, s37, 1")]
                pin[2] += [("s", None, "s_cmp_eq_u32 s37, 1"), ("s", None, "s_cselect_b32 s36, 0, -1")]
                pin[3] += [("v", None, "v_and_b32 v5, s36, v5"), ("v", None, "v_mov_b32 v11, v9")]
                pin[17] += [("s", None, "s_mov_b32 s35, s34"), ("s", None, "s_cmp_lt_u32 s37, 3")]
            if s == 1:
                pin[0] += [("s", None, "s_add_u32 s33, s33, s32")]
            if s == 3:
                pin[21] += [("s", None, "s_cmp_lt_u32 s37, 2"), ("s", None, f"s_cselect_b32 s39, s39, {-12 * P}")]
            for i_, it in enumerate(pr):
                pin[10 + i_].append(it)
            pin[14].append(xr)
            pin[15] += [("v", None, f"v_add_u32 v{A1}, {2 * P}, v{A1}"), ("v", None, f"v_add_u32 v{A2}, {2 * P}, v{A2}")]
            pin[16] += [("v", None, f"v_add_u32 v{AX}, {2 * P}, v{AX}")]
            if s == 0:
                for i_, it in enumerate(pair(1, 1, 0)):
                    pin[1 + i_].append(it)
            flow = epilogue(acc ^ 1, ((s - 1) & 1) * 2 * P, o.wrn) + [("v", None, "v_add_u32 v10, 1, v10")]
            if s == 0:
                flow += [("v", None, f"v_add_u32 v{ST[t]}, s33, v{180 + t}") for t in range(3)]
            elif not s & 1:
                flow += [("v", None, f"v_add_u32 v{r}, {4 * P}, v{r}") for r in ST]
            seen = set()
            for g, (k, b) in enumerate(sq):
                t = k[1]
                a = ACC(acc, t)
                cin = f"v[{a}:{a + 3}]" if t in seen else "0"
                seen.add(t)
                e(f"v_mfma_f32_16x16x32_bf16 v[{a}:{a + 3}], v[{W[k]}:{W[k] + 3}], v[{b}:{b + 3}], {cin}")
                cap = 2
                if g == 8:
                    cap -= wait_for([("X", s)] + ([("P", s + 1, 3)] if 0 < s < 5 else []))
                    nd = c1 * (s + 3) if s < 5 else "s35"
                    e(f"v_cmp_gt_i32 vcc, {nd}, v5")
                    cap = 0
                if g == 9:
                    e(f"s_cbranch_vccnz L_c_slow{s}")
                    self.lab(f"L_c_ready{s}")
                    slow.append((s, nd))
                    cap -= 1
                if s == 0 and g == 12:
                    cap -= wait_for([("P", 1, 3)])
                if s in (4, 5) and g == 22:
                    cap -= wait_for([("P", 6, 3)] if s == 4 else [("P", 0, 3)])
                for it in pin[g]:
                    emit(it)
                    cap -= 1
                while flow and g >= 2 and cap > 0:
                    pick = None
                    ndw = sum(1 for f in flow if f[0] == "dw")
                    for ix, f in enumerate(flow):
                        if f[0] == "dw":
                            cv = [re.match(r"v_cvt\S+ v(\d+)", h[2]).group(1) for h in flow[:ix] if "v_cvt" in h[2]]
                            if cap >= 2 and not any(c in self.srcs(f[2]) for c in cv) and not ("v8" in f[2] and cv):
                                pick = ix
                            break
                    if pick is None:
                        for ix, f in enumerate(flow):
                            if f[0] != "dw" and ("v_cvt" in f[2] or ndw == 0):
                                pick = ix
                                break
                    if pick is None:
                        break
                    it = flow.pop(pick)
                    emit(it)
                    cap -= 2 if it[0] == "dw" else 1
            assert not flow, (s, flow)
        e("s_cbranch_scc1 L_c_loop")
        e("s_nop 5")
        for it in epilogue(1, 2 * P, o.wr):
            e(it[2])
        self.stamp()
        self.stamp_flush()
        self.lab("L_end")
        e("s_endpgm")
        for u, nd in slow:
            self.lab(f"L_c_slow{u}")
            self.poll(11, 5, nd, sleep=o.csleep)
            e(f"s_branch L_c_ready{u}")
        self.lab("L_code_end")

    @staticmethod
    def srcs(txt):
        m = re.search(r", v\[(\d+):(\d+)\]", txt)
        if m:
            return [str(r) for r in range(int(m.group(1)), int(m.group(2)) + 1)]
        return [re.search(r", v(\d+)", txt).group(1)]

    def check_mfma_hazards(self):
        L = [l.strip() for l in self.L]
        if "L_c_loop:" not in L:
            return
        i = L.index("L_c_loop:")
        k = L.index("L_end:")
        jj = [n for n, l in enumerate(L) if l == "s_cbranch_scc1 L_c_loop"]
        for seqn in [L[i:k]] + ([L[i:jj[-1] + 1] * 2] if jj else []):
            pend = {}
            pos = 0
            for l in seqn:
                if l.endswith(":"):
                    continue
                regs = set()
                for m in re.finditer(r"v\[(\d+):(\d+)\]|v(\d+)", l.split(None, 1)[1] if " " in l else ""):
                    if m.group(3):
                        regs.add(int(m.group(3)))
                    else:
                        regs.update(range(int(m.group(1)), int(m.group(2)) + 1))
                if l.startswith("v_mfma"):
                    m = re.match(r"v_mfma\S+ v\[(\d+):(\d+)\]", l)
                    for r in range(int(m.group(1)), int(m.group(2)) + 1):
                        pend[r] = pos
                else:
                    for r in regs:
                        if r in pend:
                            assert pos - pend[r] - 1 >= 8, (l, pos - pend[r] - 1)
                m = re.match(r"s_nop (\d+)", l)
                pos += int(m.group(1)) + 1 if m else 1

    def build(self):
        self.prologue()
        self.helper()
        self.compute()
        self.check_mfma_hazards()
        if self.o.drop:
            i = self.L.index("L_c_loop:")
            j = self.L.index("L_end:")
            pats = self.o.drop.split(",")
            self.L = self.L[:i] + [l for l in self.L[i:j] if not any(l.strip().startswith(p) for p in pats)] + self.L[j:]
        return HEADER + "\n".join(self.L) + "\n" + FOOTER.format(vgpr=188, acc=188)


def main():
    p = argparse.ArgumentParser()
    p.add_argument("-o", default="-")
    p.add_argument("--prof", type=int, default=0)
    p.add_argument("--hflip", type=int, default=1)
    p.add_argument("--win", type=int, default=11)
    p.add_argument("--barpair", type=int, default=2)
    p.add_argument("--ldflags", default="nt")
    p.add_argument("--wflags", default="")
    p.add_argument("--stflags", default="sc0 sc1 nt")
    p.add_argument("--prio_loader", type=int, default=0)
    p.add_argument("--prio_comp", type=int, default=0)
    p.add_argument("--nocomp", type=int, default=0)
    p.add_argument("--noload", type=int, default=0)
    p.add_argument("--cstamp", type=int, default=0)
    p.add_argument("--drop", default="")
    p.add_argument("--wr", type=int, default=64)
    p.add_argument("--estart", type=int, default=2)
    p.add_argument("--diag", default="")
    p.add_argument("--now", type=int, default=0)
    p.add_argument("--stwait", type=int, default=0)
    p.add_argument("--stwin", type=int, default=0)
    p.add_argument("--pad", type=int, default=0)
    p.add_argument("--padk", type=int, default=1)
    p.add_argument("--padmask", type=int, default=7)
    p.add_argument("--fpre", type=int, default=0)
    p.add_argument("--csleep", type=int, default=1)
    p.add_argument("--eflag", type=int, default=0)
    p.add_argument("--rdint", type=int, default=0)
    p.add_argument("--sched", default="plain")
    p.add_argument("--stag", type=int, default=0)
    p.add_argument("--stagw", type=int, default=2)
    p.add_argument("--gate", type=int, default=0)
    p.add_argument("--gsleep", type=int, default=4)
    p.add_argument("--padper", default="")
    p.add_argument("--nostore", type=int, default=0)
    p.add_argument("--jmask", type=int, default=0)
    p.add_argument("--cls", default="1,2,3,4")
    p.add_argument("--order", default="C")
    p.add_argument("--modes", default="n")
    p.add_argument("--loop", type=int, default=1)
    p.add_argument("--winl", type=int, default=9)
    p.add_argument("--winr", type=int, default=11)
    p.add_argument("--prio_left", type=int, default=0)
    p.add_argument("--tlbw", type=int, default=0)
    p.add_argument("--tlbf", default="nt")
    p.add_argument("--defer", type=int, default=0)
    p.add_argument("--wrn", type=int, default=64)
    p.add_argument("--hf", type=int, default=1)
    p.add_argument("--seq", default="010")
    p.add_argument("--ipf", type=int, default=0)
    p.add_argument("--ipfh", type=int, default=0)
    p.add_argument("--early", type=int, default=0)
    p.add_argument("--fevery", type=int, default=0)
    p.add_argument("--two", type=int, default=0)
    p.add_argument("--rdint2", type=int, default=1)
    p.add_argument("--sleep", type=int, default=2)
    o = p.parse_args()
    s = Gen(o).build()
    if o.o == "-":
        sys.stdout.write(s)
    else:
        open(o.o, "w").write(s)


if __name__ == "__main__":
    main()
```

```python
import argparse
import re
import sys

ROWB = 73728
XBYTES = 28311552
WBYTES = 41472
P = 9728
LDS_TOTAL = 163840
FLAGS = LDS_TOTAL - 256
WSZ = 12288
WREG = FLAGS - 4 * WSZ

HEADER = """; Kernarg layout for this problem (40 bytes, ptrs only, base s[0:1]):
; @launch grid=(256,1,1) block=(512,1,1) lds=163840
.amdgcn_target "amdgcn-amd-amdhsa--gfx950"
.text
.globl standalone__grouped__vision_kernel
.p2align 8
.type standalone__grouped__vision_kernel,@function
standalone__grouped__vision_kernel:
"""

FOOTER = """.section .rodata,"a"
.p2align 6
.amdhsa_kernel standalone__grouped__vision_kernel
  .amdhsa_next_free_vgpr {vgpr}
  .amdhsa_next_free_sgpr 102
  .amdhsa_accum_offset {acc}
  .amdhsa_group_segment_fixed_size 0
  .amdhsa_kernarg_size 40
  .amdhsa_user_sgpr_count 2
  .amdhsa_user_sgpr_kernarg_segment_ptr 1
  .amdhsa_system_sgpr_workgroup_id_x 1
.end_amdhsa_kernel
"""

PV = 187


class Gen:
    def __init__(self, o):
        self.o = o
        self.L = []
        self.nstamp = 0
        self.nlab = 0

    def e(self, s):
        self.L.append("    " + s)

    def lab(self, s):
        self.L.append(s + ":")

    def newlab(self, p):
        self.nlab += 1
        return f"L_{p}{self.nlab}"

    def stamp(self):
        if not self.o.prof:
            return
        k = self.nstamp
        self.nstamp += 1
        assert k < 22
        self.e(f"s_mem{'real' if self.o.prof == 2 else ''}time s[{46 + 2 * k}:{47 + 2 * k}]")

    def stamp_now(self, base, ctr, real=False):
        if not self.o.prof:
            return
        self.e("s_memrealtime s[96:97]" if real else "s_memtime s[96:97]")
        self.e("s_waitcnt lgkmcnt(0)")
        self.e("s_mov_b32 s95, m0")
        if isinstance(ctr, str):
            self.e(f"s_cselect_b32 s94, 1, 0")
            self.e(f"s_add_u32 m0, {ctr}, {base}")
            self.e(f"s_cmp_lg_u32 s94, 0")
        else:
            self.e(f"s_mov_b32 m0, {base + ctr}")
        self.e(f"v_writelane_b32 v{PV}, s96, m0")
        self.e("s_mov_b32 m0, s95")

    def stamp_flush(self):
        if not self.o.prof:
            return
        e = self.e
        e("s_mov_b64 exec, -1")
        e("s_waitcnt lgkmcnt(0)")
        e("s_load_dwordx2 s[40:41], s[0:1], 32")
        e("s_lshl_b32 s42, s2, 3")
        e("s_add_u32 s42, s42, s3")
        e("s_lshl_b32 s42, s42, 8")
        e("v_lshl_add_u32 v1, v0, 2, s42")
        for k in range(self.nstamp):
            e(f"v_writelane_b32 v{PV}, s{46 + 2 * k}, {k}")
        e(f"s_mov_b32 s42, {self.nstamp}")
        e(f"v_writelane_b32 v{PV}, s42, 63")
        e("s_getreg_b32 s42, hwreg(HW_REG_XCC_ID)")
        e(f"v_writelane_b32 v{PV}, s42, 62")
        e(f"v_writelane_b32 v{PV}, s92, 60")
        if self.o.prof == 2:
            e(f"v_writelane_b32 v{PV}, s86, 57")
            e(f"v_writelane_b32 v{PV}, s84, 56")
            e(f"v_writelane_b32 v{PV}, s82, 55")
        e("s_memrealtime s[92:93]")
        e("s_waitcnt lgkmcnt(0)")
        e(f"v_writelane_b32 v{PV}, s92, 59")
        e(f"global_store_dword v1, v{PV}, s[40:41]")

    def diag_mark(self, name):
        d = self.o.diag
        if d == name:
            self.e("s_memrealtime s[90:91]")
        if d == "c" + name:
            self.e("s_memtime s[90:91]")

    def diag_end(self, comp=False):
        o, e = self.o, self.e
        if not o.diag or o.diag.startswith("k") != comp:
            return
        e("s_waitcnt vmcnt(0) lgkmcnt(0)")
        self.diag_mark("end")
        e("s_waitcnt lgkmcnt(0)")
        if o.diag == "rt":
            e("s_mov_b32 s42, 0")
        elif o.diag.startswith("c"):
            e("s_sub_u32 s42, s90, s88")
            e("s_lshr_b32 s42, s42, 2")
        else:
            e("s_sub_u32 s42, s90, s92")
            e("s_mul_i32 s42, s42, 4")
        e("s_add_u32 s42, s42, 4000")
        self.lab("L_dg")
        e("s_memrealtime s[40:41]")
        e("s_waitcnt lgkmcnt(0)")
        e("s_sub_u32 s40, s40, s92")
        e("s_cmp_lt_u32 s40, s42")
        e("s_cbranch_scc1 L_dg")

    def poll(self, vaddr, vtmp, sneed, sleep=1):
        e = self.e
        l = self.newlab("poll")
        d = self.newlab("pdone")
        self.lab(l)
        e(f"ds_read_b32 v{vtmp}, v{vaddr}")
        e("s_waitcnt lgkmcnt(0)")
        e(f"v_cmp_gt_i32 vcc, {sneed}, v{vtmp}")
        e(f"s_cbranch_vccz {d}")
        if sleep:
            e(f"s_sleep {sleep}")
        e(f"s_branch {l}")
        self.lab(d)

    def prologue(self):
        e = self.e
        e("s_cmp_ge_u32 s2, 256")
        e("s_cbranch_scc1 L_end")
        e("s_load_dwordx4 s[4:7], s[0:1], 0")
        e("s_load_dwordx2 s[8:9], s[0:1], 16")
        if self.o.prof or self.o.diag:
            e("s_memrealtime s[92:93]")
        if self.o.diag:
            e("s_memtime s[88:89]")
        self.stamp()
        if self.o.prof:
            e(f"v_mov_b32 v{PV}, 0")
        e("v_lshrrev_b32 v1, 6, v0")
        e("v_and_b32 v0, 63, v0")
        e(f"v_mov_b32 v3, {FLAGS}")
        e("v_readfirstlane_b32 s3, v1")
        e("v_xor_b32 v2, 4, v1")
        e("v_lshl_add_u32 v8, v2, 2, v3")
        e("v_mov_b32 v2, 0")
        e("ds_write_b32 v8, v2")
        e("v_and_b32 v2, 3, v0")
        e("v_lshl_add_u32 v9, v2, 2, v3")
        e("s_bfe_u32 s26, s2, 0x10005")
        e("s_bfe_u32 s43, s2, 0x10003" if self.o.hf else "s_mov_b32 s43, 0")
        e("s_cmp_lt_u32 s3, 4")
        e("s_cbranch_scc1 L_compute")

    def helper(self):
        e, o = self.e, self.o
        self.lab("L_helper")
        if o.prio_loader:
            e(f"s_setprio {o.prio_loader}")
        Wn = o.win
        phases = {"A": [(0, 304, [64, 64, 64, 64, 48])],
                  "B": [(0, 224, [56] * 4), (448, 80, [40] * 2)],
                  "C": [(0, 256, [64] * 4), (512, 48, [48])]}[o.order]
        self.phases = phases
        ntot = 7 * sum(len(p[2]) for p in phases)
        e("s_and_b32 s10, s2, 1")
        e("s_lshl_b32 s10, s10, 2")
        e("s_bfe_u32 s11, s2, 0x20003")
        e("s_add_u32 s10, s10, s11")
        e("s_bfe_u32 s11, s2, 0x20001")
        e("s_lshl_b32 s11, s11, 3")
        e("s_lshr_b32 s24, s2, 5")
        e("s_add_u32 s11, s11, s24")
        e("s_mul_i32 s25, s11, 12")
        e("s_mul_i32 s24, s10, 9216")
        e("s_and_b32 s30, s3, 1")
        e("s_bfe_u32 s45, s3, 0x10001")
        e("v_lshrrev_b32 v1, 2, v0")
        e("v_bfrev_b32 v3, 1")

        def patterns(ph, first, last):
            st, half, lanes = ph
            mir = (608 - st - 2 * half) - st if len(phases) == 2 else 0
            e(f"s_mul_i32 s33, s45, {half}")
            if mir:
                e(f"s_mul_i32 s28, s43, {mir}")
                e("s_add_u32 s33, s33, s28")
            if st:
                e(f"s_add_u32 s33, s33, {st}")
            e("s_lshr_b32 s28, s33, 2")
            e("s_add_u32 s28, s28, 2")
            e("v_add_u32 v4, s28, v1")
            e("s_lshl_b32 s33, s33, 4")
            off = 0
            for k, ln in enumerate(lanes):
                if off:
                    e(f"v_add_u32 v2, {off // 4}, v4")
                    e("v_mul_u32_u24 v2, 171, v2")
                else:
                    e("v_mul_u32_u24 v2, 171, v4")
                e("v_bfe_u32 v2, v2, 11, 2")
                e("v_xor_b32 v2, v2, v0")
                e(f"v_lshl_add_u32 v{10 + k}, v2, 4, s33")
                off += ln
            if len(lanes) == 5:
                e("v_add_u32 v14, 4096, v14")
            if first:
                e("s_add_u32 s28, s45, s10")
                e("s_cmp_eq_u32 s28, 0")
                e("s_cselect_b32 s32, 16, 0")
                e("v_cmp_gt_u32 vcc, s32, v0")
            e(f"s_mul_i32 s32, s30, {P}")
            e("s_add_u32 s33, s33, s32")
            if first:
                e("v_cndmask_b32 v10, v10, v3, vcc")
            if (first if o.hf else last):
                if not first:
                    e("s_add_u32 s28, s45, s10")
                e("s_cmp_eq_u32 s28, 8")
                e(f"s_cselect_b32 s28, {lanes[-1] - 16}, 64")
                e("v_cmp_le_u32 vcc, s28, v0")
                e("s_nop 1")
                e(f"v_cndmask_b32 v{9 + len(lanes)}, v{9 + len(lanes)}, v3, vcc")

        patterns(phases[0], True, len(phases) == 1)
        e("s_cmp_eq_u32 s26, 0")
        e("s_cselect_b32 s27, 1, -1")
        e("s_cselect_b32 s29, -1, 12")
        e(f"s_mul_i32 s27, s27, {ROWB}")
        e("s_add_i32 s29, s29, s25")
        e(f"s_mul_i32 s29, s29, {ROWB}")
        e("s_mul_i32 s28, s30, s27")
        e("s_add_i32 s29, s29, s28")
        e("s_lshl_b32 s35, s27, 1")
        cl = [int(x) for x in o.cls.split(",")]
        assert max(cl) <= 5
        e("s_bfe_u32 s44, s2, 0x20003")
        e("s_lshl_b32 s44, s44, 3")
        e(f"s_lshr_b32 s44, {hex(sum(c << (8 * i) for i, c in enumerate(cl)))}, s44")
        e("s_and_b32 s44, s44, 255")
        e("v_add_u32 v7, 16, v9")
        e("s_waitcnt lgkmcnt(0)")
        e("s_sub_u32 s12, s4, 256")
        e("s_subb_u32 s13, s5, 0")
        e(f"s_mov_b32 s14, {XBYTES + 256}")
        e("s_mov_b32 s15, 0x20000")
        self.stamp()
        self.diag_mark("karg")
        fl = o.ldflags
        if 0 in cl:
            e("s_cmp_lg_u32 s44, 0")
            e("s_cbranch_scc1 L_ld_start")
            e("s_barrier")
            self.lab("L_ld_start")
        if o.order == "A":
            self.load_A(phases, fl)
        else:
            Wn = o.winl
            n = 0
            c1, c2 = len(phases[0][2]), len(phases[1][2])
            e(f"v_mov_b32 v6, {-c1 * ((Wn - 1) // c1)}")
            for pi, ph in enumerate(phases):
                st, half, lanes = ph
                c = len(lanes)
                if pi:
                    if o.prof == 2:
                        e("s_memrealtime s[82:83]")
                    e("s_mov_b64 exec, -1")
                    patterns(ph, False, True)
                    e(f"v_mov_b32 v6, {7 * c1 - (Wn - 1) + (Wn - 1) % c}")
                e("s_mov_b32 s31, s29")
                e("s_mov_b32 s32, 0")
                if lanes[0] < 64:
                    e(f"s_mov_b32 exec_hi, {hex((1 << (lanes[0] - 32)) - 1)}")
                self.lab(f"L_ld_loop{pi}")
                e("s_add_u32 s34, s31, s24")
                e("s_cmp_lt_i32 s31, 0")
                e("s_cselect_b32 s34, 0x40000000, s34")
                e("s_mov_b32 m0, s33")
                e("s_add_i32 s31, s31, s35")
                off = 0
                for k, ln in enumerate(lanes):
                    e(f"s_waitcnt vmcnt({Wn - 1})")
                    if k == (Wn - 1) % c:
                        e("ds_write_b32 v8, v6")
                    e(f"buffer_load_dwordx4 v{10 + k}, s[12:15], s34 offen offset:{off * 16} {fl} lds")
                    off += ln
                e(f"v_add_u32 v6, {c}, v6")
                e(f"s_add_u32 s33, s33, {2 * P}")
                e("s_add_u32 s32, s32, 1")
                if pi == 0:
                    e("s_cmp_lg_u32 s32, s44")
                    e("s_cbranch_scc1 L_ld_nobar")
                    e("s_barrier")
                    self.lab("L_ld_nobar")
                    e("s_cmp_lg_u32 s32, 5")
                    e("s_cbranch_scc1 L_ld_nopoll")
                    self.poll(7, 5, 1)
                    self.lab("L_ld_nopoll")
                e("s_cmp_lt_u32 s32, 7")
                e(f"s_cbranch_scc1 L_ld_loop{pi}")
            for v in range(ntot - Wn + 1, ntot):
                if (v == 7 * c1 and o.early < 2) or (v < 7 * c1 and v % c1 == 0):
                    e(f"v_mov_b32 v2, {v}")
                    e(f"s_waitcnt vmcnt({ntot - v})")
                    e("ds_write_b32 v8, v2")
        self.lab("L_ld_tail")
        if o.prof == 2:
            e("s_memrealtime s[84:85]")
        if o.prio_loader or o.prio_left:
            e("s_setprio 0")
        e("s_mov_b64 exec, -1")
        e("s_and_b32 s30, s3, 3")
        e("s_mul_i32 s28, s30, 12")
        e("s_add_u32 s28, s28, 3")
        if o.hf:
            e("s_mul_i32 s32, s43, 6")
            e("s_add_u32 s28, s28, s32")
        e("v_add_u32 v2, s28, v1")
        e("v_mul_u32_u24 v2, 171, v2")
        e("v_bfe_u32 v2, v2, 11, 2")
        e("v_xor_b32 v2, v2, v0")
        e("s_mul_i32 s33, s30, 768")
        e("s_add_u32 s28, s33, 64")
        if o.hf:
            e("s_mul_i32 s32, s43, 6528")
            e("s_add_u32 s28, s28, s32")
            e("s_mul_i32 s32, s43, 6144")
            e("s_add_u32 s24, s24, s32")
            e("s_sub_u32 s36, 3072, s32")
            e(f"s_sub_u32 s38, s36, {12 * P}")
        e("v_lshl_add_u32 v10, v2, 4, s28")
        e("v_lshl_add_u32 v11, v0, 4, s33")
        if o.defer:
            e("s_mul_i32 s28, s30, 12")
            e("s_add_u32 s28, s28, 9")
            e("v_add_u32 v2, s28, v1")
            e("v_mul_u32_u24 v2, 171, v2")
            e("v_bfe_u32 v2, v2, 11, 2")
            e("v_xor_b32 v2, v2, v0")
            e("s_add_u32 s28, s33, 448")
            e("v_lshl_add_u32 v13, v2, 4, s28")
        e("s_cmp_eq_u32 s26, 0")
        e("s_cselect_b32 s29, 0, 11")
        e("s_add_i32 s29, s29, s25")
        e(f"s_mul_i32 s29, s29, {ROWB}")
        e("s_add_u32 s29, s29, s24")
        e("s_mov_b32 s20, s8")
        e("s_mov_b32 s21, s9")
        e(f"s_mov_b32 s22, {XBYTES}")
        e("s_mov_b32 s23, 0x20000")
        e("s_mov_b32 exec_hi, 0xffff")
        if not o.early:
            e(f"v_mov_b32 v2, {ntot}")
            e("s_waitcnt vmcnt(0)")
            e("ds_write_b32 v8, v2")
        self.stamp()
        self.diag_mark("ldone")
        self.stamp_now(58, 0, real=True)
        if o.nostore:
            self.stamp_flush()
            e("s_endpgm")
        e("s_mov_b32 s37, 2")
        if o.defer:
            e("s_mov_b32 s31, s29")
            e(f"s_mov_b32 s32, {8 - o.defer}")
        else:
            self.lab("L_st_strip")
            e("s_mov_b32 s31, s29")
            e("s_mov_b32 s32, 0")
        self.lab("L_st_loop")
        if not o.nocomp:
            e("v_cmp_gt_i32 vcc, s37, v5")
            e("s_cbranch_vccz L_st_go")
            self.poll(7, 5, "s37", sleep=o.sleep)
            self.lab("L_st_go")
        e("ds_read_b128 v[16:19], v10")
        e(f"ds_read_b128 v[20:23], v10 offset:{P}")
        e("s_add_i32 s34, s31, s27")
        e(f"v_add_u32 v10, {2 * P}, v10")
        e("s_add_u32 s37, s37, 1")
        if not o.defer:
            e("s_add_u32 s32, s32, 1")
        e("s_waitcnt lgkmcnt(1)")
        e(f"buffer_store_dwordx4 v[16:19], v11, s[20:23], s31 offen {o.stflags}")
        e("s_add_i32 s31, s34, s27")
        e("s_waitcnt lgkmcnt(0)")
        e(f"buffer_store_dwordx4 v[20:23], v11, s[20:23], s34 offen {o.stflags}")
        if o.early:
            ev = [(2 + o.early, ntot, 2 * o.early)]
            if o.early >= 2:
                ev.insert(0, (3, 28, ntot - 28 + 2))
            for sv, val, cnt in ev:
                e(f"s_cmp_lg_u32 s37, {sv}")
                e(f"s_cbranch_scc1 L_st_nf{val}")
                e(f"v_mov_b32 v2, {val}")
                e(f"s_waitcnt vmcnt({cnt})")
                e("ds_write_b32 v8, v2")
                self.lab(f"L_st_nf{val}")
        if o.prof == 2:
            e("s_cmp_lg_u32 s37, 3")
            e("s_cbranch_scc1 L_nofs")
            e("s_memrealtime s[86:87]")
            self.lab("L_nofs")
        if o.prof and o.cstamp:
            self.stamp_now(22 - 3, "s37")
            self.stamp_now(40 - 3, "s37", real=True)
        if o.defer:
            D = o.defer
            e("s_cmp_lt_u32 s37, s32")
            e("s_cbranch_scc1 L_st_loop")
            e("s_add_u32 s32, s32, 6")
            e(f"s_cmp_lg_u32 s37, {8 - D}")
            e("s_cbranch_scc1 L_st_s1")
            e("v_mov_b32 v12, v10")
            e("s_mov_b32 s43, s31")
            e("v_add_u32 v10, 6144, v13")
            e("s_add_u32 s31, s29, 6144")
            e("s_branch L_st_loop")
            self.lab("L_st_s1")
            e(f"s_cmp_lg_u32 s37, {14 - D}")
            e("s_cbranch_scc1 L_st_s2")
            e("v_add_u32 v10, 3072, v13")
            e("s_add_u32 s31, s29, 3072")
            e("s_branch L_st_loop")
            self.lab("L_st_s2")
            e("v_mov_b32 v10, v12")
            e("s_mov_b32 s31, s43")
            e("s_mov_b32 s32, 20")
            e("s_cmp_lt_u32 s37, 20")
            e("s_cbranch_scc1 L_st_loop")
        else:
            e("s_cmp_lt_u32 s32, 6")
            e("s_cbranch_scc1 L_st_loop")
            if o.hf:
                e("s_add_u32 s29, s29, s36")
                e("v_add_u32 v10, s38, v10")
            else:
                e("s_add_u32 s29, s29, 3072")
                e(f"v_add_u32 v10, {3072 - 12 * P}, v10")
            e("s_cmp_lt_u32 s37, 20")
            e("s_cbranch_scc1 L_st_strip")
        self.diag_mark("stiss")
        if o.prof:
            self.stamp()
            e("s_waitcnt vmcnt(0)")
            self.stamp()
        self.stamp_flush()
        self.diag_end()
        e("s_endpgm")

    def load_A(self, phases, fl):
        e, o = self.e, self.o
        lanes = phases[0][2]
        e("s_mov_b32 s31, s29")
        e("s_mov_b32 s32, 0")
        sides = [("l", o.winl), ("r", o.winr)] if o.winl != o.winr else [("l", o.winl)]
        if len(sides) == 2:
            e("s_cmp_lg_u32 s45, 0")
            e("s_cbranch_scc1 L_ld_pre_r")
        for sd, Wn in sides:
            self.lab(f"L_ld_pre_{sd}")
            e(f"v_mov_b32 v6, {-5 * ((Wn - 1) // 5)}")
            if sd == "l" and o.prio_left:
                e(f"s_setprio {o.prio_left}")
            self.lab(f"L_ld_loop_{sd}")
            e("s_add_u32 s34, s31, s24")
            e("s_cmp_lt_i32 s31, 0")
            e("s_cselect_b32 s34, 0x40000000, s34")
            e("s_mov_b32 m0, s33")
            e("s_add_i32 s31, s31, s35")
            for k in range(5):
                if k == 4:
                    e("s_add_u32 m0, s33, 4096")
                e(f"s_waitcnt vmcnt({Wn - 1})")
                if k == (Wn - 1) % 5:
                    e("ds_write_b32 v8, v6")
                if k == 4:
                    e("s_mov_b32 exec_hi, 0xffff")
                e(f"buffer_load_dwordx4 v{10 + k}, s[12:15], s34 offen offset:{1024 * (k % 4)} {fl} lds")
                if k == 4:
                    e("s_mov_b32 exec_hi, -1")
                if k == 0:
                    e(f"v_add_u32 v6, {(Wn - 1) % 5}, v6" if False else "s_add_u32 s32, s32, 1")
            e("v_add_u32 v6, 5, v6")
            e(f"s_add_u32 s33, s33, {2 * P}")
            e("s_cmp_lg_u32 s32, s44")
            e(f"s_cbranch_scc1 L_ld_nobar_{sd}")
            e("s_barrier")
            self.lab(f"L_ld_nobar_{sd}")
            e("s_cmp_lg_u32 s32, 5")
            e(f"s_cbranch_scc1 L_ld_nopoll_{sd}")
            self.poll(7, 5, 1)
            self.lab(f"L_ld_nopoll_{sd}")
            e("s_cmp_lt_u32 s32, 7")
            e(f"s_cbranch_scc1 L_ld_loop_{sd}")
            for v in range(35 - Wn + 1, 35):
                if v % 5 == 0:
                    e(f"v_mov_b32 v2, {v}")
                    e(f"s_waitcnt vmcnt({35 - v})")
                    e("ds_write_b32 v8, v2")
            if sd == "l" and len(sides) == 2:
                e("s_branch L_ld_tail")

    def compute(self):
        e, o = self.e, self.o
        ops = [("U0", 0), ("U0", 1), ("U1", 0), ("U1", 1), ("U2", 0), ("U2", 1), ("U2", 2), ("U3", 0), ("U3", 1), ("U3", 2),
               ("X", 0), ("X", 1), ("X", 2),
               ("L0", 0), ("L0", 1), ("L0", 2), ("L1", 0), ("L1", 1), ("L1", 2), ("L2", 1), ("L2", 2), ("L3", 1), ("L3", 2)]
        W = {k: 16 + 4 * i for i, k in enumerate(ops)}
        SET = [108, 124]
        XR = 140
        ACC = lambda s, t: 144 + 12 * s + 4 * t
        PK = 168
        A1, A2, AX = 174, 175, 176
        ST = [177, 178, 179]
        self.lab("L_compute")
        self.nstamp = 1
        if o.ipf:
            e("s_getpc_b64 s[38:39]")
            self.lab("L_pc")
            e("s_sub_u32 s38, s38, L_pc-standalone__grouped__vision_kernel")
            e("s_subb_u32 s39, s39, 0")
            e(f"v_lshlrev_b32 v2, {o.ipf}, v0")
            e("v_lshl_add_u32 v2, s3, 13, v2" if o.ipf == 7 else "v_lshl_add_u32 v2, s3, 12, v2")
            e(f"v_min_u32 v2, {'L_compute' if o.ipfh else 'L_code_end'}-standalone__grouped__vision_kernel-4, v2")
            e("v_mov_b32 v3, s39")
            e("v_add_co_u32 v2, vcc, s38, v2")
            e("s_nop 1")
            e("v_addc_co_u32 v3, vcc, 0, v3, vcc")
            e("global_load_dword v185, v[2:3], off")
        if o.prio_comp:
            e(f"s_setprio {o.prio_comp}")
        e("s_mul_i32 s28, s3, 1152")
        e("v_lshl_add_u32 v108, v0, 4, s28")
        e("s_movk_i32 s29, 3456")
        for i in range(1, 4):
            e(f"v_add_u32 v2, {64 * i}, v0")
            e("v_mul_u32_u24 v2, 911, v2")
            e("v_lshrrev_b32 v2, 16, v2")
            e(f"v_mad_u32_u24 v{108 + i}, v2, s29, v108")
        e("v_cmp_lt_u32 vcc, 23, v0")
        e("v_bfrev_b32 v3, 1")
        e(f"s_mul_i32 s33, s3, {WSZ}")
        e(f"s_add_u32 s33, s33, {WREG}")
        e("v_cndmask_b32 v111, v111, v3, vcc")
        e("s_mul_i32 s34, s26, 27648")
        e("s_movk_i32 s35, 13824")
        e("s_sub_u32 s36, 27648, s34")
        e("s_waitcnt lgkmcnt(0)")
        if o.tlbw:
            e("s_and_b32 s10, s2, 1")
            e("s_lshl_b32 s10, s10, 2")
            e("s_bfe_u32 s11, s2, 0x20003")
            e("s_add_u32 s10, s10, s11")
            e("s_mul_i32 s10, s10, 9216")
            e("s_bfe_u32 s11, s2, 0x20001")
            e("s_lshl_b32 s11, s11, 3")
            e("s_lshr_b32 s24, s2, 5")
            e("s_add_u32 s11, s11, s24")
            e(f"s_mul_i32 s11, s11, {12 * ROWB}")
            e("s_add_u32 s10, s10, s11")
            e("s_mov_b32 s20, s8")
            e("s_mov_b32 s21, s9")
            e(f"s_mov_b32 s22, {XBYTES}")
            e("s_mov_b32 s23, 0x20000")
            e(f"s_mov_b32 s11, {11 * ROWB}")
            e("v_mul_lo_u32 v2, v0, s11")
            e("s_cmp_lg_u32 s3, 0")
            e("s_cbranch_scc1 L_notouch")
            e("s_mov_b64 exec, 3")
            e(f"buffer_load_dword v186, v2, s[20:23], s10 offen {o.tlbf}")
            e("s_mov_b64 exec, -1")
            self.lab("L_notouch")
        e("s_barrier")
        e("s_mov_b32 s16, s6")
        e("s_mov_b32 s17, s7")
        e(f"s_mov_b32 s18, {WBYTES}")
        e("s_mov_b32 s19, 0x20000")
        for p in range(3):
            e(f"s_add_u32 m0, s33, {4096 * p}")
            e("s_nop 0")
            for i in range(4):
                if not o.now:
                    e(f"buffer_load_dwordx4 v{108 + i}, s[16:19], s{34 + p} offen offset:{1024 * i} {o.wflags} lds")
        self.stamp()
        e("v_and_b32 v1, 15, v0")
        e("v_lshrrev_b32 v2, 4, v0")
        e("s_mul_i32 s28, s3, 3")
        e("v_and_b32 v3, 1, v2")
        e("v_lshrrev_b32 v4, 1, v2")
        e("v_cmp_gt_u32 vcc, 2, v2")
        e("s_movk_i32 s29, 192")
        e("s_movk_i32 s30, 1152")

        def baddr(dst, vdx, vcc_, tmp1, tmp2, extra=None):
            e(f"v_add_u32 v{tmp1}, {vdx}, v1")
            e(f"v_add_u32 v{tmp2}, 1, v{tmp1}")
            e(f"v_bfe_u32 v{tmp2}, v{tmp2}, 2, 2")
            e(f"v_mad_u32_u24 v{tmp1}, v{tmp1}, s29, v15" if o.hf else f"v_mad_u32_u24 v{tmp1}, v{tmp1}, s29, 64")
            e(f"v_add_u32 v{dst}, s28, {vcc_}")
            e(f"v_xor_b32 v{dst}, v{dst}, v{tmp2}")
            e(f"v_lshl_add_u32 v{dst}, v{dst}, 4, v{tmp1}")
            if extra:
                e(f"v_add_u32 v{dst}, {extra}, v{dst}")

        if o.hf:
            e("s_mul_i32 s31, s43, 6144")
            e("s_add_u32 s32, s31, 64")
            e("v_mov_b32 v15, s32")
            e("s_sub_u32 s38, 3072, s31")
            e(f"s_sub_u32 s38, s38, {8 * P}")
        e("v_cndmask_b32 v6, 2, v2, vcc")
        e("v_cndmask_b32 v7, v3, 2, vcc")
        baddr(A1, "v3", "v4", 11, 12)
        baddr(A2, "v6", "v7", 11, 12)
        e(f"v_mul_u32_u24 v13, {P}, v2")
        e("v_mov_b32 v14, 2")
        baddr(AX, "2", "v14", 11, 12, "v13")
        if o.hf:
            e("v_lshl_add_u32 v1, s43, 1, v1")
        e("v_add_u32 v12, 1, v1")
        e("v_bfe_u32 v12, v12, 2, 2")
        e("v_mad_u32_u24 v11, v1, s29, v15" if o.hf else "v_mad_u32_u24 v11, v1, s29, 64")
        e("v_lshl_add_u32 v11, v3, 3, v11")
        e(f"v_add_u32 v13, {P}, v11")
        e("v_add_u32 v14, s28, v4")
        e("v_xor_b32 v15, v14, v12")
        e(f"v_lshl_add_u32 v{ST[0]}, v15, 4, v11")
        e("v_add_u32 v14, 1, v14")
        e("v_xor_b32 v15, v14, v12")
        e(f"v_lshl_add_u32 v{ST[2]}, v15, 4, v13")
        e("v_cndmask_b32 v14, 0, 2, vcc")
        e("v_cndmask_b32 v13, v13, v11, vcc")
        e("v_add_u32 v14, s28, v14")
        e("v_xor_b32 v15, v14, v12")
        e(f"v_lshl_add_u32 v{ST[1]}, v15, 4, v13")
        if o.defer:
            e("v_add_u32 v12, 3, v1")
            e("v_bfe_u32 v12, v12, 2, 2")
            e(f"v_add_u32 v11, {384 + 6144}, v11")
            e(f"v_add_u32 v13, {384 + 6144}, v13")
            e("v_xor_b32 v15, v14, v12")
            e("v_lshl_add_u32 v181, v15, 4, v13")
            e("v_add_u32 v14, s28, v4")
            e("v_xor_b32 v15, v14, v12")
            e("v_lshl_add_u32 v180, v15, 4, v11")
            e("v_add_u32 v14, 1, v14")
            e("v_xor_b32 v15, v14, v12")
            e(f"v_add_u32 v11, {P}, v11")
            e("v_lshl_add_u32 v182, v15, 4, v11")
        E1, E2, F1, F2, F1z, F2z, F1y, F2y, G0, G1, G2, Z = range(144, 156)
        e("v_bfe_u32 v11, v0, 2, 2")
        e("v_mul_u32_u24 v11, 48, v11")
        e("v_add_u32 v11, s33, v11")
        e("v_and_b32 v12, 3, v0")
        e("v_lshl_add_u32 v11, v12, 3, v11")
        e("v_mul_u32_u24 v13, 384, v4")
        e("v_mad_u32_u24 v13, v3, s30, v13")
        e("v_mul_u32_u24 v14, 384, v7")
        e("v_mad_u32_u24 v14, v6, s30, v14")
        e(f"v_add_u32 v{E1}, v11, v13")
        e(f"v_add_u32 v{E2}, v11, v14")
        e("v_cmp_lt_u32 vcc, 1, v12")
        e("s_add_u32 s30, s33, 3456")
        e(f"v_mov_b32 v{Z}, s30")
        e("v_mov_b32 v13, 32")
        e("v_mov_b32 v14, -4112")
        e("v_cndmask_b32 v13, v13, v14, vcc")
        e("v_cndmask_b32 v15, 0, 1, vcc")
        e(f"v_add_u32 v{F1}, v{E1}, v13")
        e(f"v_add_u32 v{F2}, v{E2}, v13")
        e(f"v_cndmask_b32 v{F1z}, v{F1}, v{Z}, vcc")
        e(f"v_cndmask_b32 v{F2z}, v{F2}, v{Z}, vcc")
        e(f"v_add_u32 v{F1y}, 12288, v{F1}")
        e(f"v_add_u32 v{F2y}, 12288, v{F2}")
        e(f"v_cndmask_b32 v{F1y}, v{Z}, v{F1y}, vcc")
        e(f"v_cndmask_b32 v{F2y}, v{Z}, v{F2y}, vcc")
        e("v_lshl_add_u32 v11, v2, 12, v11")
        e("v_add_u32 v11, 3072, v11")
        e("v_sub_u32 v15, v2, v15")
        e("v_cmp_gt_u32 vcc, 3, v15")
        e(f"v_add_u32 v{G1}, v11, v13")
        e(f"v_add_u32 v{G2}, -4080, v11")
        e(f"v_cndmask_b32 v{G1}, v{Z}, v{G1}, vcc")
        e("v_cmp_gt_u32 vcc, 3, v2")
        e("s_nop 1")
        e(f"v_cndmask_b32 v{G0}, v{Z}, v11, vcc")
        e("v_cmp_lt_u32 vcc, 0, v2")
        e("s_nop 0")
        e("v_mov_b32 v10, 1")
        e(f"v_cndmask_b32 v{G2}, v{Z}, v{G2}, vcc")

        def tr(key, a, off):
            w = W[key]
            e(f"ds_read_b64_tr_b16 v[{w}:{w + 1}], v{a} offset:{off}")
            e(f"ds_read_b64_tr_b16 v[{w + 2}:{w + 3}], v{a} offset:{off + 192}")

        e("s_waitcnt vmcnt(8)")
        self.stamp()
        tr(("U0", 0), E1, 0); tr(("U1", 0), E2, 0); tr(("U0", 1), F1z, 0); tr(("U1", 1), F2z, 0)
        tr(("U2", 2), E1, 16); tr(("U3", 2), E2, 16)
        e("s_waitcnt vmcnt(4)")
        tr(("U2", 0), E1, 4096); tr(("U3", 0), E2, 4096); tr(("U2", 1), F1, 4096); tr(("U3", 1), F2, 4096)
        tr(("L0", 2), E1, 4112); tr(("L1", 2), E2, 4112)
        e("s_waitcnt vmcnt(0)")
        self.stamp()
        tr(("X", 0), G0, 0); tr(("X", 1), G1, 0); tr(("X", 2), G2, 0)
        tr(("L0", 0), E1, 8192); tr(("L1", 0), E2, 8192); tr(("L0", 1), F1, 8192); tr(("L1", 1), F2, 8192)
        tr(("L2", 1), F1y, 0); tr(("L3", 1), F2y, 0); tr(("L2", 2), E1, 8208); tr(("L3", 2), E2, 8208)
        e("ds_write_b32 v8, v10")
        self.diag_mark("kw")
        self.stamp()
        if o.nocomp:
            self.stamp_flush()
            self.lab("L_end")
            e("s_endpgm")
            return
        if o.cstamp == 2:
            e("s_waitcnt lgkmcnt(0)")
            e("s_mov_b32 s94, s46")
        self.lab("L_c_loop")
        slow = []
        c1 = len(self.phases[0][2])
        ntot = 7 * sum(len(p[2]) for p in self.phases)

        def need(T, s):
            if o.order == "A" or T < 2:
                return c1 * (s + 2)
            return 7 * c1 + len(self.phases[1][2]) * (s + 2)

        def pair_reads(st, off):
            b = SET[st]
            return [f"ds_read_b128 v[{b}:{b + 3}], v{A1} offset:{off}",
                    f"ds_read_b128 v[{b + 4}:{b + 7}], v{A2} offset:{off}",
                    f"ds_read_b128 v[{b + 8}:{b + 11}], v{A1} offset:{off + P}",
                    f"ds_read_b128 v[{b + 12}:{b + 15}], v{A2} offset:{off + P}"]

        def epilogue(acc, off, wr):
            r = []
            for t in range(3):
                a = ACC(acc, t)
                r.append(f"v_cvt_pk_bf16_f32 v{PK + 2 * t}, v{a}, v{a + 1}")
                r.append(f"v_cvt_pk_bf16_f32 v{PK + 2 * t + 1}, v{a + 2}, v{a + 3}")
                if wr == 32:
                    r.append(f"ds_write_b32 v{ST[t]}, v{PK + 2 * t} offset:{off}")
                    r.append(f"ds_write_b32 v{ST[t]}, v{PK + 2 * t + 1} offset:{off + 4}")
                else:
                    r.append(f"ds_write_b64 v{ST[t]}, v[{PK + 2 * t}:{PK + 2 * t + 1}] offset:{off}")
            r.append("ds_write_b32 v8, v10")
            return r

        if o.modes == "q":
            return self.loop_q(ops, W, SET, XR, ACC, PK, A1, A2, AX, ST, c1, ntot)
        seen_upto = 0
        fpending = None
        modes = o.modes.split(",")
        loop = o.loop
        if loop:
            del self.L[-1]
            e("s_mov_b32 s37, 0")
            e("v_and_b32 v11, -9, v9")
            if o.hf:
                e("v_lshl_add_u32 v11, s43, 3, v11")
            e("v_mov_b32 v5, 0")
            if o.order != "A":
                e(f"s_mov_b32 s35, {2 * c1}")
                e(f"s_mov_b32 s34, {2 * c1}")
            self.lab("L_c_loop")
        nb = len(modes) if loop else 3
        seq = o.seq
        for T in range(nb):
            md = modes[T]
            if loop and T:
                self.lab(f"L_c_loop{T}")
            for s in range(6):
                u = 6 * T + s
                if o.prof and o.cstamp == 2:
                    e(f"s_memtime s[{16 + 4 * u}:{17 + 4 * u}]")
                    e(f"s_memrealtime s[{18 + 4 * u}:{19 + 4 * u}]")
                elif o.prof and o.cstamp:
                    self.stamp_now(22, u)
                    self.stamp_now(40, u, real=True)
                U, Lo = s & 1, (s & 1) ^ 1
                acc = s & 1 if md == "n" else 0
                nd = need(0 if loop else T, s)
                if loop and o.order != "A" and s == 0:
                    e("v_cmp_gt_i32 vcc, s35, v5")
                    e(f"s_cbranch_vccnz L_c_slow{u}")
                    self.lab(f"L_c_ready{u}")
                    slow.append((u, "s35"))
                    e("s_mov_b32 s35, s34")
                    e(f"s_mov_b32 s34, {ntot}")
                    seen_upto = 99
                elif loop:
                    e(f"v_cmp_gt_i32 vcc, {nd}, v5")
                    e(f"s_cbranch_vccnz L_c_slow{u}")
                    self.lab(f"L_c_ready{u}")
                    slow.append((u, nd))
                    seen_upto = 99
                elif nd > seen_upto:
                    if fpending is not None:
                        e(f"s_waitcnt lgkmcnt({fpending})")
                        if loop:
                            nd_ = "s36"
                        else:
                            nd_ = nd
                        e(f"v_cmp_gt_i32 vcc, {nd_}, v5")
                        e(f"s_cbranch_vccnz L_c_slow{u}")
                        self.lab(f"L_c_ready{u}")
                        slow.append((u, nd_))
                    else:
                        self.poll(9, 5, nd, sleep=o.csleep)
                    seen_upto = nd
                fpending = None
                if s == 0 and o.diag in ("k0", "k1", "k2"):
                    e(f"s_cmp_lg_u32 s37, {o.diag[1]}")
                    e("s_cbranch_scc1 L_nomark")
                    e("s_memrealtime s[90:91]")
                    self.lab("L_nomark")
                if s == 0 and o.prof and not o.cstamp:
                    self.stamp_now(24, "s37" if loop else T, real=(o.prof == 2))
                ro = (s & 1) * 2 * P
                rd = (pair_reads(0, 0) if s == 0 else []) + pair_reads(Lo, ro + 2 * P)
                rd.append(f"ds_read_b128 v[{XR}:{XR + 3}], v{AX} offset:{ro}")
                post = []
                if s & 1:
                    adv = 4 * P if s < 5 else "s38" if o.hf else (-3072 if o.defer else 3072) - 8 * P
                    post = [f"v_add_u32 v{r}, {adv}, v{r}" for r in (A1, A2, AX)] if (u < 17 or loop) else []
                inter = []
                if md in ("r", "n") and s > 0:
                    inter = [[x] for x in rd]
                else:
                    for x in rd:
                        e(x)
                    if s == 0:
                        e("s_waitcnt lgkmcnt(5)")
                nxt_need = need(T, s + 1) if s < 5 else (need(T + 1, 0) if T < 2 else 0)
                want_f = md != "p" and nxt_need > seen_upto
                if loop:
                    if o.defer:
                        if s == o.defer - 1:
                            post = post + ["s_cmp_eq_u32 s37, 3"]
                        if s == 5 - o.defer:
                            post = post + ["s_cmp_eq_u32 s37, 0"]
                        if s == 5:
                            post = post + ["s_add_u32 s37, s37, 1", "s_cmp_eq_u32 s37, 2"]
                    elif s == 5:
                        post = post + ["s_add_u32 s37, s37, 1", "v_mov_b32 v11, v9", "s_cmp_eq_u32 s37, 1", "s_cselect_b32 s36, 0, -1",
                                       "v_and_b32 v5, s36, v5", "s_cmp_lt_u32 s37, 3"]
                        if nb == 2:
                            post[-1] = f"s_bitcmp1_b32 {sum(1 << k for k in range(3) if o.seq[k] == '0')}, s37"
                    if o.order != "A" and s == 0:
                        pre0 = True
                defer = []
                if md == "n" and s > 0:
                    defer = ["v_add_u32 v10, 1, v10"] + epilogue(acc ^ 1, ((s - 1) & 1) * 2 * P, o.wrn)
                    if not s & 1:
                        defer += [f"v_add_u32 v{r}, {4 * P}, v{r}" for r in ST]
                seen = set()
                seq = [(k, SET[U] + 4 * int(k[0][1])) for k in ops[:10]] + [(k, SET[Lo] + 4 * int(k[0][1])) for k in ops[13:]] + [(k, XR) for k in ops[10:13]]
                behind = 0
                for g, (k, b) in enumerate(seq):
                    if g == 10:
                        e(f"s_waitcnt lgkmcnt({behind})")
                    t = k[1]
                    a = ACC(acc, t)
                    cin = f"v[{a}:{a + 3}]" if t in seen else "0"
                    seen.add(t)
                    e(f"v_mfma_f32_16x16x32_bf16 v[{a}:{a + 3}], v[{W[k]}:{W[k] + 3}], v[{b}:{b + 3}], {cin}")
                    cap = 2
                    if inter:
                        e(inter.pop(0)[0])
                        cap -= 1
                    elif post and not defer:
                        while post and cap:
                            e(post.pop(0))
                            cap -= 1
                    while defer and cap and g >= 2 and g != 9:
                        isw = defer[0].startswith("ds_write")
                        if isw and cap < 2:
                            break
                        x = defer.pop(0)
                        e(x)
                        cap -= 2 if isw else 1
                        if isw and g < 10:
                            behind += 1
                assert not defer and not inter, (u, defer)
                fill = list(post)
                if md != "n" or s == 5:
                    fill.append("v_add_u32 v10, 1, v10")
                    if want_f:
                        fill.append("ds_read_b32 v5, v9")
                    for x in fill:
                        e(x)
                    if len(fill) < 6:
                        e(f"s_nop {5 - len(fill)}")
                    ep = epilogue(acc, (s & 1) * 2 * P, o.wr)
                    for x in ep:
                        e(x)
                    if want_f:
                        fpending = sum(1 for x in ep if x.startswith("ds_"))
                    if s & 1 and (u < 17 or loop):
                        adv = 4 * P if s < 5 else "s38" if o.hf else (-3072 if o.defer else 3072) - 8 * P
                        for r in ST:
                            e(f"v_add_u32 v{r}, {adv}, v{r}")
                    if o.defer and s in (o.defer - 1, 5 - o.defer):
                        e("s_cbranch_scc1 L_c_stub")
                    if loop and nb == 2 and s == 5:
                        e("s_cbranch_scc1 L_c_loop")
                        e("s_cmp_lt_u32 s37, 3")
                        if T == 0:
                            e("s_cbranch_scc0 L_c_done")
                        else:
                            e("s_cbranch_scc1 L_c_loop1")
                            self.lab("L_c_done")
                else:
                    for x in fill:
                        e(x)
                    if want_f:
                        e("ds_read_b32 v5, v9")
                        fpending = 0
                    if o.defer and s in (o.defer - 1, 5 - o.defer):
                        e("s_cbranch_scc1 L_c_stub")
        if loop and nb == 1:
            e("s_cbranch_scc1 L_c_loop")
        if o.defer:
            D = o.defer
            for r in (A1, A2, AX):
                e(f"v_add_u32 v{r}, {(12 - 2 * D) * P}, v{r}")
            for t in range(3):
                back = 2 * D * P if md == "n" else (2 * P if D == 1 else 0)
                e(f"v_add_u32 v{ST[t]}, {back}, v{180 + t}")
            e("s_branch L_c_loop")
            self.lab("L_c_stub")
            if md == "n":
                e("v_add_u32 v10, 1, v10")
            e("s_cmp_eq_u32 s37, 0")
            e("s_mov_b32 s37, 1")
            e("v_mov_b32 v11, v9")
            e("v_mov_b32 v5, 0")
            if md == "n":
                for x in epilogue((D - 1) & 1, ((D - 1) & 1) * 2 * P, o.wr):
                    e(x)
            for r in (A1, A2, AX):
                e(f"v_add_u32 v{r}, {6144 - 8 * P}, v{r}")
            for t in range(3):
                e(f"v_swap_b32 v{ST[t]}, v{180 + t}")
            e("s_cbranch_scc1 L_c_loop")
        if o.cstamp == 2:
            e("s_memtime s[88:89]")
            e("s_waitcnt lgkmcnt(0)")
            for u in range(18):
                e(f"v_writelane_b32 v{PV}, s{16 + 4 * u}, {22 + u}")
                e(f"v_writelane_b32 v{PV}, s{18 + 4 * u}, {40 + u}")
            e("s_mov_b32 s46, s94")
            e("s_mov_b32 s48, s88")
            self.nstamp = 2
        else:
            self.stamp()
        self.stamp_flush()
        if o.diag.startswith("k"):
            self.diag_mark("kend")
            self.diag_end(True)
        self.lab("L_end")
        e("s_endpgm")
        for u, nd in slow:
            self.lab(f"L_c_slow{u}")
            self.poll(11 if loop else 9, 5, nd, sleep=o.csleep)
            e(f"s_branch L_c_ready{u}")

        self.lab("L_code_end")

    def loop_q(self, ops, W, SET, XR, ACC, PK, A1, A2, AX, ST, c1, ntot):
        e, o = self.e, self.o
        assert o.hf or o.order == "A"
        del self.L[-1]
        q = []

        def rd(tag, reg, a, off):
            return ("ds", tag, f"ds_read_b128 v[{reg}:{reg + 3}], v{a} offset:{off}")

        def pair(k, st, off):
            b = SET[st]
            return [rd(("P", k, 0), b, A1, off), rd(("P", k, 1), b + 4, A2, off),
                    rd(("P", k, 2), b + 8, A1, off + P), rd(("P", k, 3), b + 12, A2, off + P)]

        def emit(it):
            e(it[2])
            if it[0] in ("ds", "dw"):
                q.append(it[1])

        def wait_for(tags):
            ix = [q.index(t) for t in tags if t in q]
            if not ix:
                return 0
            e(f"s_waitcnt lgkmcnt({len(q) - 1 - max(ix)})")
            del q[: max(ix) + 1]
            return 1

        def epilogue(acc, off, wr):
            r = []
            for t in range(3):
                a = ACC(acc, t)
                r.append(("v", None, f"v_cvt_pk_bf16_f32 v{PK + 2 * t}, v{a}, v{a + 1}"))
                r.append(("v", None, f"v_cvt_pk_bf16_f32 v{PK + 2 * t + 1}, v{a + 2}, v{a + 3}"))
                if wr == 32:
                    r.append(("dw", ("W",), f"ds_write_b32 v{ST[t]}, v{PK + 2 * t} offset:{off}"))
                    r.append(("dw", ("W",), f"ds_write_b32 v{ST[t]}, v{PK + 2 * t + 1} offset:{off + 4}"))
                else:
                    r.append(("dw", ("W",), f"ds_write_b64 v{ST[t]}, v[{PK + 2 * t}:{PK + 2 * t + 1}] offset:{off}"))
            r.append(("dw", ("W",), "ds_write_b32 v8, v10"))
            return r

        e("s_mov_b32 s37, 0")
        e("v_and_b32 v11, -9, v9")
        if o.hf:
            e("v_lshl_add_u32 v11, s43, 3, v11")
            e(f"s_sub_u32 s39, s38, {4 * P}")
        else:
            e(f"s_mov_b32 s39, {3072 - 12 * P}")
        e("s_mov_b32 s33, 0")
        e(f"s_add_u32 s32, s39, {12 * P}")
        for t in range(3):
            e(f"v_mov_b32 v{180 + t}, v{ST[t]}")
            e(f"v_mov_b32 v{ST[t]}, {FLAGS + 64 - 2 * P}")
        e(f"s_mov_b32 s35, {2 * c1}")
        e(f"s_mov_b32 s34, {ntot if o.order != 'A' else 2 * c1}")
        self.poll(11, 5, 2 * c1, sleep=o.csleep)
        for it in pair(0, 0, 0) + [rd(("X", 0), XR, AX, 0)]:
            emit(it)
        for r in (A1, A2, AX):
            e(f"v_add_u32 v{r}, {2 * P}, v{r}")
        wait_for([("P", 0, 3)])
        self.lab("L_c_loop")
        slow = []
        for s in range(6):
            if s == 0 and o.prof:
                self.stamp_now(24, "s37", real=(o.prof == 2))
                q.clear()
            U, Lo = s & 1, (s & 1) ^ 1
            acc = s & 1
            up = [(k, SET[U] + 4 * int(k[0][1])) for k in ops[:10]]
            xs = [(k, XR) for k in ops[10:13]]
            lo = [(k, SET[Lo] + 4 * int(k[0][1])) for k in ops[13:]]
            sq = up + xs + lo if s < 5 else lo + xs + up
            pin = {g: [] for g in range(23)}
            if s < 5:
                pr, xr = pair(s + 2, U, 2 * P), rd(("X", s + 1), XR, AX, 0)
            else:
                pr, xr = pair(0, Lo, 0), rd(("X", 0), XR, AX, 0)
                pin[0] += [("v", None, f"v_add_u32 v{AX}, s39, v{AX}"), ("v", None, f"v_add_u32 v{A1}, s39, v{A1}")]
                pin[1] += [("v", None, f"v_add_u32 v{A2}, s39, v{A2}"), ("s", None, "s_add_u32 s37, s37, 1")]
                pin[2] += [("s", None, "s_cmp_eq_u32 s37, 1"), ("s", None, "s_cselect_b32 s36, 0, -1")]
                pin[3] += [("v", None, "v_and_b32 v5, s36, v5"), ("v", None, "v_mov_b32 v11, v9")]
                pin[17] += [("s", None, "s_mov_b32 s35, s34"), ("s", None, "s_cmp_lt_u32 s37, 3")]
            if s == 1:
                pin[0] += [("s", None, "s_add_u32 s33, s33, s32")]
            if s == 3:
                pin[21] += [("s", None, "s_cmp_lt_u32 s37, 2"), ("s", None, f"s_cselect_b32 s39, s39, {-12 * P}")]
            for i_, it in enumerate(pr):
                pin[10 + i_].append(it)
            pin[14].append(xr)
            pin[15] += [("v", None, f"v_add_u32 v{A1}, {2 * P}, v{A1}"), ("v", None, f"v_add_u32 v{A2}, {2 * P}, v{A2}")]
            pin[16] += [("v", None, f"v_add_u32 v{AX}, {2 * P}, v{AX}")]
            if s == 0:
                for i_, it in enumerate(pair(1, 1, 0)):
                    pin[1 + i_].append(it)
            flow = epilogue(acc ^ 1, ((s - 1) & 1) * 2 * P, o.wrn) + [("v", None, "v_add_u32 v10, 1, v10")]
            if s == 0:
                flow += [("v", None, f"v_add_u32 v{ST[t]}, s33, v{180 + t}") for t in range(3)]
            elif not s & 1:
                flow += [("v", None, f"v_add_u32 v{r}, {4 * P}, v{r}") for r in ST]
            seen = set()
            for g, (k, b) in enumerate(sq):
                t = k[1]
                a = ACC(acc, t)
                cin = f"v[{a}:{a + 3}]" if t in seen else "0"
                seen.add(t)
                e(f"v_mfma_f32_16x16x32_bf16 v[{a}:{a + 3}], v[{W[k]}:{W[k] + 3}], v[{b}:{b + 3}], {cin}")
                cap = 2
                if g == 8:
                    cap -= wait_for([("X", s)] + ([("P", s + 1, 3)] if 0 < s < 5 else []))
                    nd = c1 * (s + 3) if s < 5 else "s35"
                    e(f"v_cmp_gt_i32 vcc, {nd}, v5")
                    cap = 0
                if g == 9:
                    e(f"s_cbranch_vccnz L_c_slow{s}")
                    self.lab(f"L_c_ready{s}")
                    slow.append((s, nd))
                    cap -= 1
                if s == 0 and g == 12:
                    cap -= wait_for([("P", 1, 3)])
                if s in (4, 5) and g == 22:
                    cap -= wait_for([("P", 6, 3)] if s == 4 else [("P", 0, 3)])
                for it in pin[g]:
                    emit(it)
                    cap -= 1
                while flow and g >= 2 and cap > 0:
                    pick = None
                    ndw = sum(1 for f in flow if f[0] == "dw")
                    for ix, f in enumerate(flow):
                        if f[0] == "dw":
                            cv = [re.match(r"v_cvt\S+ v(\d+)", h[2]).group(1) for h in flow[:ix] if "v_cvt" in h[2]]
                            if cap >= 2 and not any(c in self.srcs(f[2]) for c in cv) and not ("v8" in f[2] and cv):
                                pick = ix
                            break
                    if pick is None:
                        for ix, f in enumerate(flow):
                            if f[0] != "dw" and ("v_cvt" in f[2] or ndw == 0):
                                pick = ix
                                break
                    if pick is None:
                        break
                    it = flow.pop(pick)
                    emit(it)
                    cap -= 2 if it[0] == "dw" else 1
            assert not flow, (s, flow)
        e("s_cbranch_scc1 L_c_loop")
        e("s_nop 5")
        for it in epilogue(1, 2 * P, o.wr):
            e(it[2])
        self.stamp()
        self.stamp_flush()
        self.lab("L_end")
        e("s_endpgm")
        for u, nd in slow:
            self.lab(f"L_c_slow{u}")
            self.poll(11, 5, nd, sleep=o.csleep)
            e(f"s_branch L_c_ready{u}")
        self.lab("L_code_end")

    @staticmethod
    def srcs(txt):
        m = re.search(r", v\[(\d+):(\d+)\]", txt)
        if m:
            return [str(r) for r in range(int(m.group(1)), int(m.group(2)) + 1)]
        return [re.search(r", v(\d+)", txt).group(1)]

    def check_mfma_hazards(self):
        L = [l.strip() for l in self.L]
        if "L_c_loop:" not in L:
            return
        i = L.index("L_c_loop:")
        k = L.index("L_end:")
        jj = [n for n, l in enumerate(L) if l == "s_cbranch_scc1 L_c_loop"]
        for seqn in [L[i:k]] + ([L[i:jj[-1] + 1] * 2] if jj else []):
            pend = {}
            pos = 0
            for l in seqn:
                if l.endswith(":"):
                    continue
                regs = set()
                for m in re.finditer(r"v\[(\d+):(\d+)\]|v(\d+)", l.split(None, 1)[1] if " " in l else ""):
                    if m.group(3):
                        regs.add(int(m.group(3)))
                    else:
                        regs.update(range(int(m.group(1)), int(m.group(2)) + 1))
                if l.startswith("v_mfma"):
                    m = re.match(r"v_mfma\S+ v\[(\d+):(\d+)\]", l)
                    for r in range(int(m.group(1)), int(m.group(2)) + 1):
                        pend[r] = pos
                else:
                    for r in regs:
                        if r in pend:
                            assert pos - pend[r] - 1 >= 8, (l, pos - pend[r] - 1)
                m = re.match(r"s_nop (\d+)", l)
                pos += int(m.group(1)) + 1 if m else 1

    def build(self):
        self.prologue()
        self.helper()
        self.compute()
        self.check_mfma_hazards()
        if self.o.drop:
            i = self.L.index("L_c_loop:")
            j = self.L.index("L_end:")
            pats = self.o.drop.split(",")
            self.L = self.L[:i] + [l for l in self.L[i:j] if not any(l.strip().startswith(p) for p in pats)] + self.L[j:]
        return HEADER + "\n".join(self.L) + "\n" + FOOTER.format(vgpr=188, acc=188)


def main():
    p = argparse.ArgumentParser()
    p.add_argument("-o", default="-")
    p.add_argument("--prof", type=int, default=0)
    p.add_argument("--hflip", type=int, default=1)
    p.add_argument("--win", type=int, default=11)
    p.add_argument("--barpair", type=int, default=2)
    p.add_argument("--ldflags", default="nt")
    p.add_argument("--wflags", default="")
    p.add_argument("--stflags", default="sc0 sc1 nt")
    p.add_argument("--prio_loader", type=int, default=0)
    p.add_argument("--prio_comp", type=int, default=0)
    p.add_argument("--nocomp", type=int, default=0)
    p.add_argument("--noload", type=int, default=0)
    p.add_argument("--cstamp", type=int, default=0)
    p.add_argument("--drop", default="")
    p.add_argument("--wr", type=int, default=64)
    p.add_argument("--estart", type=int, default=2)
    p.add_argument("--diag", default="")
    p.add_argument("--now", type=int, default=0)
    p.add_argument("--stwait", type=int, default=0)
    p.add_argument("--stwin", type=int, default=0)
    p.add_argument("--pad", type=int, default=0)
    p.add_argument("--padk", type=int, default=1)
    p.add_argument("--padmask", type=int, default=7)
    p.add_argument("--fpre", type=int, default=0)
    p.add_argument("--csleep", type=int, default=1)
    p.add_argument("--eflag", type=int, default=0)
    p.add_argument("--rdint", type=int, default=0)
    p.add_argument("--sched", default="plain")
    p.add_argument("--stag", type=int, default=0)
    p.add_argument("--stagw", type=int, default=2)
    p.add_argument("--gate", type=int, default=0)
    p.add_argument("--gsleep", type=int, default=4)
    p.add_argument("--padper", default="")
    p.add_argument("--nostore", type=int, default=0)
    p.add_argument("--jmask", type=int, default=0)
    p.add_argument("--cls", default="1,2,3,4")
    p.add_argument("--order", default="C")
    p.add_argument("--modes", default="n")
    p.add_argument("--loop", type=int, default=1)
    p.add_argument("--winl", type=int, default=9)
    p.add_argument("--winr", type=int, default=11)
    p.add_argument("--prio_left", type=int, default=0)
    p.add_argument("--tlbw", type=int, default=0)
    p.add_argument("--tlbf", default="nt")
    p.add_argument("--defer", type=int, default=0)
    p.add_argument("--wrn", type=int, default=64)
    p.add_argument("--hf", type=int, default=1)
    p.add_argument("--seq", default="010")
    p.add_argument("--ipf", type=int, default=0)
    p.add_argument("--ipfh", type=int, default=0)
    p.add_argument("--early", type=int, default=0)
    p.add_argument("--fevery", type=int, default=0)
    p.add_argument("--two", type=int, default=0)
    p.add_argument("--rdint2", type=int, default=1)
    p.add_argument("--sleep", type=int, default=2)
    o = p.parse_args()
    s = Gen(o).build()
    if o.o == "-":
        sys.stdout.write(s)
    else:
        open(o.o, "w").write(s)


if __name__ == "__main__":
    main()
```

```python
import argparse
import re
import sys

ROWB = 73728
XBYTES = 28311552
WBYTES = 41472
P = 9728
LDS_TOTAL = 163840
FLAGS = LDS_TOTAL - 256
WSZ = 12288
WREG = FLAGS - 4 * WSZ

HEADER = """; Kernarg layout for this problem (40 bytes, ptrs only, base s[0:1]):
; @launch grid=(256,1,1) block=(512,1,1) lds=163840
.amdgcn_target "amdgcn-amd-amdhsa--gfx950"
.text
.globl standalone__grouped__vision_kernel
.p2align 8
.type standalone__grouped__vision_kernel,@function
standalone__grouped__vision_kernel:
"""

FOOTER = """.section .rodata,"a"
.p2align 6
.amdhsa_kernel standalone__grouped__vision_kernel
  .amdhsa_next_free_vgpr {vgpr}
  .amdhsa_next_free_sgpr 102
  .amdhsa_accum_offset {acc}
  .amdhsa_group_segment_fixed_size 0
  .amdhsa_kernarg_size 40
  .amdhsa_user_sgpr_count 2
  .amdhsa_user_sgpr_kernarg_segment_ptr 1
  .amdhsa_system_sgpr_workgroup_id_x 1
.end_amdhsa_kernel
"""

PV = 187


class Gen:
    def __init__(self, o):
        self.o = o
        self.L = []
        self.nstamp = 0
        self.nlab = 0

    def e(self, s):
        self.L.append("    " + s)

    def lab(self, s):
        self.L.append(s + ":")

    def newlab(self, p):
        self.nlab += 1
        return f"L_{p}{self.nlab}"

    def stamp(self):
        if not self.o.prof:
            return
        k = self.nstamp
        self.nstamp += 1
        assert k < 22
        self.e(f"s_mem{'real' if self.o.prof == 2 else ''}time s[{46 + 2 * k}:{47 + 2 * k}]")

    def stamp_now(self, base, ctr, real=False):
        if not self.o.prof:
            return
        self.e("s_memrealtime s[96:97]" if real else "s_memtime s[96:97]")
        self.e("s_waitcnt lgkmcnt(0)")
        self.e("s_mov_b32 s95, m0")
        if isinstance(ctr, str):
            self.e(f"s_cselect_b32 s94, 1, 0")
            self.e(f"s_add_u32 m0, {ctr}, {base}")
            self.e(f"s_cmp_lg_u32 s94, 0")
        else:
            self.e(f"s_mov_b32 m0, {base + ctr}")
        self.e(f"v_writelane_b32 v{PV}, s96, m0")
        self.e("s_mov_b32 m0, s95")

    def stamp_flush(self):
        if not self.o.prof:
            return
        e = self.e
        e("s_mov_b64 exec, -1")
        e("s_waitcnt lgkmcnt(0)")
        e("s_load_dwordx2 s[40:41], s[0:1], 32")
        e("s_lshl_b32 s42, s2, 3")
        e("s_add_u32 s42, s42, s3")
        e("s_lshl_b32 s42, s42, 8")
        e("v_lshl_add_u32 v1, v0, 2, s42")
        for k in range(self.nstamp):
            e(f"v_writelane_b32 v{PV}, s{46 + 2 * k}, {k}")
        e(f"s_mov_b32 s42, {self.nstamp}")
        e(f"v_writelane_b32 v{PV}, s42, 63")
        e("s_getreg_b32 s42, hwreg(HW_REG_XCC_ID)")
        e(f"v_writelane_b32 v{PV}, s42, 62")
        e(f"v_writelane_b32 v{PV}, s92, 60")
        if self.o.prof == 2:
            e(f"v_writelane_b32 v{PV}, s86, 57")
            e(f"v_writelane_b32 v{PV}, s84, 56")
            e(f"v_writelane_b32 v{PV}, s82, 55")
        e("s_memrealtime s[92:93]")
        e("s_waitcnt lgkmcnt(0)")
        e(f"v_writelane_b32 v{PV}, s92, 59")
        e(f"global_store_dword v1, v{PV}, s[40:41]")

    def diag_mark(self, name):
        d = self.o.diag
        if d == name:
            self.e("s_memrealtime s[90:91]")
        if d == "c" + name:
            self.e("s_memtime s[90:91]")

    def diag_end(self, comp=False):
        o, e = self.o, self.e
        if not o.diag or o.diag.startswith("k") != comp:
            return
        e("s_waitcnt vmcnt(0) lgkmcnt(0)")
        self.diag_mark("end")
        e("s_waitcnt lgkmcnt(0)")
        if o.diag == "rt":
            e("s_mov_b32 s42, 0")
        elif o.diag.startswith("c"):
            e("s_sub_u32 s42, s90, s88")
            e("s_lshr_b32 s42, s42, 2")
        else:
            e("s_sub_u32 s42, s90, s92")
            e("s_mul_i32 s42, s42, 4")
        e("s_add_u32 s42, s42, 4000")
        self.lab("L_dg")
        e("s_memrealtime s[40:41]")
        e("s_waitcnt lgkmcnt(0)")
        e("s_sub_u32 s40, s40, s92")
        e("s_cmp_lt_u32 s40, s42")
        e("s_cbranch_scc1 L_dg")

    def poll(self, vaddr, vtmp, sneed, sleep=1):
        e = self.e
        l = self.newlab("poll")
        d = self.newlab("pdone")
        self.lab(l)
        e(f"ds_read_b32 v{vtmp}, v{vaddr}")
        e("s_waitcnt lgkmcnt(0)")
        e(f"v_cmp_gt_i32 vcc, {sneed}, v{vtmp}")
        e(f"s_cbranch_vccz {d}")
        if sleep:
            e(f"s_sleep {sleep}")
        e(f"s_branch {l}")
        self.lab(d)

    def prologue(self):
        e = self.e
        e("s_cmp_ge_u32 s2, 256")
        e("s_cbranch_scc1 L_end")
        e("s_load_dwordx4 s[4:7], s[0:1], 0")
        e("s_load_dwordx2 s[8:9], s[0:1], 16")
        if self.o.prof or self.o.diag:
            e("s_memrealtime s[92:93]")
        if self.o.diag:
            e("s_memtime s[88:89]")
        self.stamp()
        if self.o.prof:
            e(f"v_mov_b32 v{PV}, 0")
        e("v_lshrrev_b32 v1, 6, v0")
        e("v_and_b32 v0, 63, v0")
        e(f"v_mov_b32 v3, {FLAGS}")
        e("v_readfirstlane_b32 s3, v1")
        e("v_xor_b32 v2, 4, v1")
        e("v_lshl_add_u32 v8, v2, 2, v3")
        e("v_mov_b32 v2, 0")
        e("ds_write_b32 v8, v2")
        e("v_and_b32 v2, 3, v0")
        e("v_lshl_add_u32 v9, v2, 2, v3")
        e("s_bfe_u32 s26, s2, 0x10005")
        e("s_bfe_u32 s43, s2, 0x10003" if self.o.hf else "s_mov_b32 s43, 0")
        e("s_cmp_lt_u32 s3, 4")
        e("s_cbranch_scc1 L_compute")

    def helper(self):
        e, o = self.e, self.o
        self.lab("L_helper")
        if o.prio_loader:
            e(f"s_setprio {o.prio_loader}")
        Wn = o.win
        phases = {"A": [(0, 304, [64, 64, 64, 64, 48])],
                  "B": [(0, 224, [56] * 4), (448, 80, [40] * 2)],
                  "C": [(0, 256, [64] * 4), (512, 48, [48])],
                  "M": [(0, 352, [64] * 4), (256, 48, [48])],
                  "N": [(0, 384, [56] * 4), (224, 80, [40] * 2)]}[o.order]
        self.phases = phases
        ntot = 7 * sum(len(p[2]) for p in phases)
        e("s_and_b32 s10, s2, 1")
        e("s_lshl_b32 s10, s10, 2")
        e("s_bfe_u32 s11, s2, 0x20003")
        e("s_add_u32 s10, s10, s11")
        e("s_bfe_u32 s11, s2, 0x20001")
        e("s_lshl_b32 s11, s11, 3")
        e("s_lshr_b32 s24, s2, 5")
        e("s_add_u32 s11, s11, s24")
        e("s_mul_i32 s25, s11, 12")
        e("s_mul_i32 s24, s10, 9216")
        e("s_and_b32 s30, s3, 1")
        e("s_bfe_u32 s45, s3, 0x10001")
        e("v_lshrrev_b32 v1, 2, v0")
        e("v_bfrev_b32 v3, 1")

        def patterns(ph, first, last):
            st, half, lanes = ph
            mir = (608 - st - 2 * half) - st if len(phases) == 2 and o.hf else 0
            e(f"s_mul_i32 s33, s45, {half}")
            if mir:
                e(f"s_mul_i32 s28, s43, {mir}")
                e("s_add_u32 s33, s33, s28")
            if st:
                e(f"s_add_u32 s33, s33, {st}")
            e("s_lshr_b32 s28, s33, 2")
            e("s_add_u32 s28, s28, 2")
            e("v_add_u32 v4, s28, v1")
            e("s_lshl_b32 s33, s33, 4")
            off = 0
            for k, ln in enumerate(lanes):
                if off:
                    e(f"v_add_u32 v2, {off // 4}, v4")
                    e("v_mul_u32_u24 v2, 171, v2")
                else:
                    e("v_mul_u32_u24 v2, 171, v4")
                e("v_bfe_u32 v2, v2, 11, 2")
                e("v_xor_b32 v2, v2, v0")
                e(f"v_lshl_add_u32 v{10 + k}, v2, 4, s33")
                off += ln
            if len(lanes) == 5:
                e("v_add_u32 v14, 4096, v14")
            if first:
                e("s_add_u32 s28, s45, s10")
                e("s_cmp_eq_u32 s28, 0")
                e("s_cselect_b32 s32, 16, 0")
                e("v_cmp_gt_u32 vcc, s32, v0")
            e(f"s_mul_i32 s32, s30, {P}")
            e("s_add_u32 s33, s33, s32")
            if first:
                e("v_cndmask_b32 v10, v10, v3, vcc")
            if (first if (o.hf or o.order in "MN") else last):
                if not first:
                    e("s_add_u32 s28, s45, s10")
                e("s_cmp_eq_u32 s28, 8")
                e(f"s_cselect_b32 s28, {lanes[-1] - 16}, 64")
                e("v_cmp_le_u32 vcc, s28, v0")
                e("s_nop 1")
                e(f"v_cndmask_b32 v{9 + len(lanes)}, v{9 + len(lanes)}, v3, vcc")

        patterns(phases[0], True, len(phases) == 1)
        e("s_cmp_eq_u32 s26, 0")
        e("s_cselect_b32 s27, 1, -1")
        e("s_cselect_b32 s29, -1, 12")
        e(f"s_mul_i32 s27, s27, {ROWB}")
        e("s_add_i32 s29, s29, s25")
        e(f"s_mul_i32 s29, s29, {ROWB}")
        e("s_mul_i32 s28, s30, s27")
        e("s_add_i32 s29, s29, s28")
        e("s_lshl_b32 s35, s27, 1")
        cl = [int(x) for x in o.cls.split(",")]
        assert max(cl) <= 5
        e("s_bfe_u32 s44, s2, 0x20003")
        e("s_lshl_b32 s44, s44, 3")
        e(f"s_lshr_b32 s44, {hex(sum(c << (8 * i) for i, c in enumerate(cl)))}, s44")
        e("s_and_b32 s44, s44, 255")
        e("v_add_u32 v7, 16, v9")
        e("s_waitcnt lgkmcnt(0)")
        e("s_sub_u32 s12, s4, 256")
        e("s_subb_u32 s13, s5, 0")
        e(f"s_mov_b32 s14, {XBYTES + 256}")
        e("s_mov_b32 s15, 0x20000")
        self.stamp()
        self.diag_mark("karg")
        fl = o.ldflags
        if 0 in cl:
            e("s_cmp_lg_u32 s44, 0")
            e("s_cbranch_scc1 L_ld_start")
            e("s_barrier")
            self.lab("L_ld_start")
        if o.order == "A":
            self.load_A(phases, fl)
        else:
            Wn = o.winl
            n = 0
            c1, c2 = len(phases[0][2]), len(phases[1][2])
            e(f"v_mov_b32 v6, {-c1 * ((Wn - 1) // c1)}")
            for pi, ph in enumerate(phases):
                st, half, lanes = ph
                c = len(lanes)
                if pi:
                    if o.prof == 2:
                        e("s_memrealtime s[82:83]")
                    e("s_mov_b64 exec, -1")
                    patterns(ph, False, True)
                    e(f"v_mov_b32 v6, {7 * c1 - (Wn - 1) + (Wn - 1) % c}")
                e("s_mov_b32 s31, s29")
                e("s_mov_b32 s32, 0")
                if lanes[0] < 64:
                    e(f"s_mov_b32 exec_hi, {hex((1 << (lanes[0] - 32)) - 1)}")
                self.lab(f"L_ld_loop{pi}")
                e("s_add_u32 s34, s31, s24")
                e("s_cmp_lt_i32 s31, 0")
                e("s_cselect_b32 s34, 0x40000000, s34")
                e("s_mov_b32 m0, s33")
                e("s_add_i32 s31, s31, s35")
                off = 0
                for k, ln in enumerate(lanes):
                    e(f"s_waitcnt vmcnt({Wn - 1})")
                    if k == (Wn - 1) % c:
                        e("ds_write_b32 v8, v6")
                    e(f"buffer_load_dwordx4 v{10 + k}, s[12:15], s34 offen offset:{off * 16} {fl} lds")
                    off += ln
                e(f"v_add_u32 v6, {c}, v6")
                e(f"s_add_u32 s33, s33, {2 * P}")
                e("s_add_u32 s32, s32, 1")
                if pi == 0:
                    e("s_cmp_lg_u32 s32, s44")
                    e("s_cbranch_scc1 L_ld_nobar")
                    e("s_barrier")
                    self.lab("L_ld_nobar")
                    e("s_cmp_lg_u32 s32, 5")
                    e("s_cbranch_scc1 L_ld_nopoll")
                    self.poll(7, 5, 1)
                    self.lab("L_ld_nopoll")
                e("s_cmp_lt_u32 s32, 7")
                e(f"s_cbranch_scc1 L_ld_loop{pi}")
            for v in range(ntot - Wn + 1, ntot):
                if (v == 7 * c1 and o.early < 2) or (v < 7 * c1 and v % c1 == 0):
                    e(f"v_mov_b32 v2, {v}")
                    e(f"s_waitcnt vmcnt({ntot - v})")
                    e("ds_write_b32 v8, v2")
        self.lab("L_ld_tail")
        if o.prof == 2:
            e("s_memrealtime s[84:85]")
        if o.prio_loader or o.prio_left:
            e("s_setprio 0")
        e("s_mov_b64 exec, -1")
        e("s_and_b32 s30, s3, 3")
        e("s_mul_i32 s28, s30, 12")
        e("s_add_u32 s28, s28, 3")
        if o.hf:
            e("s_mul_i32 s32, s43, 6")
            e("s_add_u32 s28, s28, s32")
        e("v_add_u32 v2, s28, v1")
        e("v_mul_u32_u24 v2, 171, v2")
        e("v_bfe_u32 v2, v2, 11, 2")
        e("v_xor_b32 v2, v2, v0")
        e("s_mul_i32 s33, s30, 768")
        e("s_add_u32 s28, s33, 64")
        if o.hf:
            e("s_mul_i32 s32, s43, 6528")
            e("s_add_u32 s28, s28, s32")
            e("s_mul_i32 s32, s43, 6144")
            e("s_add_u32 s24, s24, s32")
            e("s_sub_u32 s36, 3072, s32")
            e(f"s_sub_u32 s38, s36, {12 * P}")
        e("v_lshl_add_u32 v10, v2, 4, s28")
        e("v_lshl_add_u32 v11, v0, 4, s33")
        if o.d2:
            e("s_mul_i32 s28, s30, 12")
            e("s_add_u32 s28, s28, 9")
            e("v_add_u32 v2, s28, v1")
            e("v_mul_u32_u24 v2, 171, v2")
            e("v_bfe_u32 v2, v2, 11, 2")
            e("v_xor_b32 v2, v2, v0")
            e("s_add_u32 s28, s33, 448")
            e("v_lshl_add_u32 v13, v2, 4, s28")
        e("s_cmp_eq_u32 s26, 0")
        e("s_cselect_b32 s29, 0, 11")
        e("s_add_i32 s29, s29, s25")
        e(f"s_mul_i32 s29, s29, {ROWB}")
        e("s_add_u32 s29, s29, s24")
        e("s_mov_b32 s20, s8")
        e("s_mov_b32 s21, s9")
        e(f"s_mov_b32 s22, {XBYTES}")
        e("s_mov_b32 s23, 0x20000")
        e("s_mov_b32 exec_hi, 0xffff")
        if not o.early:
            e(f"v_mov_b32 v2, {ntot}")
            e("s_waitcnt vmcnt(0)")
            e("ds_write_b32 v8, v2")
        self.stamp()
        self.diag_mark("ldone")
        self.stamp_now(58, 0, real=True)
        if o.nostore:
            self.stamp_flush()
            e("s_endpgm")
        e("s_mov_b32 s37, 2")
        if o.d2:
            e("s_mov_b32 s31, s29")
            e(f"s_mov_b32 s32, {8 - o.defer}")
        else:
            self.lab("L_st_strip")
            e("s_mov_b32 s31, s29")
            e("s_mov_b32 s32, 0")
        self.lab("L_st_loop")
        if not o.nocomp:
            e("v_cmp_gt_i32 vcc, s37, v5")
            e("s_cbranch_vccz L_st_go")
            self.poll(7, 5, "s37", sleep=o.sleep)
            self.lab("L_st_go")
        e("ds_read_b128 v[16:19], v10")
        e(f"ds_read_b128 v[20:23], v10 offset:{P}")
        e("s_add_i32 s34, s31, s27")
        e(f"v_add_u32 v10, {2 * P}, v10")
        e("s_add_u32 s37, s37, 1")
        if not o.d2:
            e("s_add_u32 s32, s32, 1")
        e("s_waitcnt lgkmcnt(1)")
        e(f"buffer_store_dwordx4 v[16:19], v11, s[20:23], s31 offen {o.stflags}")
        e("s_add_i32 s31, s34, s27")
        e("s_waitcnt lgkmcnt(0)")
        e(f"buffer_store_dwordx4 v[20:23], v11, s[20:23], s34 offen {o.stflags}")
        if o.early:
            ev = [(2 + o.early, ntot, 2 * o.early)]
            if o.early >= 2:
                ev.insert(0, (3, 28, ntot - 28 + 2))
            for sv, val, cnt in ev:
                e(f"s_cmp_lg_u32 s37, {sv}")
                e(f"s_cbranch_scc1 L_st_nf{val}")
                e(f"v_mov_b32 v2, {val}")
                e(f"s_waitcnt vmcnt({cnt})")
                e("ds_write_b32 v8, v2")
                self.lab(f"L_st_nf{val}")
        if o.prof == 2:
            e("s_cmp_lg_u32 s37, 3")
            e("s_cbranch_scc1 L_nofs")
            e("s_memrealtime s[86:87]")
            self.lab("L_nofs")
        if o.prof and o.cstamp:
            self.stamp_now(22 - 3, "s37")
            self.stamp_now(40 - 3, "s37", real=True)
        if o.d2:
            D = o.defer
            e("s_cmp_lt_u32 s37, s32")
            e("s_cbranch_scc1 L_st_loop")
            e("s_add_u32 s32, s32, 6")
            e(f"s_cmp_lg_u32 s37, {8 - D}")
            e("s_cbranch_scc1 L_st_s1")
            e("v_mov_b32 v12, v10")
            e("s_mov_b32 s43, s31")
            e("v_add_u32 v10, 6144, v13")
            e("s_add_u32 s31, s29, 6144")
            e("s_branch L_st_loop")
            self.lab("L_st_s1")
            e(f"s_cmp_lg_u32 s37, {14 - D}")
            e("s_cbranch_scc1 L_st_s2")
            e("v_add_u32 v10, 3072, v13")
            e("s_add_u32 s31, s29, 3072")
            e("s_branch L_st_loop")
            self.lab("L_st_s2")
            e("v_mov_b32 v10, v12")
            e("s_mov_b32 s31, s43")
            e("s_mov_b32 s32, 20")
            e("s_cmp_lt_u32 s37, 20")
            e("s_cbranch_scc1 L_st_loop")
        else:
            e("s_cmp_lt_u32 s32, 6")
            e("s_cbranch_scc1 L_st_loop")
            if o.hf:
                e("s_add_u32 s29, s29, s36")
                e("v_add_u32 v10, s38, v10")
            else:
                e("s_add_u32 s29, s29, 3072")
                e(f"v_add_u32 v10, {3072 - 12 * P}, v10")
            e("s_cmp_lt_u32 s37, 20")
            e("s_cbranch_scc1 L_st_strip")
        self.diag_mark("stiss")
        if o.prof:
            self.stamp()
            e("s_waitcnt vmcnt(0)")
            self.stamp()
        self.stamp_flush()
        self.diag_end()
        e("s_endpgm")

    def load_A(self, phases, fl):
        e, o = self.e, self.o
        lanes = phases[0][2]
        e("s_mov_b32 s31, s29")
        e("s_mov_b32 s32, 0")
        sides = [("l", o.winl), ("r", o.winr)] if o.winl != o.winr else [("l", o.winl)]
        if len(sides) == 2:
            e("s_cmp_lg_u32 s45, 0")
            e("s_cbranch_scc1 L_ld_pre_r")
        for sd, Wn in sides:
            self.lab(f"L_ld_pre_{sd}")
            e(f"v_mov_b32 v6, {-5 * ((Wn - 1) // 5)}")
            if sd == "l" and o.prio_left:
                e(f"s_setprio {o.prio_left}")
            self.lab(f"L_ld_loop_{sd}")
            e("s_add_u32 s34, s31, s24")
            e("s_cmp_lt_i32 s31, 0")
            e("s_cselect_b32 s34, 0x40000000, s34")
            e("s_mov_b32 m0, s33")
            e("s_add_i32 s31, s31, s35")
            for k in range(5):
                if k == 4:
                    e("s_add_u32 m0, s33, 4096")
                e(f"s_waitcnt vmcnt({Wn - 1})")
                if k == (Wn - 1) % 5:
                    e("ds_write_b32 v8, v6")
                if k == 4:
                    e("s_mov_b32 exec_hi, 0xffff")
                e(f"buffer_load_dwordx4 v{10 + k}, s[12:15], s34 offen offset:{1024 * (k % 4)} {fl} lds")
                if k == 4:
                    e("s_mov_b32 exec_hi, -1")
                if k == 0:
                    e(f"v_add_u32 v6, {(Wn - 1) % 5}, v6" if False else "s_add_u32 s32, s32, 1")
            e("v_add_u32 v6, 5, v6")
            e(f"s_add_u32 s33, s33, {2 * P}")
            e("s_cmp_lg_u32 s32, s44")
            e(f"s_cbranch_scc1 L_ld_nobar_{sd}")
            e("s_barrier")
            self.lab(f"L_ld_nobar_{sd}")
            e("s_cmp_lg_u32 s32, 5")
            e(f"s_cbranch_scc1 L_ld_nopoll_{sd}")
            self.poll(7, 5, 1)
            self.lab(f"L_ld_nopoll_{sd}")
            e("s_cmp_lt_u32 s32, 7")
            e(f"s_cbranch_scc1 L_ld_loop_{sd}")
            for v in range(35 - Wn + 1, 35):
                if v % 5 == 0:
                    e(f"v_mov_b32 v2, {v}")
                    e(f"s_waitcnt vmcnt({35 - v})")
                    e("ds_write_b32 v8, v2")
            if sd == "l" and len(sides) == 2:
                e("s_branch L_ld_tail")

    def compute(self):
        e, o = self.e, self.o
        ops = [("U0", 0), ("U0", 1), ("U1", 0), ("U1", 1), ("U2", 0), ("U2", 1), ("U2", 2), ("U3", 0), ("U3", 1), ("U3", 2),
               ("X", 0), ("X", 1), ("X", 2),
               ("L0", 0), ("L0", 1), ("L0", 2), ("L1", 0), ("L1", 1), ("L1", 2), ("L2", 1), ("L2", 2), ("L3", 1), ("L3", 2)]
        W = {k: 16 + 4 * i for i, k in enumerate(ops)}
        SET = [108, 124]
        XR = 140
        ACC = lambda s, t: 144 + 12 * s + 4 * t
        PK = 168
        A1, A2, AX = 174, 175, 176
        ST = [177, 178, 179]
        self.lab("L_compute")
        self.nstamp = 1
        if o.ipf:
            e("s_getpc_b64 s[38:39]")
            self.lab("L_pc")
            e("s_sub_u32 s38, s38, L_pc-standalone__grouped__vision_kernel")
            e("s_subb_u32 s39, s39, 0")
            e(f"v_lshlrev_b32 v2, {o.ipf}, v0")
            e("v_lshl_add_u32 v2, s3, 13, v2" if o.ipf == 7 else "v_lshl_add_u32 v2, s3, 12, v2")
            e(f"v_min_u32 v2, {'L_compute' if o.ipfh else 'L_code_end'}-standalone__grouped__vision_kernel-4, v2")
            e("v_mov_b32 v3, s39")
            e("v_add_co_u32 v2, vcc, s38, v2")
            e("s_nop 1")
            e("v_addc_co_u32 v3, vcc, 0, v3, vcc")
            e("global_load_dword v185, v[2:3], off")
        if o.prio_comp:
            e(f"s_setprio {o.prio_comp}")
        e("s_mul_i32 s28, s3, 1152")
        e("v_lshl_add_u32 v108, v0, 4, s28")
        e("s_movk_i32 s29, 3456")
        for i in range(1, 4):
            e(f"v_add_u32 v2, {64 * i}, v0")
            e("v_mul_u32_u24 v2, 911, v2")
            e("v_lshrrev_b32 v2, 16, v2")
            e(f"v_mad_u32_u24 v{108 + i}, v2, s29, v108")
        e("v_cmp_lt_u32 vcc, 23, v0")
        e("v_bfrev_b32 v3, 1")
        e(f"s_mul_i32 s33, s3, {WSZ}")
        e(f"s_add_u32 s33, s33, {WREG}")
        e("v_cndmask_b32 v111, v111, v3, vcc")
        e("s_mul_i32 s34, s26, 27648")
        e("s_movk_i32 s35, 13824")
        e("s_sub_u32 s36, 27648, s34")
        e("s_waitcnt lgkmcnt(0)")
        if o.tlbw:
            e("s_and_b32 s10, s2, 1")
            e("s_lshl_b32 s10, s10, 2")
            e("s_bfe_u32 s11, s2, 0x20003")
            e("s_add_u32 s10, s10, s11")
            e("s_mul_i32 s10, s10, 9216")
            e("s_bfe_u32 s11, s2, 0x20001")
            e("s_lshl_b32 s11, s11, 3")
            e("s_lshr_b32 s24, s2, 5")
            e("s_add_u32 s11, s11, s24")
            e(f"s_mul_i32 s11, s11, {12 * ROWB}")
            e("s_add_u32 s10, s10, s11")
            e("s_mov_b32 s20, s8")
            e("s_mov_b32 s21, s9")
            e(f"s_mov_b32 s22, {XBYTES}")
            e("s_mov_b32 s23, 0x20000")
            e(f"s_mov_b32 s11, {11 * ROWB}")
            e("v_mul_lo_u32 v2, v0, s11")
            e("s_cmp_lg_u32 s3, 0")
            e("s_cbranch_scc1 L_notouch")
            e("s_mov_b64 exec, 3")
            e(f"buffer_load_dword v186, v2, s[20:23], s10 offen {o.tlbf}")
            e("s_mov_b64 exec, -1")
            self.lab("L_notouch")
        e("s_barrier")
        e("s_mov_b32 s16, s6")
        e("s_mov_b32 s17, s7")
        e(f"s_mov_b32 s18, {WBYTES}")
        e("s_mov_b32 s19, 0x20000")
        for p in range(3):
            if o.wsplit and p:
                e(f"s_waitcnt vmcnt({o.wsplit - 1})")
            e(f"s_add_u32 m0, s33, {4096 * p}")
            e("s_nop 0")
            for i in range(4):
                if not o.now:
                    e(f"buffer_load_dwordx4 v{108 + i}, s[16:19], s{34 + p} offen offset:{1024 * i} {o.wflags} lds")
        self.stamp()
        e("v_and_b32 v1, 15, v0")
        e("v_lshrrev_b32 v2, 4, v0")
        e("s_mul_i32 s28, s3, 3")
        e("v_and_b32 v3, 1, v2")
        e("v_lshrrev_b32 v4, 1, v2")
        e("v_cmp_gt_u32 vcc, 2, v2")
        e("s_movk_i32 s29, 192")
        e("s_movk_i32 s30, 1152")

        def baddr(dst, vdx, vcc_, tmp1, tmp2, extra=None):
            e(f"v_add_u32 v{tmp1}, {vdx}, v1")
            e(f"v_add_u32 v{tmp2}, 1, v{tmp1}")
            e(f"v_bfe_u32 v{tmp2}, v{tmp2}, 2, 2")
            e(f"v_mad_u32_u24 v{tmp1}, v{tmp1}, s29, v15" if o.hf else f"v_mad_u32_u24 v{tmp1}, v{tmp1}, s29, 64")
            e(f"v_add_u32 v{dst}, s28, {vcc_}")
            e(f"v_xor_b32 v{dst}, v{dst}, v{tmp2}")
            e(f"v_lshl_add_u32 v{dst}, v{dst}, 4, v{tmp1}")
            if extra:
                e(f"v_add_u32 v{dst}, {extra}, v{dst}")

        if o.hf:
            e("s_mul_i32 s31, s43, 6144")
            e("s_add_u32 s32, s31, 64")
            e("v_mov_b32 v15, s32")
            e("s_sub_u32 s38, 3072, s31")
            e(f"s_sub_u32 s38, s38, {8 * P}")
        e("v_cndmask_b32 v6, 2, v2, vcc")
        e("v_cndmask_b32 v7, v3, 2, vcc")
        baddr(A1, "v3", "v4", 11, 12)
        baddr(A2, "v6", "v7", 11, 12)
        e(f"v_mul_u32_u24 v13, {P}, v2")
        e("v_mov_b32 v14, 2")
        baddr(AX, "2", "v14", 11, 12, "v13")
        if o.hf:
            e("v_lshl_add_u32 v1, s43, 1, v1")
        e("v_add_u32 v12, 1, v1")
        e("v_bfe_u32 v12, v12, 2, 2")
        e("v_mad_u32_u24 v11, v1, s29, v15" if o.hf else "v_mad_u32_u24 v11, v1, s29, 64")
        e("v_lshl_add_u32 v11, v3, 3, v11")
        e(f"v_add_u32 v13, {P}, v11")
        e("v_add_u32 v14, s28, v4")
        e("v_xor_b32 v15, v14, v12")
        e(f"v_lshl_add_u32 v{ST[0]}, v15, 4, v11")
        e("v_add_u32 v14, 1, v14")
        e("v_xor_b32 v15, v14, v12")
        e(f"v_lshl_add_u32 v{ST[2]}, v15, 4, v13")
        e("v_cndmask_b32 v14, 0, 2, vcc")
        e("v_cndmask_b32 v13, v13, v11, vcc")
        e("v_add_u32 v14, s28, v14")
        e("v_xor_b32 v15, v14, v12")
        e(f"v_lshl_add_u32 v{ST[1]}, v15, 4, v13")
        if o.d2:
            e("v_add_u32 v12, 3, v1")
            e("v_bfe_u32 v12, v12, 2, 2")
            e(f"v_add_u32 v11, {384 + 6144}, v11")
            e(f"v_add_u32 v13, {384 + 6144}, v13")
            e("v_xor_b32 v15, v14, v12")
            e("v_lshl_add_u32 v181, v15, 4, v13")
            e("v_add_u32 v14, s28, v4")
            e("v_xor_b32 v15, v14, v12")
            e("v_lshl_add_u32 v180, v15, 4, v11")
            e("v_add_u32 v14, 1, v14")
            e("v_xor_b32 v15, v14, v12")
            e(f"v_add_u32 v11, {P}, v11")
            e("v_lshl_add_u32 v182, v15, 4, v11")
        E1, E2, F1, F2, F1z, F2z, F1y, F2y, G0, G1, G2, Z = range(144, 156)
        e("v_bfe_u32 v11, v0, 2, 2")
        e("v_mul_u32_u24 v11, 48, v11")
        e("v_add_u32 v11, s33, v11")
        e("v_and_b32 v12, 3, v0")
        e("v_lshl_add_u32 v11, v12, 3, v11")
        e("v_mul_u32_u24 v13, 384, v4")
        e("v_mad_u32_u24 v13, v3, s30, v13")
        e("v_mul_u32_u24 v14, 384, v7")
        e("v_mad_u32_u24 v14, v6, s30, v14")
        e(f"v_add_u32 v{E1}, v11, v13")
        e(f"v_add_u32 v{E2}, v11, v14")
        e("v_cmp_lt_u32 vcc, 1, v12")
        e("s_add_u32 s30, s33, 3456")
        e(f"v_mov_b32 v{Z}, s30")
        e("v_mov_b32 v13, 32")
        e("v_mov_b32 v14, -4112")
        e("v_cndmask_b32 v13, v13, v14, vcc")
        e("v_cndmask_b32 v15, 0, 1, vcc")
        e(f"v_add_u32 v{F1}, v{E1}, v13")
        e(f"v_add_u32 v{F2}, v{E2}, v13")
        e(f"v_cndmask_b32 v{F1z}, v{F1}, v{Z}, vcc")
        e(f"v_cndmask_b32 v{F2z}, v{F2}, v{Z}, vcc")
        e(f"v_add_u32 v{F1y}, 12288, v{F1}")
        e(f"v_add_u32 v{F2y}, 12288, v{F2}")
        e(f"v_cndmask_b32 v{F1y}, v{Z}, v{F1y}, vcc")
        e(f"v_cndmask_b32 v{F2y}, v{Z}, v{F2y}, vcc")
        e("v_lshl_add_u32 v11, v2, 12, v11")
        e("v_add_u32 v11, 3072, v11")
        e("v_sub_u32 v15, v2, v15")
        e("v_cmp_gt_u32 vcc, 3, v15")
        e(f"v_add_u32 v{G1}, v11, v13")
        e(f"v_add_u32 v{G2}, -4080, v11")
        e(f"v_cndmask_b32 v{G1}, v{Z}, v{G1}, vcc")
        e("v_cmp_gt_u32 vcc, 3, v2")
        e("s_nop 1")
        e(f"v_cndmask_b32 v{G0}, v{Z}, v11, vcc")
        e("v_cmp_lt_u32 vcc, 0, v2")
        e("s_nop 0")
        e("v_mov_b32 v10, 1")
        e(f"v_cndmask_b32 v{G2}, v{Z}, v{G2}, vcc")

        def tr(key, a, off):
            w = W[key]
            e(f"ds_read_b64_tr_b16 v[{w}:{w + 1}], v{a} offset:{off}")
            e(f"ds_read_b64_tr_b16 v[{w + 2}:{w + 3}], v{a} offset:{off + 192}")

        e("s_waitcnt vmcnt(8)")
        self.stamp()
        tr(("U0", 0), E1, 0); tr(("U1", 0), E2, 0); tr(("U0", 1), F1z, 0); tr(("U1", 1), F2z, 0)
        tr(("U2", 2), E1, 16); tr(("U3", 2), E2, 16)
        e("s_waitcnt vmcnt(4)")
        tr(("U2", 0), E1, 4096); tr(("U3", 0), E2, 4096); tr(("U2", 1), F1, 4096); tr(("U3", 1), F2, 4096)
        tr(("L0", 2), E1, 4112); tr(("L1", 2), E2, 4112)
        e("s_waitcnt vmcnt(0)")
        self.stamp()
        tr(("X", 0), G0, 0); tr(("X", 1), G1, 0); tr(("X", 2), G2, 0)
        tr(("L0", 0), E1, 8192); tr(("L1", 0), E2, 8192); tr(("L0", 1), F1, 8192); tr(("L1", 1), F2, 8192)
        tr(("L2", 1), F1y, 0); tr(("L3", 1), F2y, 0); tr(("L2", 2), E1, 8208); tr(("L3", 2), E2, 8208)
        e("ds_write_b32 v8, v10")
        self.diag_mark("kw")
        self.stamp()
        if o.nocomp:
            self.stamp_flush()
            self.lab("L_end")
            e("s_endpgm")
            return
        if o.cstamp == 2:
            e("s_waitcnt lgkmcnt(0)")
            e("s_mov_b32 s94, s46")
        self.lab("L_c_loop")
        slow = []
        c1 = len(self.phases[0][2])
        ntot = 7 * sum(len(p[2]) for p in self.phases)

        def need(T, s):
            if o.order == "A" or T < 2:
                return c1 * (s + 2)
            return 7 * c1 + len(self.phases[1][2]) * (s + 2)

        def pair_reads(st, off):
            b = SET[st]
            return [f"ds_read_b128 v[{b}:{b + 3}], v{A1} offset:{off}",
                    f"ds_read_b128 v[{b + 4}:{b + 7}], v{A2} offset:{off}",
                    f"ds_read_b128 v[{b + 8}:{b + 11}], v{A1} offset:{off + P}",
                    f"ds_read_b128 v[{b + 12}:{b + 15}], v{A2} offset:{off + P}"]

        def epilogue(acc, off, wr):
            r = []
            for t in range(3):
                a = ACC(acc, t)
                r.append(f"v_cvt_pk_bf16_f32 v{PK + 2 * t}, v{a}, v{a + 1}")
                r.append(f"v_cvt_pk_bf16_f32 v{PK + 2 * t + 1}, v{a + 2}, v{a + 3}")
                if wr == 32:
                    r.append(f"ds_write_b32 v{ST[t]}, v{PK + 2 * t} offset:{off}")
                    r.append(f"ds_write_b32 v{ST[t]}, v{PK + 2 * t + 1} offset:{off + 4}")
                else:
                    r.append(f"ds_write_b64 v{ST[t]}, v[{PK + 2 * t}:{PK + 2 * t + 1}] offset:{off}")
            r.append("ds_write_b32 v8, v10")
            return r

        if o.modes == "q":
            return self.loop_q(ops, W, SET, XR, ACC, PK, A1, A2, AX, ST, c1, ntot)
        seen_upto = 0
        fpending = None
        modes = o.modes.split(",")
        loop = o.loop
        if loop:
            del self.L[-1]
            e("s_mov_b32 s37, 0")
            e("v_and_b32 v11, -9, v9")
            if o.hf:
                e("v_lshl_add_u32 v11, s43, 3, v11")
            e("v_mov_b32 v5, 0")
            if o.order != "A":
                e(f"s_mov_b32 s35, {2 * c1}")
                e(f"s_mov_b32 s34, {2 * c1}")
            self.lab("L_c_loop")
        nb = len(modes) if loop else 3
        seq = o.seq
        for T in range(nb):
            md = modes[T]
            if loop and T:
                self.lab(f"L_c_loop{T}")
            for s in range(6):
                u = 6 * T + s
                if o.prof and o.cstamp == 2:
                    e(f"s_memtime s[{16 + 4 * u}:{17 + 4 * u}]")
                    e(f"s_memrealtime s[{18 + 4 * u}:{19 + 4 * u}]")
                elif o.prof and o.cstamp:
                    self.stamp_now(22, u)
                    self.stamp_now(40, u, real=True)
                U, Lo = s & 1, (s & 1) ^ 1
                acc = s & 1 if md == "n" else 0
                nd = need(0 if loop else T, s)
                if loop and o.order != "A" and s == 0:
                    e("v_cmp_gt_i32 vcc, s35, v5")
                    e(f"s_cbranch_vccnz L_c_slow{u}")
                    self.lab(f"L_c_ready{u}")
                    slow.append((u, "s35"))
                    e("s_mov_b32 s35, s34")
                    e(f"s_mov_b32 s34, {ntot}")
                    seen_upto = 99
                elif loop:
                    e(f"v_cmp_gt_i32 vcc, {nd}, v5")
                    e(f"s_cbranch_vccnz L_c_slow{u}")
                    self.lab(f"L_c_ready{u}")
                    slow.append((u, nd))
                    seen_upto = 99
                elif nd > seen_upto:
                    if fpending is not None:
                        e(f"s_waitcnt lgkmcnt({fpending})")
                        if loop:
                            nd_ = "s36"
                        else:
                            nd_ = nd
                        e(f"v_cmp_gt_i32 vcc, {nd_}, v5")
                        e(f"s_cbranch_vccnz L_c_slow{u}")
                        self.lab(f"L_c_ready{u}")
                        slow.append((u, nd_))
                    else:
                        self.poll(9, 5, nd, sleep=o.csleep)
                    seen_upto = nd
                fpending = None
                if s == 0 and o.diag in ("k0", "k1", "k2"):
                    e(f"s_cmp_lg_u32 s37, {o.diag[1]}")
                    e("s_cbranch_scc1 L_nomark")
                    e("s_memrealtime s[90:91]")
                    self.lab("L_nomark")
                if s == 0 and o.prof and not o.cstamp:
                    self.stamp_now(24, "s37" if loop else T, real=(o.prof == 2))
                ro = (s & 1) * 2 * P
                rd = (pair_reads(0, 0) if s == 0 else []) + pair_reads(Lo, ro + 2 * P)
                rd.append(f"ds_read_b128 v[{XR}:{XR + 3}], v{AX} offset:{ro}")
                post = []
                if s & 1:
                    adv = 4 * P if s < 5 else "s38" if o.hf else (-3072 if o.d2 else 3072) - 8 * P
                    post = [f"v_add_u32 v{r}, {adv}, v{r}" for r in (A1, A2, AX)] if (u < 17 or loop) else []
                inter = []
                if md in ("r", "n") and s > 0:
                    inter = [[x] for x in rd]
                else:
                    for x in rd:
                        e(x)
                    if s == 0:
                        e("s_waitcnt lgkmcnt(5)")
                nxt_need = need(T, s + 1) if s < 5 else (need(T + 1, 0) if T < 2 else 0)
                want_f = md != "p" and nxt_need > seen_upto
                if loop:
                    if o.d2 and not o.defer:
                        if s == 5:
                            post = post + ["s_add_u32 s37, s37, 1", "s_cmp_eq_u32 s37, 2"]
                    elif o.defer:
                        if s == o.defer - 1:
                            post = post + ["s_cmp_eq_u32 s37, 3"]
                        if s == 5 - o.defer:
                            post = post + ["s_cmp_eq_u32 s37, 0"]
                        if s == 5:
                            post = post + ["s_add_u32 s37, s37, 1", "s_cmp_eq_u32 s37, 2"]
                    elif s == 5:
                        post = post + ["s_add_u32 s37, s37, 1", "v_mov_b32 v11, v9", "s_cmp_eq_u32 s37, 1", "s_cselect_b32 s36, 0, -1",
                                       "v_and_b32 v5, s36, v5", "s_cmp_lt_u32 s37, 3"]
                        if nb == 2:
                            post[-1] = f"s_bitcmp1_b32 {sum(1 << k for k in range(3) if o.seq[k] == '0')}, s37"
                    if o.order != "A" and s == 0:
                        pre0 = True
                defer = []
                if md == "n" and s > 0:
                    defer = ["v_add_u32 v10, 1, v10"] + epilogue(acc ^ 1, ((s - 1) & 1) * 2 * P, o.wrn)
                    if not s & 1:
                        defer += [f"v_add_u32 v{r}, {4 * P}, v{r}" for r in ST]
                seen = set()
                seq = [(k, SET[U] + 4 * int(k[0][1])) for k in ops[:10]] + [(k, SET[Lo] + 4 * int(k[0][1])) for k in ops[13:]] + [(k, XR) for k in ops[10:13]]
                behind = 0
                for g, (k, b) in enumerate(seq):
                    if g == 10:
                        e(f"s_waitcnt lgkmcnt({behind})")
                    t = k[1]
                    a = ACC(acc, t)
                    cin = f"v[{a}:{a + 3}]" if t in seen else "0"
                    seen.add(t)
                    e(f"v_mfma_f32_16x16x32_bf16 v[{a}:{a + 3}], v[{W[k]}:{W[k] + 3}], v[{b}:{b + 3}], {cin}")
                    cap = 2
                    if inter:
                        e(inter.pop(0)[0])
                        cap -= 1
                    elif post and not defer:
                        while post and cap:
                            e(post.pop(0))
                            cap -= 1
                    while defer and cap and g >= 2 and g != 9:
                        isw = defer[0].startswith("ds_write")
                        if isw and cap < 2:
                            break
                        x = defer.pop(0)
                        e(x)
                        cap -= 2 if isw else 1
                        if isw and g < 10:
                            behind += 1
                assert not defer and not inter, (u, defer)
                fill = list(post)
                if md != "n" or s == 5:
                    fill.append("v_add_u32 v10, 1, v10")
                    if want_f:
                        fill.append("ds_read_b32 v5, v9")
                    for x in fill:
                        e(x)
                    if len(fill) < 6:
                        e(f"s_nop {5 - len(fill)}")
                    ep = epilogue(acc, (s & 1) * 2 * P, o.wr)
                    for x in ep:
                        e(x)
                    if want_f:
                        fpending = sum(1 for x in ep if x.startswith("ds_"))
                    if s & 1 and (u < 17 or loop):
                        adv = 4 * P if s < 5 else "s38" if o.hf else (-3072 if o.d2 else 3072) - 8 * P
                        for r in ST:
                            e(f"v_add_u32 v{r}, {adv}, v{r}")
                    if o.defer and s in (o.defer - 1, 5 - o.defer):
                        e("s_cbranch_scc1 L_c_stub")
                    if loop and nb == 2 and s == 5:
                        e("s_cbranch_scc1 L_c_loop")
                        e("s_cmp_lt_u32 s37, 3")
                        if T == 0:
                            e("s_cbranch_scc0 L_c_done")
                        else:
                            e("s_cbranch_scc1 L_c_loop1")
                            self.lab("L_c_done")
                else:
                    for x in fill:
                        e(x)
                    if want_f:
                        e("ds_read_b32 v5, v9")
                        fpending = 0
                    if o.defer and s in (o.defer - 1, 5 - o.defer):
                        e("s_cbranch_scc1 L_c_stub")
        if loop and nb == 1:
            e("s_cbranch_scc1 L_c_loop")
        if o.d2 and not o.defer:
            e("s_cmp_eq_u32 s37, 3")
            e("s_cbranch_scc1 L_c_fin")
            e("v_mov_b32 v11, v9")
            e("v_mov_b32 v5, 0")
            for r in (A1, A2, AX):
                e(f"v_add_u32 v{r}, 9216, v{r}")
            for t in range(3):
                e(f"v_mov_b32 v{ST[t]}, v{180 + t}")
            e("s_branch L_c_loop")
            self.lab("L_c_fin")
        if o.defer:
            D = o.defer
            for r in (A1, A2, AX):
                e(f"v_add_u32 v{r}, {(12 - 2 * D) * P}, v{r}")
            for t in range(3):
                back = 2 * D * P if md == "n" else (2 * P if D == 1 else 0)
                e(f"v_add_u32 v{ST[t]}, {back}, v{180 + t}")
            e("s_branch L_c_loop")
            self.lab("L_c_stub")
            if md == "n":
                e("v_add_u32 v10, 1, v10")
            e("s_cmp_eq_u32 s37, 0")
            e("s_mov_b32 s37, 1")
            e("v_mov_b32 v11, v9")
            e("v_mov_b32 v5, 0")
            if md == "n":
                for x in epilogue((D - 1) & 1, ((D - 1) & 1) * 2 * P, o.wr):
                    e(x)
            for r in (A1, A2, AX):
                e(f"v_add_u32 v{r}, {6144 - 8 * P}, v{r}")
            for t in range(3):
                e(f"v_swap_b32 v{ST[t]}, v{180 + t}")
            e("s_cbranch_scc1 L_c_loop")
        if o.cstamp == 2:
            e("s_memtime s[88:89]")
            e("s_waitcnt lgkmcnt(0)")
            for u in range(18):
                e(f"v_writelane_b32 v{PV}, s{16 + 4 * u}, {22 + u}")
                e(f"v_writelane_b32 v{PV}, s{18 + 4 * u}, {40 + u}")
            e("s_mov_b32 s46, s94")
            e("s_mov_b32 s48, s88")
            self.nstamp = 2
        else:
            self.stamp()
        self.stamp_flush()
        if o.diag.startswith("k"):
            self.diag_mark("kend")
            self.diag_end(True)
        self.lab("L_end")
        e("s_endpgm")
        for u, nd in slow:
            self.lab(f"L_c_slow{u}")
            self.poll(11 if loop else 9, 5, nd, sleep=o.csleep)
            e(f"s_branch L_c_ready{u}")

        self.lab("L_code_end")

    def loop_q(self, ops, W, SET, XR, ACC, PK, A1, A2, AX, ST, c1, ntot):
        e, o = self.e, self.o
        assert o.hf or o.order == "A"
        del self.L[-1]
        q = []

        def rd(tag, reg, a, off):
            return ("ds", tag, f"ds_read_b128 v[{reg}:{reg + 3}], v{a} offset:{off}")

        def pair(k, st, off):
            b = SET[st]
            return [rd(("P", k, 0), b, A1, off), rd(("P", k, 1), b + 4, A2, off),
                    rd(("P", k, 2), b + 8, A1, off + P), rd(("P", k, 3), b + 12, A2, off + P)]

        def emit(it):
            e(it[2])
            if it[0] in ("ds", "dw"):
                q.append(it[1])

        def wait_for(tags):
            ix = [q.index(t) for t in tags if t in q]
            if not ix:
                return 0
            e(f"s_waitcnt lgkmcnt({len(q) - 1 - max(ix)})")
            del q[: max(ix) + 1]
            return 1

        def epilogue(acc, off, wr):
            r = []
            for t in range(3):
                a = ACC(acc, t)
                r.append(("v", None, f"v_cvt_pk_bf16_f32 v{PK + 2 * t}, v{a}, v{a + 1}"))
                r.append(("v", None, f"v_cvt_pk_bf16_f32 v{PK + 2 * t + 1}, v{a + 2}, v{a + 3}"))
                if wr == 32:
                    r.append(("dw", ("W",), f"ds_write_b32 v{ST[t]}, v{PK + 2 * t} offset:{off}"))
                    r.append(("dw", ("W",), f"ds_write_b32 v{ST[t]}, v{PK + 2 * t + 1} offset:{off + 4}"))
                else:
                    r.append(("dw", ("W",), f"ds_write_b64 v{ST[t]}, v[{PK + 2 * t}:{PK + 2 * t + 1}] offset:{off}"))
            r.append(("dw", ("W",), "ds_write_b32 v8, v10"))
            return r

        e("s_mov_b32 s37, 0")
        e("v_and_b32 v11, -9, v9")
        if o.hf:
            e("v_lshl_add_u32 v11, s43, 3, v11")
            e(f"s_sub_u32 s39, s38, {4 * P}")
        else:
            e(f"s_mov_b32 s39, {3072 - 12 * P}")
        e("s_mov_b32 s33, 0")
        e(f"s_add_u32 s32, s39, {12 * P}")
        for t in range(3):
            e(f"v_mov_b32 v{180 + t}, v{ST[t]}")
            e(f"v_mov_b32 v{ST[t]}, {FLAGS + 64 - 2 * P}")
        e(f"s_mov_b32 s35, {2 * c1}")
        e(f"s_mov_b32 s34, {ntot if o.order != 'A' else 2 * c1}")
        self.poll(11, 5, 2 * c1, sleep=o.csleep)
        for it in pair(0, 0, 0) + [rd(("X", 0), XR, AX, 0)]:
            emit(it)
        for r in (A1, A2, AX):
            e(f"v_add_u32 v{r}, {2 * P}, v{r}")
        wait_for([("P", 0, 3)])
        self.lab("L_c_loop")
        slow = []
        for s in range(6):
            if s == 0 and o.prof:
                self.stamp_now(24, "s37", real=(o.prof == 2))
                q.clear()
            U, Lo = s & 1, (s & 1) ^ 1
            acc = s & 1
            up = [(k, SET[U] + 4 * int(k[0][1])) for k in ops[:10]]
            xs = [(k, XR) for k in ops[10:13]]
            lo = [(k, SET[Lo] + 4 * int(k[0][1])) for k in ops[13:]]
            sq = up + xs + lo if s < 5 else lo + xs + up
            pin = {g: [] for g in range(23)}
            if s < 5:
                pr, xr = pair(s + 2, U, 2 * P), rd(("X", s + 1), XR, AX, 0)
            else:
                pr, xr = pair(0, Lo, 0), rd(("X", 0), XR, AX, 0)
                pin[0] += [("v", None, f"v_add_u32 v{AX}, s39, v{AX}"), ("v", None, f"v_add_u32 v{A1}, s39, v{A1}")]
                pin[1] += [("v", None, f"v_add_u32 v{A2}, s39, v{A2}"), ("s", None, "s_add_u32 s37, s37, 1")]
                pin[2] += [("s", None, "s_cmp_eq_u32 s37, 1"), ("s", None, "s_cselect_b32 s36, 0, -1")]
                pin[3] += [("v", None, "v_and_b32 v5, s36, v5"), ("v", None, "v_mov_b32 v11, v9")]
                pin[17] += [("s", None, "s_mov_b32 s35, s34"), ("s", None, "s_cmp_lt_u32 s37, 3")]
            if s == 1:
                pin[0] += [("s", None, "s_add_u32 s33, s33, s32")]
            if s == 3:
                pin[21] += [("s", None, "s_cmp_lt_u32 s37, 2"), ("s", None, f"s_cselect_b32 s39, s39, {-12 * P}")]
            for i_, it in enumerate(pr):
                pin[10 + i_].append(it)
            pin[14].append(xr)
            pin[15] += [("v", None, f"v_add_u32 v{A1}, {2 * P}, v{A1}"), ("v", None, f"v_add_u32 v{A2}, {2 * P}, v{A2}")]
            pin[16] += [("v", None, f"v_add_u32 v{AX}, {2 * P}, v{AX}")]
            if s == 0:
                for i_, it in enumerate(pair(1, 1, 0)):
                    pin[1 + i_].append(it)
            flow = epilogue(acc ^ 1, ((s - 1) & 1) * 2 * P, o.wrn) + [("v", None, "v_add_u32 v10, 1, v10")]
            if s == 0:
                flow += [("v", None, f"v_add_u32 v{ST[t]}, s33, v{180 + t}") for t in range(3)]
            elif not s & 1:
                flow += [("v", None, f"v_add_u32 v{r}, {4 * P}, v{r}") for r in ST]
            seen = set()
            for g, (k, b) in enumerate(sq):
                t = k[1]
                a = ACC(acc, t)
                cin = f"v[{a}:{a + 3}]" if t in seen else "0"
                seen.add(t)
                e(f"v_mfma_f32_16x16x32_bf16 v[{a}:{a + 3}], v[{W[k]}:{W[k] + 3}], v[{b}:{b + 3}], {cin}")
                cap = 2
                if g == 8:
                    cap -= wait_for([("X", s)] + ([("P", s + 1, 3)] if 0 < s < 5 else []))
                    nd = c1 * (s + 3) if s < 5 else "s35"
                    e(f"v_cmp_gt_i32 vcc, {nd}, v5")
                    cap = 0
                if g == 9:
                    e(f"s_cbranch_vccnz L_c_slow{s}")
                    self.lab(f"L_c_ready{s}")
                    slow.append((s, nd))
                    cap -= 1
                if s == 0 and g == 12:
                    cap -= wait_for([("P", 1, 3)])
                if s in (4, 5) and g == 22:
                    cap -= wait_for([("P", 6, 3)] if s == 4 else [("P", 0, 3)])
                for it in pin[g]:
                    emit(it)
                    cap -= 1
                while flow and g >= 2 and cap > 0:
                    pick = None
                    ndw = sum(1 for f in flow if f[0] == "dw")
                    for ix, f in enumerate(flow):
                        if f[0] == "dw":
                            cv = [re.match(r"v_cvt\S+ v(\d+)", h[2]).group(1) for h in flow[:ix] if "v_cvt" in h[2]]
                            if cap >= 2 and not any(c in self.srcs(f[2]) for c in cv) and not ("v8" in f[2] and cv):
                                pick = ix
                            break
                    if pick is None:
                        for ix, f in enumerate(flow):
                            if f[0] != "dw" and ("v_cvt" in f[2] or ndw == 0):
                                pick = ix
                                break
                    if pick is None:
                        break
                    it = flow.pop(pick)
                    emit(it)
                    cap -= 2 if it[0] == "dw" else 1
            assert not flow, (s, flow)
        e("s_cbranch_scc1 L_c_loop")
        e("s_nop 5")
        for it in epilogue(1, 2 * P, o.wr):
            e(it[2])
        self.stamp()
        self.stamp_flush()
        self.lab("L_end")
        e("s_endpgm")
        for u, nd in slow:
            self.lab(f"L_c_slow{u}")
            self.poll(11, 5, nd, sleep=o.csleep)
            e(f"s_branch L_c_ready{u}")
        self.lab("L_code_end")

    @staticmethod
    def srcs(txt):
        m = re.search(r", v\[(\d+):(\d+)\]", txt)
        if m:
            return [str(r) for r in range(int(m.group(1)), int(m.group(2)) + 1)]
        return [re.search(r", v(\d+)", txt).group(1)]

    def check_mfma_hazards(self):
        L = [l.strip() for l in self.L]
        if "L_c_loop:" not in L:
            return
        i = L.index("L_c_loop:")
        k = L.index("L_end:")
        jj = [n for n, l in enumerate(L) if l == "s_cbranch_scc1 L_c_loop"]
        for seqn in [L[i:k]] + ([L[i:jj[-1] + 1] * 2] if jj else []):
            pend = {}
            pos = 0
            for l in seqn:
                if l.endswith(":"):
                    continue
                regs = set()
                for m in re.finditer(r"v\[(\d+):(\d+)\]|v(\d+)", l.split(None, 1)[1] if " " in l else ""):
                    if m.group(3):
                        regs.add(int(m.group(3)))
                    else:
                        regs.update(range(int(m.group(1)), int(m.group(2)) + 1))
                if l.startswith("v_mfma"):
                    m = re.match(r"v_mfma\S+ v\[(\d+):(\d+)\]", l)
                    for r in range(int(m.group(1)), int(m.group(2)) + 1):
                        pend[r] = pos
                else:
                    for r in regs:
                        if r in pend:
                            assert pos - pend[r] - 1 >= 8, (l, pos - pend[r] - 1)
                m = re.match(r"s_nop (\d+)", l)
                pos += int(m.group(1)) + 1 if m else 1

    def build(self):
        self.prologue()
        self.helper()
        self.compute()
        self.check_mfma_hazards()
        if self.o.drop:
            i = self.L.index("L_c_loop:")
            j = self.L.index("L_end:")
            pats = self.o.drop.split(",")
            self.L = self.L[:i] + [l for l in self.L[i:j] if not any(l.strip().startswith(p) for p in pats)] + self.L[j:]
        return HEADER + "\n".join(self.L) + "\n" + FOOTER.format(vgpr=188, acc=188)


def main():
    p = argparse.ArgumentParser()
    p.add_argument("-o", default="-")
    p.add_argument("--prof", type=int, default=0)
    p.add_argument("--hflip", type=int, default=1)
    p.add_argument("--win", type=int, default=11)
    p.add_argument("--barpair", type=int, default=2)
    p.add_argument("--ldflags", default="nt")
    p.add_argument("--wflags", default="")
    p.add_argument("--stflags", default="sc0 sc1 nt")
    p.add_argument("--prio_loader", type=int, default=0)
    p.add_argument("--prio_comp", type=int, default=0)
    p.add_argument("--nocomp", type=int, default=0)
    p.add_argument("--noload", type=int, default=0)
    p.add_argument("--cstamp", type=int, default=0)
    p.add_argument("--drop", default="")
    p.add_argument("--wr", type=int, default=64)
    p.add_argument("--estart", type=int, default=2)
    p.add_argument("--diag", default="")
    p.add_argument("--now", type=int, default=0)
    p.add_argument("--stwait", type=int, default=0)
    p.add_argument("--stwin", type=int, default=0)
    p.add_argument("--pad", type=int, default=0)
    p.add_argument("--padk", type=int, default=1)
    p.add_argument("--padmask", type=int, default=7)
    p.add_argument("--fpre", type=int, default=0)
    p.add_argument("--csleep", type=int, default=1)
    p.add_argument("--eflag", type=int, default=0)
    p.add_argument("--rdint", type=int, default=0)
    p.add_argument("--sched", default="plain")
    p.add_argument("--stag", type=int, default=0)
    p.add_argument("--stagw", type=int, default=2)
    p.add_argument("--gate", type=int, default=0)
    p.add_argument("--gsleep", type=int, default=4)
    p.add_argument("--padper", default="")
    p.add_argument("--nostore", type=int, default=0)
    p.add_argument("--jmask", type=int, default=0)
    p.add_argument("--cls", default="1,2,3,4")
    p.add_argument("--order", default="C")
    p.add_argument("--modes", default="n")
    p.add_argument("--loop", type=int, default=1)
    p.add_argument("--winl", type=int, default=9)
    p.add_argument("--winr", type=int, default=11)
    p.add_argument("--prio_left", type=int, default=0)
    p.add_argument("--tlbw", type=int, default=0)
    p.add_argument("--tlbf", default="nt")
    p.add_argument("--defer", type=int, default=0)
    p.add_argument("--wrn", type=int, default=64)
    p.add_argument("--hf", type=int, default=1)
    p.add_argument("--seq", default="010")
    p.add_argument("--ipf", type=int, default=0)
    p.add_argument("--ipfh", type=int, default=0)
    p.add_argument("--early", type=int, default=0)
    p.add_argument("--wsplit", type=int, default=0)
    p.add_argument("--fevery", type=int, default=0)
    p.add_argument("--two", type=int, default=0)
    p.add_argument("--rdint2", type=int, default=1)
    p.add_argument("--sleep", type=int, default=2)
    o = p.parse_args()
    if o.order in "MN":
        o.hf = 0
    o.d2 = o.defer or o.order in "MN"
    s = Gen(o).build()
    if o.o == "-":
        sys.stdout.write(s)
    else:
        open(o.o, "w").write(s)


if __name__ == "__main__":
    main()
```

```python
import argparse
import re
import sys

ROWB = 73728
XBYTES = 28311552
WBYTES = 41472
P = 9728
LDS_TOTAL = 163840
FLAGS = LDS_TOTAL - 256
WSZ = 12288
WREG = FLAGS - 4 * WSZ

HEADER = """; Kernarg layout for this problem (40 bytes, ptrs only, base s[0:1]):
; @launch grid=(256,1,1) block=(512,1,1) lds=163840
.amdgcn_target "amdgcn-amd-amdhsa--gfx950"
.text
.globl standalone__grouped__vision_kernel
.p2align 8
.type standalone__grouped__vision_kernel,@function
standalone__grouped__vision_kernel:
"""

FOOTER = """.section .rodata,"a"
.p2align 6
.amdhsa_kernel standalone__grouped__vision_kernel
  .amdhsa_next_free_vgpr {vgpr}
  .amdhsa_next_free_sgpr 102
  .amdhsa_accum_offset {acc}
  .amdhsa_group_segment_fixed_size 0
  .amdhsa_kernarg_size 40
  .amdhsa_user_sgpr_count 2
  .amdhsa_user_sgpr_kernarg_segment_ptr 1
  .amdhsa_system_sgpr_workgroup_id_x 1
.end_amdhsa_kernel
"""

PV = 187


class Gen:
    def __init__(self, o):
        self.o = o
        self.L = []
        self.nstamp = 0
        self.nlab = 0

    def e(self, s):
        self.L.append("    " + s)

    def lab(self, s):
        self.L.append(s + ":")

    def newlab(self, p):
        self.nlab += 1
        return f"L_{p}{self.nlab}"

    def stamp(self):
        if not self.o.prof:
            return
        k = self.nstamp
        self.nstamp += 1
        assert k < 22
        self.e(f"s_mem{'real' if self.o.prof == 2 else ''}time s[{46 + 2 * k}:{47 + 2 * k}]")

    def stamp_now(self, base, ctr, real=False):
        if not self.o.prof:
            return
        self.e("s_memrealtime s[96:97]" if real else "s_memtime s[96:97]")
        self.e("s_waitcnt lgkmcnt(0)")
        self.e("s_mov_b32 s95, m0")
        if isinstance(ctr, str):
            self.e(f"s_cselect_b32 s94, 1, 0")
            self.e(f"s_add_u32 m0, {ctr}, {base}")
            self.e(f"s_cmp_lg_u32 s94, 0")
        else:
            self.e(f"s_mov_b32 m0, {base + ctr}")
        self.e(f"v_writelane_b32 v{PV}, s96, m0")
        self.e("s_mov_b32 m0, s95")

    def stamp_flush(self):
        if not self.o.prof:
            return
        e = self.e
        e("s_mov_b64 exec, -1")
        e("s_waitcnt lgkmcnt(0)")
        e("s_load_dwordx2 s[40:41], s[0:1], 32")
        e("s_lshl_b32 s42, s2, 3")
        e("s_add_u32 s42, s42, s3")
        e("s_lshl_b32 s42, s42, 8")
        e("v_lshl_add_u32 v1, v0, 2, s42")
        for k in range(self.nstamp):
            e(f"v_writelane_b32 v{PV}, s{46 + 2 * k}, {k}")
        e(f"s_mov_b32 s42, {self.nstamp}")
        e(f"v_writelane_b32 v{PV}, s42, 63")
        e("s_getreg_b32 s42, hwreg(HW_REG_XCC_ID)")
        e(f"v_writelane_b32 v{PV}, s42, 62")
        e(f"v_writelane_b32 v{PV}, s92, 60")
        if self.o.prof == 2:
            e(f"v_writelane_b32 v{PV}, s86, 57")
            e(f"v_writelane_b32 v{PV}, s84, 56")
            e(f"v_writelane_b32 v{PV}, s82, 55")
        e("s_memrealtime s[92:93]")
        e("s_waitcnt lgkmcnt(0)")
        e(f"v_writelane_b32 v{PV}, s92, 59")
        e(f"global_store_dword v1, v{PV}, s[40:41]")

    def diag_mark(self, name):
        d = self.o.diag
        if d == name:
            self.e("s_memrealtime s[90:91]")
        if d == "c" + name:
            self.e("s_memtime s[90:91]")

    def diag_end(self, comp=False):
        o, e = self.o, self.e
        if not o.diag or o.diag.startswith("k") != comp:
            return
        e("s_waitcnt vmcnt(0) lgkmcnt(0)")
        self.diag_mark("end")
        e("s_waitcnt lgkmcnt(0)")
        if o.diag == "rt":
            e("s_mov_b32 s42, 0")
        elif o.diag.startswith("c"):
            e("s_sub_u32 s42, s90, s88")
            e("s_lshr_b32 s42, s42, 2")
        else:
            e("s_sub_u32 s42, s90, s92")
            e("s_mul_i32 s42, s42, 4")
        e("s_add_u32 s42, s42, 4000")
        self.lab("L_dg")
        e("s_memrealtime s[40:41]")
        e("s_waitcnt lgkmcnt(0)")
        e("s_sub_u32 s40, s40, s92")
        e("s_cmp_lt_u32 s40, s42")
        e("s_cbranch_scc1 L_dg")

    def poll(self, vaddr, vtmp, sneed, sleep=1):
        e = self.e
        l = self.newlab("poll")
        d = self.newlab("pdone")
        self.lab(l)
        e(f"ds_read_b32 v{vtmp}, v{vaddr}")
        e("s_waitcnt lgkmcnt(0)")
        e(f"v_cmp_gt_i32 vcc, {sneed}, v{vtmp}")
        e(f"s_cbranch_vccz {d}")
        if sleep:
            e(f"s_sleep {sleep}")
        e(f"s_branch {l}")
        self.lab(d)

    def prologue(self):
        e = self.e
        e("s_cmp_ge_u32 s2, 256")
        e("s_cbranch_scc1 L_end")
        e("s_load_dwordx4 s[4:7], s[0:1], 0")
        e("s_load_dwordx2 s[8:9], s[0:1], 16")
        if self.o.prof or self.o.diag:
            e("s_memrealtime s[92:93]")
        if self.o.diag:
            e("s_memtime s[88:89]")
        self.stamp()
        if self.o.prof:
            e(f"v_mov_b32 v{PV}, 0")
        e("v_lshrrev_b32 v1, 6, v0")
        e("v_and_b32 v0, 63, v0")
        e(f"v_mov_b32 v3, {FLAGS}")
        e("v_readfirstlane_b32 s3, v1")
        e("v_xor_b32 v2, 4, v1")
        e("v_lshl_add_u32 v8, v2, 2, v3")
        e("v_mov_b32 v2, 0")
        e("ds_write_b32 v8, v2")
        e("v_and_b32 v2, 3, v0")
        e("v_lshl_add_u32 v9, v2, 2, v3")
        e("s_bfe_u32 s26, s2, 0x10005")
        e("s_bfe_u32 s43, s2, 0x10003" if self.o.hf else "s_mov_b32 s43, 0")
        e("s_cmp_lt_u32 s3, 4")
        e("s_cbranch_scc1 L_compute")

    def helper(self):
        e, o = self.e, self.o
        self.lab("L_helper")
        if o.prio_loader:
            e(f"s_setprio {o.prio_loader}")
        Wn = o.win
        phases = {"A": [(0, 304, [64, 64, 64, 64, 48])],
                  "B": [(0, 224, [56] * 4), (448, 80, [40] * 2)],
                  "C": [(0, 256, [64] * 4), (512, 48, [48])]}[o.order]
        self.phases = phases
        ntot = 7 * sum(len(p[2]) for p in phases)
        e("s_and_b32 s10, s2, 1")
        e("s_lshl_b32 s10, s10, 2")
        e("s_bfe_u32 s11, s2, 0x20003")
        e("s_add_u32 s10, s10, s11")
        e("s_bfe_u32 s11, s2, 0x20001")
        e("s_lshl_b32 s11, s11, 3")
        e("s_lshr_b32 s24, s2, 5")
        e("s_add_u32 s11, s11, s24")
        e("s_mul_i32 s25, s11, 12")
        e("s_mul_i32 s24, s10, 9216")
        e("s_and_b32 s30, s3, 1")
        e("s_bfe_u32 s45, s3, 0x10001")
        e("v_lshrrev_b32 v1, 2, v0")
        e("v_bfrev_b32 v3, 1")

        def patterns(ph, first, last):
            st, half, lanes = ph
            mir = (608 - st - 2 * half) - st if len(phases) == 2 else 0
            e(f"s_mul_i32 s33, s45, {half}")
            if mir:
                e(f"s_mul_i32 s28, s43, {mir}")
                e("s_add_u32 s33, s33, s28")
            if st:
                e(f"s_add_u32 s33, s33, {st}")
            e("s_lshr_b32 s28, s33, 2")
            e("s_add_u32 s28, s28, 2")
            e("v_add_u32 v4, s28, v1")
            e("s_lshl_b32 s33, s33, 4")
            off = 0
            for k, ln in enumerate(lanes):
                if off:
                    e(f"v_add_u32 v2, {off // 4}, v4")
                    e("v_mul_u32_u24 v2, 171, v2")
                else:
                    e("v_mul_u32_u24 v2, 171, v4")
                e("v_bfe_u32 v2, v2, 11, 2")
                e("v_xor_b32 v2, v2, v0")
                e(f"v_lshl_add_u32 v{10 + k}, v2, 4, s33")
                off += ln
            if len(lanes) == 5:
                e("v_add_u32 v14, 4096, v14")
            if first:
                e("s_add_u32 s28, s45, s10")
                e("s_cmp_eq_u32 s28, 0")
                e("s_cselect_b32 s32, 16, 0")
                e("v_cmp_gt_u32 vcc, s32, v0")
            e(f"s_mul_i32 s32, s30, {P}")
            e("s_add_u32 s33, s33, s32")
            if first:
                e("v_cndmask_b32 v10, v10, v3, vcc")
            if (first if o.hf else last):
                if not first:
                    e("s_add_u32 s28, s45, s10")
                e("s_cmp_eq_u32 s28, 8")
                e(f"s_cselect_b32 s28, {lanes[-1] - 16}, 64")
                e("v_cmp_le_u32 vcc, s28, v0")
                e("s_nop 1")
                e(f"v_cndmask_b32 v{9 + len(lanes)}, v{9 + len(lanes)}, v3, vcc")

        patterns(phases[0], True, len(phases) == 1)
        e("s_cmp_eq_u32 s26, 0")
        e("s_cselect_b32 s27, 1, -1")
        e("s_cselect_b32 s29, -1, 12")
        e(f"s_mul_i32 s27, s27, {ROWB}")
        e("s_add_i32 s29, s29, s25")
        e(f"s_mul_i32 s29, s29, {ROWB}")
        e("s_mul_i32 s28, s30, s27")
        e("s_add_i32 s29, s29, s28")
        e("s_lshl_b32 s35, s27, 1")
        cl = [int(x) for x in o.cls.split(",")]
        assert max(cl) <= 5
        e("s_bfe_u32 s44, s2, 0x20003")
        e("s_lshl_b32 s44, s44, 3")
        e(f"s_lshr_b32 s44, {hex(sum(c << (8 * i) for i, c in enumerate(cl)))}, s44")
        e("s_and_b32 s44, s44, 255")
        e("v_add_u32 v7, 16, v9")
        e("s_waitcnt lgkmcnt(0)")
        e("s_sub_u32 s12, s4, 256")
        e("s_subb_u32 s13, s5, 0")
        e(f"s_mov_b32 s14, {XBYTES + 256}")
        e("s_mov_b32 s15, 0x20000")
        self.stamp()
        self.diag_mark("karg")
        fl = o.ldflags
        if 0 in cl:
            e("s_cmp_lg_u32 s44, 0")
            e("s_cbranch_scc1 L_ld_start")
            e("s_barrier")
            self.lab("L_ld_start")
        if o.order == "A":
            self.load_A(phases, fl)
        else:
            Wn = o.winl
            n = 0
            c1, c2 = len(phases[0][2]), len(phases[1][2])
            e(f"v_mov_b32 v6, {-c1 * ((Wn - 1) // c1)}")
            for pi, ph in enumerate(phases):
                st, half, lanes = ph
                c = len(lanes)
                if pi:
                    if o.prof == 2:
                        e("s_memrealtime s[82:83]")
                    e("s_mov_b64 exec, -1")
                    patterns(ph, False, True)
                    e(f"v_mov_b32 v6, {7 * c1 - (Wn - 1) + (Wn - 1) % c}")
                e("s_mov_b32 s31, s29")
                e("s_mov_b32 s32, 0")
                if lanes[0] < 64:
                    e(f"s_mov_b32 exec_hi, {hex((1 << (lanes[0] - 32)) - 1)}")
                self.lab(f"L_ld_loop{pi}")
                e("s_add_u32 s34, s31, s24")
                e("s_cmp_lt_i32 s31, 0")
                e("s_cselect_b32 s34, 0x40000000, s34")
                e("s_mov_b32 m0, s33")
                e("s_add_i32 s31, s31, s35")
                off = 0
                for k, ln in enumerate(lanes):
                    e(f"s_waitcnt vmcnt({Wn - 1})")
                    if k == (Wn - 1) % c:
                        e("ds_write_b32 v8, v6")
                    e(f"buffer_load_dwordx4 v{10 + k}, s[12:15], s34 offen offset:{off * 16} {fl} lds")
                    off += ln
                e(f"v_add_u32 v6, {c}, v6")
                e(f"s_add_u32 s33, s33, {2 * P}")
                e("s_add_u32 s32, s32, 1")
                if pi == 0:
                    e("s_cmp_lg_u32 s32, s44")
                    e("s_cbranch_scc1 L_ld_nobar")
                    e("s_barrier")
                    self.lab("L_ld_nobar")
                    e("s_cmp_lg_u32 s32, 5")
                    e("s_cbranch_scc1 L_ld_nopoll")
                    self.poll(7, 5, 1)
                    self.lab("L_ld_nopoll")
                e("s_cmp_lt_u32 s32, 7")
                e(f"s_cbranch_scc1 L_ld_loop{pi}")
            for v in range(ntot - Wn + 1, ntot):
                if (v == 7 * c1 and o.early < 2) or (v < 7 * c1 and v % c1 == 0):
                    e(f"v_mov_b32 v2, {v}")
                    e(f"s_waitcnt vmcnt({ntot - v})")
                    e("ds_write_b32 v8, v2")
        self.lab("L_ld_tail")
        if o.prof == 2:
            e("s_memrealtime s[84:85]")
        if o.prio_loader or o.prio_left:
            e("s_setprio 0")
        e("s_mov_b64 exec, -1")
        e("s_and_b32 s30, s3, 3")
        e("s_mul_i32 s28, s30, 12")
        e("s_add_u32 s28, s28, 3")
        if o.hf:
            e("s_mul_i32 s32, s43, 6")
            e("s_add_u32 s28, s28, s32")
        e("v_add_u32 v2, s28, v1")
        e("v_mul_u32_u24 v2, 171, v2")
        e("v_bfe_u32 v2, v2, 11, 2")
        e("v_xor_b32 v2, v2, v0")
        e("s_mul_i32 s33, s30, 768")
        e("s_add_u32 s28, s33, 64")
        if o.hf:
            e("s_mul_i32 s32, s43, 6528")
            e("s_add_u32 s28, s28, s32")
            e("s_mul_i32 s32, s43, 6144")
            e("s_add_u32 s24, s24, s32")
            e("s_sub_u32 s36, 3072, s32")
            e(f"s_sub_u32 s38, s36, {12 * P}")
        e("v_lshl_add_u32 v10, v2, 4, s28")
        e("v_lshl_add_u32 v11, v0, 4, s33")
        if o.defer:
            e("s_mul_i32 s28, s30, 12")
            e("s_add_u32 s28, s28, 9")
            e("v_add_u32 v2, s28, v1")
            e("v_mul_u32_u24 v2, 171, v2")
            e("v_bfe_u32 v2, v2, 11, 2")
            e("v_xor_b32 v2, v2, v0")
            e("s_add_u32 s28, s33, 448")
            e("v_lshl_add_u32 v13, v2, 4, s28")
        e("s_cmp_eq_u32 s26, 0")
        e("s_cselect_b32 s29, 0, 11")
        e("s_add_i32 s29, s29, s25")
        e(f"s_mul_i32 s29, s29, {ROWB}")
        e("s_add_u32 s29, s29, s24")
        e("s_mov_b32 s20, s8")
        e("s_mov_b32 s21, s9")
        e(f"s_mov_b32 s22, {XBYTES}")
        e("s_mov_b32 s23, 0x20000")
        e("s_mov_b32 exec_hi, 0xffff")
        if not o.early:
            e(f"v_mov_b32 v2, {ntot}")
            e("s_waitcnt vmcnt(0)")
            e("ds_write_b32 v8, v2")
        self.stamp()
        self.diag_mark("ldone")
        self.stamp_now(58, 0, real=True)
        if o.nostore:
            self.stamp_flush()
            e("s_endpgm")
        e("s_mov_b32 s37, 2")
        if o.defer:
            e("s_mov_b32 s31, s29")
            e(f"s_mov_b32 s32, {8 - o.defer}")
        else:
            self.lab("L_st_strip")
            e("s_mov_b32 s31, s29")
            e("s_mov_b32 s32, 0")
        self.lab("L_st_loop")
        if not o.nocomp:
            e("v_cmp_gt_i32 vcc, s37, v5")
            e("s_cbranch_vccz L_st_go")
            self.poll(7, 5, "s37", sleep=o.sleep)
            self.lab("L_st_go")
        e("ds_read_b128 v[16:19], v10")
        e(f"ds_read_b128 v[20:23], v10 offset:{P}")
        e("s_add_i32 s34, s31, s27")
        e(f"v_add_u32 v10, {2 * P}, v10")
        e("s_add_u32 s37, s37, 1")
        if not o.defer:
            e("s_add_u32 s32, s32, 1")
        e("s_waitcnt lgkmcnt(1)")
        e(f"buffer_store_dwordx4 v[16:19], v11, s[20:23], s31 offen {o.stflags}")
        e("s_add_i32 s31, s34, s27")
        e("s_waitcnt lgkmcnt(0)")
        e(f"buffer_store_dwordx4 v[20:23], v11, s[20:23], s34 offen {o.stflags}")
        if o.early:
            ev = [(2 + o.early, ntot, 2 * o.early)]
            if o.early >= 2:
                ev.insert(0, (3, 28, ntot - 28 + 2))
            for sv, val, cnt in ev:
                e(f"s_cmp_lg_u32 s37, {sv}")
                e(f"s_cbranch_scc1 L_st_nf{val}")
                e(f"v_mov_b32 v2, {val}")
                e(f"s_waitcnt vmcnt({cnt})")
                e("ds_write_b32 v8, v2")
                self.lab(f"L_st_nf{val}")
        if o.prof == 2:
            e("s_cmp_lg_u32 s37, 3")
            e("s_cbranch_scc1 L_nofs")
            e("s_memrealtime s[86:87]")
            self.lab("L_nofs")
        if o.prof and o.cstamp:
            self.stamp_now(22 - 3, "s37")
            self.stamp_now(40 - 3, "s37", real=True)
        if o.defer:
            D = o.defer
            e("s_cmp_lt_u32 s37, s32")
            e("s_cbranch_scc1 L_st_loop")
            e("s_add_u32 s32, s32, 6")
            e(f"s_cmp_lg_u32 s37, {8 - D}")
            e("s_cbranch_scc1 L_st_s1")
            e("v_mov_b32 v12, v10")
            e("s_mov_b32 s43, s31")
            e("v_add_u32 v10, 6144, v13")
            e("s_add_u32 s31, s29, 6144")
            e("s_branch L_st_loop")
            self.lab("L_st_s1")
            e(f"s_cmp_lg_u32 s37, {14 - D}")
            e("s_cbranch_scc1 L_st_s2")
            e("v_add_u32 v10, 3072, v13")
            e("s_add_u32 s31, s29, 3072")
            e("s_branch L_st_loop")
            self.lab("L_st_s2")
            e("v_mov_b32 v10, v12")
            e("s_mov_b32 s31, s43")
            e("s_mov_b32 s32, 20")
            e("s_cmp_lt_u32 s37, 20")
            e("s_cbranch_scc1 L_st_loop")
        else:
            e("s_cmp_lt_u32 s32, 6")
            e("s_cbranch_scc1 L_st_loop")
            if o.hf:
                e("s_add_u32 s29, s29, s36")
                e("v_add_u32 v10, s38, v10")
            else:
                e("s_add_u32 s29, s29, 3072")
                e(f"v_add_u32 v10, {3072 - 12 * P}, v10")
            e("s_cmp_lt_u32 s37, 20")
            e("s_cbranch_scc1 L_st_strip")
        self.diag_mark("stiss")
        if o.prof:
            self.stamp()
            e("s_waitcnt vmcnt(0)")
            self.stamp()
        self.stamp_flush()
        self.diag_end()
        e("s_endpgm")

    def load_A(self, phases, fl):
        e, o = self.e, self.o
        lanes = phases[0][2]
        e("s_mov_b32 s31, s29")
        e("s_mov_b32 s32, 0")
        sides = [("l", o.winl), ("r", o.winr)] if o.winl != o.winr else [("l", o.winl)]
        if len(sides) == 2:
            e("s_cmp_lg_u32 s45, 0")
            e("s_cbranch_scc1 L_ld_pre_r")
        for sd, Wn in sides:
            self.lab(f"L_ld_pre_{sd}")
            e(f"v_mov_b32 v6, {-5 * ((Wn - 1) // 5)}")
            if sd == "l" and o.prio_left:
                e(f"s_setprio {o.prio_left}")
            self.lab(f"L_ld_loop_{sd}")
            e("s_add_u32 s34, s31, s24")
            e("s_cmp_lt_i32 s31, 0")
            e("s_cselect_b32 s34, 0x40000000, s34")
            e("s_mov_b32 m0, s33")
            e("s_add_i32 s31, s31, s35")
            for k in range(5):
                if k == 4:
                    e("s_add_u32 m0, s33, 4096")
                e(f"s_waitcnt vmcnt({Wn - 1})")
                if k == (Wn - 1) % 5:
                    e("ds_write_b32 v8, v6")
                if k == 4:
                    e("s_mov_b32 exec_hi, 0xffff")
                e(f"buffer_load_dwordx4 v{10 + k}, s[12:15], s34 offen offset:{1024 * (k % 4)} {fl} lds")
                if k == 4:
                    e("s_mov_b32 exec_hi, -1")
                if k == 0:
                    e(f"v_add_u32 v6, {(Wn - 1) % 5}, v6" if False else "s_add_u32 s32, s32, 1")
            e("v_add_u32 v6, 5, v6")
            e(f"s_add_u32 s33, s33, {2 * P}")
            e("s_cmp_lg_u32 s32, s44")
            e(f"s_cbranch_scc1 L_ld_nobar_{sd}")
            e("s_barrier")
            self.lab(f"L_ld_nobar_{sd}")
            e("s_cmp_lg_u32 s32, 5")
            e(f"s_cbranch_scc1 L_ld_nopoll_{sd}")
            self.poll(7, 5, 1)
            self.lab(f"L_ld_nopoll_{sd}")
            e("s_cmp_lt_u32 s32, 7")
            e(f"s_cbranch_scc1 L_ld_loop_{sd}")
            for v in range(35 - Wn + 1, 35):
                if v % 5 == 0:
                    e(f"v_mov_b32 v2, {v}")
                    e(f"s_waitcnt vmcnt({35 - v})")
                    e("ds_write_b32 v8, v2")
            if sd == "l" and len(sides) == 2:
                e("s_branch L_ld_tail")

    def compute(self):
        e, o = self.e, self.o
        ops = [("U0", 0), ("U0", 1), ("U1", 0), ("U1", 1), ("U2", 0), ("U2", 1), ("U2", 2), ("U3", 0), ("U3", 1), ("U3", 2),
               ("X", 0), ("X", 1), ("X", 2),
               ("L0", 0), ("L0", 1), ("L0", 2), ("L1", 0), ("L1", 1), ("L1", 2), ("L2", 1), ("L2", 2), ("L3", 1), ("L3", 2)]
        W = {k: 16 + 4 * i for i, k in enumerate(ops)}
        SET = [108, 124]
        XR = 140
        ACC = lambda s, t: 144 + 12 * s + 4 * t
        PK = 168
        A1, A2, AX = 174, 175, 176
        ST = [177, 178, 179]
        self.lab("L_compute")
        self.nstamp = 1
        if o.ipf:
            e("s_getpc_b64 s[38:39]")
            self.lab("L_pc")
            e("s_sub_u32 s38, s38, L_pc-standalone__grouped__vision_kernel")
            e("s_subb_u32 s39, s39, 0")
            e(f"v_lshlrev_b32 v2, {o.ipf}, v0")
            e("v_lshl_add_u32 v2, s3, 13, v2" if o.ipf == 7 else "v_lshl_add_u32 v2, s3, 12, v2")
            e(f"v_min_u32 v2, {['L_code_end', 'L_compute', 'L_c_loop'][o.ipfh]}-standalone__grouped__vision_kernel-4, v2")
            e("v_mov_b32 v3, s39")
            e("v_add_co_u32 v2, vcc, s38, v2")
            e("s_nop 1")
            e("v_addc_co_u32 v3, vcc, 0, v3, vcc")
            e("global_load_dword v185, v[2:3], off")
        if o.prio_comp:
            e(f"s_setprio {o.prio_comp}")
        e("s_mul_i32 s28, s3, 1152")
        e("v_lshl_add_u32 v108, v0, 4, s28")
        e("s_movk_i32 s29, 3456")
        for i in range(1, 4):
            e(f"v_add_u32 v2, {64 * i}, v0")
            e("v_mul_u32_u24 v2, 911, v2")
            e("v_lshrrev_b32 v2, 16, v2")
            e(f"v_mad_u32_u24 v{108 + i}, v2, s29, v108")
        e("v_cmp_lt_u32 vcc, 23, v0")
        e("v_bfrev_b32 v3, 1")
        e(f"s_mul_i32 s33, s3, {WSZ}")
        e(f"s_add_u32 s33, s33, {WREG}")
        e("v_cndmask_b32 v111, v111, v3, vcc")
        e("s_mul_i32 s34, s26, 27648")
        e("s_movk_i32 s35, 13824")
        e("s_sub_u32 s36, 27648, s34")
        e("s_waitcnt lgkmcnt(0)")
        if o.tlbw:
            e("s_and_b32 s10, s2, 1")
            e("s_lshl_b32 s10, s10, 2")
            e("s_bfe_u32 s11, s2, 0x20003")
            e("s_add_u32 s10, s10, s11")
            e("s_mul_i32 s10, s10, 9216")
            e("s_bfe_u32 s11, s2, 0x20001")
            e("s_lshl_b32 s11, s11, 3")
            e("s_lshr_b32 s24, s2, 5")
            e("s_add_u32 s11, s11, s24")
            e(f"s_mul_i32 s11, s11, {12 * ROWB}")
            e("s_add_u32 s10, s10, s11")
            e("s_mov_b32 s20, s8")
            e("s_mov_b32 s21, s9")
            e(f"s_mov_b32 s22, {XBYTES}")
            e("s_mov_b32 s23, 0x20000")
            e(f"s_mov_b32 s11, {11 * ROWB}")
            e("v_mul_lo_u32 v2, v0, s11")
            e("s_cmp_lg_u32 s3, 0")
            e("s_cbranch_scc1 L_notouch")
            e("s_mov_b64 exec, 3")
            e(f"buffer_load_dword v186, v2, s[20:23], s10 offen {o.tlbf}")
            e("s_mov_b64 exec, -1")
            self.lab("L_notouch")
        e("s_barrier")
        e("s_mov_b32 s16, s6")
        e("s_mov_b32 s17, s7")
        e(f"s_mov_b32 s18, {WBYTES}")
        e("s_mov_b32 s19, 0x20000")
        for p in range(3):
            if o.wsplit and p:
                e(f"s_waitcnt vmcnt({o.wsplit - 1})")
            e(f"s_add_u32 m0, s33, {4096 * p}")
            e("s_nop 0")
            for i in range(4):
                if not o.now:
                    e(f"buffer_load_dwordx4 v{108 + i}, s[16:19], s{34 + p} offen offset:{1024 * i} {o.wflags} lds")
        self.stamp()
        e("v_and_b32 v1, 15, v0")
        e("v_lshrrev_b32 v2, 4, v0")
        e("s_mul_i32 s28, s3, 3")
        e("v_and_b32 v3, 1, v2")
        e("v_lshrrev_b32 v4, 1, v2")
        e("v_cmp_gt_u32 vcc, 2, v2")
        e("s_movk_i32 s29, 192")
        e("s_movk_i32 s30, 1152")

        def baddr(dst, vdx, vcc_, tmp1, tmp2, extra=None):
            e(f"v_add_u32 v{tmp1}, {vdx}, v1")
            e(f"v_add_u32 v{tmp2}, 1, v{tmp1}")
            e(f"v_bfe_u32 v{tmp2}, v{tmp2}, 2, 2")
            e(f"v_mad_u32_u24 v{tmp1}, v{tmp1}, s29, v15" if o.hf else f"v_mad_u32_u24 v{tmp1}, v{tmp1}, s29, 64")
            e(f"v_add_u32 v{dst}, s28, {vcc_}")
            e(f"v_xor_b32 v{dst}, v{dst}, v{tmp2}")
            e(f"v_lshl_add_u32 v{dst}, v{dst}, 4, v{tmp1}")
            if extra:
                e(f"v_add_u32 v{dst}, {extra}, v{dst}")

        if o.hf:
            e("s_mul_i32 s31, s43, 6144")
            e("s_add_u32 s32, s31, 64")
            e("v_mov_b32 v15, s32")
            e("s_sub_u32 s38, 3072, s31")
            e(f"s_sub_u32 s38, s38, {8 * P}")
        e("v_cndmask_b32 v6, 2, v2, vcc")
        e("v_cndmask_b32 v7, v3, 2, vcc")
        baddr(A1, "v3", "v4", 11, 12)
        baddr(A2, "v6", "v7", 11, 12)
        e(f"v_mul_u32_u24 v13, {P}, v2")
        e("v_mov_b32 v14, 2")
        baddr(AX, "2", "v14", 11, 12, "v13")
        if o.hf:
            e("v_lshl_add_u32 v1, s43, 1, v1")
        e("v_add_u32 v12, 1, v1")
        e("v_bfe_u32 v12, v12, 2, 2")
        e("v_mad_u32_u24 v11, v1, s29, v15" if o.hf else "v_mad_u32_u24 v11, v1, s29, 64")
        e("v_lshl_add_u32 v11, v3, 3, v11")
        e(f"v_add_u32 v13, {P}, v11")
        e("v_add_u32 v14, s28, v4")
        e("v_xor_b32 v15, v14, v12")
        e(f"v_lshl_add_u32 v{ST[0]}, v15, 4, v11")
        e("v_add_u32 v14, 1, v14")
        e("v_xor_b32 v15, v14, v12")
        e(f"v_lshl_add_u32 v{ST[2]}, v15, 4, v13")
        e("v_cndmask_b32 v14, 0, 2, vcc")
        e("v_cndmask_b32 v13, v13, v11, vcc")
        e("v_add_u32 v14, s28, v14")
        e("v_xor_b32 v15, v14, v12")
        e(f"v_lshl_add_u32 v{ST[1]}, v15, 4, v13")
        if o.defer:
            e("v_add_u32 v12, 3, v1")
            e("v_bfe_u32 v12, v12, 2, 2")
            e(f"v_add_u32 v11, {384 + 6144}, v11")
            e(f"v_add_u32 v13, {384 + 6144}, v13")
            e("v_xor_b32 v15, v14, v12")
            e("v_lshl_add_u32 v181, v15, 4, v13")
            e("v_add_u32 v14, s28, v4")
            e("v_xor_b32 v15, v14, v12")
            e("v_lshl_add_u32 v180, v15, 4, v11")
            e("v_add_u32 v14, 1, v14")
            e("v_xor_b32 v15, v14, v12")
            e(f"v_add_u32 v11, {P}, v11")
            e("v_lshl_add_u32 v182, v15, 4, v11")
        E1, E2, F1, F2, F1z, F2z, F1y, F2y, G0, G1, G2, Z = range(144, 156)
        e("v_bfe_u32 v11, v0, 2, 2")
        e("v_mul_u32_u24 v11, 48, v11")
        e("v_add_u32 v11, s33, v11")
        e("v_and_b32 v12, 3, v0")
        e("v_lshl_add_u32 v11, v12, 3, v11")
        e("v_mul_u32_u24 v13, 384, v4")
        e("v_mad_u32_u24 v13, v3, s30, v13")
        e("v_mul_u32_u24 v14, 384, v7")
        e("v_mad_u32_u24 v14, v6, s30, v14")
        e(f"v_add_u32 v{E1}, v11, v13")
        e(f"v_add_u32 v{E2}, v11, v14")
        e("v_cmp_lt_u32 vcc, 1, v12")
        e("s_add_u32 s30, s33, 3456")
        e(f"v_mov_b32 v{Z}, s30")
        e("v_mov_b32 v13, 32")
        e("v_mov_b32 v14, -4112")
        e("v_cndmask_b32 v13, v13, v14, vcc")
        e("v_cndmask_b32 v15, 0, 1, vcc")
        e(f"v_add_u32 v{F1}, v{E1}, v13")
        e(f"v_add_u32 v{F2}, v{E2}, v13")
        e(f"v_cndmask_b32 v{F1z}, v{F1}, v{Z}, vcc")
        e(f"v_cndmask_b32 v{F2z}, v{F2}, v{Z}, vcc")
        e(f"v_add_u32 v{F1y}, 12288, v{F1}")
        e(f"v_add_u32 v{F2y}, 12288, v{F2}")
        e(f"v_cndmask_b32 v{F1y}, v{Z}, v{F1y}, vcc")
        e(f"v_cndmask_b32 v{F2y}, v{Z}, v{F2y}, vcc")
        e("v_lshl_add_u32 v11, v2, 12, v11")
        e("v_add_u32 v11, 3072, v11")
        e("v_sub_u32 v15, v2, v15")
        e("v_cmp_gt_u32 vcc, 3, v15")
        e(f"v_add_u32 v{G1}, v11, v13")
        e(f"v_add_u32 v{G2}, -4080, v11")
        e(f"v_cndmask_b32 v{G1}, v{Z}, v{G1}, vcc")
        e("v_cmp_gt_u32 vcc, 3, v2")
        e("s_nop 1")
        e(f"v_cndmask_b32 v{G0}, v{Z}, v11, vcc")
        e("v_cmp_lt_u32 vcc, 0, v2")
        e("s_nop 0")
        e("v_mov_b32 v10, 1")
        e(f"v_cndmask_b32 v{G2}, v{Z}, v{G2}, vcc")

        def tr(key, a, off):
            w = W[key]
            e(f"ds_read_b64_tr_b16 v[{w}:{w + 1}], v{a} offset:{off}")
            e(f"ds_read_b64_tr_b16 v[{w + 2}:{w + 3}], v{a} offset:{off + 192}")

        e("s_waitcnt vmcnt(8)")
        self.stamp()
        tr(("U0", 0), E1, 0); tr(("U1", 0), E2, 0); tr(("U0", 1), F1z, 0); tr(("U1", 1), F2z, 0)
        tr(("U2", 2), E1, 16); tr(("U3", 2), E2, 16)
        e("s_waitcnt vmcnt(4)")
        tr(("U2", 0), E1, 4096); tr(("U3", 0), E2, 4096); tr(("U2", 1), F1, 4096); tr(("U3", 1), F2, 4096)
        tr(("L0", 2), E1, 4112); tr(("L1", 2), E2, 4112)
        e("s_waitcnt vmcnt(0)")
        self.stamp()
        tr(("X", 0), G0, 0); tr(("X", 1), G1, 0); tr(("X", 2), G2, 0)
        tr(("L0", 0), E1, 8192); tr(("L1", 0), E2, 8192); tr(("L0", 1), F1, 8192); tr(("L1", 1), F2, 8192)
        tr(("L2", 1), F1y, 0); tr(("L3", 1), F2y, 0); tr(("L2", 2), E1, 8208); tr(("L3", 2), E2, 8208)
        e("ds_write_b32 v8, v10")
        self.diag_mark("kw")
        self.stamp()
        if o.nocomp:
            self.stamp_flush()
            self.lab("L_end")
            e("s_endpgm")
            return
        if o.cstamp == 2:
            e("s_waitcnt lgkmcnt(0)")
            e("s_mov_b32 s94, s46")
        self.lab("L_c_loop")
        slow = []
        c1 = len(self.phases[0][2])
        ntot = 7 * sum(len(p[2]) for p in self.phases)

        def need(T, s):
            if o.order == "A" or T < 2:
                return c1 * (s + 2)
            return 7 * c1 + len(self.phases[1][2]) * (s + 2)

        def pair_reads(st, off):
            b = SET[st]
            return [f"ds_read_b128 v[{b}:{b + 3}], v{A1} offset:{off}",
                    f"ds_read_b128 v[{b + 4}:{b + 7}], v{A2} offset:{off}",
                    f"ds_read_b128 v[{b + 8}:{b + 11}], v{A1} offset:{off + P}",
                    f"ds_read_b128 v[{b + 12}:{b + 15}], v{A2} offset:{off + P}"]

        def epilogue(acc, off, wr):
            r = []
            for t in range(3):
                a = ACC(acc, t)
                r.append(f"v_cvt_pk_bf16_f32 v{PK + 2 * t}, v{a}, v{a + 1}")
                r.append(f"v_cvt_pk_bf16_f32 v{PK + 2 * t + 1}, v{a + 2}, v{a + 3}")
                if wr == 32:
                    r.append(f"ds_write_b32 v{ST[t]}, v{PK + 2 * t} offset:{off}")
                    r.append(f"ds_write_b32 v{ST[t]}, v{PK + 2 * t + 1} offset:{off + 4}")
                else:
                    r.append(f"ds_write_b64 v{ST[t]}, v[{PK + 2 * t}:{PK + 2 * t + 1}] offset:{off}")
            r.append("ds_write_b32 v8, v10")
            return r

        if o.modes == "q":
            return self.loop_q(ops, W, SET, XR, ACC, PK, A1, A2, AX, ST, c1, ntot)
        seen_upto = 0
        fpending = None
        modes = o.modes.split(",")
        loop = o.loop
        if loop:
            del self.L[-1]
            e("s_mov_b32 s37, 0")
            e("v_and_b32 v11, -9, v9")
            if o.hf:
                e("v_lshl_add_u32 v11, s43, 3, v11")
            e("v_mov_b32 v5, 0")
            if o.order != "A":
                e(f"s_mov_b32 s35, {2 * c1}")
                e(f"s_mov_b32 s34, {2 * c1}")
            self.lab("L_c_loop")
        nb = len(modes) if loop else 3
        seq = o.seq
        for T in range(nb):
            md = modes[T]
            if loop and T:
                self.lab(f"L_c_loop{T}")
            for s in range(6):
                u = 6 * T + s
                if o.prof and o.cstamp == 2:
                    e(f"s_memtime s[{16 + 4 * u}:{17 + 4 * u}]")
                    e(f"s_memrealtime s[{18 + 4 * u}:{19 + 4 * u}]")
                elif o.prof and o.cstamp:
                    self.stamp_now(22, u)
                    self.stamp_now(40, u, real=True)
                U, Lo = s & 1, (s & 1) ^ 1
                acc = s & 1 if md == "n" else 0
                nd = need(0 if loop else T, s)
                if loop and o.order != "A" and s == 0:
                    e("v_cmp_gt_i32 vcc, s35, v5")
                    e(f"s_cbranch_vccnz L_c_slow{u}")
                    self.lab(f"L_c_ready{u}")
                    slow.append((u, "s35"))
                    e("s_mov_b32 s35, s34")
                    e(f"s_mov_b32 s34, {ntot}")
                    seen_upto = 99
                elif loop:
                    e(f"v_cmp_gt_i32 vcc, {nd}, v5")
                    e(f"s_cbranch_vccnz L_c_slow{u}")
                    self.lab(f"L_c_ready{u}")
                    slow.append((u, nd))
                    seen_upto = 99
                elif nd > seen_upto:
                    if fpending is not None:
                        e(f"s_waitcnt lgkmcnt({fpending})")
                        if loop:
                            nd_ = "s36"
                        else:
                            nd_ = nd
                        e(f"v_cmp_gt_i32 vcc, {nd_}, v5")
                        e(f"s_cbranch_vccnz L_c_slow{u}")
                        self.lab(f"L_c_ready{u}")
                        slow.append((u, nd_))
                    else:
                        self.poll(9, 5, nd, sleep=o.csleep)
                    seen_upto = nd
                fpending = None
                if s == 0 and o.diag in ("k0", "k1", "k2"):
                    e(f"s_cmp_lg_u32 s37, {o.diag[1]}")
                    e("s_cbranch_scc1 L_nomark")
                    e("s_memrealtime s[90:91]")
                    self.lab("L_nomark")
                if s == 0 and o.prof and not o.cstamp:
                    self.stamp_now(24, "s37" if loop else T, real=(o.prof == 2))
                ro = (s & 1) * 2 * P
                rd = (pair_reads(0, 0) if s == 0 else []) + pair_reads(Lo, ro + 2 * P)
                rd.append(f"ds_read_b128 v[{XR}:{XR + 3}], v{AX} offset:{ro}")
                post = []
                if s & 1:
                    adv = 4 * P if s < 5 else "s38" if o.hf else (-3072 if o.defer else 3072) - 8 * P
                    post = [f"v_add_u32 v{r}, {adv}, v{r}" for r in (A1, A2, AX)] if (u < 17 or loop) else []
                inter = []
                if md in ("r", "n") and s > 0:
                    inter = [[x] for x in rd]
                else:
                    for x in rd:
                        e(x)
                    if s == 0:
                        e("s_waitcnt lgkmcnt(5)")
                nxt_need = need(T, s + 1) if s < 5 else (need(T + 1, 0) if T < 2 else 0)
                want_f = md != "p" and nxt_need > seen_upto
                if loop:
                    if o.defer:
                        if s == o.defer - 1:
                            post = post + ["s_cmp_eq_u32 s37, 3"]
                        if s == 5 - o.defer:
                            post = post + ["s_cmp_eq_u32 s37, 0"]
                        if s == 5:
                            post = post + ["s_add_u32 s37, s37, 1", "s_cmp_eq_u32 s37, 2"]
                    elif s == 5:
                        post = post + ["s_add_u32 s37, s37, 1", "v_mov_b32 v11, v9", "s_cmp_eq_u32 s37, 1", "s_cselect_b32 s36, 0, -1",
                                       "v_and_b32 v5, s36, v5", "s_cmp_lt_u32 s37, 3"]
                        if nb == 2:
                            post[-1] = f"s_bitcmp1_b32 {sum(1 << k for k in range(3) if o.seq[k] == '0')}, s37"
                    if o.order != "A" and s == 0:
                        pre0 = True
                defer = []
                if md == "n" and s > 0:
                    defer = ["v_add_u32 v10, 1, v10"] + epilogue(acc ^ 1, ((s - 1) & 1) * 2 * P, o.wrn)
                    if not s & 1:
                        defer += [f"v_add_u32 v{r}, {4 * P}, v{r}" for r in ST]
                seen = set()
                seq = [(k, SET[U] + 4 * int(k[0][1])) for k in ops[:10]] + [(k, SET[Lo] + 4 * int(k[0][1])) for k in ops[13:]] + [(k, XR) for k in ops[10:13]]
                behind = 0
                for g, (k, b) in enumerate(seq):
                    if g == 10:
                        e(f"s_waitcnt lgkmcnt({behind})")
                    t = k[1]
                    a = ACC(acc, t)
                    cin = f"v[{a}:{a + 3}]" if t in seen else "0"
                    seen.add(t)
                    e(f"v_mfma_f32_16x16x32_bf16 v[{a}:{a + 3}], v[{W[k]}:{W[k] + 3}], v[{b}:{b + 3}], {cin}")
                    cap = 2
                    if inter:
                        e(inter.pop(0)[0])
                        cap -= 1
                    elif post and not defer:
                        while post and cap:
                            e(post.pop(0))
                            cap -= 1
                    while defer and cap and g >= 2 and g != 9:
                        isw = defer[0].startswith("ds_write")
                        if isw and cap < 2:
                            break
                        x = defer.pop(0)
                        e(x)
                        cap -= 2 if isw else 1
                        if isw and g < 10:
                            behind += 1
                assert not defer and not inter, (u, defer)
                fill = list(post)
                if md != "n" or s == 5:
                    fill.append("v_add_u32 v10, 1, v10")
                    if want_f:
                        fill.append("ds_read_b32 v5, v9")
                    for x in fill:
                        e(x)
                    if len(fill) < 6:
                        e(f"s_nop {5 - len(fill)}")
                    ep = epilogue(acc, (s & 1) * 2 * P, o.wr)
                    for x in ep:
                        e(x)
                    if want_f:
                        fpending = sum(1 for x in ep if x.startswith("ds_"))
                    if s & 1 and (u < 17 or loop):
                        adv = 4 * P if s < 5 else "s38" if o.hf else (-3072 if o.defer else 3072) - 8 * P
                        for r in ST:
                            e(f"v_add_u32 v{r}, {adv}, v{r}")
                    if o.defer and s in (o.defer - 1, 5 - o.defer):
                        e("s_cbranch_scc1 L_c_stub")
                    if loop and nb == 2 and s == 5:
                        e("s_cbranch_scc1 L_c_loop")
                        e("s_cmp_lt_u32 s37, 3")
                        if T == 0:
                            e("s_cbranch_scc0 L_c_done")
                        else:
                            e("s_cbranch_scc1 L_c_loop1")
                            self.lab("L_c_done")
                else:
                    for x in fill:
                        e(x)
                    if want_f:
                        e("ds_read_b32 v5, v9")
                        fpending = 0
                    if o.defer and s in (o.defer - 1, 5 - o.defer):
                        e("s_cbranch_scc1 L_c_stub")
        if loop and nb == 1:
            e("s_cbranch_scc1 L_c_loop")
        if o.defer:
            D = o.defer
            for r in (A1, A2, AX):
                e(f"v_add_u32 v{r}, {(12 - 2 * D) * P}, v{r}")
            for t in range(3):
                back = 2 * D * P if md == "n" else (2 * P if D == 1 else 0)
                e(f"v_add_u32 v{ST[t]}, {back}, v{180 + t}")
            e("s_branch L_c_loop")
            self.lab("L_c_stub")
            if md == "n":
                e("v_add_u32 v10, 1, v10")
            e("s_cmp_eq_u32 s37, 0")
            e("s_mov_b32 s37, 1")
            e("v_mov_b32 v11, v9")
            e("v_mov_b32 v5, 0")
            if md == "n":
                for x in epilogue((D - 1) & 1, ((D - 1) & 1) * 2 * P, o.wr):
                    e(x)
            for r in (A1, A2, AX):
                e(f"v_add_u32 v{r}, {6144 - 8 * P}, v{r}")
            for t in range(3):
                e(f"v_swap_b32 v{ST[t]}, v{180 + t}")
            e("s_cbranch_scc1 L_c_loop")
        if o.cstamp == 2:
            e("s_memtime s[88:89]")
            e("s_waitcnt lgkmcnt(0)")
            for u in range(18):
                e(f"v_writelane_b32 v{PV}, s{16 + 4 * u}, {22 + u}")
                e(f"v_writelane_b32 v{PV}, s{18 + 4 * u}, {40 + u}")
            e("s_mov_b32 s46, s94")
            e("s_mov_b32 s48, s88")
            self.nstamp = 2
        else:
            self.stamp()
        self.stamp_flush()
        if o.diag.startswith("k"):
            self.diag_mark("kend")
            self.diag_end(True)
        self.lab("L_end")
        e("s_endpgm")
        for u, nd in slow:
            self.lab(f"L_c_slow{u}")
            self.poll(11 if loop else 9, 5, nd, sleep=o.csleep)
            e(f"s_branch L_c_ready{u}")

        self.lab("L_code_end")

    def loop_q(self, ops, W, SET, XR, ACC, PK, A1, A2, AX, ST, c1, ntot):
        e, o = self.e, self.o
        assert o.hf or o.order == "A"
        del self.L[-1]
        q = []

        def rd(tag, reg, a, off):
            return ("ds", tag, f"ds_read_b128 v[{reg}:{reg + 3}], v{a} offset:{off}")

        def pair(k, st, off):
            b = SET[st]
            return [rd(("P", k, 0), b, A1, off), rd(("P", k, 1), b + 4, A2, off),
                    rd(("P", k, 2), b + 8, A1, off + P), rd(("P", k, 3), b + 12, A2, off + P)]

        def emit(it):
            e(it[2])
            if it[0] in ("ds", "dw"):
                q.append(it[1])

        def wait_for(tags):
            ix = [q.index(t) for t in tags if t in q]
            if not ix:
                return 0
            e(f"s_waitcnt lgkmcnt({len(q) - 1 - max(ix)})")
            del q[: max(ix) + 1]
            return 1

        def epilogue(acc, off, wr):
            r = []
            for t in range(3):
                a = ACC(acc, t)
                r.append(("v", None, f"v_cvt_pk_bf16_f32 v{PK + 2 * t}, v{a}, v{a + 1}"))
                r.append(("v", None, f"v_cvt_pk_bf16_f32 v{PK + 2 * t + 1}, v{a + 2}, v{a + 3}"))
                if wr == 32:
                    r.append(("dw", ("W",), f"ds_write_b32 v{ST[t]}, v{PK + 2 * t} offset:{off}"))
                    r.append(("dw", ("W",), f"ds_write_b32 v{ST[t]}, v{PK + 2 * t + 1} offset:{off + 4}"))
                else:
                    r.append(("dw", ("W",), f"ds_write_b64 v{ST[t]}, v[{PK + 2 * t}:{PK + 2 * t + 1}] offset:{off}"))
            r.append(("dw", ("W",), "ds_write_b32 v8, v10"))
            return r

        e("s_mov_b32 s37, 0")
        e("v_and_b32 v11, -9, v9")
        if o.hf:
            e("v_lshl_add_u32 v11, s43, 3, v11")
            e(f"s_sub_u32 s39, s38, {4 * P}")
        else:
            e(f"s_mov_b32 s39, {3072 - 12 * P}")
        e("s_mov_b32 s33, 0")
        e(f"s_add_u32 s32, s39, {12 * P}")
        for t in range(3):
            e(f"v_mov_b32 v{180 + t}, v{ST[t]}")
            e(f"v_mov_b32 v{ST[t]}, {FLAGS + 64 - 2 * P}")
        e(f"s_mov_b32 s35, {2 * c1}")
        e(f"s_mov_b32 s34, {ntot if o.order != 'A' else 2 * c1}")
        self.poll(11, 5, 2 * c1, sleep=o.csleep)
        for it in pair(0, 0, 0) + [rd(("X", 0), XR, AX, 0)]:
            emit(it)
        for r in (A1, A2, AX):
            e(f"v_add_u32 v{r}, {2 * P}, v{r}")
        wait_for([("P", 0, 3)])
        self.lab("L_c_loop")
        slow = []
        for s in range(6):
            if s == 0 and o.prof:
                self.stamp_now(24, "s37", real=(o.prof == 2))
                q.clear()
            U, Lo = s & 1, (s & 1) ^ 1
            acc = s & 1
            up = [(k, SET[U] + 4 * int(k[0][1])) for k in ops[:10]]
            xs = [(k, XR) for k in ops[10:13]]
            lo = [(k, SET[Lo] + 4 * int(k[0][1])) for k in ops[13:]]
            sq = up + xs + lo if s < 5 else lo + xs + up
            pin = {g: [] for g in range(23)}
            if s < 5:
                pr, xr = pair(s + 2, U, 2 * P), rd(("X", s + 1), XR, AX, 0)
            else:
                pr, xr = pair(0, Lo, 0), rd(("X", 0), XR, AX, 0)
                pin[0] += [("v", None, f"v_add_u32 v{AX}, s39, v{AX}"), ("v", None, f"v_add_u32 v{A1}, s39, v{A1}")]
                pin[1] += [("v", None, f"v_add_u32 v{A2}, s39, v{A2}"), ("s", None, "s_add_u32 s37, s37, 1")]
                pin[2] += [("s", None, "s_cmp_eq_u32 s37, 1"), ("s", None, "s_cselect_b32 s36, 0, -1")]
                pin[3] += [("v", None, "v_and_b32 v5, s36, v5"), ("v", None, "v_mov_b32 v11, v9")]
                pin[17] += [("s", None, "s_mov_b32 s35, s34"), ("s", None, "s_cmp_lt_u32 s37, 3")]
            if s == 1:
                pin[0] += [("s", None, "s_add_u32 s33, s33, s32")]
            if s == 3:
                pin[21] += [("s", None, "s_cmp_lt_u32 s37, 2"), ("s", None, f"s_cselect_b32 s39, s39, {-12 * P}")]
            for i_, it in enumerate(pr):
                pin[10 + i_].append(it)
            pin[14].append(xr)
            pin[15] += [("v", None, f"v_add_u32 v{A1}, {2 * P}, v{A1}"), ("v", None, f"v_add_u32 v{A2}, {2 * P}, v{A2}")]
            pin[16] += [("v", None, f"v_add_u32 v{AX}, {2 * P}, v{AX}")]
            if s == 0:
                for i_, it in enumerate(pair(1, 1, 0)):
                    pin[1 + i_].append(it)
            flow = epilogue(acc ^ 1, ((s - 1) & 1) * 2 * P, o.wrn) + [("v", None, "v_add_u32 v10, 1, v10")]
            if s == 0:
                flow += [("v", None, f"v_add_u32 v{ST[t]}, s33, v{180 + t}") for t in range(3)]
            elif not s & 1:
                flow += [("v", None, f"v_add_u32 v{r}, {4 * P}, v{r}") for r in ST]
            seen = set()
            for g, (k, b) in enumerate(sq):
                t = k[1]
                a = ACC(acc, t)
                cin = f"v[{a}:{a + 3}]" if t in seen else "0"
                seen.add(t)
                e(f"v_mfma_f32_16x16x32_bf16 v[{a}:{a + 3}], v[{W[k]}:{W[k] + 3}], v[{b}:{b + 3}], {cin}")
                cap = 2
                if g == 8:
                    cap -= wait_for([("X", s)] + ([("P", s + 1, 3)] if 0 < s < 5 else []))
                    nd = c1 * (s + 3) if s < 5 else "s35"
                    e(f"v_cmp_gt_i32 vcc, {nd}, v5")
                    cap = 0
                if g == 9:
                    e(f"s_cbranch_vccnz L_c_slow{s}")
                    self.lab(f"L_c_ready{s}")
                    slow.append((s, nd))
                    cap -= 1
                if s == 0 and g == 12:
                    cap -= wait_for([("P", 1, 3)])
                if s in (4, 5) and g == 22:
                    cap -= wait_for([("P", 6, 3)] if s == 4 else [("P", 0, 3)])
                for it in pin[g]:
                    emit(it)
                    cap -= 1
                while flow and g >= 2 and cap > 0:
                    pick = None
                    ndw = sum(1 for f in flow if f[0] == "dw")
                    for ix, f in enumerate(flow):
                        if f[0] == "dw":
                            cv = [re.match(r"v_cvt\S+ v(\d+)", h[2]).group(1) for h in flow[:ix] if "v_cvt" in h[2]]
                            if cap >= 2 and not any(c in self.srcs(f[2]) for c in cv) and not ("v8" in f[2] and cv):
                                pick = ix
                            break
                    if pick is None:
                        for ix, f in enumerate(flow):
                            if f[0] != "dw" and ("v_cvt" in f[2] or ndw == 0):
                                pick = ix
                                break
                    if pick is None:
                        break
                    it = flow.pop(pick)
                    emit(it)
                    cap -= 2 if it[0] == "dw" else 1
            assert not flow, (s, flow)
        e("s_cbranch_scc1 L_c_loop")
        e("s_nop 5")
        for it in epilogue(1, 2 * P, o.wr):
            e(it[2])
        self.stamp()
        self.stamp_flush()
        self.lab("L_end")
        e("s_endpgm")
        for u, nd in slow:
            self.lab(f"L_c_slow{u}")
            self.poll(11, 5, nd, sleep=o.csleep)
            e(f"s_branch L_c_ready{u}")
        self.lab("L_code_end")

    @staticmethod
    def srcs(txt):
        m = re.search(r", v\[(\d+):(\d+)\]", txt)
        if m:
            return [str(r) for r in range(int(m.group(1)), int(m.group(2)) + 1)]
        return [re.search(r", v(\d+)", txt).group(1)]

    def check_mfma_hazards(self):
        L = [l.strip() for l in self.L]
        if "L_c_loop:" not in L:
            return
        i = L.index("L_c_loop:")
        k = L.index("L_end:")
        jj = [n for n, l in enumerate(L) if l == "s_cbranch_scc1 L_c_loop"]
        for seqn in [L[i:k]] + ([L[i:jj[-1] + 1] * 2] if jj else []):
            pend = {}
            pos = 0
            for l in seqn:
                if l.endswith(":"):
                    continue
                regs = set()
                for m in re.finditer(r"v\[(\d+):(\d+)\]|v(\d+)", l.split(None, 1)[1] if " " in l else ""):
                    if m.group(3):
                        regs.add(int(m.group(3)))
                    else:
                        regs.update(range(int(m.group(1)), int(m.group(2)) + 1))
                if l.startswith("v_mfma"):
                    m = re.match(r"v_mfma\S+ v\[(\d+):(\d+)\]", l)
                    for r in range(int(m.group(1)), int(m.group(2)) + 1):
                        pend[r] = pos
                else:
                    for r in regs:
                        if r in pend:
                            assert pos - pend[r] - 1 >= 8, (l, pos - pend[r] - 1)
                m = re.match(r"s_nop (\d+)", l)
                pos += int(m.group(1)) + 1 if m else 1

    def build(self):
        self.prologue()
        self.helper()
        self.compute()
        self.check_mfma_hazards()
        if self.o.stubfirst:
            i = self.L.index("L_c_slow0:")
            j = self.L.index("L_code_end:")
            stubs = self.L[i:j]
            del self.L[i:j]
            k = self.L.index("L_compute:")
            self.L[k:k] = stubs
        if self.o.drop:
            i = self.L.index("L_c_loop:")
            j = self.L.index("L_end:")
            pats = self.o.drop.split(",")
            self.L = self.L[:i] + [l for l in self.L[i:j] if not any(l.strip().startswith(p) for p in pats)] + self.L[j:]
        return HEADER + "\n".join(self.L) + "\n" + FOOTER.format(vgpr=188, acc=188)


def main():
    p = argparse.ArgumentParser()
    p.add_argument("-o", default="-")
    p.add_argument("--prof", type=int, default=0)
    p.add_argument("--hflip", type=int, default=1)
    p.add_argument("--win", type=int, default=11)
    p.add_argument("--barpair", type=int, default=2)
    p.add_argument("--ldflags", default="nt")
    p.add_argument("--wflags", default="")
    p.add_argument("--stflags", default="sc0 sc1 nt")
    p.add_argument("--prio_loader", type=int, default=0)
    p.add_argument("--prio_comp", type=int, default=0)
    p.add_argument("--nocomp", type=int, default=0)
    p.add_argument("--noload", type=int, default=0)
    p.add_argument("--cstamp", type=int, default=0)
    p.add_argument("--drop", default="")
    p.add_argument("--wr", type=int, default=64)
    p.add_argument("--estart", type=int, default=2)
    p.add_argument("--diag", default="")
    p.add_argument("--now", type=int, default=0)
    p.add_argument("--stwait", type=int, default=0)
    p.add_argument("--stwin", type=int, default=0)
    p.add_argument("--pad", type=int, default=0)
    p.add_argument("--padk", type=int, default=1)
    p.add_argument("--padmask", type=int, default=7)
    p.add_argument("--fpre", type=int, default=0)
    p.add_argument("--csleep", type=int, default=1)
    p.add_argument("--eflag", type=int, default=0)
    p.add_argument("--rdint", type=int, default=0)
    p.add_argument("--sched", default="plain")
    p.add_argument("--stag", type=int, default=0)
    p.add_argument("--stagw", type=int, default=2)
    p.add_argument("--gate", type=int, default=0)
    p.add_argument("--gsleep", type=int, default=4)
    p.add_argument("--padper", default="")
    p.add_argument("--nostore", type=int, default=0)
    p.add_argument("--jmask", type=int, default=0)
    p.add_argument("--cls", default="1,2,3,4")
    p.add_argument("--order", default="C")
    p.add_argument("--modes", default="n")
    p.add_argument("--loop", type=int, default=1)
    p.add_argument("--winl", type=int, default=9)
    p.add_argument("--winr", type=int, default=11)
    p.add_argument("--prio_left", type=int, default=0)
    p.add_argument("--tlbw", type=int, default=0)
    p.add_argument("--tlbf", default="nt")
    p.add_argument("--defer", type=int, default=0)
    p.add_argument("--wrn", type=int, default=64)
    p.add_argument("--hf", type=int, default=1)
    p.add_argument("--seq", default="010")
    p.add_argument("--ipf", type=int, default=0)
    p.add_argument("--ipfh", type=int, default=0)
    p.add_argument("--early", type=int, default=0)
    p.add_argument("--wsplit", type=int, default=0)
    p.add_argument("--stubfirst", type=int, default=0)
    p.add_argument("--fevery", type=int, default=0)
    p.add_argument("--two", type=int, default=0)
    p.add_argument("--rdint2", type=int, default=1)
    p.add_argument("--sleep", type=int, default=2)
    o = p.parse_args()
    s = Gen(o).build()
    if o.o == "-":
        sys.stdout.write(s)
    else:
        open(o.o, "w").write(s)


if __name__ == "__main__":
    main()
```

```python
import argparse
import re
import sys

ROWB = 73728
XBYTES = 28311552
WBYTES = 41472
P = 9728
LDS_TOTAL = 163840
FLAGS = LDS_TOTAL - 256
WSZ = 12288
WREG = FLAGS - 4 * WSZ

HEADER = """; Kernarg layout for this problem (40 bytes, ptrs only, base s[0:1]):
; @launch grid=(256,1,1) block=(512,1,1) lds=163840
.amdgcn_target "amdgcn-amd-amdhsa--gfx950"
.text
.globl standalone__grouped__vision_kernel
.p2align 8
.type standalone__grouped__vision_kernel,@function
standalone__grouped__vision_kernel:
"""

FOOTER = """.section .rodata,"a"
.p2align 6
.amdhsa_kernel standalone__grouped__vision_kernel
  .amdhsa_next_free_vgpr {vgpr}
  .amdhsa_next_free_sgpr 102
  .amdhsa_accum_offset {acc}
  .amdhsa_group_segment_fixed_size 0
  .amdhsa_kernarg_size 40
  .amdhsa_user_sgpr_count 2
  .amdhsa_user_sgpr_kernarg_segment_ptr 1
  .amdhsa_system_sgpr_workgroup_id_x 1
.end_amdhsa_kernel
"""

PV = 187


class Gen:
    def __init__(self, o):
        self.o = o
        self.L = []
        self.nstamp = 0
        self.nlab = 0

    def e(self, s):
        self.L.append("    " + s)

    def lab(self, s):
        self.L.append(s + ":")

    def newlab(self, p):
        self.nlab += 1
        return f"L_{p}{self.nlab}"

    def stamp(self):
        if not self.o.prof:
            return
        k = self.nstamp
        self.nstamp += 1
        assert k < 22
        self.e(f"s_mem{'real' if self.o.prof == 2 else ''}time s[{46 + 2 * k}:{47 + 2 * k}]")

    def stamp_now(self, base, ctr, real=False):
        if not self.o.prof:
            return
        self.e("s_memrealtime s[96:97]" if real else "s_memtime s[96:97]")
        self.e("s_waitcnt lgkmcnt(0)")
        self.e("s_mov_b32 s95, m0")
        if isinstance(ctr, str):
            self.e(f"s_cselect_b32 s94, 1, 0")
            self.e(f"s_add_u32 m0, {ctr}, {base}")
            self.e(f"s_cmp_lg_u32 s94, 0")
        else:
            self.e(f"s_mov_b32 m0, {base + ctr}")
        self.e(f"v_writelane_b32 v{PV}, s96, m0")
        self.e("s_mov_b32 m0, s95")

    def stamp_flush(self):
        if not self.o.prof:
            return
        e = self.e
        e("s_mov_b64 exec, -1")
        e("s_waitcnt lgkmcnt(0)")
        e("s_load_dwordx2 s[40:41], s[0:1], 32")
        e("s_lshl_b32 s42, s2, 3")
        e("s_add_u32 s42, s42, s3")
        e("s_lshl_b32 s42, s42, 8")
        e("v_lshl_add_u32 v1, v0, 2, s42")
        for k in range(self.nstamp):
            e(f"v_writelane_b32 v{PV}, s{46 + 2 * k}, {k}")
        e(f"s_mov_b32 s42, {self.nstamp}")
        e(f"v_writelane_b32 v{PV}, s42, 63")
        e("s_getreg_b32 s42, hwreg(HW_REG_XCC_ID)")
        e(f"v_writelane_b32 v{PV}, s42, 62")
        e(f"v_writelane_b32 v{PV}, s92, 60")
        if self.o.prof == 2:
            e(f"v_writelane_b32 v{PV}, s86, 57")
            e(f"v_writelane_b32 v{PV}, s84, 56")
            e(f"v_writelane_b32 v{PV}, s82, 55")
        e("s_memrealtime s[92:93]")
        e("s_waitcnt lgkmcnt(0)")
        e(f"v_writelane_b32 v{PV}, s92, 59")
        e(f"global_store_dword v1, v{PV}, s[40:41]")

    def diag_mark(self, name):
        d = self.o.diag
        if d == name:
            self.e("s_memrealtime s[90:91]")
        if d == "c" + name:
            self.e("s_memtime s[90:91]")

    def diag_end(self, comp=False):
        o, e = self.o, self.e
        if not o.diag or o.diag.startswith("k") != comp:
            return
        e("s_waitcnt vmcnt(0) lgkmcnt(0)")
        self.diag_mark("end")
        e("s_waitcnt lgkmcnt(0)")
        if o.diag == "rt":
            e("s_mov_b32 s42, 0")
        elif o.diag.startswith("d"):
            e("s_sub_u32 s42, s90, s88")
            e("s_mul_i32 s42, s42, 16")
        elif o.diag.startswith("c"):
            e("s_sub_u32 s42, s90, s88")
            e("s_lshr_b32 s42, s42, 2")
        else:
            e("s_sub_u32 s42, s90, s92")
            e("s_mul_i32 s42, s42, 4")
        e("s_add_u32 s42, s42, 4000")
        self.lab("L_dg")
        e("s_memrealtime s[40:41]")
        e("s_waitcnt lgkmcnt(0)")
        e("s_sub_u32 s40, s40, s92")
        e("s_cmp_lt_u32 s40, s42")
        e("s_cbranch_scc1 L_dg")

    def poll(self, vaddr, vtmp, sneed, sleep=1):
        e = self.e
        l = self.newlab("poll")
        d = self.newlab("pdone")
        self.lab(l)
        e(f"ds_read_b32 v{vtmp}, v{vaddr}")
        e("s_waitcnt lgkmcnt(0)")
        e(f"v_cmp_gt_i32 vcc, {sneed}, v{vtmp}")
        e(f"s_cbranch_vccz {d}")
        if sleep:
            e(f"s_sleep {sleep}")
        e(f"s_branch {l}")
        self.lab(d)

    def prologue(self):
        e = self.e
        e("s_cmp_ge_u32 s2, 256")
        e("s_cbranch_scc1 L_end")
        e("s_load_dwordx4 s[4:7], s[0:1], 0")
        e("s_load_dwordx2 s[8:9], s[0:1], 16")
        if self.o.prof or self.o.diag:
            e("s_memrealtime s[92:93]")
        if self.o.diag:
            e("s_memtime s[88:89]")
        self.stamp()
        if self.o.prof:
            e(f"v_mov_b32 v{PV}, 0")
        e("v_lshrrev_b32 v1, 6, v0")
        e("v_and_b32 v0, 63, v0")
        e(f"v_mov_b32 v3, {FLAGS}")
        e("v_readfirstlane_b32 s3, v1")
        e("v_xor_b32 v2, 4, v1")
        e("v_lshl_add_u32 v8, v2, 2, v3")
        e("v_mov_b32 v2, 0")
        e("ds_write_b32 v8, v2")
        e("v_and_b32 v2, 3, v0")
        e("v_lshl_add_u32 v9, v2, 2, v3")
        e("s_bfe_u32 s26, s2, 0x10005")
        e("s_bfe_u32 s43, s2, 0x10003" if self.o.hf else "s_mov_b32 s43, 0")
        e("s_cmp_lt_u32 s3, 4")
        e("s_cbranch_scc1 L_compute")

    def helper(self):
        e, o = self.e, self.o
        self.lab("L_helper")
        if o.prio_loader:
            e(f"s_setprio {o.prio_loader}")
        Wn = o.win
        phases = {"A": [(0, 304, [64, 64, 64, 64, 48])],
                  "B": [(0, 224, [56] * 4), (448, 80, [40] * 2)],
                  "C": [(0, 256, [64] * 4), (512, 48, [48])]}[o.order]
        self.phases = phases
        ntot = 7 * sum(len(p[2]) for p in phases)
        e("s_and_b32 s10, s2, 1")
        e("s_lshl_b32 s10, s10, 2")
        e("s_bfe_u32 s11, s2, 0x20003")
        e("s_add_u32 s10, s10, s11")
        e("s_bfe_u32 s11, s2, 0x20001")
        e("s_lshl_b32 s11, s11, 3")
        e("s_lshr_b32 s24, s2, 5")
        e("s_add_u32 s11, s11, s24")
        e("s_mul_i32 s25, s11, 12")
        e("s_mul_i32 s24, s10, 9216")
        e("s_and_b32 s30, s3, 1")
        e("s_bfe_u32 s45, s3, 0x10001")
        e("v_lshrrev_b32 v1, 2, v0")
        e("v_bfrev_b32 v3, 1")

        def patterns(ph, first, last):
            st, half, lanes = ph
            mir = (608 - st - 2 * half) - st if len(phases) == 2 else 0
            e(f"s_mul_i32 s33, s45, {half}")
            if mir:
                e(f"s_mul_i32 s28, s43, {mir}")
                e("s_add_u32 s33, s33, s28")
            if st:
                e(f"s_add_u32 s33, s33, {st}")
            e("s_lshr_b32 s28, s33, 2")
            e("s_add_u32 s28, s28, 2")
            e("v_add_u32 v4, s28, v1")
            e("s_lshl_b32 s33, s33, 4")
            off = 0
            for k, ln in enumerate(lanes):
                if off:
                    e(f"v_add_u32 v2, {off // 4}, v4")
                    e("v_mul_u32_u24 v2, 171, v2")
                else:
                    e("v_mul_u32_u24 v2, 171, v4")
                e("v_bfe_u32 v2, v2, 11, 2")
                e("v_xor_b32 v2, v2, v0")
                e(f"v_lshl_add_u32 v{10 + k}, v2, 4, s33")
                off += ln
            if len(lanes) == 5:
                e("v_add_u32 v14, 4096, v14")
            if first:
                e("s_add_u32 s28, s45, s10")
                e("s_cmp_eq_u32 s28, 0")
                e("s_cselect_b32 s32, 16, 0")
                e("v_cmp_gt_u32 vcc, s32, v0")
            e(f"s_mul_i32 s32, s30, {P}")
            e("s_add_u32 s33, s33, s32")
            if first:
                e("v_cndmask_b32 v10, v10, v3, vcc")
            if (first if o.hf else last):
                if not first:
                    e("s_add_u32 s28, s45, s10")
                e("s_cmp_eq_u32 s28, 8")
                e(f"s_cselect_b32 s28, {lanes[-1] - 16}, 64")
                e("v_cmp_le_u32 vcc, s28, v0")
                e("s_nop 1")
                e(f"v_cndmask_b32 v{9 + len(lanes)}, v{9 + len(lanes)}, v3, vcc")

        patterns(phases[0], True, len(phases) == 1)
        e("s_cmp_eq_u32 s26, 0")
        e("s_cselect_b32 s27, 1, -1")
        e("s_cselect_b32 s29, -1, 12")
        e(f"s_mul_i32 s27, s27, {ROWB}")
        e("s_add_i32 s29, s29, s25")
        e(f"s_mul_i32 s29, s29, {ROWB}")
        e("s_mul_i32 s28, s30, s27")
        e("s_add_i32 s29, s29, s28")
        e("s_lshl_b32 s35, s27, 1")
        cl = [int(x) for x in o.cls.split(",")]
        assert max(cl) <= 5
        e("s_bfe_u32 s44, s2, 0x20003")
        e("s_lshl_b32 s44, s44, 3")
        e(f"s_lshr_b32 s44, {hex(sum(c << (8 * i) for i, c in enumerate(cl)))}, s44")
        e("s_and_b32 s44, s44, 255")
        e("v_add_u32 v7, 16, v9")
        e("s_waitcnt lgkmcnt(0)")
        e("s_sub_u32 s12, s4, 256")
        e("s_subb_u32 s13, s5, 0")
        e(f"s_mov_b32 s14, {XBYTES + 256}")
        e("s_mov_b32 s15, 0x20000")
        self.stamp()
        self.diag_mark("karg")
        fl = o.ldflags
        if 0 in cl:
            e("s_cmp_lg_u32 s44, 0")
            e("s_cbranch_scc1 L_ld_start")
            e("s_barrier")
            self.lab("L_ld_start")
        if o.order == "A":
            self.load_A(phases, fl)
        else:
            Wn = o.winl
            n = 0
            c1, c2 = len(phases[0][2]), len(phases[1][2])
            e(f"v_mov_b32 v6, {-c1 * ((Wn - 1) // c1)}")
            for pi, ph in enumerate(phases):
                st, half, lanes = ph
                c = len(lanes)
                if pi and o.diag == "dA":
                    e("s_memrealtime s[88:89]")
                if pi:
                    if o.prof == 2:
                        e("s_memrealtime s[82:83]")
                    e("s_mov_b64 exec, -1")
                    patterns(ph, False, True)
                    e(f"v_mov_b32 v6, {7 * c1 - (Wn - 1) + (Wn - 1) % c}")
                e("s_mov_b32 s31, s29")
                e("s_mov_b32 s32, 0")
                if lanes[0] < 64:
                    e(f"s_mov_b32 exec_hi, {hex((1 << (lanes[0] - 32)) - 1)}")
                if pi and o.diag == "dA":
                    e("s_memrealtime s[90:91]")
                if pi == 0 and o.diag == "dS":
                    e("s_mov_b32 s88, s92")
                    e("s_memrealtime s[90:91]")
                self.lab(f"L_ld_loop{pi}")
                e("s_add_u32 s34, s31, s24")
                e("s_cmp_lt_i32 s31, 0")
                e("s_cselect_b32 s34, 0x40000000, s34")
                e("s_mov_b32 m0, s33")
                e("s_add_i32 s31, s31, s35")
                off = 0
                for k, ln in enumerate(lanes):
                    e(f"s_waitcnt vmcnt({Wn - 1})")
                    if k == (Wn - 1) % c:
                        e("ds_write_b32 v8, v6")
                    e(f"buffer_load_dwordx4 v{10 + k}, s[12:15], s34 offen offset:{off * 16} {fl} lds")
                    off += ln
                e(f"v_add_u32 v6, {c}, v6")
                e(f"s_add_u32 s33, s33, {2 * P}")
                e("s_add_u32 s32, s32, 1")
                if pi == 0:
                    e("s_cmp_lg_u32 s32, s44")
                    e("s_cbranch_scc1 L_ld_nobar")
                    e("s_barrier")
                    self.lab("L_ld_nobar")
                    e("s_cmp_lg_u32 s32, 5")
                    e("s_cbranch_scc1 L_ld_nopoll")
                    self.poll(7, 5, 1)
                    self.lab("L_ld_nopoll")
                e("s_cmp_lt_u32 s32, 7")
                e(f"s_cbranch_scc1 L_ld_loop{pi}")
            for v in range(ntot - Wn + 1, ntot):
                if (v == 7 * c1 and o.early < 2) or (v < 7 * c1 and v % c1 == 0):
                    e(f"v_mov_b32 v2, {v}")
                    e(f"s_waitcnt vmcnt({ntot - v})")
                    e("ds_write_b32 v8, v2")
        if o.diag == "dT":
            e("s_memrealtime s[88:89]")
        self.lab("L_ld_tail")
        if o.prof == 2:
            e("s_memrealtime s[84:85]")
        if o.prio_loader or o.prio_left:
            e("s_setprio 0")
        e("s_mov_b64 exec, -1")
        e("s_and_b32 s30, s3, 3")
        e("s_mul_i32 s28, s30, 12")
        e("s_add_u32 s28, s28, 3")
        if o.hf:
            e("s_mul_i32 s32, s43, 6")
            e("s_add_u32 s28, s28, s32")
        e("v_add_u32 v2, s28, v1")
        e("v_mul_u32_u24 v2, 171, v2")
        e("v_bfe_u32 v2, v2, 11, 2")
        e("v_xor_b32 v2, v2, v0")
        e("s_mul_i32 s33, s30, 768")
        e("s_add_u32 s28, s33, 64")
        if o.hf:
            e("s_mul_i32 s32, s43, 6528")
            e("s_add_u32 s28, s28, s32")
            e("s_mul_i32 s32, s43, 6144")
            e("s_add_u32 s24, s24, s32")
            e("s_sub_u32 s36, 3072, s32")
            e(f"s_sub_u32 s38, s36, {12 * P}")
        e("v_lshl_add_u32 v10, v2, 4, s28")
        e("v_lshl_add_u32 v11, v0, 4, s33")
        if o.defer:
            e("s_mul_i32 s28, s30, 12")
            e("s_add_u32 s28, s28, 9")
            e("v_add_u32 v2, s28, v1")
            e("v_mul_u32_u24 v2, 171, v2")
            e("v_bfe_u32 v2, v2, 11, 2")
            e("v_xor_b32 v2, v2, v0")
            e("s_add_u32 s28, s33, 448")
            e("v_lshl_add_u32 v13, v2, 4, s28")
        e("s_cmp_eq_u32 s26, 0")
        e("s_cselect_b32 s29, 0, 11")
        e("s_add_i32 s29, s29, s25")
        e(f"s_mul_i32 s29, s29, {ROWB}")
        e("s_add_u32 s29, s29, s24")
        e("s_mov_b32 s20, s8")
        e("s_mov_b32 s21, s9")
        e(f"s_mov_b32 s22, {XBYTES}")
        e("s_mov_b32 s23, 0x20000")
        e("s_mov_b32 exec_hi, 0xffff")
        if o.diag == "dT":
            e("s_memrealtime s[90:91]")
        if not o.early:
            e(f"v_mov_b32 v2, {ntot}")
            e("s_waitcnt vmcnt(0)")
            e("ds_write_b32 v8, v2")
        self.stamp()
        self.diag_mark("ldone")
        if o.diag == "dB":
            e("s_memrealtime s[88:89]")
        self.stamp_now(58, 0, real=True)
        if o.nostore:
            self.stamp_flush()
            e("s_endpgm")
        e("s_mov_b32 s37, 2")
        if o.defer:
            e("s_mov_b32 s31, s29")
            e(f"s_mov_b32 s32, {8 - o.defer}")
        else:
            self.lab("L_st_strip")
            e("s_mov_b32 s31, s29")
            e("s_mov_b32 s32, 0")
        self.lab("L_st_loop")
        if not o.nocomp:
            e("v_cmp_gt_i32 vcc, s37, v5")
            e("s_cbranch_vccz L_st_go")
            self.poll(7, 5, "s37", sleep=o.sleep)
            self.lab("L_st_go")
        e("ds_read_b128 v[16:19], v10")
        e(f"ds_read_b128 v[20:23], v10 offset:{P}")
        e("s_add_i32 s34, s31, s27")
        e(f"v_add_u32 v10, {2 * P}, v10")
        e("s_add_u32 s37, s37, 1")
        if not o.defer:
            e("s_add_u32 s32, s32, 1")
        if o.st2from:
            e(f"s_cmp_ge_u32 s37, {o.st2from + 3}")
            e("s_cbranch_scc1 L_st_alt")
        e("s_waitcnt lgkmcnt(1)")
        e(f"buffer_store_dwordx4 v[16:19], v11, s[20:23], s31 offen {o.stflags}")
        e("s_add_i32 s31, s34, s27")
        e("s_waitcnt lgkmcnt(0)")
        e(f"buffer_store_dwordx4 v[20:23], v11, s[20:23], s34 offen {o.stflags}")
        if o.st2from:
            e("s_branch L_st_join")
            self.lab("L_st_alt")
            e("s_waitcnt lgkmcnt(1)")
            e(f"buffer_store_dwordx4 v[16:19], v11, s[20:23], s31 offen {o.stflags2}")
            e("s_add_i32 s31, s34, s27")
            e("s_waitcnt lgkmcnt(0)")
            e(f"buffer_store_dwordx4 v[20:23], v11, s[20:23], s34 offen {o.stflags2}")
            self.lab("L_st_join")
        if o.diag == "dB":
            e("s_cmp_lg_u32 s37, 3")
            e("s_cbranch_scc1 L_nofs2")
            e("s_memrealtime s[90:91]")
            self.lab("L_nofs2")
        if o.early:
            ev = [(2 + o.early, ntot, 2 * o.early)]
            if o.early >= 2:
                ev.insert(0, (3, 28, ntot - 28 + 2))
            for sv, val, cnt in ev:
                e(f"s_cmp_lg_u32 s37, {sv}")
                e(f"s_cbranch_scc1 L_st_nf{val}")
                e(f"v_mov_b32 v2, {val}")
                e(f"s_waitcnt vmcnt({cnt})")
                e("ds_write_b32 v8, v2")
                self.lab(f"L_st_nf{val}")
        if o.prof == 2:
            e("s_cmp_lg_u32 s37, 3")
            e("s_cbranch_scc1 L_nofs")
            e("s_memrealtime s[86:87]")
            self.lab("L_nofs")
        if o.prof and o.cstamp:
            self.stamp_now(22 - 3, "s37")
            self.stamp_now(40 - 3, "s37", real=True)
        if o.defer:
            D = o.defer
            e("s_cmp_lt_u32 s37, s32")
            e("s_cbranch_scc1 L_st_loop")
            e("s_add_u32 s32, s32, 6")
            e(f"s_cmp_lg_u32 s37, {8 - D}")
            e("s_cbranch_scc1 L_st_s1")
            e("v_mov_b32 v12, v10")
            e("s_mov_b32 s43, s31")
            e("v_add_u32 v10, 6144, v13")
            e("s_add_u32 s31, s29, 6144")
            e("s_branch L_st_loop")
            self.lab("L_st_s1")
            e(f"s_cmp_lg_u32 s37, {14 - D}")
            e("s_cbranch_scc1 L_st_s2")
            e("v_add_u32 v10, 3072, v13")
            e("s_add_u32 s31, s29, 3072")
            e("s_branch L_st_loop")
            self.lab("L_st_s2")
            e("v_mov_b32 v10, v12")
            e("s_mov_b32 s31, s43")
            e("s_mov_b32 s32, 20")
            e("s_cmp_lt_u32 s37, 20")
            e("s_cbranch_scc1 L_st_loop")
        else:
            e("s_cmp_lt_u32 s32, 6")
            e("s_cbranch_scc1 L_st_loop")
            if o.hf:
                e("s_add_u32 s29, s29, s36")
                e("v_add_u32 v10, s38, v10")
            else:
                e("s_add_u32 s29, s29, 3072")
                e(f"v_add_u32 v10, {3072 - 12 * P}, v10")
            e("s_cmp_lt_u32 s37, 20")
            e("s_cbranch_scc1 L_st_strip")
        self.diag_mark("stiss")
        if o.prof:
            self.stamp()
            e("s_waitcnt vmcnt(0)")
            self.stamp()
        self.stamp_flush()
        self.diag_end()
        e("s_endpgm")

    def load_A(self, phases, fl):
        e, o = self.e, self.o
        lanes = phases[0][2]
        e("s_mov_b32 s31, s29")
        e("s_mov_b32 s32, 0")
        sides = [("l", o.winl), ("r", o.winr)] if o.winl != o.winr else [("l", o.winl)]
        if len(sides) == 2:
            e("s_cmp_lg_u32 s45, 0")
            e("s_cbranch_scc1 L_ld_pre_r")
        for sd, Wn in sides:
            self.lab(f"L_ld_pre_{sd}")
            e(f"v_mov_b32 v6, {-5 * ((Wn - 1) // 5)}")
            if sd == "l" and o.prio_left:
                e(f"s_setprio {o.prio_left}")
            self.lab(f"L_ld_loop_{sd}")
            e("s_add_u32 s34, s31, s24")
            e("s_cmp_lt_i32 s31, 0")
            e("s_cselect_b32 s34, 0x40000000, s34")
            e("s_mov_b32 m0, s33")
            e("s_add_i32 s31, s31, s35")
            for k in range(5):
                if k == 4:
                    e("s_add_u32 m0, s33, 4096")
                e(f"s_waitcnt vmcnt({Wn - 1})")
                if k == (Wn - 1) % 5:
                    e("ds_write_b32 v8, v6")
                if k == 4:
                    e("s_mov_b32 exec_hi, 0xffff")
                e(f"buffer_load_dwordx4 v{10 + k}, s[12:15], s34 offen offset:{1024 * (k % 4)} {fl} lds")
                if k == 4:
                    e("s_mov_b32 exec_hi, -1")
                if k == 0:
                    e(f"v_add_u32 v6, {(Wn - 1) % 5}, v6" if False else "s_add_u32 s32, s32, 1")
            e("v_add_u32 v6, 5, v6")
            e(f"s_add_u32 s33, s33, {2 * P}")
            e("s_cmp_lg_u32 s32, s44")
            e(f"s_cbranch_scc1 L_ld_nobar_{sd}")
            e("s_barrier")
            self.lab(f"L_ld_nobar_{sd}")
            e("s_cmp_lg_u32 s32, 5")
            e(f"s_cbranch_scc1 L_ld_nopoll_{sd}")
            self.poll(7, 5, 1)
            self.lab(f"L_ld_nopoll_{sd}")
            e("s_cmp_lt_u32 s32, 7")
            e(f"s_cbranch_scc1 L_ld_loop_{sd}")
            for v in range(35 - Wn + 1, 35):
                if v % 5 == 0:
                    e(f"v_mov_b32 v2, {v}")
                    e(f"s_waitcnt vmcnt({35 - v})")
                    e("ds_write_b32 v8, v2")
            if sd == "l" and len(sides) == 2:
                e("s_branch L_ld_tail")

    def compute(self):
        e, o = self.e, self.o
        ops = [("U0", 0), ("U0", 1), ("U1", 0), ("U1", 1), ("U2", 0), ("U2", 1), ("U2", 2), ("U3", 0), ("U3", 1), ("U3", 2),
               ("X", 0), ("X", 1), ("X", 2),
               ("L0", 0), ("L0", 1), ("L0", 2), ("L1", 0), ("L1", 1), ("L1", 2), ("L2", 1), ("L2", 2), ("L3", 1), ("L3", 2)]
        W = {k: 16 + 4 * i for i, k in enumerate(ops)}
        SET = [108, 124]
        XR = 140
        ACC = lambda s, t: 144 + 12 * s + 4 * t
        PK = 168
        A1, A2, AX = 174, 175, 176
        ST = [177, 178, 179]
        self.lab("L_compute")
        self.nstamp = 1
        if o.ipf:
            e("s_getpc_b64 s[38:39]")
            self.lab("L_pc")
            e("s_sub_u32 s38, s38, L_pc-standalone__grouped__vision_kernel")
            e("s_subb_u32 s39, s39, 0")
            e(f"v_lshlrev_b32 v2, {o.ipf}, v0")
            e("v_lshl_add_u32 v2, s3, 13, v2" if o.ipf == 7 else "v_lshl_add_u32 v2, s3, 12, v2")
            e(f"v_min_u32 v2, {['L_code_end', 'L_compute', 'L_c_loop'][o.ipfh]}-standalone__grouped__vision_kernel-4, v2")
            e("v_mov_b32 v3, s39")
            e("v_add_co_u32 v2, vcc, s38, v2")
            e("s_nop 1")
            e("v_addc_co_u32 v3, vcc, 0, v3, vcc")
            e("global_load_dword v185, v[2:3], off")
        if o.prio_comp:
            e(f"s_setprio {o.prio_comp}")
        e("s_mul_i32 s28, s3, 1152")
        e("v_lshl_add_u32 v108, v0, 4, s28")
        e("s_movk_i32 s29, 3456")
        for i in range(1, 4):
            e(f"v_add_u32 v2, {64 * i}, v0")
            e("v_mul_u32_u24 v2, 911, v2")
            e("v_lshrrev_b32 v2, 16, v2")
            e(f"v_mad_u32_u24 v{108 + i}, v2, s29, v108")
        e("v_cmp_lt_u32 vcc, 23, v0")
        e("v_bfrev_b32 v3, 1")
        e(f"s_mul_i32 s33, s3, {WSZ}")
        e(f"s_add_u32 s33, s33, {WREG}")
        e("v_cndmask_b32 v111, v111, v3, vcc")
        e("s_mul_i32 s34, s26, 27648")
        e("s_movk_i32 s35, 13824")
        e("s_sub_u32 s36, 27648, s34")
        e("s_waitcnt lgkmcnt(0)")
        if o.tlbw:
            e("s_and_b32 s10, s2, 1")
            e("s_lshl_b32 s10, s10, 2")
            e("s_bfe_u32 s11, s2, 0x20003")
            e("s_add_u32 s10, s10, s11")
            e("s_mul_i32 s10, s10, 9216")
            e("s_bfe_u32 s11, s2, 0x20001")
            e("s_lshl_b32 s11, s11, 3")
            e("s_lshr_b32 s24, s2, 5")
            e("s_add_u32 s11, s11, s24")
            e(f"s_mul_i32 s11, s11, {12 * ROWB}")
            e("s_add_u32 s10, s10, s11")
            e("s_mov_b32 s20, s8")
            e("s_mov_b32 s21, s9")
            e(f"s_mov_b32 s22, {XBYTES}")
            e("s_mov_b32 s23, 0x20000")
            e(f"s_mov_b32 s11, {11 * ROWB}")
            e("v_mul_lo_u32 v2, v0, s11")
            e("s_cmp_lg_u32 s3, 0")
            e("s_cbranch_scc1 L_notouch")
            e("s_mov_b64 exec, 3")
            e(f"buffer_load_dword v186, v2, s[20:23], s10 offen {o.tlbf}")
            e("s_mov_b64 exec, -1")
            self.lab("L_notouch")
        e("s_barrier")
        e("s_mov_b32 s16, s6")
        e("s_mov_b32 s17, s7")
        e(f"s_mov_b32 s18, {WBYTES}")
        e("s_mov_b32 s19, 0x20000")
        for p in range(3):
            if o.wsplit and p:
                e(f"s_waitcnt vmcnt({o.wsplit - 1})")
            e(f"s_add_u32 m0, s33, {4096 * p}")
            e("s_nop 0")
            for i in range(4):
                if not o.now:
                    e(f"buffer_load_dwordx4 v{108 + i}, s[16:19], s{34 + p} offen offset:{1024 * i} {o.wflags} lds")
        self.stamp()
        e("v_and_b32 v1, 15, v0")
        e("v_lshrrev_b32 v2, 4, v0")
        e("s_mul_i32 s28, s3, 3")
        e("v_and_b32 v3, 1, v2")
        e("v_lshrrev_b32 v4, 1, v2")
        e("v_cmp_gt_u32 vcc, 2, v2")
        e("s_movk_i32 s29, 192")
        e("s_movk_i32 s30, 1152")

        def baddr(dst, vdx, vcc_, tmp1, tmp2, extra=None):
            e(f"v_add_u32 v{tmp1}, {vdx}, v1")
            e(f"v_add_u32 v{tmp2}, 1, v{tmp1}")
            e(f"v_bfe_u32 v{tmp2}, v{tmp2}, 2, 2")
            e(f"v_mad_u32_u24 v{tmp1}, v{tmp1}, s29, v15" if o.hf else f"v_mad_u32_u24 v{tmp1}, v{tmp1}, s29, 64")
            e(f"v_add_u32 v{dst}, s28, {vcc_}")
            e(f"v_xor_b32 v{dst}, v{dst}, v{tmp2}")
            e(f"v_lshl_add_u32 v{dst}, v{dst}, 4, v{tmp1}")
            if extra:
                e(f"v_add_u32 v{dst}, {extra}, v{dst}")

        if o.hf:
            e("s_mul_i32 s31, s43, 6144")
            e("s_add_u32 s32, s31, 64")
            e("v_mov_b32 v15, s32")
            e("s_sub_u32 s38, 3072, s31")
            e(f"s_sub_u32 s38, s38, {8 * P}")
        e("v_cndmask_b32 v6, 2, v2, vcc")
        e("v_cndmask_b32 v7, v3, 2, vcc")
        baddr(A1, "v3", "v4", 11, 12)
        baddr(A2, "v6", "v7", 11, 12)
        e(f"v_mul_u32_u24 v13, {P}, v2")
        e("v_mov_b32 v14, 2")
        baddr(AX, "2", "v14", 11, 12, "v13")
        if o.hf:
            e("v_lshl_add_u32 v1, s43, 1, v1")
        e("v_add_u32 v12, 1, v1")
        e("v_bfe_u32 v12, v12, 2, 2")
        e("v_mad_u32_u24 v11, v1, s29, v15" if o.hf else "v_mad_u32_u24 v11, v1, s29, 64")
        e("v_lshl_add_u32 v11, v3, 3, v11")
        e(f"v_add_u32 v13, {P}, v11")
        e("v_add_u32 v14, s28, v4")
        e("v_xor_b32 v15, v14, v12")
        e(f"v_lshl_add_u32 v{ST[0]}, v15, 4, v11")
        e("v_add_u32 v14, 1, v14")
        e("v_xor_b32 v15, v14, v12")
        e(f"v_lshl_add_u32 v{ST[2]}, v15, 4, v13")
        e("v_cndmask_b32 v14, 0, 2, vcc")
        e("v_cndmask_b32 v13, v13, v11, vcc")
        e("v_add_u32 v14, s28, v14")
        e("v_xor_b32 v15, v14, v12")
        e(f"v_lshl_add_u32 v{ST[1]}, v15, 4, v13")
        if o.defer:
            e("v_add_u32 v12, 3, v1")
            e("v_bfe_u32 v12, v12, 2, 2")
            e(f"v_add_u32 v11, {384 + 6144}, v11")
            e(f"v_add_u32 v13, {384 + 6144}, v13")
            e("v_xor_b32 v15, v14, v12")
            e("v_lshl_add_u32 v181, v15, 4, v13")
            e("v_add_u32 v14, s28, v4")
            e("v_xor_b32 v15, v14, v12")
            e("v_lshl_add_u32 v180, v15, 4, v11")
            e("v_add_u32 v14, 1, v14")
            e("v_xor_b32 v15, v14, v12")
            e(f"v_add_u32 v11, {P}, v11")
            e("v_lshl_add_u32 v182, v15, 4, v11")
        E1, E2, F1, F2, F1z, F2z, F1y, F2y, G0, G1, G2, Z = range(144, 156)
        e("v_bfe_u32 v11, v0, 2, 2")
        e("v_mul_u32_u24 v11, 48, v11")
        e("v_add_u32 v11, s33, v11")
        e("v_and_b32 v12, 3, v0")
        e("v_lshl_add_u32 v11, v12, 3, v11")
        e("v_mul_u32_u24 v13, 384, v4")
        e("v_mad_u32_u24 v13, v3, s30, v13")
        e("v_mul_u32_u24 v14, 384, v7")
        e("v_mad_u32_u24 v14, v6, s30, v14")
        e(f"v_add_u32 v{E1}, v11, v13")
        e(f"v_add_u32 v{E2}, v11, v14")
        e("v_cmp_lt_u32 vcc, 1, v12")
        e("s_add_u32 s30, s33, 3456")
        e(f"v_mov_b32 v{Z}, s30")
        e("v_mov_b32 v13, 32")
        e("v_mov_b32 v14, -4112")
        e("v_cndmask_b32 v13, v13, v14, vcc")
        e("v_cndmask_b32 v15, 0, 1, vcc")
        e(f"v_add_u32 v{F1}, v{E1}, v13")
        e(f"v_add_u32 v{F2}, v{E2}, v13")
        e(f"v_cndmask_b32 v{F1z}, v{F1}, v{Z}, vcc")
        e(f"v_cndmask_b32 v{F2z}, v{F2}, v{Z}, vcc")
        e(f"v_add_u32 v{F1y}, 12288, v{F1}")
        e(f"v_add_u32 v{F2y}, 12288, v{F2}")
        e(f"v_cndmask_b32 v{F1y}, v{Z}, v{F1y}, vcc")
        e(f"v_cndmask_b32 v{F2y}, v{Z}, v{F2y}, vcc")
        e("v_lshl_add_u32 v11, v2, 12, v11")
        e("v_add_u32 v11, 3072, v11")
        e("v_sub_u32 v15, v2, v15")
        e("v_cmp_gt_u32 vcc, 3, v15")
        e(f"v_add_u32 v{G1}, v11, v13")
        e(f"v_add_u32 v{G2}, -4080, v11")
        e(f"v_cndmask_b32 v{G1}, v{Z}, v{G1}, vcc")
        e("v_cmp_gt_u32 vcc, 3, v2")
        e("s_nop 1")
        e(f"v_cndmask_b32 v{G0}, v{Z}, v11, vcc")
        e("v_cmp_lt_u32 vcc, 0, v2")
        e("s_nop 0")
        e("v_mov_b32 v10, 1")
        e(f"v_cndmask_b32 v{G2}, v{Z}, v{G2}, vcc")

        def tr(key, a, off):
            w = W[key]
            e(f"ds_read_b64_tr_b16 v[{w}:{w + 1}], v{a} offset:{off}")
            e(f"ds_read_b64_tr_b16 v[{w + 2}:{w + 3}], v{a} offset:{off + 192}")

        e("s_waitcnt vmcnt(8)")
        self.stamp()
        tr(("U0", 0), E1, 0); tr(("U1", 0), E2, 0); tr(("U0", 1), F1z, 0); tr(("U1", 1), F2z, 0)
        tr(("U2", 2), E1, 16); tr(("U3", 2), E2, 16)
        e("s_waitcnt vmcnt(4)")
        tr(("U2", 0), E1, 4096); tr(("U3", 0), E2, 4096); tr(("U2", 1), F1, 4096); tr(("U3", 1), F2, 4096)
        tr(("L0", 2), E1, 4112); tr(("L1", 2), E2, 4112)
        e("s_waitcnt vmcnt(0)")
        self.stamp()
        tr(("X", 0), G0, 0); tr(("X", 1), G1, 0); tr(("X", 2), G2, 0)
        tr(("L0", 0), E1, 8192); tr(("L1", 0), E2, 8192); tr(("L0", 1), F1, 8192); tr(("L1", 1), F2, 8192)
        tr(("L2", 1), F1y, 0); tr(("L3", 1), F2y, 0); tr(("L2", 2), E1, 8208); tr(("L3", 2), E2, 8208)
        e("ds_write_b32 v8, v10")
        self.diag_mark("kw")
        self.stamp()
        if o.nocomp:
            self.stamp_flush()
            self.lab("L_end")
            e("s_endpgm")
            return
        if o.cstamp == 2:
            e("s_waitcnt lgkmcnt(0)")
            e("s_mov_b32 s94, s46")
        self.lab("L_c_loop")
        slow = []
        c1 = len(self.phases[0][2])
        ntot = 7 * sum(len(p[2]) for p in self.phases)

        def need(T, s):
            if o.order == "A" or T < 2:
                return c1 * (s + 2)
            return 7 * c1 + len(self.phases[1][2]) * (s + 2)

        def pair_reads(st, off):
            b = SET[st]
            return [f"ds_read_b128 v[{b}:{b + 3}], v{A1} offset:{off}",
                    f"ds_read_b128 v[{b + 4}:{b + 7}], v{A2} offset:{off}",
                    f"ds_read_b128 v[{b + 8}:{b + 11}], v{A1} offset:{off + P}",
                    f"ds_read_b128 v[{b + 12}:{b + 15}], v{A2} offset:{off + P}"]

        def epilogue(acc, off, wr):
            r = []
            for t in range(3):
                a = ACC(acc, t)
                r.append(f"v_cvt_pk_bf16_f32 v{PK + 2 * t}, v{a}, v{a + 1}")
                r.append(f"v_cvt_pk_bf16_f32 v{PK + 2 * t + 1}, v{a + 2}, v{a + 3}")
                if wr == 32:
                    r.append(f"ds_write_b32 v{ST[t]}, v{PK + 2 * t} offset:{off}")
                    r.append(f"ds_write_b32 v{ST[t]}, v{PK + 2 * t + 1} offset:{off + 4}")
                else:
                    r.append(f"ds_write_b64 v{ST[t]}, v[{PK + 2 * t}:{PK + 2 * t + 1}] offset:{off}")
            r.append("ds_write_b32 v8, v10")
            return r

        if o.modes == "q":
            return self.loop_q(ops, W, SET, XR, ACC, PK, A1, A2, AX, ST, c1, ntot)
        seen_upto = 0
        fpending = None
        modes = o.modes.split(",")
        loop = o.loop
        if loop:
            del self.L[-1]
            e("s_mov_b32 s37, 0")
            e("v_and_b32 v11, -9, v9")
            if o.hf:
                e("v_lshl_add_u32 v11, s43, 3, v11")
            e("v_mov_b32 v5, 0")
            if o.order != "A":
                e(f"s_mov_b32 s35, {2 * c1}")
                e(f"s_mov_b32 s34, {2 * c1}")
            self.lab("L_c_loop")
        nb = len(modes) if loop else 3
        seq = o.seq
        for T in range(nb):
            md = modes[T]
            if loop and T:
                self.lab(f"L_c_loop{T}")
            for s in range(6):
                u = 6 * T + s
                if o.prof and o.cstamp == 2:
                    e(f"s_memtime s[{16 + 4 * u}:{17 + 4 * u}]")
                    e(f"s_memrealtime s[{18 + 4 * u}:{19 + 4 * u}]")
                elif o.prof and o.cstamp:
                    self.stamp_now(22, u)
                    self.stamp_now(40, u, real=True)
                U, Lo = s & 1, (s & 1) ^ 1
                acc = s & 1 if md == "n" else 0
                nd = need(0 if loop else T, s)
                if loop and o.order != "A" and s == 0:
                    e("v_cmp_gt_i32 vcc, s35, v5")
                    e(f"s_cbranch_vccnz L_c_slow{u}")
                    self.lab(f"L_c_ready{u}")
                    slow.append((u, "s35"))
                    e("s_mov_b32 s35, s34")
                    e(f"s_mov_b32 s34, {ntot}")
                    seen_upto = 99
                elif loop:
                    e(f"v_cmp_gt_i32 vcc, {nd}, v5")
                    e(f"s_cbranch_vccnz L_c_slow{u}")
                    self.lab(f"L_c_ready{u}")
                    slow.append((u, nd))
                    seen_upto = 99
                elif nd > seen_upto:
                    if fpending is not None:
                        e(f"s_waitcnt lgkmcnt({fpending})")
                        if loop:
                            nd_ = "s36"
                        else:
                            nd_ = nd
                        e(f"v_cmp_gt_i32 vcc, {nd_}, v5")
                        e(f"s_cbranch_vccnz L_c_slow{u}")
                        self.lab(f"L_c_ready{u}")
                        slow.append((u, nd_))
                    else:
                        self.poll(9, 5, nd, sleep=o.csleep)
                    seen_upto = nd
                fpending = None
                if s == 0 and o.diag in ("k0", "k1", "k2"):
                    e(f"s_cmp_lg_u32 s37, {o.diag[1]}")
                    e("s_cbranch_scc1 L_nomark")
                    e("s_memrealtime s[90:91]")
                    self.lab("L_nomark")
                if s == 0 and o.prof and not o.cstamp:
                    self.stamp_now(24, "s37" if loop else T, real=(o.prof == 2))
                ro = (s & 1) * 2 * P
                rd = (pair_reads(0, 0) if s == 0 else []) + pair_reads(Lo, ro + 2 * P)
                rd.append(f"ds_read_b128 v[{XR}:{XR + 3}], v{AX} offset:{ro}")
                post = []
                if s & 1:
                    adv = 4 * P if s < 5 else "s38" if o.hf else (-3072 if o.defer else 3072) - 8 * P
                    post = [f"v_add_u32 v{r}, {adv}, v{r}" for r in (A1, A2, AX)] if (u < 17 or loop) else []
                inter = []
                if md in ("r", "n") and s > 0:
                    inter = [[x] for x in rd]
                else:
                    for x in rd:
                        e(x)
                    if s == 0:
                        e("s_waitcnt lgkmcnt(5)")
                nxt_need = need(T, s + 1) if s < 5 else (need(T + 1, 0) if T < 2 else 0)
                want_f = md != "p" and nxt_need > seen_upto
                if loop:
                    if o.defer:
                        if s == o.defer - 1:
                            post = post + ["s_cmp_eq_u32 s37, 3"]
                        if s == 5 - o.defer:
                            post = post + ["s_cmp_eq_u32 s37, 0"]
                        if s == 5:
                            post = post + ["s_add_u32 s37, s37, 1", "s_cmp_eq_u32 s37, 2"]
                    elif s == 5:
                        post = post + ["s_add_u32 s37, s37, 1", "v_mov_b32 v11, v9", "s_cmp_eq_u32 s37, 1", "s_cselect_b32 s36, 0, -1",
                                       "v_and_b32 v5, s36, v5", "s_cmp_lt_u32 s37, 3"]
                        if nb == 2:
                            post[-1] = f"s_bitcmp1_b32 {sum(1 << k for k in range(3) if o.seq[k] == '0')}, s37"
                    if o.order != "A" and s == 0:
                        pre0 = True
                defer = []
                if md == "n" and s > 0:
                    defer = ["v_add_u32 v10, 1, v10"] + epilogue(acc ^ 1, ((s - 1) & 1) * 2 * P, o.wrn)
                    if not s & 1:
                        defer += [f"v_add_u32 v{r}, {4 * P}, v{r}" for r in ST]
                seen = set()
                seq = [(k, SET[U] + 4 * int(k[0][1])) for k in ops[:10]] + [(k, SET[Lo] + 4 * int(k[0][1])) for k in ops[13:]] + [(k, XR) for k in ops[10:13]]
                behind = 0
                for g, (k, b) in enumerate(seq):
                    if g == 10:
                        e(f"s_waitcnt lgkmcnt({behind})")
                    t = k[1]
                    a = ACC(acc, t)
                    cin = f"v[{a}:{a + 3}]" if t in seen else "0"
                    seen.add(t)
                    e(f"v_mfma_f32_16x16x32_bf16 v[{a}:{a + 3}], v[{W[k]}:{W[k] + 3}], v[{b}:{b + 3}], {cin}")
                    cap = 2
                    if inter:
                        e(inter.pop(0)[0])
                        cap -= 1
                    elif post and not defer:
                        while post and cap:
                            e(post.pop(0))
                            cap -= 1
                    while defer and cap and g >= 2 and g != 9:
                        isw = defer[0].startswith("ds_write")
                        if isw and cap < 2:
                            break
                        x = defer.pop(0)
                        e(x)
                        cap -= 2 if isw else 1
                        if isw and g < 10:
                            behind += 1
                assert not defer and not inter, (u, defer)
                fill = list(post)
                if md != "n" or s == 5:
                    fill.append("v_add_u32 v10, 1, v10")
                    if want_f:
                        fill.append("ds_read_b32 v5, v9")
                    for x in fill:
                        e(x)
                    if len(fill) < 6:
                        e(f"s_nop {5 - len(fill)}")
                    ep = epilogue(acc, (s & 1) * 2 * P, o.wr)
                    for x in ep:
                        e(x)
                    if want_f:
                        fpending = sum(1 for x in ep if x.startswith("ds_"))
                    if s & 1 and (u < 17 or loop):
                        adv = 4 * P if s < 5 else "s38" if o.hf else (-3072 if o.defer else 3072) - 8 * P
                        for r in ST:
                            e(f"v_add_u32 v{r}, {adv}, v{r}")
                    if o.defer and s in (o.defer - 1, 5 - o.defer):
                        e("s_cbranch_scc1 L_c_stub")
                    if loop and nb == 2 and s == 5:
                        e("s_cbranch_scc1 L_c_loop")
                        e("s_cmp_lt_u32 s37, 3")
                        if T == 0:
                            e("s_cbranch_scc0 L_c_done")
                        else:
                            e("s_cbranch_scc1 L_c_loop1")
                            self.lab("L_c_done")
                else:
                    for x in fill:
                        e(x)
                    if want_f:
                        e("ds_read_b32 v5, v9")
                        fpending = 0
                    if o.defer and s in (o.defer - 1, 5 - o.defer):
                        e("s_cbranch_scc1 L_c_stub")
        if loop and nb == 1:
            e("s_cbranch_scc1 L_c_loop")
        if o.defer:
            D = o.defer
            for r in (A1, A2, AX):
                e(f"v_add_u32 v{r}, {(12 - 2 * D) * P}, v{r}")
            for t in range(3):
                back = 2 * D * P if md == "n" else (2 * P if D == 1 else 0)
                e(f"v_add_u32 v{ST[t]}, {back}, v{180 + t}")
            e("s_branch L_c_loop")
            self.lab("L_c_stub")
            if md == "n":
                e("v_add_u32 v10, 1, v10")
            e("s_cmp_eq_u32 s37, 0")
            e("s_mov_b32 s37, 1")
            e("v_mov_b32 v11, v9")
            e("v_mov_b32 v5, 0")
            if md == "n":
                for x in epilogue((D - 1) & 1, ((D - 1) & 1) * 2 * P, o.wr):
                    e(x)
            for r in (A1, A2, AX):
                e(f"v_add_u32 v{r}, {6144 - 8 * P}, v{r}")
            for t in range(3):
                e(f"v_swap_b32 v{ST[t]}, v{180 + t}")
            e("s_cbranch_scc1 L_c_loop")
        if o.cstamp == 2:
            e("s_memtime s[88:89]")
            e("s_waitcnt lgkmcnt(0)")
            for u in range(18):
                e(f"v_writelane_b32 v{PV}, s{16 + 4 * u}, {22 + u}")
                e(f"v_writelane_b32 v{PV}, s{18 + 4 * u}, {40 + u}")
            e("s_mov_b32 s46, s94")
            e("s_mov_b32 s48, s88")
            self.nstamp = 2
        else:
            self.stamp()
        self.stamp_flush()
        if o.diag.startswith("k"):
            self.diag_mark("kend")
            self.diag_end(True)
        self.lab("L_end")
        e("s_endpgm")
        for u, nd in slow:
            self.lab(f"L_c_slow{u}")
            self.poll(11 if loop else 9, 5, nd, sleep=o.csleep)
            e(f"s_branch L_c_ready{u}")

        self.lab("L_code_end")

    def loop_q(self, ops, W, SET, XR, ACC, PK, A1, A2, AX, ST, c1, ntot):
        e, o = self.e, self.o
        assert o.hf or o.order == "A"
        del self.L[-1]
        q = []

        def rd(tag, reg, a, off):
            return ("ds", tag, f"ds_read_b128 v[{reg}:{reg + 3}], v{a} offset:{off}")

        def pair(k, st, off):
            b = SET[st]
            return [rd(("P", k, 0), b, A1, off), rd(("P", k, 1), b + 4, A2, off),
                    rd(("P", k, 2), b + 8, A1, off + P), rd(("P", k, 3), b + 12, A2, off + P)]

        def emit(it):
            e(it[2])
            if it[0] in ("ds", "dw"):
                q.append(it[1])

        def wait_for(tags):
            ix = [q.index(t) for t in tags if t in q]
            if not ix:
                return 0
            e(f"s_waitcnt lgkmcnt({len(q) - 1 - max(ix)})")
            del q[: max(ix) + 1]
            return 1

        def epilogue(acc, off, wr):
            r = []
            for t in range(3):
                a = ACC(acc, t)
                r.append(("v", None, f"v_cvt_pk_bf16_f32 v{PK + 2 * t}, v{a}, v{a + 1}"))
                r.append(("v", None, f"v_cvt_pk_bf16_f32 v{PK + 2 * t + 1}, v{a + 2}, v{a + 3}"))
                if wr == 32:
                    r.append(("dw", ("W",), f"ds_write_b32 v{ST[t]}, v{PK + 2 * t} offset:{off}"))
                    r.append(("dw", ("W",), f"ds_write_b32 v{ST[t]}, v{PK + 2 * t + 1} offset:{off + 4}"))
                else:
                    r.append(("dw", ("W",), f"ds_write_b64 v{ST[t]}, v[{PK + 2 * t}:{PK + 2 * t + 1}] offset:{off}"))
            r.append(("dw", ("W",), "ds_write_b32 v8, v10"))
            return r

        e("s_mov_b32 s37, 0")
        e("v_and_b32 v11, -9, v9")
        if o.hf:
            e("v_lshl_add_u32 v11, s43, 3, v11")
            e(f"s_sub_u32 s39, s38, {4 * P}")
        else:
            e(f"s_mov_b32 s39, {3072 - 12 * P}")
        e("s_mov_b32 s33, 0")
        e(f"s_add_u32 s32, s39, {12 * P}")
        for t in range(3):
            e(f"v_mov_b32 v{180 + t}, v{ST[t]}")
            e(f"v_mov_b32 v{ST[t]}, {FLAGS + 64 - 2 * P}")
        e(f"s_mov_b32 s35, {2 * c1}")
        e(f"s_mov_b32 s34, {ntot if o.order != 'A' else 2 * c1}")
        self.poll(11, 5, 2 * c1, sleep=o.csleep)
        for it in pair(0, 0, 0) + [rd(("X", 0), XR, AX, 0)]:
            emit(it)
        for r in (A1, A2, AX):
            e(f"v_add_u32 v{r}, {2 * P}, v{r}")
        wait_for([("P", 0, 3)])
        self.lab("L_c_loop")
        slow = []
        for s in range(6):
            if s == 0 and o.prof:
                self.stamp_now(24, "s37", real=(o.prof == 2))
                q.clear()
            U, Lo = s & 1, (s & 1) ^ 1
            acc = s & 1
            up = [(k, SET[U] + 4 * int(k[0][1])) for k in ops[:10]]
            xs = [(k, XR) for k in ops[10:13]]
            lo = [(k, SET[Lo] + 4 * int(k[0][1])) for k in ops[13:]]
            sq = up + xs + lo if s < 5 else lo + xs + up
            pin = {g: [] for g in range(23)}
            if s < 5:
                pr, xr = pair(s + 2, U, 2 * P), rd(("X", s + 1), XR, AX, 0)
            else:
                pr, xr = pair(0, Lo, 0), rd(("X", 0), XR, AX, 0)
                pin[0] += [("v", None, f"v_add_u32 v{AX}, s39, v{AX}"), ("v", None, f"v_add_u32 v{A1}, s39, v{A1}")]
                pin[1] += [("v", None, f"v_add_u32 v{A2}, s39, v{A2}"), ("s", None, "s_add_u32 s37, s37, 1")]
                pin[2] += [("s", None, "s_cmp_eq_u32 s37, 1"), ("s", None, "s_cselect_b32 s36, 0, -1")]
                pin[3] += [("v", None, "v_and_b32 v5, s36, v5"), ("v", None, "v_mov_b32 v11, v9")]
                pin[17] += [("s", None, "s_mov_b32 s35, s34"), ("s", None, "s_cmp_lt_u32 s37, 3")]
            if s == 1:
                pin[0] += [("s", None, "s_add_u32 s33, s33, s32")]
            if s == 3:
                pin[21] += [("s", None, "s_cmp_lt_u32 s37, 2"), ("s", None, f"s_cselect_b32 s39, s39, {-12 * P}")]
            for i_, it in enumerate(pr):
                pin[10 + i_].append(it)
            pin[14].append(xr)
            pin[15] += [("v", None, f"v_add_u32 v{A1}, {2 * P}, v{A1}"), ("v", None, f"v_add_u32 v{A2}, {2 * P}, v{A2}")]
            pin[16] += [("v", None, f"v_add_u32 v{AX}, {2 * P}, v{AX}")]
            if s == 0:
                for i_, it in enumerate(pair(1, 1, 0)):
                    pin[1 + i_].append(it)
            flow = epilogue(acc ^ 1, ((s - 1) & 1) * 2 * P, o.wrn) + [("v", None, "v_add_u32 v10, 1, v10")]
            if s == 0:
                flow += [("v", None, f"v_add_u32 v{ST[t]}, s33, v{180 + t}") for t in range(3)]
            elif not s & 1:
                flow += [("v", None, f"v_add_u32 v{r}, {4 * P}, v{r}") for r in ST]
            seen = set()
            for g, (k, b) in enumerate(sq):
                t = k[1]
                a = ACC(acc, t)
                cin = f"v[{a}:{a + 3}]" if t in seen else "0"
                seen.add(t)
                e(f"v_mfma_f32_16x16x32_bf16 v[{a}:{a + 3}], v[{W[k]}:{W[k] + 3}], v[{b}:{b + 3}], {cin}")
                cap = 2
                if g == 8:
                    cap -= wait_for([("X", s)] + ([("P", s + 1, 3)] if 0 < s < 5 else []))
                    nd = c1 * (s + 3) if s < 5 else "s35"
                    e(f"v_cmp_gt_i32 vcc, {nd}, v5")
                    cap = 0
                if g == 9:
                    e(f"s_cbranch_vccnz L_c_slow{s}")
                    self.lab(f"L_c_ready{s}")
                    slow.append((s, nd))
                    cap -= 1
                if s == 0 and g == 12:
                    cap -= wait_for([("P", 1, 3)])
                if s in (4, 5) and g == 22:
                    cap -= wait_for([("P", 6, 3)] if s == 4 else [("P", 0, 3)])
                for it in pin[g]:
                    emit(it)
                    cap -= 1
                while flow and g >= 2 and cap > 0:
                    pick = None
                    ndw = sum(1 for f in flow if f[0] == "dw")
                    for ix, f in enumerate(flow):
                        if f[0] == "dw":
                            cv = [re.match(r"v_cvt\S+ v(\d+)", h[2]).group(1) for h in flow[:ix] if "v_cvt" in h[2]]
                            if cap >= 2 and not any(c in self.srcs(f[2]) for c in cv) and not ("v8" in f[2] and cv):
                                pick = ix
                            break
                    if pick is None:
                        for ix, f in enumerate(flow):
                            if f[0] != "dw" and ("v_cvt" in f[2] or ndw == 0):
                                pick = ix
                                break
                    if pick is None:
                        break
                    it = flow.pop(pick)
                    emit(it)
                    cap -= 2 if it[0] == "dw" else 1
            assert not flow, (s, flow)
        e("s_cbranch_scc1 L_c_loop")
        e("s_nop 5")
        for it in epilogue(1, 2 * P, o.wr):
            e(it[2])
        self.stamp()
        self.stamp_flush()
        self.lab("L_end")
        e("s_endpgm")
        for u, nd in slow:
            self.lab(f"L_c_slow{u}")
            self.poll(11, 5, nd, sleep=o.csleep)
            e(f"s_branch L_c_ready{u}")
        self.lab("L_code_end")

    @staticmethod
    def srcs(txt):
        m = re.search(r", v\[(\d+):(\d+)\]", txt)
        if m:
            return [str(r) for r in range(int(m.group(1)), int(m.group(2)) + 1)]
        return [re.search(r", v(\d+)", txt).group(1)]

    def check_mfma_hazards(self):
        L = [l.strip() for l in self.L]
        if "L_c_loop:" not in L:
            return
        i = L.index("L_c_loop:")
        k = L.index("L_end:")
        jj = [n for n, l in enumerate(L) if l == "s_cbranch_scc1 L_c_loop"]
        for seqn in [L[i:k]] + ([L[i:jj[-1] + 1] * 2] if jj else []):
            pend = {}
            pos = 0
            for l in seqn:
                if l.endswith(":"):
                    continue
                regs = set()
                for m in re.finditer(r"v\[(\d+):(\d+)\]|v(\d+)", l.split(None, 1)[1] if " " in l else ""):
                    if m.group(3):
                        regs.add(int(m.group(3)))
                    else:
                        regs.update(range(int(m.group(1)), int(m.group(2)) + 1))
                if l.startswith("v_mfma"):
                    m = re.match(r"v_mfma\S+ v\[(\d+):(\d+)\]", l)
                    for r in range(int(m.group(1)), int(m.group(2)) + 1):
                        pend[r] = pos
                else:
                    for r in regs:
                        if r in pend:
                            assert pos - pend[r] - 1 >= 8, (l, pos - pend[r] - 1)
                m = re.match(r"s_nop (\d+)", l)
                pos += int(m.group(1)) + 1 if m else 1

    def build(self):
        self.prologue()
        self.helper()
        self.compute()
        self.check_mfma_hazards()
        if self.o.stubfirst:
            i = self.L.index("L_c_slow0:")
            j = self.L.index("L_code_end:")
            stubs = self.L[i:j]
            del self.L[i:j]
            k = self.L.index("L_compute:")
            self.L[k:k] = stubs
        if self.o.drop:
            i = self.L.index("L_c_loop:")
            j = self.L.index("L_end:")
            pats = self.o.drop.split(",")
            self.L = self.L[:i] + [l for l in self.L[i:j] if not any(l.strip().startswith(p) for p in pats)] + self.L[j:]
        return HEADER + "\n".join(self.L) + "\n" + FOOTER.format(vgpr=188, acc=188)


def main():
    p = argparse.ArgumentParser()
    p.add_argument("-o", default="-")
    p.add_argument("--prof", type=int, default=0)
    p.add_argument("--hflip", type=int, default=1)
    p.add_argument("--win", type=int, default=11)
    p.add_argument("--barpair", type=int, default=2)
    p.add_argument("--ldflags", default="nt")
    p.add_argument("--wflags", default="")
    p.add_argument("--stflags", default="sc0 sc1 nt")
    p.add_argument("--prio_loader", type=int, default=0)
    p.add_argument("--prio_comp", type=int, default=0)
    p.add_argument("--nocomp", type=int, default=0)
    p.add_argument("--noload", type=int, default=0)
    p.add_argument("--cstamp", type=int, default=0)
    p.add_argument("--drop", default="")
    p.add_argument("--wr", type=int, default=64)
    p.add_argument("--estart", type=int, default=2)
    p.add_argument("--diag", default="")
    p.add_argument("--now", type=int, default=0)
    p.add_argument("--stwait", type=int, default=0)
    p.add_argument("--stwin", type=int, default=0)
    p.add_argument("--pad", type=int, default=0)
    p.add_argument("--padk", type=int, default=1)
    p.add_argument("--padmask", type=int, default=7)
    p.add_argument("--fpre", type=int, default=0)
    p.add_argument("--csleep", type=int, default=1)
    p.add_argument("--eflag", type=int, default=0)
    p.add_argument("--rdint", type=int, default=0)
    p.add_argument("--sched", default="plain")
    p.add_argument("--stag", type=int, default=0)
    p.add_argument("--stagw", type=int, default=2)
    p.add_argument("--gate", type=int, default=0)
    p.add_argument("--gsleep", type=int, default=4)
    p.add_argument("--padper", default="")
    p.add_argument("--nostore", type=int, default=0)
    p.add_argument("--jmask", type=int, default=0)
    p.add_argument("--cls", default="1,2,3,4")
    p.add_argument("--order", default="C")
    p.add_argument("--modes", default="n")
    p.add_argument("--loop", type=int, default=1)
    p.add_argument("--winl", type=int, default=9)
    p.add_argument("--winr", type=int, default=11)
    p.add_argument("--prio_left", type=int, default=0)
    p.add_argument("--tlbw", type=int, default=0)
    p.add_argument("--tlbf", default="nt")
    p.add_argument("--defer", type=int, default=0)
    p.add_argument("--wrn", type=int, default=64)
    p.add_argument("--hf", type=int, default=1)
    p.add_argument("--seq", default="010")
    p.add_argument("--ipf", type=int, default=0)
    p.add_argument("--ipfh", type=int, default=0)
    p.add_argument("--early", type=int, default=0)
    p.add_argument("--wsplit", type=int, default=0)
    p.add_argument("--stubfirst", type=int, default=0)
    p.add_argument("--st2from", type=int, default=0)
    p.add_argument("--stflags2", default="nt")
    p.add_argument("--fevery", type=int, default=0)
    p.add_argument("--two", type=int, default=0)
    p.add_argument("--rdint2", type=int, default=1)
    p.add_argument("--sleep", type=int, default=2)
    o = p.parse_args()
    s = Gen(o).build()
    if o.o == "-":
        sys.stdout.write(s)
    else:
        open(o.o, "w").write(s)


if __name__ == "__main__":
    main()
```

```python
import argparse
import re
import sys

ROWB = 73728
XBYTES = 28311552
WBYTES = 41472
P = 9728
LDS_TOTAL = 163840
FLAGS = LDS_TOTAL - 256
WSZ = 12288
WREG = FLAGS - 4 * WSZ

HEADER = """; Kernarg layout for this problem (40 bytes, ptrs only, base s[0:1]):
; @launch grid=(256,1,1) block=(512,1,1) lds=163840
.amdgcn_target "amdgcn-amd-amdhsa--gfx950"
.text
.globl standalone__grouped__vision_kernel
.p2align 8
.type standalone__grouped__vision_kernel,@function
standalone__grouped__vision_kernel:
"""

FOOTER = """.section .rodata,"a"
.p2align 6
.amdhsa_kernel standalone__grouped__vision_kernel
  .amdhsa_next_free_vgpr {vgpr}
  .amdhsa_next_free_sgpr 102
  .amdhsa_accum_offset {acc}
  .amdhsa_group_segment_fixed_size 0
  .amdhsa_kernarg_size 40
  .amdhsa_user_sgpr_count 2
  .amdhsa_user_sgpr_kernarg_segment_ptr 1
  .amdhsa_system_sgpr_workgroup_id_x 1
.end_amdhsa_kernel
"""

PV = 189


class Gen:
    def __init__(self, o):
        self.o = o
        self.L = []
        self.nstamp = 0
        self.nlab = 0

    def e(self, s):
        self.L.append("    " + s)

    def lab(self, s):
        self.L.append(s + ":")

    def newlab(self, p):
        self.nlab += 1
        return f"L_{p}{self.nlab}"

    def stamp(self):
        if not self.o.prof:
            return
        k = self.nstamp
        self.nstamp += 1
        assert k < 22
        self.e(f"s_mem{'real' if self.o.prof == 2 else ''}time s[{46 + 2 * k}:{47 + 2 * k}]")

    def stamp_now(self, base, ctr, real=False):
        if not self.o.prof:
            return
        self.e("s_memrealtime s[96:97]" if real else "s_memtime s[96:97]")
        self.e("s_waitcnt lgkmcnt(0)")
        self.e("s_mov_b32 s95, m0")
        if isinstance(ctr, str):
            self.e(f"s_cselect_b32 s94, 1, 0")
            self.e(f"s_add_u32 m0, {ctr}, {base}")
            self.e(f"s_cmp_lg_u32 s94, 0")
        else:
            self.e(f"s_mov_b32 m0, {base + ctr}")
        self.e(f"v_writelane_b32 v{PV}, s96, m0")
        self.e("s_mov_b32 m0, s95")

    def stamp_flush(self):
        if not self.o.prof:
            return
        e = self.e
        e("s_mov_b64 exec, -1")
        e("s_waitcnt lgkmcnt(0)")
        e("s_load_dwordx2 s[40:41], s[0:1], 32")
        e("s_lshl_b32 s42, s2, 3")
        e("s_add_u32 s42, s42, s3")
        e("s_lshl_b32 s42, s42, 8")
        e("v_lshl_add_u32 v1, v0, 2, s42")
        for k in range(self.nstamp):
            e(f"v_writelane_b32 v{PV}, s{46 + 2 * k}, {k}")
        e(f"s_mov_b32 s42, {self.nstamp}")
        e(f"v_writelane_b32 v{PV}, s42, 63")
        e("s_getreg_b32 s42, hwreg(HW_REG_XCC_ID)")
        e(f"v_writelane_b32 v{PV}, s42, 62")
        e(f"v_writelane_b32 v{PV}, s92, 60")
        if self.o.prof == 2:
            e(f"v_writelane_b32 v{PV}, s86, 57")
            e(f"v_writelane_b32 v{PV}, s84, 56")
            e(f"v_writelane_b32 v{PV}, s82, 55")
        e("s_memrealtime s[92:93]")
        e("s_waitcnt lgkmcnt(0)")
        e(f"v_writelane_b32 v{PV}, s92, 59")
        e(f"global_store_dword v1, v{PV}, s[40:41]")

    def diag_mark(self, name):
        d = self.o.diag
        if d == name:
            self.e("s_memrealtime s[90:91]")
        if d == "c" + name:
            self.e("s_memtime s[90:91]")

    def diag_end(self, comp=False):
        o, e = self.o, self.e
        if not o.diag or o.diag.startswith("k") != comp:
            return
        e("s_waitcnt vmcnt(0) lgkmcnt(0)")
        self.diag_mark("end")
        e("s_waitcnt lgkmcnt(0)")
        if o.diag == "rt":
            e("s_mov_b32 s42, 0")
        elif o.diag.startswith("c"):
            e("s_sub_u32 s42, s90, s88")
            e("s_lshr_b32 s42, s42, 2")
        else:
            e("s_sub_u32 s42, s90, s92")
            e("s_mul_i32 s42, s42, 4")
        e("s_add_u32 s42, s42, 4000")
        self.lab("L_dg")
        e("s_memrealtime s[40:41]")
        e("s_waitcnt lgkmcnt(0)")
        e("s_sub_u32 s40, s40, s92")
        e("s_cmp_lt_u32 s40, s42")
        e("s_cbranch_scc1 L_dg")

    def poll(self, vaddr, vtmp, sneed, sleep=1):
        e = self.e
        l = self.newlab("poll")
        d = self.newlab("pdone")
        self.lab(l)
        e(f"ds_read_b32 v{vtmp}, v{vaddr}")
        e("s_waitcnt lgkmcnt(0)")
        e(f"v_cmp_gt_i32 vcc, {sneed}, v{vtmp}")
        e(f"s_cbranch_vccz {d}")
        if sleep:
            e(f"s_sleep {sleep}")
        e(f"s_branch {l}")
        self.lab(d)

    def prologue(self):
        e = self.e
        e("s_cmp_ge_u32 s2, 256")
        e("s_cbranch_scc1 L_end")
        e("s_load_dwordx4 s[4:7], s[0:1], 0")
        e("s_load_dwordx2 s[8:9], s[0:1], 16")
        if self.o.prof or self.o.diag:
            e("s_memrealtime s[92:93]")
        if self.o.diag:
            e("s_memtime s[88:89]")
        self.stamp()
        if self.o.prof:
            e(f"v_mov_b32 v{PV}, 0")
        e("v_lshrrev_b32 v1, 6, v0")
        e("v_and_b32 v0, 63, v0")
        e(f"v_mov_b32 v3, {FLAGS}")
        e("v_readfirstlane_b32 s3, v1")
        e("v_xor_b32 v2, 4, v1")
        e("v_lshl_add_u32 v8, v2, 2, v3")
        e("v_mov_b32 v2, 0")
        e("ds_write_b32 v8, v2")
        e("v_and_b32 v2, 3, v0")
        e("v_lshl_add_u32 v9, v2, 2, v3")
        e("s_bfe_u32 s26, s2, 0x10005")
        e("s_bfe_u32 s43, s2, 0x10003" if self.o.hf else "s_mov_b32 s43, 0")
        e("s_cmp_lt_u32 s3, 4")
        e("s_cbranch_scc1 L_compute")

    def helper(self):
        e, o = self.e, self.o
        self.lab("L_helper")
        if o.prio_loader:
            e(f"s_setprio {o.prio_loader}")
        Wn = o.win
        phases = {"A": [(0, 304, [64, 64, 64, 64, 48])],
                  "B": [(0, 224, [56] * 4), (448, 80, [40] * 2)],
                  "C": [(0, 256, [64] * 4), (512, 48, [48])],
                  "M": [(0, 352, [64] * 4), (256, 48, [48])],
                  "N": [(0, 384, [56] * 4), (224, 80, [40] * 2)]}[o.order]
        self.phases = phases
        ntot = 7 * sum(len(p[2]) for p in phases)
        e("s_and_b32 s10, s2, 1")
        e("s_lshl_b32 s10, s10, 2")
        e("s_bfe_u32 s11, s2, 0x20003")
        e("s_add_u32 s10, s10, s11")
        e("s_bfe_u32 s11, s2, 0x20001")
        e("s_lshl_b32 s11, s11, 3")
        e("s_lshr_b32 s24, s2, 5")
        e("s_add_u32 s11, s11, s24")
        e("s_mul_i32 s25, s11, 12")
        e("s_mul_i32 s24, s10, 9216")
        e("s_and_b32 s30, s3, 1")
        e("s_bfe_u32 s45, s3, 0x10001")
        e("v_lshrrev_b32 v1, 2, v0")
        e("v_bfrev_b32 v3, 1")

        def patterns(ph, first, last):
            st, half, lanes = ph
            mir = (608 - st - 2 * half) - st if len(phases) == 2 and o.hf else 0
            e(f"s_mul_i32 s33, s45, {half}")
            if mir:
                e(f"s_mul_i32 s28, s43, {mir}")
                e("s_add_u32 s33, s33, s28")
            if st:
                e(f"s_add_u32 s33, s33, {st}")
            e("s_lshr_b32 s28, s33, 2")
            e("s_add_u32 s28, s28, 2")
            e("v_add_u32 v4, s28, v1")
            e("s_lshl_b32 s33, s33, 4")
            off = 0
            for k, ln in enumerate(lanes):
                if off:
                    e(f"v_add_u32 v2, {off // 4}, v4")
                    e("v_mul_u32_u24 v2, 171, v2")
                else:
                    e("v_mul_u32_u24 v2, 171, v4")
                e("v_bfe_u32 v2, v2, 11, 2")
                e("v_xor_b32 v2, v2, v0")
                e(f"v_lshl_add_u32 v{10 + k}, v2, 4, s33")
                off += ln
            if len(lanes) == 5:
                e("v_add_u32 v14, 4096, v14")
            if first:
                e("s_add_u32 s28, s45, s10")
                e("s_cmp_eq_u32 s28, 0")
                e("s_cselect_b32 s32, 16, 0")
                e("v_cmp_gt_u32 vcc, s32, v0")
            e(f"s_mul_i32 s32, s30, {P}")
            e("s_add_u32 s33, s33, s32")
            if first:
                e("v_cndmask_b32 v10, v10, v3, vcc")
            if (first if (o.hf or o.order in "MN") else last):
                if not first:
                    e("s_add_u32 s28, s45, s10")
                e("s_cmp_eq_u32 s28, 8")
                e(f"s_cselect_b32 s28, {lanes[-1] - 16}, 64")
                e("v_cmp_le_u32 vcc, s28, v0")
                e("s_nop 1")
                e(f"v_cndmask_b32 v{9 + len(lanes)}, v{9 + len(lanes)}, v3, vcc")

        patterns(phases[0], True, len(phases) == 1)
        e("s_cmp_eq_u32 s26, 0")
        e("s_cselect_b32 s27, 1, -1")
        e("s_cselect_b32 s29, -1, 12")
        e(f"s_mul_i32 s27, s27, {ROWB}")
        e("s_add_i32 s29, s29, s25")
        e(f"s_mul_i32 s29, s29, {ROWB}")
        e("s_mul_i32 s28, s30, s27")
        e("s_add_i32 s29, s29, s28")
        e("s_lshl_b32 s35, s27, 1")
        cl = [int(x) for x in o.cls.split(",")]
        assert max(cl) <= 5
        e("s_bfe_u32 s44, s2, 0x20003")
        e("s_lshl_b32 s44, s44, 3")
        e(f"s_lshr_b32 s44, {hex(sum(c << (8 * i) for i, c in enumerate(cl)))}, s44")
        e("s_and_b32 s44, s44, 255")
        e("v_add_u32 v7, 16, v9")
        e("s_waitcnt lgkmcnt(0)")
        e("s_sub_u32 s12, s4, 256")
        e("s_subb_u32 s13, s5, 0")
        e(f"s_mov_b32 s14, {XBYTES + 256}")
        e("s_mov_b32 s15, 0x20000")
        self.stamp()
        self.diag_mark("karg")
        fl = o.ldflags
        if 0 in cl:
            e("s_cmp_lg_u32 s44, 0")
            e("s_cbranch_scc1 L_ld_start")
            e("s_barrier")
            self.lab("L_ld_start")
        if o.warm:
            self.load_warm(phases, fl, ntot)
        else:
            if o.order == "A":
                self.load_A(phases, fl)
            else:
                Wn = o.winl
                n = 0
                c1, c2 = len(phases[0][2]), len(phases[1][2])
                e(f"v_mov_b32 v6, {-c1 * ((Wn - 1) // c1)}")
                for pi, ph in enumerate(phases):
                    st, half, lanes = ph
                    c = len(lanes)
                    if pi:
                        if o.prof == 2:
                            e("s_memrealtime s[82:83]")
                        e("s_mov_b64 exec, -1")
                        patterns(ph, False, True)
                        e(f"v_mov_b32 v6, {7 * c1 - (Wn - 1) + (Wn - 1) % c}")
                    e("s_mov_b32 s31, s29")
                    e("s_mov_b32 s32, 0")
                    if lanes[0] < 64:
                        e(f"s_mov_b32 exec_hi, {hex((1 << (lanes[0] - 32)) - 1)}")
                    self.lab(f"L_ld_loop{pi}")
                    e("s_add_u32 s34, s31, s24")
                    e("s_cmp_lt_i32 s31, 0")
                    e("s_cselect_b32 s34, 0x40000000, s34")
                    e("s_mov_b32 m0, s33")
                    e("s_add_i32 s31, s31, s35")
                    off = 0
                    for k, ln in enumerate(lanes):
                        e(f"s_waitcnt vmcnt({Wn - 1})")
                        if k == (Wn - 1) % c:
                            e("ds_write_b32 v8, v6")
                        e(f"buffer_load_dwordx4 v{10 + k}, s[12:15], s34 offen offset:{off * 16} {fl} lds")
                        off += ln
                    e(f"v_add_u32 v6, {c}, v6")
                    e(f"s_add_u32 s33, s33, {2 * P}")
                    e("s_add_u32 s32, s32, 1")
                    if pi == 0:
                        e("s_cmp_lg_u32 s32, s44")
                        e("s_cbranch_scc1 L_ld_nobar")
                        e("s_barrier")
                        self.lab("L_ld_nobar")
                        e("s_cmp_lg_u32 s32, 5")
                        e("s_cbranch_scc1 L_ld_nopoll")
                        self.poll(7, 5, 1)
                        self.lab("L_ld_nopoll")
                    e("s_cmp_lt_u32 s32, 7")
                    e(f"s_cbranch_scc1 L_ld_loop{pi}")
                for v in range(ntot - Wn + 1, ntot):
                    if (v == 7 * c1 and o.early < 2) or (v < 7 * c1 and v % c1 == 0):
                        e(f"v_mov_b32 v2, {v}")
                        e(f"s_waitcnt vmcnt({ntot - v})")
                        e("ds_write_b32 v8, v2")
            self.lab("L_ld_tail")
            if o.prof == 2:
                e("s_memrealtime s[84:85]")
            if o.prio_loader or o.prio_left:
                e("s_setprio 0")
            e("s_mov_b64 exec, -1")
            e("s_and_b32 s30, s3, 3")
            e("s_mul_i32 s28, s30, 12")
            e("s_add_u32 s28, s28, 3")
            if o.hf:
                e("s_mul_i32 s32, s43, 6")
                e("s_add_u32 s28, s28, s32")
            e("v_add_u32 v2, s28, v1")
            e("v_mul_u32_u24 v2, 171, v2")
            e("v_bfe_u32 v2, v2, 11, 2")
            e("v_xor_b32 v2, v2, v0")
            e("s_mul_i32 s33, s30, 768")
            e("s_add_u32 s28, s33, 64")
            if o.hf:
                e("s_mul_i32 s32, s43, 6528")
                e("s_add_u32 s28, s28, s32")
                e("s_mul_i32 s32, s43, 6144")
                e("s_add_u32 s24, s24, s32")
                e("s_sub_u32 s36, 3072, s32")
                e(f"s_sub_u32 s38, s36, {12 * P}")
            e("v_lshl_add_u32 v10, v2, 4, s28")
            e("v_lshl_add_u32 v11, v0, 4, s33")
            if o.d2:
                e("s_mul_i32 s28, s30, 12")
                e("s_add_u32 s28, s28, 9")
                e("v_add_u32 v2, s28, v1")
                e("v_mul_u32_u24 v2, 171, v2")
                e("v_bfe_u32 v2, v2, 11, 2")
                e("v_xor_b32 v2, v2, v0")
                e("s_add_u32 s28, s33, 448")
                e("v_lshl_add_u32 v13, v2, 4, s28")
            e("s_cmp_eq_u32 s26, 0")
            e("s_cselect_b32 s29, 0, 11")
            e("s_add_i32 s29, s29, s25")
            e(f"s_mul_i32 s29, s29, {ROWB}")
            e("s_add_u32 s29, s29, s24")
            e("s_mov_b32 s20, s8")
            e("s_mov_b32 s21, s9")
            e(f"s_mov_b32 s22, {XBYTES}")
            e("s_mov_b32 s23, 0x20000")
            e("s_mov_b32 exec_hi, 0xffff")
            if not o.early:
                e(f"v_mov_b32 v2, {ntot}")
                e("s_waitcnt vmcnt(0)")
                e("ds_write_b32 v8, v2")
        self.stamp()
        self.diag_mark("ldone")
        self.stamp_now(58, 0, real=True)
        if o.nostore:
            self.stamp_flush()
            e("s_endpgm")
        e("s_mov_b32 s37, 2")
        if o.d2:
            e("s_mov_b32 s31, s29")
            e(f"s_mov_b32 s32, {8 - o.defer}")
        else:
            self.lab("L_st_strip")
            e("s_mov_b32 s31, s29")
            e("s_mov_b32 s32, 0")
        self.lab("L_st_loop")
        if not o.nocomp:
            e("v_cmp_gt_i32 vcc, s37, v5")
            e("s_cbranch_vccz L_st_go")
            self.poll(7, 5, "s37", sleep=o.sleep)
            self.lab("L_st_go")
        RA, GA = (15, 4) if o.warm else (10, 11)
        e(f"ds_read_b128 v[16:19], v{RA}")
        e(f"ds_read_b128 v[20:23], v{RA} offset:{P}")
        e("s_add_i32 s34, s31, s27")
        e(f"v_add_u32 v{RA}, {2 * P}, v{RA}")
        e("s_add_u32 s37, s37, 1")
        if not o.d2:
            e("s_add_u32 s32, s32, 1")
        e("s_waitcnt lgkmcnt(1)")
        e(f"buffer_store_dwordx4 v[16:19], v{GA}, s[20:23], s31 offen {o.stflags}")
        e("s_add_i32 s31, s34, s27")
        e("s_waitcnt lgkmcnt(0)")
        e(f"buffer_store_dwordx4 v[20:23], v{GA}, s[20:23], s34 offen {o.stflags}")
        if o.early:
            ev = [(2 + o.early, ntot, 2 * o.early)]
            if o.early >= 2:
                ev.insert(0, (3, 28, ntot - 28 + 2))
            for sv, val, cnt in ev:
                e(f"s_cmp_lg_u32 s37, {sv}")
                e(f"s_cbranch_scc1 L_st_nf{val}")
                e(f"v_mov_b32 v2, {val}")
                e(f"s_waitcnt vmcnt({cnt})")
                e("ds_write_b32 v8, v2")
                self.lab(f"L_st_nf{val}")
        if o.prof == 2:
            e("s_cmp_lg_u32 s37, 3")
            e("s_cbranch_scc1 L_nofs")
            e("s_memrealtime s[86:87]")
            self.lab("L_nofs")
        if o.prof and o.cstamp:
            self.stamp_now(22 - 3, "s37")
            self.stamp_now(40 - 3, "s37", real=True)
        if o.d2:
            D = o.defer
            e("s_cmp_lt_u32 s37, s32")
            e("s_cbranch_scc1 L_st_loop")
            e("s_add_u32 s32, s32, 6")
            e(f"s_cmp_lg_u32 s37, {8 - D}")
            e("s_cbranch_scc1 L_st_s1")
            e("v_mov_b32 v12, v10")
            e("s_mov_b32 s43, s31")
            e("v_add_u32 v10, 6144, v13")
            e("s_add_u32 s31, s29, 6144")
            e("s_branch L_st_loop")
            self.lab("L_st_s1")
            e(f"s_cmp_lg_u32 s37, {14 - D}")
            e("s_cbranch_scc1 L_st_s2")
            e("v_add_u32 v10, 3072, v13")
            e("s_add_u32 s31, s29, 3072")
            e("s_branch L_st_loop")
            self.lab("L_st_s2")
            if o.compact:
                e(f"v_add_u32 v10, {(12 - 2 * D) * P}, v13")
            else:
                e("v_mov_b32 v10, v12")
            e("s_mov_b32 s31, s43")
            e("s_mov_b32 s32, 20")
            e("s_cmp_lt_u32 s37, 20")
            e("s_cbranch_scc1 L_st_loop")
        else:
            e("s_cmp_lt_u32 s32, 6")
            e("s_cbranch_scc1 L_st_loop")
            if o.hf:
                e("s_add_u32 s29, s29, s36")
                e(f"v_add_u32 v{RA}, s38, v{RA}")
            else:
                e("s_add_u32 s29, s29, 3072")
                e(f"v_add_u32 v10, {3072 - 12 * P}, v10")
            e("s_cmp_lt_u32 s37, 20")
            e("s_cbranch_scc1 L_st_strip")
        self.diag_mark("stiss")
        if o.prof:
            self.stamp()
            e("s_waitcnt vmcnt(0)")
            self.stamp()
        self.stamp_flush()
        self.diag_end()
        e("s_endpgm")
        if o.warm:
            self.setup2()

    def load_warm(self, phases, fl, ntot):
        e, o = self.e, self.o
        Wn = o.winl
        assert o.order == "C" and o.hf and (Wn - 1) % 4 == 0
        e(f"v_mov_b32 v6, {-(Wn - 1)}")
        e("s_mov_b32 s31, s29")
        e("s_mov_b32 s32, 0")
        self.lab("L_p1")
        e("s_add_u32 s34, s31, s24")
        e("s_cmp_lt_i32 s31, 0")
        e("s_cselect_b32 s34, 0x40000000, s34")
        e("s_mov_b32 m0, s33")
        e("s_add_i32 s31, s31, s35")
        for k in range(4):
            e(f"s_waitcnt vmcnt({Wn - 1})")
            if k == 0:
                e("ds_write_b32 v8, v6")
            e(f"buffer_load_dwordx4 v{10 + k}, s[12:15], s34 offen offset:{1024 * k} {fl} lds")
        e("v_add_u32 v6, 4, v6")
        e(f"s_add_u32 s33, s33, {2 * P}")
        e("s_add_u32 s32, s32, 1")
        e("s_cmp_lg_u32 s32, s44")
        e("s_cbranch_scc1 L_ld_nobar")
        e("s_barrier")
        self.lab("L_ld_nobar")
        e("s_cmp_eq_u32 s32, 2")
        e("s_cbranch_scc1 L_setup2")
        e("s_cmp_lg_u32 s32, 5")
        e("s_cbranch_scc1 L_ld_nopoll")
        self.poll(7, 5, 1)
        self.lab("L_ld_nopoll")
        e("s_cmp_lt_u32 s32, 7")
        e("s_cbranch_scc1 L_p1")
        e(f"v_mov_b32 v6, {28 - (Wn - 1)}")
        self.lab("L_p2")
        e("s_add_u32 s34, s39, s24")
        e("s_cmp_lt_i32 s39, 0")
        e("s_cselect_b32 s34, 0x40000000, s34")
        e("s_mov_b32 m0, s40")
        e("s_add_i32 s39, s39, s35")
        e("s_mov_b32 exec_hi, 0xffff")
        e(f"s_waitcnt vmcnt({Wn - 1})")
        e("ds_write_b32 v8, v6")
        e(f"buffer_load_dwordx4 v14, s[12:15], s34 offen {fl} lds")
        e("s_mov_b32 exec_hi, -1")
        e(f"s_add_u32 s40, s40, {2 * P}")
        e("s_cmp_lt_u32 s32, 7")
        e("s_cbranch_scc1 L_p1")
        e("v_add_u32 v6, 1, v6")
        e("s_add_u32 s41, s41, 1")
        e("s_cmp_lt_u32 s41, 7")
        e("s_cbranch_scc1 L_p2")
        e("s_mov_b32 exec_hi, 0xffff")
        for v in range(36 - Wn, 29):
            if v % 4 == 0:
                e(f"v_mov_b32 v2, {v}")
                e(f"s_waitcnt vmcnt({34 - v})")
                e("ds_write_b32 v8, v2")
        e("v_mov_b32 v2, 35")
        e("s_waitcnt vmcnt(0)")
        e("ds_write_b32 v8, v2")

    def setup2(self):
        e, o = self.e, self.o
        self.lab("L_setup2")
        e("s_mul_i32 s40, s45, 48")
        e("s_mul_i32 s28, s43, -512")
        e("s_add_u32 s40, s40, s28")
        e("s_add_u32 s40, s40, 512")
        e("s_lshr_b32 s28, s40, 2")
        e("s_add_u32 s28, s28, 2")
        e("v_add_u32 v2, s28, v1")
        e("s_lshl_b32 s40, s40, 4")
        e("v_mul_u32_u24 v2, 171, v2")
        e("v_bfe_u32 v2, v2, 11, 2")
        e("v_xor_b32 v2, v2, v0")
        e("v_lshl_add_u32 v14, v2, 4, s40")
        e(f"s_mul_i32 s28, s30, {P}")
        e("s_add_u32 s40, s40, s28")
        e("s_mov_b32 s39, s29")
        e("s_mov_b32 s41, 1")
        e("s_and_b32 s30, s3, 3")
        e("s_mul_i32 s28, s30, 12")
        e("s_mul_i32 s36, s43, 6")
        e("s_add_u32 s28, s28, s36")
        e("s_add_u32 s28, s28, 3")
        e("v_add_u32 v2, s28, v1")
        e("v_mul_u32_u24 v2, 171, v2")
        e("v_bfe_u32 v2, v2, 11, 2")
        e("v_xor_b32 v2, v2, v0")
        e("s_mul_i32 s30, s30, 768")
        e("s_mul_i32 s36, s43, 6528")
        e("s_add_u32 s28, s30, s36")
        e("s_add_u32 s28, s28, 64")
        e("v_lshl_add_u32 v15, v2, 4, s28")
        e("v_lshl_add_u32 v4, v0, 4, s30")
        e("s_mul_i32 s38, s43, 6144")
        e("s_sub_u32 s36, 3072, s38")
        e("s_cmp_eq_u32 s26, 0")
        e("s_cselect_b32 s29, 0, 11")
        e("s_add_i32 s29, s29, s25")
        e(f"s_mul_i32 s29, s29, {ROWB}")
        e("s_add_u32 s29, s29, s24")
        e("s_add_u32 s29, s29, s38")
        e(f"s_sub_u32 s38, s36, {12 * P}")
        e("s_mov_b32 s20, s8")
        e("s_mov_b32 s21, s9")
        e(f"s_mov_b32 s22, {XBYTES}")
        e("s_mov_b32 s23, 0x20000")
        e("s_branch L_p2")

    def load_A(self, phases, fl):
        e, o = self.e, self.o
        lanes = phases[0][2]
        e("s_mov_b32 s31, s29")
        e("s_mov_b32 s32, 0")
        sides = [("l", o.winl), ("r", o.winr)] if o.winl != o.winr else [("l", o.winl)]
        if len(sides) == 2:
            e("s_cmp_lg_u32 s45, 0")
            e("s_cbranch_scc1 L_ld_pre_r")
        for sd, Wn in sides:
            self.lab(f"L_ld_pre_{sd}")
            e(f"v_mov_b32 v6, {-5 * ((Wn - 1) // 5)}")
            if sd == "l" and o.prio_left:
                e(f"s_setprio {o.prio_left}")
            self.lab(f"L_ld_loop_{sd}")
            e("s_add_u32 s34, s31, s24")
            e("s_cmp_lt_i32 s31, 0")
            e("s_cselect_b32 s34, 0x40000000, s34")
            e("s_mov_b32 m0, s33")
            e("s_add_i32 s31, s31, s35")
            for k in range(5):
                if k == 4:
                    e("s_add_u32 m0, s33, 4096")
                e(f"s_waitcnt vmcnt({Wn - 1})")
                if k == (Wn - 1) % 5:
                    e("ds_write_b32 v8, v6")
                if k == 4:
                    e("s_mov_b32 exec_hi, 0xffff")
                e(f"buffer_load_dwordx4 v{10 + k}, s[12:15], s34 offen offset:{1024 * (k % 4)} {fl} lds")
                if k == 4:
                    e("s_mov_b32 exec_hi, -1")
                if k == 0:
                    e(f"v_add_u32 v6, {(Wn - 1) % 5}, v6" if False else "s_add_u32 s32, s32, 1")
            e("v_add_u32 v6, 5, v6")
            e(f"s_add_u32 s33, s33, {2 * P}")
            e("s_cmp_lg_u32 s32, s44")
            e(f"s_cbranch_scc1 L_ld_nobar_{sd}")
            e("s_barrier")
            self.lab(f"L_ld_nobar_{sd}")
            e("s_cmp_lg_u32 s32, 5")
            e(f"s_cbranch_scc1 L_ld_nopoll_{sd}")
            self.poll(7, 5, 1)
            self.lab(f"L_ld_nopoll_{sd}")
            e("s_cmp_lt_u32 s32, 7")
            e(f"s_cbranch_scc1 L_ld_loop_{sd}")
            for v in range(35 - Wn + 1, 35):
                if v % 5 == 0:
                    e(f"v_mov_b32 v2, {v}")
                    e(f"s_waitcnt vmcnt({35 - v})")
                    e("ds_write_b32 v8, v2")
            if sd == "l" and len(sides) == 2:
                e("s_branch L_ld_tail")

    def compute(self):
        e, o = self.e, self.o
        ops = [("U0", 0), ("U0", 1), ("U1", 0), ("U1", 1), ("U2", 0), ("U2", 1), ("U2", 2), ("U3", 0), ("U3", 1), ("U3", 2),
               ("X", 0), ("X", 1), ("X", 2),
               ("L0", 0), ("L0", 1), ("L0", 2), ("L1", 0), ("L1", 1), ("L1", 2), ("L2", 1), ("L2", 2), ("L3", 1), ("L3", 2)]
        W = {k: 16 + 4 * i for i, k in enumerate(ops)}
        SET = [108, 124]
        XR = 140
        ACC = lambda s, t: 144 + 12 * s + 4 * t
        PK = 168
        A1, A2, AX = 174, 175, 176
        ST = [177, 178, 179]
        self.lab("L_compute")
        self.nstamp = 1
        if o.ipf:
            e("s_getpc_b64 s[38:39]")
            self.lab("L_pc")
            e("s_sub_u32 s38, s38, L_pc-standalone__grouped__vision_kernel")
            e("s_subb_u32 s39, s39, 0")
            e(f"v_lshlrev_b32 v2, {o.ipf}, v0")
            e("v_lshl_add_u32 v2, s3, 13, v2" if o.ipf == 7 else "v_lshl_add_u32 v2, s3, 12, v2")
            e(f"v_min_u32 v2, {'L_compute' if o.ipfh else 'L_code_end'}-standalone__grouped__vision_kernel-4, v2")
            e("v_mov_b32 v3, s39")
            e("v_add_co_u32 v2, vcc, s38, v2")
            e("s_nop 1")
            e("v_addc_co_u32 v3, vcc, 0, v3, vcc")
            e("global_load_dword v188, v[2:3], off")
        if o.prio_comp:
            e(f"s_setprio {o.prio_comp}")
        e("s_mul_i32 s28, s3, 1152")
        e("v_lshl_add_u32 v108, v0, 4, s28")
        e("s_movk_i32 s29, 3456")
        for i in range(1, 4):
            e(f"v_add_u32 v2, {64 * i}, v0")
            e("v_mul_u32_u24 v2, 911, v2")
            e("v_lshrrev_b32 v2, 16, v2")
            e(f"v_mad_u32_u24 v{108 + i}, v2, s29, v108")
        e("v_cmp_lt_u32 vcc, 23, v0")
        e("v_bfrev_b32 v3, 1")
        e(f"s_mul_i32 s33, s3, {WSZ}")
        e(f"s_add_u32 s33, s33, {WREG}")
        e("v_cndmask_b32 v111, v111, v3, vcc")
        e("s_mul_i32 s34, s26, 27648")
        e("s_movk_i32 s35, 13824")
        e("s_sub_u32 s36, 27648, s34")
        e("s_waitcnt lgkmcnt(0)")
        if o.tlbw:
            e("s_and_b32 s10, s2, 1")
            e("s_lshl_b32 s10, s10, 2")
            e("s_bfe_u32 s11, s2, 0x20003")
            e("s_add_u32 s10, s10, s11")
            e("s_mul_i32 s10, s10, 9216")
            e("s_bfe_u32 s11, s2, 0x20001")
            e("s_lshl_b32 s11, s11, 3")
            e("s_lshr_b32 s24, s2, 5")
            e("s_add_u32 s11, s11, s24")
            e(f"s_mul_i32 s11, s11, {12 * ROWB}")
            e("s_add_u32 s10, s10, s11")
            e("s_mov_b32 s20, s8")
            e("s_mov_b32 s21, s9")
            e(f"s_mov_b32 s22, {XBYTES}")
            e("s_mov_b32 s23, 0x20000")
            e(f"s_mov_b32 s11, {11 * ROWB}")
            e("v_mul_lo_u32 v2, v0, s11")
            e("s_cmp_lg_u32 s3, 0")
            e("s_cbranch_scc1 L_notouch")
            e("s_mov_b64 exec, 3")
            e(f"buffer_load_dword v186, v2, s[20:23], s10 offen {o.tlbf}")
            e("s_mov_b64 exec, -1")
            self.lab("L_notouch")
        e("s_barrier")
        e("s_mov_b32 s16, s6")
        e("s_mov_b32 s17, s7")
        e(f"s_mov_b32 s18, {WBYTES}")
        e("s_mov_b32 s19, 0x20000")
        for p in range(3):
            if o.wsplit and p:
                e(f"s_waitcnt vmcnt({o.wsplit - 1})")
            e(f"s_add_u32 m0, s33, {4096 * p}")
            e("s_nop 0")
            for i in range(4):
                if not o.now:
                    e(f"buffer_load_dwordx4 v{108 + i}, s[16:19], s{34 + p} offen offset:{1024 * i} {o.wflags} lds")
        self.stamp()
        e("v_and_b32 v1, 15, v0")
        e("v_lshrrev_b32 v2, 4, v0")
        e("s_mul_i32 s28, s3, 3")
        e("v_and_b32 v3, 1, v2")
        e("v_lshrrev_b32 v4, 1, v2")
        e("v_cmp_gt_u32 vcc, 2, v2")
        e("s_movk_i32 s29, 192")
        e("s_movk_i32 s30, 1152")

        def baddr(dst, vdx, vcc_, tmp1, tmp2, extra=None):
            e(f"v_add_u32 v{tmp1}, {vdx}, v1")
            e(f"v_add_u32 v{tmp2}, 1, v{tmp1}")
            e(f"v_bfe_u32 v{tmp2}, v{tmp2}, 2, 2")
            e(f"v_mad_u32_u24 v{tmp1}, v{tmp1}, s29, v15" if o.hf else f"v_mad_u32_u24 v{tmp1}, v{tmp1}, s29, 64")
            e(f"v_add_u32 v{dst}, s28, {vcc_}")
            e(f"v_xor_b32 v{dst}, v{dst}, v{tmp2}")
            e(f"v_lshl_add_u32 v{dst}, v{dst}, 4, v{tmp1}")
            if extra:
                e(f"v_add_u32 v{dst}, {extra}, v{dst}")

        if o.hf:
            e("s_mul_i32 s31, s43, 6144")
            e("s_add_u32 s32, s31, 64")
            e("v_mov_b32 v15, s32")
            e("s_sub_u32 s38, 3072, s31")
            e(f"s_sub_u32 s38, s38, {8 * P}")
        e("v_cndmask_b32 v6, 2, v2, vcc")
        e("v_cndmask_b32 v7, v3, 2, vcc")
        baddr(A1, "v3", "v4", 11, 12)
        baddr(A2, "v6", "v7", 11, 12)
        e(f"v_mul_u32_u24 v13, {P}, v2")
        e("v_mov_b32 v14, 2")
        baddr(AX, "2", "v14", 11, 12, "v13")
        if o.hf:
            e("v_lshl_add_u32 v1, s43, 1, v1")
        e("v_add_u32 v12, 1, v1")
        e("v_bfe_u32 v12, v12, 2, 2")
        e("v_mad_u32_u24 v11, v1, s29, v15" if o.hf else "v_mad_u32_u24 v11, v1, s29, 64")
        e("v_lshl_add_u32 v11, v3, 3, v11")
        e(f"v_add_u32 v13, {P}, v11")
        e("v_add_u32 v14, s28, v4")
        e("v_xor_b32 v15, v14, v12")
        e(f"v_lshl_add_u32 v{ST[0]}, v15, 4, v11")
        e("v_add_u32 v14, 1, v14")
        e("v_xor_b32 v15, v14, v12")
        e(f"v_lshl_add_u32 v{ST[2]}, v15, 4, v13")
        e("v_cndmask_b32 v14, 0, 2, vcc")
        e("v_cndmask_b32 v13, v13, v11, vcc")
        e("v_add_u32 v14, s28, v14")
        e("v_xor_b32 v15, v14, v12")
        e(f"v_lshl_add_u32 v{ST[1]}, v15, 4, v13")
        if o.d2:
            e("v_add_u32 v12, 3, v1")
            e("v_bfe_u32 v12, v12, 2, 2")
            e(f"v_add_u32 v11, {384 + (0 if o.compact else 6144)}, v11")
            e(f"v_add_u32 v13, {384 + (0 if o.compact else 6144)}, v13")
            e("v_xor_b32 v15, v14, v12")
            e("v_lshl_add_u32 v181, v15, 4, v13")
            e("v_add_u32 v14, s28, v4")
            e("v_xor_b32 v15, v14, v12")
            e("v_lshl_add_u32 v180, v15, 4, v11")
            e("v_add_u32 v14, 1, v14")
            e("v_xor_b32 v15, v14, v12")
            e(f"v_add_u32 v11, {P}, v11")
            e("v_lshl_add_u32 v182, v15, 4, v11")
        E1, E2, F1, F2, F1z, F2z, F1y, F2y, G0, G1, G2, Z = range(144, 156)
        e("v_bfe_u32 v11, v0, 2, 2")
        e("v_mul_u32_u24 v11, 48, v11")
        e("v_add_u32 v11, s33, v11")
        e("v_and_b32 v12, 3, v0")
        e("v_lshl_add_u32 v11, v12, 3, v11")
        e("v_mul_u32_u24 v13, 384, v4")
        e("v_mad_u32_u24 v13, v3, s30, v13")
        e("v_mul_u32_u24 v14, 384, v7")
        e("v_mad_u32_u24 v14, v6, s30, v14")
        e(f"v_add_u32 v{E1}, v11, v13")
        e(f"v_add_u32 v{E2}, v11, v14")
        e("v_cmp_lt_u32 vcc, 1, v12")
        e("s_add_u32 s30, s33, 3456")
        e(f"v_mov_b32 v{Z}, s30")
        e("v_mov_b32 v13, 32")
        e("v_mov_b32 v14, -4112")
        e("v_cndmask_b32 v13, v13, v14, vcc")
        e("v_cndmask_b32 v15, 0, 1, vcc")
        e(f"v_add_u32 v{F1}, v{E1}, v13")
        e(f"v_add_u32 v{F2}, v{E2}, v13")
        e(f"v_cndmask_b32 v{F1z}, v{F1}, v{Z}, vcc")
        e(f"v_cndmask_b32 v{F2z}, v{F2}, v{Z}, vcc")
        e(f"v_add_u32 v{F1y}, 12288, v{F1}")
        e(f"v_add_u32 v{F2y}, 12288, v{F2}")
        e(f"v_cndmask_b32 v{F1y}, v{Z}, v{F1y}, vcc")
        e(f"v_cndmask_b32 v{F2y}, v{Z}, v{F2y}, vcc")
        e("v_lshl_add_u32 v11, v2, 12, v11")
        e("v_add_u32 v11, 3072, v11")
        e("v_sub_u32 v15, v2, v15")
        e("v_cmp_gt_u32 vcc, 3, v15")
        e(f"v_add_u32 v{G1}, v11, v13")
        e(f"v_add_u32 v{G2}, -4080, v11")
        e(f"v_cndmask_b32 v{G1}, v{Z}, v{G1}, vcc")
        e("v_cmp_gt_u32 vcc, 3, v2")
        e("s_nop 1")
        e(f"v_cndmask_b32 v{G0}, v{Z}, v11, vcc")
        e("v_cmp_lt_u32 vcc, 0, v2")
        e("s_nop 0")
        e("v_mov_b32 v10, 1")
        e(f"v_cndmask_b32 v{G2}, v{Z}, v{G2}, vcc")

        def tr(key, a, off):
            w = W[key]
            e(f"ds_read_b64_tr_b16 v[{w}:{w + 1}], v{a} offset:{off}")
            e(f"ds_read_b64_tr_b16 v[{w + 2}:{w + 3}], v{a} offset:{off + 192}")

        e("s_waitcnt vmcnt(8)")
        self.stamp()
        tr(("U0", 0), E1, 0); tr(("U1", 0), E2, 0); tr(("U0", 1), F1z, 0); tr(("U1", 1), F2z, 0)
        tr(("U2", 2), E1, 16); tr(("U3", 2), E2, 16)
        e("s_waitcnt vmcnt(4)")
        tr(("U2", 0), E1, 4096); tr(("U3", 0), E2, 4096); tr(("U2", 1), F1, 4096); tr(("U3", 1), F2, 4096)
        tr(("L0", 2), E1, 4112); tr(("L1", 2), E2, 4112)
        e("s_waitcnt vmcnt(0)")
        self.stamp()
        tr(("X", 0), G0, 0); tr(("X", 1), G1, 0); tr(("X", 2), G2, 0)
        tr(("L0", 0), E1, 8192); tr(("L1", 0), E2, 8192); tr(("L0", 1), F1, 8192); tr(("L1", 1), F2, 8192)
        tr(("L2", 1), F1y, 0); tr(("L3", 1), F2y, 0); tr(("L2", 2), E1, 8208); tr(("L3", 2), E2, 8208)
        e("ds_write_b32 v8, v10")
        self.diag_mark("kw")
        self.stamp()
        if o.nocomp:
            self.stamp_flush()
            self.lab("L_end")
            e("s_endpgm")
            return
        if o.cstamp == 2:
            e("s_waitcnt lgkmcnt(0)")
            e("s_mov_b32 s94, s46")
        self.lab("L_c_loop")
        slow = []
        c1 = len(self.phases[0][2])
        ntot = 7 * sum(len(p[2]) for p in self.phases)

        def need(T, s):
            if o.order == "A" or T < 2:
                return c1 * (s + 2)
            return 7 * c1 + len(self.phases[1][2]) * (s + 2)

        def pair_reads(st, off):
            b = SET[st]
            return [f"ds_read_b128 v[{b}:{b + 3}], v{A1} offset:{off}",
                    f"ds_read_b128 v[{b + 4}:{b + 7}], v{A2} offset:{off}",
                    f"ds_read_b128 v[{b + 8}:{b + 11}], v{A1} offset:{off + P}",
                    f"ds_read_b128 v[{b + 12}:{b + 15}], v{A2} offset:{off + P}"]

        def epilogue(acc, off, wr):
            r = []
            for t in range(3):
                a = ACC(acc, t)
                r.append(f"v_cvt_pk_bf16_f32 v{PK + 2 * t}, v{a}, v{a + 1}")
                r.append(f"v_cvt_pk_bf16_f32 v{PK + 2 * t + 1}, v{a + 2}, v{a + 3}")
                if wr == 32:
                    r.append(f"ds_write_b32 v{ST[t]}, v{PK + 2 * t} offset:{off}")
                    r.append(f"ds_write_b32 v{ST[t]}, v{PK + 2 * t + 1} offset:{off + 4}")
                else:
                    r.append(f"ds_write_b64 v{ST[t]}, v[{PK + 2 * t}:{PK + 2 * t + 1}] offset:{off}")
            r.append("ds_write_b32 v8, v10")
            return r

        if o.compact:
            return self.loop_compact(ops, W, SET, XR, ACC, PK, A1, A2, AX, ST, c1, ntot, pair_reads, epilogue)
        if o.modes == "q":
            return self.loop_q(ops, W, SET, XR, ACC, PK, A1, A2, AX, ST, c1, ntot)
        seen_upto = 0
        fpending = None
        modes = o.modes.split(",")
        loop = o.loop
        if loop:
            del self.L[-1]
            e("s_mov_b32 s37, 0")
            e("v_and_b32 v11, -9, v9")
            if o.hf:
                e("v_lshl_add_u32 v11, s43, 3, v11")
            e("v_mov_b32 v5, 0")
            if o.order != "A":
                e(f"s_mov_b32 s35, {2 * c1}")
                e(f"s_mov_b32 s34, {2 * c1}")
            self.lab("L_c_loop")
        nb = len(modes) if loop else 3
        seq = o.seq
        for T in range(nb):
            md = modes[T]
            if loop and T:
                self.lab(f"L_c_loop{T}")
            for s in range(6):
                u = 6 * T + s
                if o.prof and o.cstamp == 2:
                    e(f"s_memtime s[{16 + 4 * u}:{17 + 4 * u}]")
                    e(f"s_memrealtime s[{18 + 4 * u}:{19 + 4 * u}]")
                elif o.prof and o.cstamp:
                    self.stamp_now(22, u)
                    self.stamp_now(40, u, real=True)
                U, Lo = s & 1, (s & 1) ^ 1
                acc = s & 1 if md == "n" else 0
                nd = need(0 if loop else T, s)
                if loop and o.order != "A" and s == 0:
                    e("v_cmp_gt_i32 vcc, s35, v5")
                    e(f"s_cbranch_vccnz L_c_slow{u}")
                    self.lab(f"L_c_ready{u}")
                    slow.append((u, "s35"))
                    e("s_mov_b32 s35, s34")
                    e(f"s_mov_b32 s34, {ntot}")
                    seen_upto = 99
                elif loop:
                    e(f"v_cmp_gt_i32 vcc, {nd}, v5")
                    e(f"s_cbranch_vccnz L_c_slow{u}")
                    self.lab(f"L_c_ready{u}")
                    slow.append((u, nd))
                    seen_upto = 99
                elif nd > seen_upto:
                    if fpending is not None:
                        e(f"s_waitcnt lgkmcnt({fpending})")
                        if loop:
                            nd_ = "s36"
                        else:
                            nd_ = nd
                        e(f"v_cmp_gt_i32 vcc, {nd_}, v5")
                        e(f"s_cbranch_vccnz L_c_slow{u}")
                        self.lab(f"L_c_ready{u}")
                        slow.append((u, nd_))
                    else:
                        self.poll(9, 5, nd, sleep=o.csleep)
                    seen_upto = nd
                fpending = None
                if s == 0 and o.diag in ("k0", "k1", "k2"):
                    e(f"s_cmp_lg_u32 s37, {o.diag[1]}")
                    e("s_cbranch_scc1 L_nomark")
                    e("s_memrealtime s[90:91]")
                    self.lab("L_nomark")
                if s == 0 and o.prof and not o.cstamp:
                    self.stamp_now(24, "s37" if loop else T, real=(o.prof == 2))
                ro = (s & 1) * 2 * P
                rd = (pair_reads(0, 0) if s == 0 else []) + pair_reads(Lo, ro + 2 * P)
                rd.append(f"ds_read_b128 v[{XR}:{XR + 3}], v{AX} offset:{ro}")
                post = []
                if s & 1:
                    adv = 4 * P if s < 5 else "s38" if o.hf else (-3072 if o.d2 else 3072) - 8 * P
                    post = [f"v_add_u32 v{r}, {adv}, v{r}" for r in (A1, A2, AX)] if (u < 17 or loop) else []
                inter = []
                if md in ("r", "n") and s > 0:
                    inter = [[x] for x in rd]
                else:
                    for x in rd:
                        e(x)
                    if s == 0:
                        e("s_waitcnt lgkmcnt(5)")
                nxt_need = need(T, s + 1) if s < 5 else (need(T + 1, 0) if T < 2 else 0)
                want_f = md != "p" and nxt_need > seen_upto
                if loop:
                    if o.d2 and not o.defer:
                        if s == 5:
                            post = post + ["s_add_u32 s37, s37, 1", "s_cmp_eq_u32 s37, 2"]
                    elif o.defer:
                        if s == o.defer - 1:
                            post = post + ["s_cmp_eq_u32 s37, 3"]
                        if s == 5 - o.defer:
                            post = post + ["s_cmp_eq_u32 s37, 0"]
                        if s == 5:
                            post = post + ["s_add_u32 s37, s37, 1", "s_cmp_eq_u32 s37, 2"]
                    elif s == 5:
                        post = post + ["s_add_u32 s37, s37, 1", "v_mov_b32 v11, v9", "s_cmp_eq_u32 s37, 1", "s_cselect_b32 s36, 0, -1",
                                       "v_and_b32 v5, s36, v5", "s_cmp_lt_u32 s37, 3"]
                        if nb == 2:
                            post[-1] = f"s_bitcmp1_b32 {sum(1 << k for k in range(3) if o.seq[k] == '0')}, s37"
                    if o.order != "A" and s == 0:
                        pre0 = True
                defer = []
                if md == "n" and s > 0:
                    defer = ["v_add_u32 v10, 1, v10"] + epilogue(acc ^ 1, ((s - 1) & 1) * 2 * P, o.wrn)
                    if not s & 1:
                        defer += [f"v_add_u32 v{r}, {4 * P}, v{r}" for r in ST]
                seen = set()
                seq = [(k, SET[U] + 4 * int(k[0][1])) for k in ops[:10]] + [(k, SET[Lo] + 4 * int(k[0][1])) for k in ops[13:]] + [(k, XR) for k in ops[10:13]]
                behind = 0
                for g, (k, b) in enumerate(seq):
                    if g == 10:
                        e(f"s_waitcnt lgkmcnt({behind})")
                    t = k[1]
                    a = ACC(acc, t)
                    cin = f"v[{a}:{a + 3}]" if t in seen else "0"
                    seen.add(t)
                    e(f"v_mfma_f32_16x16x32_bf16 v[{a}:{a + 3}], v[{W[k]}:{W[k] + 3}], v[{b}:{b + 3}], {cin}")
                    cap = 2
                    if inter:
                        e(inter.pop(0)[0])
                        cap -= 1
                    elif post and not defer:
                        while post and cap:
                            e(post.pop(0))
                            cap -= 1
                    while defer and cap and g >= 2 and g != 9:
                        isw = defer[0].startswith("ds_write")
                        if isw and cap < 2:
                            break
                        x = defer.pop(0)
                        e(x)
                        cap -= 2 if isw else 1
                        if isw and g < 10:
                            behind += 1
                assert not defer and not inter, (u, defer)
                fill = list(post)
                if md != "n" or s == 5:
                    fill.append("v_add_u32 v10, 1, v10")
                    if want_f:
                        fill.append("ds_read_b32 v5, v9")
                    for x in fill:
                        e(x)
                    if len(fill) < 6:
                        e(f"s_nop {5 - len(fill)}")
                    ep = epilogue(acc, (s & 1) * 2 * P, o.wr)
                    for x in ep:
                        e(x)
                    if want_f:
                        fpending = sum(1 for x in ep if x.startswith("ds_"))
                    if s & 1 and (u < 17 or loop):
                        adv = 4 * P if s < 5 else "s38" if o.hf else (-3072 if o.d2 else 3072) - 8 * P
                        for r in ST:
                            e(f"v_add_u32 v{r}, {adv}, v{r}")
                    if o.defer and s in (o.defer - 1, 5 - o.defer):
                        e("s_cbranch_scc1 L_c_stub")
                    if loop and nb == 2 and s == 5:
                        e("s_cbranch_scc1 L_c_loop")
                        e("s_cmp_lt_u32 s37, 3")
                        if T == 0:
                            e("s_cbranch_scc0 L_c_done")
                        else:
                            e("s_cbranch_scc1 L_c_loop1")
                            self.lab("L_c_done")
                else:
                    for x in fill:
                        e(x)
                    if want_f:
                        e("ds_read_b32 v5, v9")
                        fpending = 0
                    if o.defer and s in (o.defer - 1, 5 - o.defer):
                        e("s_cbranch_scc1 L_c_stub")
        if loop and nb == 1:
            e("s_cbranch_scc1 L_c_loop")
        if o.d2 and not o.defer:
            e("s_cmp_eq_u32 s37, 3")
            e("s_cbranch_scc1 L_c_fin")
            e("v_mov_b32 v11, v9")
            e("v_mov_b32 v5, 0")
            for r in (A1, A2, AX):
                e(f"v_add_u32 v{r}, 9216, v{r}")
            for t in range(3):
                e(f"v_mov_b32 v{ST[t]}, v{180 + t}")
            e("s_branch L_c_loop")
            self.lab("L_c_fin")
        if o.defer:
            D = o.defer
            for r in (A1, A2, AX):
                e(f"v_add_u32 v{r}, {(12 - 2 * D) * P}, v{r}")
            for t in range(3):
                back = 2 * D * P if md == "n" else (2 * P if D == 1 else 0)
                e(f"v_add_u32 v{ST[t]}, {back}, v{180 + t}")
            e("s_branch L_c_loop")
            self.lab("L_c_stub")
            if md == "n":
                e("v_add_u32 v10, 1, v10")
            e("s_cmp_eq_u32 s37, 0")
            e("s_mov_b32 s37, 1")
            e("v_mov_b32 v11, v9")
            e("v_mov_b32 v5, 0")
            if md == "n":
                for x in epilogue((D - 1) & 1, ((D - 1) & 1) * 2 * P, o.wr):
                    e(x)
            for r in (A1, A2, AX):
                e(f"v_add_u32 v{r}, {6144 - 8 * P}, v{r}")
            for t in range(3):
                e(f"v_swap_b32 v{ST[t]}, v{180 + t}")
            e("s_cbranch_scc1 L_c_loop")
        if o.cstamp == 2:
            e("s_memtime s[88:89]")
            e("s_waitcnt lgkmcnt(0)")
            for u in range(18):
                e(f"v_writelane_b32 v{PV}, s{16 + 4 * u}, {22 + u}")
                e(f"v_writelane_b32 v{PV}, s{18 + 4 * u}, {40 + u}")
            e("s_mov_b32 s46, s94")
            e("s_mov_b32 s48, s88")
            self.nstamp = 2
        else:
            self.stamp()
        self.stamp_flush()
        if o.diag.startswith("k"):
            self.diag_mark("kend")
            self.diag_end(True)
        self.lab("L_end")
        e("s_endpgm")
        for u, nd in slow:
            self.lab(f"L_c_slow{u}")
            self.poll(11 if loop else 9, 5, nd, sleep=o.csleep)
            e(f"s_branch L_c_ready{u}")

        self.lab("L_code_end")

    def loop_compact(self, ops, W, SET, XR, ACC, PK, A1, A2, AX, ST, c1, ntot, pair_reads, epilogue):
        e, o = self.e, self.o
        D = o.defer
        assert D in (0, 2, 4) and (not o.hf or D == 0)
        del self.L[-1]
        AB = [183, 184, 185]
        if not o.hf:
            for r, b in zip((A1, A2, AX), AB):
                e(f"v_mov_b32 v{b}, v{r}")
        e("v_and_b32 v11, -9, v9")
        if o.hf:
            e("v_lshl_add_u32 v11, s43, 3, v11")
            e(f"s_sub_u32 s39, s38, {4 * P}")
        e("v_mov_b32 v5, 0")
        e("s_mov_b32 s37, 0")
        e(f"s_mov_b32 s36, {2 * c1}")
        e(f"s_mov_b32 s35, {c1}")
        e(f"s_mov_b32 s34, {(4 - D) // 2}")

        def unit(kind):
            U = 1 if kind == "O" else 0
            Lo, acc = U ^ 1, U
            self.lab({"F": "L_c_loop", "O": "L_c_odd", "E": "L_c_even"}[kind])
            if kind == "F" and o.prof:
                self.stamp_now(24, "s37", real=(o.prof == 2))
            e("v_cmp_gt_i32 vcc, s36, v5")
            e(f"s_cbranch_vccnz L_c_slow{kind}")
            self.lab(f"L_c_ready{kind}")
            ro = 2 * P if kind == "O" else 0
            rd = (pair_reads(0, 0) if kind == "F" else []) + pair_reads(Lo, ro + 2 * P)
            rd.append(f"ds_read_b128 v[{XR}:{XR + 3}], v{AX} offset:{ro}")
            post = ["s_add_u32 s36, s36, s35"]
            inter, defer = [], []
            if kind == "F":
                for x in rd:
                    e(x)
                e("s_waitcnt lgkmcnt(5)")
            else:
                inter = rd
                defer = ["v_add_u32 v10, 1, v10"] + epilogue(acc ^ 1, 0 if kind == "O" else 2 * P, o.wrn)
            if kind == "O":
                post += [f"v_add_u32 v{r}, {4 * P}, v{r}" for r in (A1, A2, AX)] + ["s_sub_u32 s34, s34, 1"]
            if kind == "E":
                defer += [f"v_add_u32 v{r}, {4 * P}, v{r}" for r in ST]
            seen = set()
            sq = [(k, SET[U] + 4 * int(k[0][1])) for k in ops[:10]] + [(k, SET[Lo] + 4 * int(k[0][1])) for k in ops[13:]] + [(k, XR) for k in ops[10:13]]
            behind = 0
            for g, (k, b) in enumerate(sq):
                if g == 10:
                    e(f"s_waitcnt lgkmcnt({behind})")
                t = k[1]
                a = ACC(acc, t)
                cin = f"v[{a}:{a + 3}]" if t in seen else "0"
                seen.add(t)
                e(f"v_mfma_f32_16x16x32_bf16 v[{a}:{a + 3}], v[{W[k]}:{W[k] + 3}], v[{b}:{b + 3}], {cin}")
                cap = 2
                if inter:
                    e(inter.pop(0))
                    cap -= 1
                elif post and not defer:
                    while post and cap:
                        e(post.pop(0))
                        cap -= 1
                while defer and cap and g >= 2 and g != 9:
                    isw = defer[0].startswith("ds_write")
                    if isw and cap < 2:
                        break
                    x = defer.pop(0)
                    e(x)
                    cap -= 2 if isw else 1
                    if isw and g < 10:
                        behind += 1
            assert not defer and not inter and not post, (kind, defer, post)

        unit("F")
        unit("O")
        e("s_cbranch_scc0 L_c_even")
        e("v_add_u32 v10, 1, v10")
        e("s_add_u32 s37, s37, 1")
        if o.hf:
            e(f"v_add_u32 v{A1}, s39, v{A1}")
            e(f"v_add_u32 v{A2}, s39, v{A2}")
        else:
            e("s_mul_i32 s33, s37, -3072")
            e("s_add_u32 s33, s33, 9216")
        e("s_cmp_eq_u32 s37, 1")
        e(f"s_cselect_b32 s36, {2 * c1}, {ntot}")
        ep = epilogue(1, 2 * P, o.wr)
        tail = [f"s_cselect_b32 s35, {c1}, 0", "s_cselect_b32 s32, 0, -1", "v_mov_b32 v11, v9", "v_and_b32 v5, s32, v5",
                "s_cmp_eq_u32 s37, 3", f"s_cselect_b32 s33, {(12 - 2 * D) * P}, s33", f"s_cselect_b32 s34, {max(D - 2, 0) // 2}, 2"]
        if o.hf:
            tail = tail[:4] + ["s_mov_b32 s34, 2", f"v_add_u32 v{AX}, s39, v{AX}"]
        for x in ep:
            e(x)
            if tail and x.startswith("v_cvt"):
                e(tail.pop(0))
        for x in tail:
            e(x)
        if o.hf:
            for r in ST:
                e(f"v_add_u32 v{r}, s38, v{r}")
        else:
            for r, b in zip((A1, A2, AX), AB):
                e(f"v_add_u32 v{r}, s33, v{b}")
            for t in range(3):
                e(f"v_add_u32 v{ST[t]}, s33, v{180 + t}")
        e(f"s_cmp_lt_u32 s37, {4 if D else 3}")
        e("s_cbranch_scc1 L_c_loop")
        self.stamp()
        self.stamp_flush()
        if o.diag.startswith("k"):
            self.diag_mark("kend")
            self.diag_end(True)
        self.lab("L_end")
        e("s_endpgm")
        unit("E")
        e("s_branch L_c_odd")
        for kind in "FOE":
            self.lab(f"L_c_slow{kind}")
            self.poll(11, 5, "s36", sleep=o.csleep)
            e(f"s_branch L_c_ready{kind}")
        self.lab("L_code_end")

    def loop_q(self, ops, W, SET, XR, ACC, PK, A1, A2, AX, ST, c1, ntot):
        e, o = self.e, self.o
        assert o.hf or o.order == "A"
        del self.L[-1]
        q = []

        def rd(tag, reg, a, off):
            return ("ds", tag, f"ds_read_b128 v[{reg}:{reg + 3}], v{a} offset:{off}")

        def pair(k, st, off):
            b = SET[st]
            return [rd(("P", k, 0), b, A1, off), rd(("P", k, 1), b + 4, A2, off),
                    rd(("P", k, 2), b + 8, A1, off + P), rd(("P", k, 3), b + 12, A2, off + P)]

        def emit(it):
            e(it[2])
            if it[0] in ("ds", "dw"):
                q.append(it[1])

        def wait_for(tags):
            ix = [q.index(t) for t in tags if t in q]
            if not ix:
                return 0
            e(f"s_waitcnt lgkmcnt({len(q) - 1 - max(ix)})")
            del q[: max(ix) + 1]
            return 1

        def epilogue(acc, off, wr):
            r = []
            for t in range(3):
                a = ACC(acc, t)
                r.append(("v", None, f"v_cvt_pk_bf16_f32 v{PK + 2 * t}, v{a}, v{a + 1}"))
                r.append(("v", None, f"v_cvt_pk_bf16_f32 v{PK + 2 * t + 1}, v{a + 2}, v{a + 3}"))
                if wr == 32:
                    r.append(("dw", ("W",), f"ds_write_b32 v{ST[t]}, v{PK + 2 * t} offset:{off}"))
                    r.append(("dw", ("W",), f"ds_write_b32 v{ST[t]}, v{PK + 2 * t + 1} offset:{off + 4}"))
                else:
                    r.append(("dw", ("W",), f"ds_write_b64 v{ST[t]}, v[{PK + 2 * t}:{PK + 2 * t + 1}] offset:{off}"))
            r.append(("dw", ("W",), "ds_write_b32 v8, v10"))
            return r

        e("s_mov_b32 s37, 0")
        e("v_and_b32 v11, -9, v9")
        if o.hf:
            e("v_lshl_add_u32 v11, s43, 3, v11")
            e(f"s_sub_u32 s39, s38, {4 * P}")
        else:
            e(f"s_mov_b32 s39, {3072 - 12 * P}")
        e("s_mov_b32 s33, 0")
        e(f"s_add_u32 s32, s39, {12 * P}")
        for t in range(3):
            e(f"v_mov_b32 v{180 + t}, v{ST[t]}")
            e(f"v_mov_b32 v{ST[t]}, {FLAGS + 64 - 2 * P}")
        e(f"s_mov_b32 s35, {2 * c1}")
        e(f"s_mov_b32 s34, {ntot if o.order != 'A' else 2 * c1}")
        self.poll(11, 5, 2 * c1, sleep=o.csleep)
        for it in pair(0, 0, 0) + [rd(("X", 0), XR, AX, 0)]:
            emit(it)
        for r in (A1, A2, AX):
            e(f"v_add_u32 v{r}, {2 * P}, v{r}")
        wait_for([("P", 0, 3)])
        self.lab("L_c_loop")
        slow = []
        for s in range(6):
            if s == 0 and o.prof:
                self.stamp_now(24, "s37", real=(o.prof == 2))
                q.clear()
            U, Lo = s & 1, (s & 1) ^ 1
            acc = s & 1
            up = [(k, SET[U] + 4 * int(k[0][1])) for k in ops[:10]]
            xs = [(k, XR) for k in ops[10:13]]
            lo = [(k, SET[Lo] + 4 * int(k[0][1])) for k in ops[13:]]
            sq = up + xs + lo if s < 5 else lo + xs + up
            pin = {g: [] for g in range(23)}
            if s < 5:
                pr, xr = pair(s + 2, U, 2 * P), rd(("X", s + 1), XR, AX, 0)
            else:
                pr, xr = pair(0, Lo, 0), rd(("X", 0), XR, AX, 0)
                pin[0] += [("v", None, f"v_add_u32 v{AX}, s39, v{AX}"), ("v", None, f"v_add_u32 v{A1}, s39, v{A1}")]
                pin[1] += [("v", None, f"v_add_u32 v{A2}, s39, v{A2}"), ("s", None, "s_add_u32 s37, s37, 1")]
                pin[2] += [("s", None, "s_cmp_eq_u32 s37, 1"), ("s", None, "s_cselect_b32 s36, 0, -1")]
                pin[3] += [("v", None, "v_and_b32 v5, s36, v5"), ("v", None, "v_mov_b32 v11, v9")]
                pin[17] += [("s", None, "s_mov_b32 s35, s34"), ("s", None, "s_cmp_lt_u32 s37, 3")]
            if s == 1:
                pin[0] += [("s", None, "s_add_u32 s33, s33, s32")]
            if s == 3:
                pin[21] += [("s", None, "s_cmp_lt_u32 s37, 2"), ("s", None, f"s_cselect_b32 s39, s39, {-12 * P}")]
            for i_, it in enumerate(pr):
                pin[10 + i_].append(it)
            pin[14].append(xr)
            pin[15] += [("v", None, f"v_add_u32 v{A1}, {2 * P}, v{A1}"), ("v", None, f"v_add_u32 v{A2}, {2 * P}, v{A2}")]
            pin[16] += [("v", None, f"v_add_u32 v{AX}, {2 * P}, v{AX}")]
            if s == 0:
                for i_, it in enumerate(pair(1, 1, 0)):
                    pin[1 + i_].append(it)
            flow = epilogue(acc ^ 1, ((s - 1) & 1) * 2 * P, o.wrn) + [("v", None, "v_add_u32 v10, 1, v10")]
            if s == 0:
                flow += [("v", None, f"v_add_u32 v{ST[t]}, s33, v{180 + t}") for t in range(3)]
            elif not s & 1:
                flow += [("v", None, f"v_add_u32 v{r}, {4 * P}, v{r}") for r in ST]
            seen = set()
            for g, (k, b) in enumerate(sq):
                t = k[1]
                a = ACC(acc, t)
                cin = f"v[{a}:{a + 3}]" if t in seen else "0"
                seen.add(t)
                e(f"v_mfma_f32_16x16x32_bf16 v[{a}:{a + 3}], v[{W[k]}:{W[k] + 3}], v[{b}:{b + 3}], {cin}")
                cap = 2
                if g == 8:
                    cap -= wait_for([("X", s)] + ([("P", s + 1, 3)] if 0 < s < 5 else []))
                    nd = c1 * (s + 3) if s < 5 else "s35"
                    e(f"v_cmp_gt_i32 vcc, {nd}, v5")
                    cap = 0
                if g == 9:
                    e(f"s_cbranch_vccnz L_c_slow{s}")
                    self.lab(f"L_c_ready{s}")
                    slow.append((s, nd))
                    cap -= 1
                if s == 0 and g == 12:
                    cap -= wait_for([("P", 1, 3)])
                if s in (4, 5) and g == 22:
                    cap -= wait_for([("P", 6, 3)] if s == 4 else [("P", 0, 3)])
                for it in pin[g]:
                    emit(it)
                    cap -= 1
                while flow and g >= 2 and cap > 0:
                    pick = None
                    ndw = sum(1 for f in flow if f[0] == "dw")
                    for ix, f in enumerate(flow):
                        if f[0] == "dw":
                            cv = [re.match(r"v_cvt\S+ v(\d+)", h[2]).group(1) for h in flow[:ix] if "v_cvt" in h[2]]
                            if cap >= 2 and not any(c in self.srcs(f[2]) for c in cv) and not ("v8" in f[2] and cv):
                                pick = ix
                            break
                    if pick is None:
                        for ix, f in enumerate(flow):
                            if f[0] != "dw" and ("v_cvt" in f[2] or ndw == 0):
                                pick = ix
                                break
                    if pick is None:
                        break
                    it = flow.pop(pick)
                    emit(it)
                    cap -= 2 if it[0] == "dw" else 1
            assert not flow, (s, flow)
        e("s_cbranch_scc1 L_c_loop")
        e("s_nop 5")
        for it in epilogue(1, 2 * P, o.wr):
            e(it[2])
        self.stamp()
        self.stamp_flush()
        self.lab("L_end")
        e("s_endpgm")
        for u, nd in slow:
            self.lab(f"L_c_slow{u}")
            self.poll(11, 5, nd, sleep=o.csleep)
            e(f"s_branch L_c_ready{u}")
        self.lab("L_code_end")

    @staticmethod
    def srcs(txt):
        m = re.search(r", v\[(\d+):(\d+)\]", txt)
        if m:
            return [str(r) for r in range(int(m.group(1)), int(m.group(2)) + 1)]
        return [re.search(r", v(\d+)", txt).group(1)]

    def check_mfma_hazards(self):
        L = [l.strip() for l in self.L]
        if "L_c_loop:" not in L:
            return
        i = L.index("L_c_loop:")
        k = L.index("L_end:")
        if "L_c_even:" in L:
            io, ie = L.index("L_c_odd:"), L.index("L_c_even:")
            bo = L.index("s_cbranch_scc0 L_c_even")
            be = L.index("s_branch L_c_odd")
            L = L[:i] + L[i:bo + 1] + L[ie:be + 1] + L[io:]
            k = L.index("L_end:")
        jj = [n for n, l in enumerate(L) if l == "s_cbranch_scc1 L_c_loop"]
        for seqn in [L[i:k]] + ([L[i:jj[-1] + 1] * 2] if jj else []):
            pend = {}
            pos = 0
            for l in seqn:
                if l.endswith(":"):
                    continue
                regs = set()
                for m in re.finditer(r"v\[(\d+):(\d+)\]|v(\d+)", l.split(None, 1)[1] if " " in l else ""):
                    if m.group(3):
                        regs.add(int(m.group(3)))
                    else:
                        regs.update(range(int(m.group(1)), int(m.group(2)) + 1))
                if l.startswith("v_mfma"):
                    m = re.match(r"v_mfma\S+ v\[(\d+):(\d+)\]", l)
                    for r in range(int(m.group(1)), int(m.group(2)) + 1):
                        pend[r] = pos
                else:
                    for r in regs:
                        if r in pend:
                            assert pos - pend[r] - 1 >= 8, (l, pos - pend[r] - 1)
                m = re.match(r"s_nop (\d+)", l)
                pos += int(m.group(1)) + 1 if m else 1

    def build(self):
        self.prologue()
        self.helper()
        self.compute()
        self.check_mfma_hazards()
        if self.o.drop:
            i = self.L.index("L_c_loop:")
            j = self.L.index("L_end:")
            pats = self.o.drop.split(",")
            self.L = self.L[:i] + [l for l in self.L[i:j] if not any(l.strip().startswith(p) for p in pats)] + self.L[j:]
        return HEADER + "\n".join(self.L) + "\n" + FOOTER.format(vgpr=192, acc=192)


def main():
    p = argparse.ArgumentParser()
    p.add_argument("-o", default="-")
    p.add_argument("--prof", type=int, default=0)
    p.add_argument("--hflip", type=int, default=1)
    p.add_argument("--win", type=int, default=11)
    p.add_argument("--barpair", type=int, default=2)
    p.add_argument("--ldflags", default="nt")
    p.add_argument("--wflags", default="")
    p.add_argument("--stflags", default="sc0 sc1 nt")
    p.add_argument("--prio_loader", type=int, default=0)
    p.add_argument("--prio_comp", type=int, default=0)
    p.add_argument("--nocomp", type=int, default=0)
    p.add_argument("--noload", type=int, default=0)
    p.add_argument("--cstamp", type=int, default=0)
    p.add_argument("--drop", default="")
    p.add_argument("--wr", type=int, default=64)
    p.add_argument("--estart", type=int, default=2)
    p.add_argument("--diag", default="")
    p.add_argument("--now", type=int, default=0)
    p.add_argument("--stwait", type=int, default=0)
    p.add_argument("--stwin", type=int, default=0)
    p.add_argument("--pad", type=int, default=0)
    p.add_argument("--padk", type=int, default=1)
    p.add_argument("--padmask", type=int, default=7)
    p.add_argument("--fpre", type=int, default=0)
    p.add_argument("--csleep", type=int, default=1)
    p.add_argument("--eflag", type=int, default=0)
    p.add_argument("--rdint", type=int, default=0)
    p.add_argument("--sched", default="plain")
    p.add_argument("--stag", type=int, default=0)
    p.add_argument("--stagw", type=int, default=2)
    p.add_argument("--gate", type=int, default=0)
    p.add_argument("--gsleep", type=int, default=4)
    p.add_argument("--padper", default="")
    p.add_argument("--nostore", type=int, default=0)
    p.add_argument("--jmask", type=int, default=0)
    p.add_argument("--cls", default="1,2,3,4")
    p.add_argument("--order", default="C")
    p.add_argument("--modes", default="n")
    p.add_argument("--loop", type=int, default=1)
    p.add_argument("--winl", type=int, default=9)
    p.add_argument("--winr", type=int, default=11)
    p.add_argument("--prio_left", type=int, default=0)
    p.add_argument("--tlbw", type=int, default=0)
    p.add_argument("--tlbf", default="nt")
    p.add_argument("--defer", type=int, default=0)
    p.add_argument("--wrn", type=int, default=64)
    p.add_argument("--hf", type=int, default=1)
    p.add_argument("--seq", default="010")
    p.add_argument("--ipf", type=int, default=0)
    p.add_argument("--ipfh", type=int, default=0)
    p.add_argument("--early", type=int, default=0)
    p.add_argument("--wsplit", type=int, default=0)
    p.add_argument("--compact", type=int, default=0)
    p.add_argument("--warm", type=int, default=0)
    p.add_argument("--fevery", type=int, default=0)
    p.add_argument("--two", type=int, default=0)
    p.add_argument("--rdint2", type=int, default=1)
    p.add_argument("--sleep", type=int, default=2)
    o = p.parse_args()
    if o.order in "MN":
        o.hf = 0
    o.d2 = o.defer or o.order in "MN" or (o.compact and not o.hf)
    s = Gen(o).build()
    if o.o == "-":
        sys.stdout.write(s)
    else:
        open(o.o, "w").write(s)


if __name__ == "__main__":
    main()
```

```python
import argparse
import re
import sys

ROWB = 73728
XBYTES = 28311552
WBYTES = 41472
P = 9728
LDS_TOTAL = 163840
FLAGS = LDS_TOTAL - 256
WSZ = 12288
WREG = FLAGS - 4 * WSZ

HEADER = """; Kernarg layout for this problem (40 bytes, ptrs only, base s[0:1]):
; @launch grid=(256,1,1) block=(512,1,1) lds=163840
.amdgcn_target "amdgcn-amd-amdhsa--gfx950"
.text
.globl standalone__grouped__vision_kernel
.p2align 8
.type standalone__grouped__vision_kernel,@function
standalone__grouped__vision_kernel:
"""

FOOTER = """.section .rodata,"a"
.p2align 6
.amdhsa_kernel standalone__grouped__vision_kernel
  .amdhsa_next_free_vgpr {vgpr}
  .amdhsa_next_free_sgpr 102
  .amdhsa_accum_offset {acc}
  .amdhsa_group_segment_fixed_size 0
  .amdhsa_kernarg_size 40
  .amdhsa_user_sgpr_count 2
  .amdhsa_user_sgpr_kernarg_segment_ptr 1
  .amdhsa_system_sgpr_workgroup_id_x 1
.end_amdhsa_kernel
"""

PV = 189


class Gen:
    def __init__(self, o):
        self.o = o
        self.L = []
        self.nstamp = 0
        self.nlab = 0

    def e(self, s):
        self.L.append("    " + s)

    def lab(self, s):
        self.L.append(s + ":")

    def newlab(self, p):
        self.nlab += 1
        return f"L_{p}{self.nlab}"

    def stamp(self):
        if not self.o.prof:
            return
        k = self.nstamp
        self.nstamp += 1
        assert k < 22
        self.e(f"s_mem{'real' if self.o.prof == 2 else ''}time s[{46 + 2 * k}:{47 + 2 * k}]")

    def stamp_now(self, base, ctr, real=False):
        if not self.o.prof:
            return
        self.e("s_memrealtime s[96:97]" if real else "s_memtime s[96:97]")
        self.e("s_waitcnt lgkmcnt(0)")
        self.e("s_mov_b32 s95, m0")
        if isinstance(ctr, str):
            self.e(f"s_cselect_b32 s94, 1, 0")
            self.e(f"s_add_u32 m0, {ctr}, {base}")
            self.e(f"s_cmp_lg_u32 s94, 0")
        else:
            self.e(f"s_mov_b32 m0, {base + ctr}")
        self.e(f"v_writelane_b32 v{PV}, s96, m0")
        self.e("s_mov_b32 m0, s95")

    def stamp_flush(self):
        if not self.o.prof:
            return
        e = self.e
        e("s_mov_b64 exec, -1")
        e("s_waitcnt lgkmcnt(0)")
        e("s_load_dwordx2 s[40:41], s[0:1], 32")
        e("s_lshl_b32 s42, s2, 3")
        e("s_add_u32 s42, s42, s3")
        e("s_lshl_b32 s42, s42, 8")
        e("v_lshl_add_u32 v1, v0, 2, s42")
        for k in range(self.nstamp):
            e(f"v_writelane_b32 v{PV}, s{46 + 2 * k}, {k}")
        e(f"s_mov_b32 s42, {self.nstamp}")
        e(f"v_writelane_b32 v{PV}, s42, 63")
        e("s_getreg_b32 s42, hwreg(HW_REG_XCC_ID)")
        e(f"v_writelane_b32 v{PV}, s42, 62")
        e(f"v_writelane_b32 v{PV}, s92, 60")
        if self.o.prof == 2:
            e(f"v_writelane_b32 v{PV}, s86, 57")
            e(f"v_writelane_b32 v{PV}, s84, 56")
            e(f"v_writelane_b32 v{PV}, s82, 55")
        e("s_memrealtime s[92:93]")
        e("s_waitcnt lgkmcnt(0)")
        e(f"v_writelane_b32 v{PV}, s92, 59")
        e(f"global_store_dword v1, v{PV}, s[40:41]")

    def diag_mark(self, name):
        d = self.o.diag
        if d == name:
            self.e("s_memrealtime s[90:91]")
        if d == "c" + name:
            self.e("s_memtime s[90:91]")

    def diag_end(self, comp=False):
        o, e = self.o, self.e
        if not o.diag or o.diag.startswith("k") != comp:
            return
        e("s_waitcnt vmcnt(0) lgkmcnt(0)")
        self.diag_mark("end")
        e("s_waitcnt lgkmcnt(0)")
        if o.diag == "rt":
            e("s_mov_b32 s42, 0")
        elif o.diag.startswith("c"):
            e("s_sub_u32 s42, s90, s88")
            e("s_lshr_b32 s42, s42, 2")
        else:
            e("s_sub_u32 s42, s90, s92")
            e("s_mul_i32 s42, s42, 4")
        e("s_add_u32 s42, s42, 4000")
        self.lab("L_dg")
        e("s_memrealtime s[40:41]")
        e("s_waitcnt lgkmcnt(0)")
        e("s_sub_u32 s40, s40, s92")
        e("s_cmp_lt_u32 s40, s42")
        e("s_cbranch_scc1 L_dg")

    def poll(self, vaddr, vtmp, sneed, sleep=1):
        e = self.e
        l = self.newlab("poll")
        d = self.newlab("pdone")
        self.lab(l)
        e(f"ds_read_b32 v{vtmp}, v{vaddr}")
        e("s_waitcnt lgkmcnt(0)")
        e(f"v_cmp_gt_i32 vcc, {sneed}, v{vtmp}")
        e(f"s_cbranch_vccz {d}")
        if sleep:
            e(f"s_sleep {sleep}")
        e(f"s_branch {l}")
        self.lab(d)

    def prologue(self):
        e = self.e
        e("s_cmp_ge_u32 s2, 256")
        e("s_cbranch_scc1 L_end")
        e("s_load_dwordx4 s[4:7], s[0:1], 0")
        e("s_load_dwordx2 s[8:9], s[0:1], 16")
        if self.o.prof or self.o.diag:
            e("s_memrealtime s[92:93]")
        if self.o.diag:
            e("s_memtime s[88:89]")
        self.stamp()
        if self.o.prof:
            e(f"v_mov_b32 v{PV}, 0")
        e("v_lshrrev_b32 v1, 6, v0")
        e("v_and_b32 v0, 63, v0")
        e(f"v_mov_b32 v3, {FLAGS}")
        e("v_readfirstlane_b32 s3, v1")
        e("v_xor_b32 v2, 4, v1")
        e("v_lshl_add_u32 v8, v2, 2, v3")
        e("v_mov_b32 v2, 0")
        e("ds_write_b32 v8, v2")
        e("v_and_b32 v2, 3, v0")
        e("v_lshl_add_u32 v9, v2, 2, v3")
        e("s_bfe_u32 s26, s2, 0x10005")
        e("s_bfe_u32 s43, s2, 0x10003" if self.o.hf else "s_mov_b32 s43, 0")
        e("s_cmp_lt_u32 s3, 4")
        e("s_cbranch_scc1 L_compute")

    def helper(self):
        e, o = self.e, self.o
        self.lab("L_helper")
        if o.prio_loader:
            e(f"s_setprio {o.prio_loader}")
        Wn = o.win
        phases = {"A": [(0, 304, [64, 64, 64, 64, 48])],
                  "B": [(0, 224, [56] * 4), (448, 80, [40] * 2)],
                  "C": [(0, 256, [64] * 4), (512, 48, [48])],
                  "M": [(0, 352, [64] * 4), (256, 48, [48])],
                  "N": [(0, 384, [56] * 4), (224, 80, [40] * 2)]}[o.order]
        self.phases = phases
        ntot = 7 * sum(len(p[2]) for p in phases)
        e("s_and_b32 s10, s2, 1")
        e("s_lshl_b32 s10, s10, 2")
        e("s_bfe_u32 s11, s2, 0x20003")
        e("s_add_u32 s10, s10, s11")
        e("s_bfe_u32 s11, s2, 0x20001")
        e("s_lshl_b32 s11, s11, 3")
        e("s_lshr_b32 s24, s2, 5")
        e("s_add_u32 s11, s11, s24")
        e("s_mul_i32 s25, s11, 12")
        e("s_mul_i32 s24, s10, 9216")
        e("s_and_b32 s30, s3, 1")
        e("s_bfe_u32 s45, s3, 0x10001")
        e("v_lshrrev_b32 v1, 2, v0")
        e("v_bfrev_b32 v3, 1")

        def patterns(ph, first, last):
            st, half, lanes = ph
            mir = (608 - st - 2 * half) - st if len(phases) == 2 and o.hf else 0
            e(f"s_mul_i32 s33, s45, {half}")
            if mir:
                e(f"s_mul_i32 s28, s43, {mir}")
                e("s_add_u32 s33, s33, s28")
            if st:
                e(f"s_add_u32 s33, s33, {st}")
            e("s_lshr_b32 s28, s33, 2")
            e("s_add_u32 s28, s28, 2")
            e("v_add_u32 v4, s28, v1")
            e("s_lshl_b32 s33, s33, 4")
            off = 0
            for k, ln in enumerate(lanes):
                if off:
                    e(f"v_add_u32 v2, {off // 4}, v4")
                    e("v_mul_u32_u24 v2, 171, v2")
                else:
                    e("v_mul_u32_u24 v2, 171, v4")
                e("v_bfe_u32 v2, v2, 11, 2")
                e("v_xor_b32 v2, v2, v0")
                e(f"v_lshl_add_u32 v{10 + k}, v2, 4, s33")
                off += ln
            if len(lanes) == 5:
                e("v_add_u32 v14, 4096, v14")
            if first:
                e("s_add_u32 s28, s45, s10")
                e("s_cmp_eq_u32 s28, 0")
                e("s_cselect_b32 s32, 16, 0")
                e("v_cmp_gt_u32 vcc, s32, v0")
            e(f"s_mul_i32 s32, s30, {P}")
            e("s_add_u32 s33, s33, s32")
            if first:
                e("v_cndmask_b32 v10, v10, v3, vcc")
            if (first if (o.hf or o.order in "MN") else last):
                if not first:
                    e("s_add_u32 s28, s45, s10")
                e("s_cmp_eq_u32 s28, 8")
                e(f"s_cselect_b32 s28, {lanes[-1] - 16}, 64")
                e("v_cmp_le_u32 vcc, s28, v0")
                e("s_nop 1")
                e(f"v_cndmask_b32 v{9 + len(lanes)}, v{9 + len(lanes)}, v3, vcc")

        patterns(phases[0], True, len(phases) == 1)
        e("s_cmp_eq_u32 s26, 0")
        e("s_cselect_b32 s27, 1, -1")
        e("s_cselect_b32 s29, -1, 12")
        e(f"s_mul_i32 s27, s27, {ROWB}")
        e("s_add_i32 s29, s29, s25")
        e(f"s_mul_i32 s29, s29, {ROWB}")
        e("s_mul_i32 s28, s30, s27")
        e("s_add_i32 s29, s29, s28")
        e("s_lshl_b32 s35, s27, 1")
        cl = [int(x) for x in o.cls.split(",")]
        assert max(cl) <= 5
        e("s_bfe_u32 s44, s2, 0x20003")
        e("s_lshl_b32 s44, s44, 3")
        e(f"s_lshr_b32 s44, {hex(sum(c << (8 * i) for i, c in enumerate(cl)))}, s44")
        e("s_and_b32 s44, s44, 255")
        e("v_add_u32 v7, 16, v9")
        e("s_waitcnt lgkmcnt(0)")
        e("s_sub_u32 s12, s4, 256")
        e("s_subb_u32 s13, s5, 0")
        e(f"s_mov_b32 s14, {XBYTES + 256}")
        e("s_mov_b32 s15, 0x20000")
        self.stamp()
        self.diag_mark("karg")
        fl = o.ldflags
        if 0 in cl:
            e("s_cmp_lg_u32 s44, 0")
            e("s_cbranch_scc1 L_ld_start")
            e("s_barrier")
            self.lab("L_ld_start")
        if o.warm:
            self.load_warm(phases, fl, ntot)
        else:
            if o.order == "A":
                self.load_A(phases, fl)
            else:
                Wn = o.winl
                n = 0
                c1, c2 = len(phases[0][2]), len(phases[1][2])
                e(f"v_mov_b32 v6, {-c1 * ((Wn - 1) // c1)}")
                for pi, ph in enumerate(phases):
                    st, half, lanes = ph
                    c = len(lanes)
                    if pi:
                        if o.prof == 2:
                            e("s_memrealtime s[82:83]")
                        e("s_mov_b64 exec, -1")
                        patterns(ph, False, True)
                        e(f"v_mov_b32 v6, {7 * c1 - (Wn - 1) + (Wn - 1) % c}")
                    e("s_mov_b32 s31, s29")
                    e("s_mov_b32 s32, 0")
                    if lanes[0] < 64:
                        e(f"s_mov_b32 exec_hi, {hex((1 << (lanes[0] - 32)) - 1)}")
                    self.lab(f"L_ld_loop{pi}")
                    e("s_add_u32 s34, s31, s24")
                    e("s_cmp_lt_i32 s31, 0")
                    e("s_cselect_b32 s34, 0x40000000, s34")
                    e("s_mov_b32 m0, s33")
                    e("s_add_i32 s31, s31, s35")
                    off = 0
                    for k, ln in enumerate(lanes):
                        e(f"s_waitcnt vmcnt({Wn - 1})")
                        if k == (Wn - 1) % c:
                            e("ds_write_b32 v8, v6")
                        e(f"buffer_load_dwordx4 v{10 + k}, s[12:15], s34 offen offset:{off * 16} {fl} lds")
                        off += ln
                    e(f"v_add_u32 v6, {c}, v6")
                    e(f"s_add_u32 s33, s33, {2 * P}")
                    e("s_add_u32 s32, s32, 1")
                    if pi == 0:
                        e("s_cmp_lg_u32 s32, s44")
                        e("s_cbranch_scc1 L_ld_nobar")
                        e("s_barrier")
                        self.lab("L_ld_nobar")
                        e("s_cmp_lg_u32 s32, 5")
                        e("s_cbranch_scc1 L_ld_nopoll")
                        self.poll(7, 5, 1)
                        self.lab("L_ld_nopoll")
                    e("s_cmp_lt_u32 s32, 7")
                    e(f"s_cbranch_scc1 L_ld_loop{pi}")
                for v in range(ntot - Wn + 1, ntot):
                    if (v == 7 * c1 and o.early < 2) or (v < 7 * c1 and v % c1 == 0):
                        e(f"v_mov_b32 v2, {v}")
                        e(f"s_waitcnt vmcnt({ntot - v})")
                        e("ds_write_b32 v8, v2")
            self.lab("L_ld_tail")
            if o.prof == 2:
                e("s_memrealtime s[84:85]")
            if o.prio_loader or o.prio_left:
                e("s_setprio 0")
            e("s_mov_b64 exec, -1")
            e("s_and_b32 s30, s3, 3")
            e("s_mul_i32 s28, s30, 12")
            e("s_add_u32 s28, s28, 3")
            if o.hf:
                e("s_mul_i32 s32, s43, 6")
                e("s_add_u32 s28, s28, s32")
            e("v_add_u32 v2, s28, v1")
            e("v_mul_u32_u24 v2, 171, v2")
            e("v_bfe_u32 v2, v2, 11, 2")
            e("v_xor_b32 v2, v2, v0")
            e("s_mul_i32 s33, s30, 768")
            e("s_add_u32 s28, s33, 64")
            if o.hf:
                e("s_mul_i32 s32, s43, 6528")
                e("s_add_u32 s28, s28, s32")
                e("s_mul_i32 s32, s43, 6144")
                e("s_add_u32 s24, s24, s32")
                e("s_sub_u32 s36, 3072, s32")
                e(f"s_sub_u32 s38, s36, {12 * P}")
            e("v_lshl_add_u32 v10, v2, 4, s28")
            e("v_lshl_add_u32 v11, v0, 4, s33")
            if o.d2:
                e("s_mul_i32 s28, s30, 12")
                e("s_add_u32 s28, s28, 9")
                e("v_add_u32 v2, s28, v1")
                e("v_mul_u32_u24 v2, 171, v2")
                e("v_bfe_u32 v2, v2, 11, 2")
                e("v_xor_b32 v2, v2, v0")
                e("s_add_u32 s28, s33, 448")
                e("v_lshl_add_u32 v13, v2, 4, s28")
            e("s_cmp_eq_u32 s26, 0")
            e("s_cselect_b32 s29, 0, 11")
            e("s_add_i32 s29, s29, s25")
            e(f"s_mul_i32 s29, s29, {ROWB}")
            e("s_add_u32 s29, s29, s24")
            e("s_mov_b32 s20, s8")
            e("s_mov_b32 s21, s9")
            e(f"s_mov_b32 s22, {XBYTES}")
            e("s_mov_b32 s23, 0x20000")
            e("s_mov_b32 exec_hi, 0xffff")
            if not o.early:
                e(f"v_mov_b32 v2, {ntot}")
                e("s_waitcnt vmcnt(0)")
                e("ds_write_b32 v8, v2")
        self.stamp()
        self.diag_mark("ldone")
        self.stamp_now(58, 0, real=True)
        if o.nostore:
            self.stamp_flush()
            e("s_endpgm")
        e("s_mov_b32 s37, 2")
        if o.d2:
            e("s_mov_b32 s31, s29")
            e(f"s_mov_b32 s32, {8 - o.defer}")
        else:
            self.lab("L_st_strip")
            e("s_mov_b32 s31, s29")
            e("s_mov_b32 s32, 0")
        self.lab("L_st_loop")
        if not o.nocomp:
            e("v_cmp_gt_i32 vcc, s37, v5")
            e("s_cbranch_vccz L_st_go")
            self.poll(7, 5, "s37", sleep=o.sleep)
            self.lab("L_st_go")
        RA, GA = (15, 4) if o.warm else (10, 11)
        e(f"ds_read_b128 v[16:19], v{RA}")
        e(f"ds_read_b128 v[20:23], v{RA} offset:{P}")
        e("s_add_i32 s34, s31, s27")
        e(f"v_add_u32 v{RA}, {2 * P}, v{RA}")
        e("s_add_u32 s37, s37, 1")
        if not o.d2:
            e("s_add_u32 s32, s32, 1")
        e("s_waitcnt lgkmcnt(1)")
        e(f"buffer_store_dwordx4 v[16:19], v{GA}, s[20:23], s31 offen {o.stflags}")
        e("s_add_i32 s31, s34, s27")
        e("s_waitcnt lgkmcnt(0)")
        e(f"buffer_store_dwordx4 v[20:23], v{GA}, s[20:23], s34 offen {o.stflags}")
        if o.early:
            ev = [(2 + o.early, ntot, 2 * o.early)]
            if o.early >= 2:
                ev.insert(0, (3, 28, ntot - 28 + 2))
            for sv, val, cnt in ev:
                e(f"s_cmp_lg_u32 s37, {sv}")
                e(f"s_cbranch_scc1 L_st_nf{val}")
                e(f"v_mov_b32 v2, {val}")
                e(f"s_waitcnt vmcnt({cnt})")
                e("ds_write_b32 v8, v2")
                self.lab(f"L_st_nf{val}")
        if o.prof == 2:
            e("s_cmp_lg_u32 s37, 3")
            e("s_cbranch_scc1 L_nofs")
            e("s_memrealtime s[86:87]")
            self.lab("L_nofs")
        if o.prof and o.cstamp:
            self.stamp_now(22 - 3, "s37")
            self.stamp_now(40 - 3, "s37", real=True)
        if o.d2 and o.warm:
            e("s_cmp_lt_u32 s37, s32")
            e("s_cbranch_scc1 L_st_loop")
            e("v_add_u32 v15, s16, v25")
            e("s_mov_b32 s31, s36")
            e("s_add_u32 s32, s32, 6")
            e("s_min_u32 s32, s32, 20")
            e("s_mov_b32 s16, s17")
            e("s_mov_b32 s17, s18")
            e("s_mov_b32 s36, s38")
            e("s_mov_b32 s38, s19")
            e("s_cmp_lt_u32 s37, 20")
            e("s_cbranch_scc1 L_st_loop")
        elif o.d2:
            D = o.defer
            e("s_cmp_lt_u32 s37, s32")
            e("s_cbranch_scc1 L_st_loop")
            e("s_add_u32 s32, s32, 6")
            e(f"s_cmp_lg_u32 s37, {8 - D}")
            e("s_cbranch_scc1 L_st_s1")
            e("v_mov_b32 v12, v10")
            e("s_mov_b32 s43, s31")
            e("v_add_u32 v10, 6144, v13")
            e("s_add_u32 s31, s29, 6144")
            e("s_branch L_st_loop")
            self.lab("L_st_s1")
            e(f"s_cmp_lg_u32 s37, {14 - D}")
            e("s_cbranch_scc1 L_st_s2")
            e("v_add_u32 v10, 3072, v13")
            e("s_add_u32 s31, s29, 3072")
            e("s_branch L_st_loop")
            self.lab("L_st_s2")
            if o.compact:
                e(f"v_add_u32 v10, {(12 - 2 * D) * P}, v13")
            else:
                e("v_mov_b32 v10, v12")
            e("s_mov_b32 s31, s43")
            e("s_mov_b32 s32, 20")
            e("s_cmp_lt_u32 s37, 20")
            e("s_cbranch_scc1 L_st_loop")
        else:
            e("s_cmp_lt_u32 s32, 6")
            e("s_cbranch_scc1 L_st_loop")
            if o.hf:
                e("s_add_u32 s29, s29, s36")
                e(f"v_add_u32 v{RA}, s38, v{RA}")
            else:
                e("s_add_u32 s29, s29, 3072")
                e(f"v_add_u32 v10, {3072 - 12 * P}, v10")
            e("s_cmp_lt_u32 s37, 20")
            e("s_cbranch_scc1 L_st_strip")
        self.diag_mark("stiss")
        if o.prof:
            self.stamp()
            e("s_waitcnt vmcnt(0)")
            self.stamp()
        self.stamp_flush()
        self.diag_end()
        e("s_endpgm")
        if o.warm:
            self.setup2()

    def load_warm(self, phases, fl, ntot):
        e, o = self.e, self.o
        Wn = o.winl
        assert (o.order == "C" and o.hf or o.order == "M") and (Wn - 1) % 4 == 0
        e(f"v_mov_b32 v6, {-(Wn - 1)}")
        e("s_mov_b32 s31, s29")
        e("s_mov_b32 s32, 0")
        self.lab("L_p1")
        e("s_add_u32 s34, s31, s24")
        e("s_cmp_lt_i32 s31, 0")
        e("s_cselect_b32 s34, 0x40000000, s34")
        e("s_mov_b32 m0, s33")
        e("s_add_i32 s31, s31, s35")
        for k in range(4):
            e(f"s_waitcnt vmcnt({Wn - 1})")
            if k == 0:
                e("ds_write_b32 v8, v6")
            e(f"buffer_load_dwordx4 v{10 + k}, s[12:15], s34 offen offset:{1024 * k} {fl} lds")
        e("v_add_u32 v6, 4, v6")
        e(f"s_add_u32 s33, s33, {2 * P}")
        e("s_add_u32 s32, s32, 1")
        e("s_cmp_lg_u32 s32, s44")
        e("s_cbranch_scc1 L_ld_nobar")
        e("s_barrier")
        self.lab("L_ld_nobar")
        e("s_cmp_eq_u32 s32, 2")
        e("s_cbranch_scc1 L_setup2")
        e("s_cmp_lg_u32 s32, 5")
        e("s_cbranch_scc1 L_ld_nopoll")
        self.poll(7, 5, 1)
        self.lab("L_ld_nopoll")
        e("s_cmp_lt_u32 s32, 7")
        e("s_cbranch_scc1 L_p1")
        e(f"v_mov_b32 v6, {28 - (Wn - 1)}")
        self.lab("L_p2")
        e("s_add_u32 s34, s39, s24")
        e("s_cmp_lt_i32 s39, 0")
        e("s_cselect_b32 s34, 0x40000000, s34")
        e("s_mov_b32 m0, s40")
        e("s_add_i32 s39, s39, s35")
        e("s_mov_b32 exec_hi, 0xffff")
        e(f"s_waitcnt vmcnt({Wn - 1})")
        e("ds_write_b32 v8, v6")
        e(f"buffer_load_dwordx4 v14, s[12:15], s34 offen {fl} lds")
        e("s_mov_b32 exec_hi, -1")
        e(f"s_add_u32 s40, s40, {2 * P}")
        e("s_cmp_lt_u32 s32, 7")
        e("s_cbranch_scc1 L_p1")
        e("v_add_u32 v6, 1, v6")
        e("s_add_u32 s41, s41, 1")
        e("s_cmp_lt_u32 s41, 7")
        e("s_cbranch_scc1 L_p2")
        e("s_mov_b32 exec_hi, 0xffff")
        for v in range(36 - Wn, 29):
            if v % 4 == 0:
                e(f"v_mov_b32 v2, {v}")
                e(f"s_waitcnt vmcnt({34 - v})")
                e("ds_write_b32 v8, v2")
        e("v_mov_b32 v2, 35")
        e("s_waitcnt vmcnt(0)")
        e("ds_write_b32 v8, v2")

    def setup2(self):
        e, o = self.e, self.o
        if o.order == "M":
            D = o.defer
            self.lab("L_setup2")
            e("s_mul_i32 s40, s45, 48")
            e("s_add_u32 s40, s40, 256")
            e("s_lshr_b32 s28, s40, 2")
            e("s_add_u32 s28, s28, 2")
            e("v_add_u32 v2, s28, v1")
            e("s_lshl_b32 s40, s40, 4")
            e("v_mul_u32_u24 v2, 171, v2")
            e("v_bfe_u32 v2, v2, 11, 2")
            e("v_xor_b32 v2, v2, v0")
            e("v_lshl_add_u32 v14, v2, 4, s40")
            e(f"s_mul_i32 s28, s30, {P}")
            e("s_add_u32 s40, s40, s28")
            e("s_mov_b32 s39, s29")
            e("s_mov_b32 s41, 1")
            e("s_and_b32 s30, s3, 3")
            e("s_mul_i32 s28, s30, 12")
            e("s_add_u32 s28, s28, 3")
            e("v_add_u32 v3, s28, v1")
            e("s_mul_i32 s30, s30, 768")
            for dv, dst, off in ((0, 15, 64), (6, 25, 448)):
                e(f"v_add_u32 v2, {dv}, v3")
                e("v_mul_u32_u24 v2, 171, v2")
                e("v_bfe_u32 v2, v2, 11, 2")
                e("v_xor_b32 v2, v2, v0")
                e(f"s_add_u32 s28, s30, {off}")
                e(f"v_lshl_add_u32 v{dst}, v2, 4, s28")
            e("v_lshl_add_u32 v4, v0, 4, s30")
            e("s_cmp_eq_u32 s26, 0")
            e("s_cselect_b32 s29, 0, 11")
            e("s_add_i32 s29, s29, s25")
            e(f"s_mul_i32 s29, s29, {ROWB}")
            e("s_add_u32 s29, s29, s24")
            e("s_movk_i32 s16, 6144")
            e("s_movk_i32 s17, 3072")
            e(f"s_mov_b32 s18, {(12 - 2 * D) * P}")
            e("s_add_u32 s36, s29, 6144")
            e("s_add_u32 s38, s29, 3072")
            e(f"s_mul_i32 s19, s27, {12 - 2 * D}")
            e("s_add_u32 s19, s19, s29")
        else:
            self.lab("L_setup2")
            e("s_mul_i32 s40, s45, 48")
            e("s_mul_i32 s28, s43, -512")
            e("s_add_u32 s40, s40, s28")
            e("s_add_u32 s40, s40, 512")
            e("s_lshr_b32 s28, s40, 2")
            e("s_add_u32 s28, s28, 2")
            e("v_add_u32 v2, s28, v1")
            e("s_lshl_b32 s40, s40, 4")
            e("v_mul_u32_u24 v2, 171, v2")
            e("v_bfe_u32 v2, v2, 11, 2")
            e("v_xor_b32 v2, v2, v0")
            e("v_lshl_add_u32 v14, v2, 4, s40")
            e(f"s_mul_i32 s28, s30, {P}")
            e("s_add_u32 s40, s40, s28")
            e("s_mov_b32 s39, s29")
            e("s_mov_b32 s41, 1")
            e("s_and_b32 s30, s3, 3")
            e("s_mul_i32 s28, s30, 12")
            e("s_mul_i32 s36, s43, 6")
            e("s_add_u32 s28, s28, s36")
            e("s_add_u32 s28, s28, 3")
            e("v_add_u32 v2, s28, v1")
            e("v_mul_u32_u24 v2, 171, v2")
            e("v_bfe_u32 v2, v2, 11, 2")
            e("v_xor_b32 v2, v2, v0")
            e("s_mul_i32 s30, s30, 768")
            e("s_mul_i32 s36, s43, 6528")
            e("s_add_u32 s28, s30, s36")
            e("s_add_u32 s28, s28, 64")
            e("v_lshl_add_u32 v15, v2, 4, s28")
            e("v_lshl_add_u32 v4, v0, 4, s30")
            e("s_mul_i32 s38, s43, 6144")
            e("s_sub_u32 s36, 3072, s38")
            e("s_cmp_eq_u32 s26, 0")
            e("s_cselect_b32 s29, 0, 11")
            e("s_add_i32 s29, s29, s25")
            e(f"s_mul_i32 s29, s29, {ROWB}")
            e("s_add_u32 s29, s29, s24")
            e("s_add_u32 s29, s29, s38")
            e(f"s_sub_u32 s38, s36, {12 * P}")
        e("s_mov_b32 s20, s8")
        e("s_mov_b32 s21, s9")
        e(f"s_mov_b32 s22, {XBYTES}")
        e("s_mov_b32 s23, 0x20000")
        e("s_branch L_p2")

    def load_A(self, phases, fl):
        e, o = self.e, self.o
        lanes = phases[0][2]
        e("s_mov_b32 s31, s29")
        e("s_mov_b32 s32, 0")
        sides = [("l", o.winl), ("r", o.winr)] if o.winl != o.winr else [("l", o.winl)]
        if len(sides) == 2:
            e("s_cmp_lg_u32 s45, 0")
            e("s_cbranch_scc1 L_ld_pre_r")
        for sd, Wn in sides:
            self.lab(f"L_ld_pre_{sd}")
            e(f"v_mov_b32 v6, {-5 * ((Wn - 1) // 5)}")
            if sd == "l" and o.prio_left:
                e(f"s_setprio {o.prio_left}")
            self.lab(f"L_ld_loop_{sd}")
            e("s_add_u32 s34, s31, s24")
            e("s_cmp_lt_i32 s31, 0")
            e("s_cselect_b32 s34, 0x40000000, s34")
            e("s_mov_b32 m0, s33")
            e("s_add_i32 s31, s31, s35")
            for k in range(5):
                if k == 4:
                    e("s_add_u32 m0, s33, 4096")
                e(f"s_waitcnt vmcnt({Wn - 1})")
                if k == (Wn - 1) % 5:
                    e("ds_write_b32 v8, v6")
                if k == 4:
                    e("s_mov_b32 exec_hi, 0xffff")
                e(f"buffer_load_dwordx4 v{10 + k}, s[12:15], s34 offen offset:{1024 * (k % 4)} {fl} lds")
                if k == 4:
                    e("s_mov_b32 exec_hi, -1")
                if k == 0:
                    e(f"v_add_u32 v6, {(Wn - 1) % 5}, v6" if False else "s_add_u32 s32, s32, 1")
            e("v_add_u32 v6, 5, v6")
            e(f"s_add_u32 s33, s33, {2 * P}")
            e("s_cmp_lg_u32 s32, s44")
            e(f"s_cbranch_scc1 L_ld_nobar_{sd}")
            e("s_barrier")
            self.lab(f"L_ld_nobar_{sd}")
            e("s_cmp_lg_u32 s32, 5")
            e(f"s_cbranch_scc1 L_ld_nopoll_{sd}")
            self.poll(7, 5, 1)
            self.lab(f"L_ld_nopoll_{sd}")
            e("s_cmp_lt_u32 s32, 7")
            e(f"s_cbranch_scc1 L_ld_loop_{sd}")
            for v in range(35 - Wn + 1, 35):
                if v % 5 == 0:
                    e(f"v_mov_b32 v2, {v}")
                    e(f"s_waitcnt vmcnt({35 - v})")
                    e("ds_write_b32 v8, v2")
            if sd == "l" and len(sides) == 2:
                e("s_branch L_ld_tail")

    def compute(self):
        e, o = self.e, self.o
        ops = [("U0", 0), ("U0", 1), ("U1", 0), ("U1", 1), ("U2", 0), ("U2", 1), ("U2", 2), ("U3", 0), ("U3", 1), ("U3", 2),
               ("X", 0), ("X", 1), ("X", 2),
               ("L0", 0), ("L0", 1), ("L0", 2), ("L1", 0), ("L1", 1), ("L1", 2), ("L2", 1), ("L2", 2), ("L3", 1), ("L3", 2)]
        W = {k: 16 + 4 * i for i, k in enumerate(ops)}
        SET = [108, 124]
        XR = 140
        ACC = lambda s, t: 144 + 12 * s + 4 * t
        PK = 168
        A1, A2, AX = 174, 175, 176
        ST = [177, 178, 179]
        self.lab("L_compute")
        self.nstamp = 1
        if o.ipf:
            e("s_getpc_b64 s[38:39]")
            self.lab("L_pc")
            e("s_sub_u32 s38, s38, L_pc-standalone__grouped__vision_kernel")
            e("s_subb_u32 s39, s39, 0")
            e(f"v_lshlrev_b32 v2, {o.ipf}, v0")
            e("v_lshl_add_u32 v2, s3, 13, v2" if o.ipf == 7 else "v_lshl_add_u32 v2, s3, 12, v2")
            e(f"v_min_u32 v2, {'L_compute' if o.ipfh else 'L_code_end'}-standalone__grouped__vision_kernel-4, v2")
            e("v_mov_b32 v3, s39")
            e("v_add_co_u32 v2, vcc, s38, v2")
            e("s_nop 1")
            e("v_addc_co_u32 v3, vcc, 0, v3, vcc")
            e("global_load_dword v188, v[2:3], off")
        if o.prio_comp:
            e(f"s_setprio {o.prio_comp}")
        e("s_mul_i32 s28, s3, 1152")
        e("v_lshl_add_u32 v108, v0, 4, s28")
        e("s_movk_i32 s29, 3456")
        for i in range(1, 4):
            e(f"v_add_u32 v2, {64 * i}, v0")
            e("v_mul_u32_u24 v2, 911, v2")
            e("v_lshrrev_b32 v2, 16, v2")
            e(f"v_mad_u32_u24 v{108 + i}, v2, s29, v108")
        e("v_cmp_lt_u32 vcc, 23, v0")
        e("v_bfrev_b32 v3, 1")
        e(f"s_mul_i32 s33, s3, {WSZ}")
        e(f"s_add_u32 s33, s33, {WREG}")
        e("v_cndmask_b32 v111, v111, v3, vcc")
        e("s_mul_i32 s34, s26, 27648")
        e("s_movk_i32 s35, 13824")
        e("s_sub_u32 s36, 27648, s34")
        e("s_waitcnt lgkmcnt(0)")
        if o.tlbw:
            e("s_and_b32 s10, s2, 1")
            e("s_lshl_b32 s10, s10, 2")
            e("s_bfe_u32 s11, s2, 0x20003")
            e("s_add_u32 s10, s10, s11")
            e("s_mul_i32 s10, s10, 9216")
            e("s_bfe_u32 s11, s2, 0x20001")
            e("s_lshl_b32 s11, s11, 3")
            e("s_lshr_b32 s24, s2, 5")
            e("s_add_u32 s11, s11, s24")
            e(f"s_mul_i32 s11, s11, {12 * ROWB}")
            e("s_add_u32 s10, s10, s11")
            e("s_mov_b32 s20, s8")
            e("s_mov_b32 s21, s9")
            e(f"s_mov_b32 s22, {XBYTES}")
            e("s_mov_b32 s23, 0x20000")
            e(f"s_mov_b32 s11, {11 * ROWB}")
            e("v_mul_lo_u32 v2, v0, s11")
            e("s_cmp_lg_u32 s3, 0")
            e("s_cbranch_scc1 L_notouch")
            e("s_mov_b64 exec, 3")
            e(f"buffer_load_dword v186, v2, s[20:23], s10 offen {o.tlbf}")
            e("s_mov_b64 exec, -1")
            self.lab("L_notouch")
        e("s_barrier")
        e("s_mov_b32 s16, s6")
        e("s_mov_b32 s17, s7")
        e(f"s_mov_b32 s18, {WBYTES}")
        e("s_mov_b32 s19, 0x20000")
        for p in range(3):
            if o.wsplit and p:
                e(f"s_waitcnt vmcnt({o.wsplit - 1})")
            e(f"s_add_u32 m0, s33, {4096 * p}")
            e("s_nop 0")
            for i in range(4):
                if not o.now:
                    e(f"buffer_load_dwordx4 v{108 + i}, s[16:19], s{34 + p} offen offset:{1024 * i} {o.wflags} lds")
        self.stamp()
        e("v_and_b32 v1, 15, v0")
        e("v_lshrrev_b32 v2, 4, v0")
        e("s_mul_i32 s28, s3, 3")
        e("v_and_b32 v3, 1, v2")
        e("v_lshrrev_b32 v4, 1, v2")
        e("v_cmp_gt_u32 vcc, 2, v2")
        e("s_movk_i32 s29, 192")
        e("s_movk_i32 s30, 1152")

        def baddr(dst, vdx, vcc_, tmp1, tmp2, extra=None):
            e(f"v_add_u32 v{tmp1}, {vdx}, v1")
            e(f"v_add_u32 v{tmp2}, 1, v{tmp1}")
            e(f"v_bfe_u32 v{tmp2}, v{tmp2}, 2, 2")
            e(f"v_mad_u32_u24 v{tmp1}, v{tmp1}, s29, v15" if o.hf else f"v_mad_u32_u24 v{tmp1}, v{tmp1}, s29, 64")
            e(f"v_add_u32 v{dst}, s28, {vcc_}")
            e(f"v_xor_b32 v{dst}, v{dst}, v{tmp2}")
            e(f"v_lshl_add_u32 v{dst}, v{dst}, 4, v{tmp1}")
            if extra:
                e(f"v_add_u32 v{dst}, {extra}, v{dst}")

        if o.hf:
            e("s_mul_i32 s31, s43, 6144")
            e("s_add_u32 s32, s31, 64")
            e("v_mov_b32 v15, s32")
            e("s_sub_u32 s38, 3072, s31")
            e(f"s_sub_u32 s38, s38, {8 * P}")
        e("v_cndmask_b32 v6, 2, v2, vcc")
        e("v_cndmask_b32 v7, v3, 2, vcc")
        baddr(A1, "v3", "v4", 11, 12)
        baddr(A2, "v6", "v7", 11, 12)
        e(f"v_mul_u32_u24 v13, {P}, v2")
        e("v_mov_b32 v14, 2")
        baddr(AX, "2", "v14", 11, 12, "v13")
        if o.hf:
            e("v_lshl_add_u32 v1, s43, 1, v1")
        e("v_add_u32 v12, 1, v1")
        e("v_bfe_u32 v12, v12, 2, 2")
        e("v_mad_u32_u24 v11, v1, s29, v15" if o.hf else "v_mad_u32_u24 v11, v1, s29, 64")
        e("v_lshl_add_u32 v11, v3, 3, v11")
        e(f"v_add_u32 v13, {P}, v11")
        e("v_add_u32 v14, s28, v4")
        e("v_xor_b32 v15, v14, v12")
        e(f"v_lshl_add_u32 v{ST[0]}, v15, 4, v11")
        e("v_add_u32 v14, 1, v14")
        e("v_xor_b32 v15, v14, v12")
        e(f"v_lshl_add_u32 v{ST[2]}, v15, 4, v13")
        e("v_cndmask_b32 v14, 0, 2, vcc")
        e("v_cndmask_b32 v13, v13, v11, vcc")
        e("v_add_u32 v14, s28, v14")
        e("v_xor_b32 v15, v14, v12")
        e(f"v_lshl_add_u32 v{ST[1]}, v15, 4, v13")
        if o.d2:
            e("v_add_u32 v12, 3, v1")
            e("v_bfe_u32 v12, v12, 2, 2")
            e(f"v_add_u32 v11, {384 + (0 if o.compact else 6144)}, v11")
            e(f"v_add_u32 v13, {384 + (0 if o.compact else 6144)}, v13")
            e("v_xor_b32 v15, v14, v12")
            e("v_lshl_add_u32 v181, v15, 4, v13")
            e("v_add_u32 v14, s28, v4")
            e("v_xor_b32 v15, v14, v12")
            e("v_lshl_add_u32 v180, v15, 4, v11")
            e("v_add_u32 v14, 1, v14")
            e("v_xor_b32 v15, v14, v12")
            e(f"v_add_u32 v11, {P}, v11")
            e("v_lshl_add_u32 v182, v15, 4, v11")
        E1, E2, F1, F2, F1z, F2z, F1y, F2y, G0, G1, G2, Z = range(144, 156)
        e("v_bfe_u32 v11, v0, 2, 2")
        e("v_mul_u32_u24 v11, 48, v11")
        e("v_add_u32 v11, s33, v11")
        e("v_and_b32 v12, 3, v0")
        e("v_lshl_add_u32 v11, v12, 3, v11")
        e("v_mul_u32_u24 v13, 384, v4")
        e("v_mad_u32_u24 v13, v3, s30, v13")
        e("v_mul_u32_u24 v14, 384, v7")
        e("v_mad_u32_u24 v14, v6, s30, v14")
        e(f"v_add_u32 v{E1}, v11, v13")
        e(f"v_add_u32 v{E2}, v11, v14")
        e("v_cmp_lt_u32 vcc, 1, v12")
        e("s_add_u32 s30, s33, 3456")
        e(f"v_mov_b32 v{Z}, s30")
        e("v_mov_b32 v13, 32")
        e("v_mov_b32 v14, -4112")
        e("v_cndmask_b32 v13, v13, v14, vcc")
        e("v_cndmask_b32 v15, 0, 1, vcc")
        e(f"v_add_u32 v{F1}, v{E1}, v13")
        e(f"v_add_u32 v{F2}, v{E2}, v13")
        e(f"v_cndmask_b32 v{F1z}, v{F1}, v{Z}, vcc")
        e(f"v_cndmask_b32 v{F2z}, v{F2}, v{Z}, vcc")
        e(f"v_add_u32 v{F1y}, 12288, v{F1}")
        e(f"v_add_u32 v{F2y}, 12288, v{F2}")
        e(f"v_cndmask_b32 v{F1y}, v{Z}, v{F1y}, vcc")
        e(f"v_cndmask_b32 v{F2y}, v{Z}, v{F2y}, vcc")
        e("v_lshl_add_u32 v11, v2, 12, v11")
        e("v_add_u32 v11, 3072, v11")
        e("v_sub_u32 v15, v2, v15")
        e("v_cmp_gt_u32 vcc, 3, v15")
        e(f"v_add_u32 v{G1}, v11, v13")
        e(f"v_add_u32 v{G2}, -4080, v11")
        e(f"v_cndmask_b32 v{G1}, v{Z}, v{G1}, vcc")
        e("v_cmp_gt_u32 vcc, 3, v2")
        e("s_nop 1")
        e(f"v_cndmask_b32 v{G0}, v{Z}, v11, vcc")
        e("v_cmp_lt_u32 vcc, 0, v2")
        e("s_nop 0")
        e("v_mov_b32 v10, 1")
        e(f"v_cndmask_b32 v{G2}, v{Z}, v{G2}, vcc")

        def tr(key, a, off):
            w = W[key]
            e(f"ds_read_b64_tr_b16 v[{w}:{w + 1}], v{a} offset:{off}")
            e(f"ds_read_b64_tr_b16 v[{w + 2}:{w + 3}], v{a} offset:{off + 192}")

        e("s_waitcnt vmcnt(8)")
        self.stamp()
        tr(("U0", 0), E1, 0); tr(("U1", 0), E2, 0); tr(("U0", 1), F1z, 0); tr(("U1", 1), F2z, 0)
        tr(("U2", 2), E1, 16); tr(("U3", 2), E2, 16)
        e("s_waitcnt vmcnt(4)")
        tr(("U2", 0), E1, 4096); tr(("U3", 0), E2, 4096); tr(("U2", 1), F1, 4096); tr(("U3", 1), F2, 4096)
        tr(("L0", 2), E1, 4112); tr(("L1", 2), E2, 4112)
        e("s_waitcnt vmcnt(0)")
        self.stamp()
        tr(("X", 0), G0, 0); tr(("X", 1), G1, 0); tr(("X", 2), G2, 0)
        tr(("L0", 0), E1, 8192); tr(("L1", 0), E2, 8192); tr(("L0", 1), F1, 8192); tr(("L1", 1), F2, 8192)
        tr(("L2", 1), F1y, 0); tr(("L3", 1), F2y, 0); tr(("L2", 2), E1, 8208); tr(("L3", 2), E2, 8208)
        e("ds_write_b32 v8, v10")
        self.diag_mark("kw")
        self.stamp()
        if o.nocomp:
            self.stamp_flush()
            self.lab("L_end")
            e("s_endpgm")
            return
        if o.cstamp == 2:
            e("s_waitcnt lgkmcnt(0)")
            e("s_mov_b32 s94, s46")
        self.lab("L_c_loop")
        slow = []
        c1 = len(self.phases[0][2])
        ntot = 7 * sum(len(p[2]) for p in self.phases)

        def need(T, s):
            if o.order == "A" or T < 2:
                return c1 * (s + 2)
            return 7 * c1 + len(self.phases[1][2]) * (s + 2)

        def pair_reads(st, off):
            b = SET[st]
            return [f"ds_read_b128 v[{b}:{b + 3}], v{A1} offset:{off}",
                    f"ds_read_b128 v[{b + 4}:{b + 7}], v{A2} offset:{off}",
                    f"ds_read_b128 v[{b + 8}:{b + 11}], v{A1} offset:{off + P}",
                    f"ds_read_b128 v[{b + 12}:{b + 15}], v{A2} offset:{off + P}"]

        def epilogue(acc, off, wr):
            r = []
            for t in range(3):
                a = ACC(acc, t)
                r.append(f"v_cvt_pk_bf16_f32 v{PK + 2 * t}, v{a}, v{a + 1}")
                r.append(f"v_cvt_pk_bf16_f32 v{PK + 2 * t + 1}, v{a + 2}, v{a + 3}")
                if wr == 32:
                    r.append(f"ds_write_b32 v{ST[t]}, v{PK + 2 * t} offset:{off}")
                    r.append(f"ds_write_b32 v{ST[t]}, v{PK + 2 * t + 1} offset:{off + 4}")
                else:
                    r.append(f"ds_write_b64 v{ST[t]}, v[{PK + 2 * t}:{PK + 2 * t + 1}] offset:{off}")
            r.append("ds_write_b32 v8, v10")
            return r

        if o.compact:
            return self.loop_compact(ops, W, SET, XR, ACC, PK, A1, A2, AX, ST, c1, ntot, pair_reads, epilogue)
        if o.modes == "q":
            return self.loop_q(ops, W, SET, XR, ACC, PK, A1, A2, AX, ST, c1, ntot)
        seen_upto = 0
        fpending = None
        modes = o.modes.split(",")
        loop = o.loop
        if loop:
            del self.L[-1]
            e("s_mov_b32 s37, 0")
            e("v_and_b32 v11, -9, v9")
            if o.hf:
                e("v_lshl_add_u32 v11, s43, 3, v11")
            e("v_mov_b32 v5, 0")
            if o.order != "A":
                e(f"s_mov_b32 s35, {2 * c1}")
                e(f"s_mov_b32 s34, {2 * c1}")
            self.lab("L_c_loop")
        nb = len(modes) if loop else 3
        seq = o.seq
        for T in range(nb):
            md = modes[T]
            if loop and T:
                self.lab(f"L_c_loop{T}")
            for s in range(6):
                u = 6 * T + s
                if o.prof and o.cstamp == 2:
                    e(f"s_memtime s[{16 + 4 * u}:{17 + 4 * u}]")
                    e(f"s_memrealtime s[{18 + 4 * u}:{19 + 4 * u}]")
                elif o.prof and o.cstamp:
                    self.stamp_now(22, u)
                    self.stamp_now(40, u, real=True)
                U, Lo = s & 1, (s & 1) ^ 1
                acc = s & 1 if md == "n" else 0
                nd = need(0 if loop else T, s)
                if loop and o.order != "A" and s == 0:
                    e("v_cmp_gt_i32 vcc, s35, v5")
                    e(f"s_cbranch_vccnz L_c_slow{u}")
                    self.lab(f"L_c_ready{u}")
                    slow.append((u, "s35"))
                    e("s_mov_b32 s35, s34")
                    e(f"s_mov_b32 s34, {ntot}")
                    seen_upto = 99
                elif loop:
                    e(f"v_cmp_gt_i32 vcc, {nd}, v5")
                    e(f"s_cbranch_vccnz L_c_slow{u}")
                    self.lab(f"L_c_ready{u}")
                    slow.append((u, nd))
                    seen_upto = 99
                elif nd > seen_upto:
                    if fpending is not None:
                        e(f"s_waitcnt lgkmcnt({fpending})")
                        if loop:
                            nd_ = "s36"
                        else:
                            nd_ = nd
                        e(f"v_cmp_gt_i32 vcc, {nd_}, v5")
                        e(f"s_cbranch_vccnz L_c_slow{u}")
                        self.lab(f"L_c_ready{u}")
                        slow.append((u, nd_))
                    else:
                        self.poll(9, 5, nd, sleep=o.csleep)
                    seen_upto = nd
                fpending = None
                if s == 0 and o.diag in ("k0", "k1", "k2"):
                    e(f"s_cmp_lg_u32 s37, {o.diag[1]}")
                    e("s_cbranch_scc1 L_nomark")
                    e("s_memrealtime s[90:91]")
                    self.lab("L_nomark")
                if s == 0 and o.prof and not o.cstamp:
                    self.stamp_now(24, "s37" if loop else T, real=(o.prof == 2))
                ro = (s & 1) * 2 * P
                rd = (pair_reads(0, 0) if s == 0 else []) + pair_reads(Lo, ro + 2 * P)
                rd.append(f"ds_read_b128 v[{XR}:{XR + 3}], v{AX} offset:{ro}")
                post = []
                if s & 1:
                    adv = 4 * P if s < 5 else "s38" if o.hf else (-3072 if o.d2 else 3072) - 8 * P
                    post = [f"v_add_u32 v{r}, {adv}, v{r}" for r in (A1, A2, AX)] if (u < 17 or loop) else []
                inter = []
                if md in ("r", "n") and s > 0:
                    inter = [[x] for x in rd]
                else:
                    for x in rd:
                        e(x)
                    if s == 0:
                        e("s_waitcnt lgkmcnt(5)")
                nxt_need = need(T, s + 1) if s < 5 else (need(T + 1, 0) if T < 2 else 0)
                want_f = md != "p" and nxt_need > seen_upto
                if loop:
                    if o.d2 and not o.defer:
                        if s == 5:
                            post = post + ["s_add_u32 s37, s37, 1", "s_cmp_eq_u32 s37, 2"]
                    elif o.defer:
                        if s == o.defer - 1:
                            post = post + ["s_cmp_eq_u32 s37, 3"]
                        if s == 5 - o.defer:
                            post = post + ["s_cmp_eq_u32 s37, 0"]
                        if s == 5:
                            post = post + ["s_add_u32 s37, s37, 1", "s_cmp_eq_u32 s37, 2"]
                    elif s == 5:
                        post = post + ["s_add_u32 s37, s37, 1", "v_mov_b32 v11, v9", "s_cmp_eq_u32 s37, 1", "s_cselect_b32 s36, 0, -1",
                                       "v_and_b32 v5, s36, v5", "s_cmp_lt_u32 s37, 3"]
                        if nb == 2:
                            post[-1] = f"s_bitcmp1_b32 {sum(1 << k for k in range(3) if o.seq[k] == '0')}, s37"
                    if o.order != "A" and s == 0:
                        pre0 = True
                defer = []
                if md == "n" and s > 0:
                    defer = ["v_add_u32 v10, 1, v10"] + epilogue(acc ^ 1, ((s - 1) & 1) * 2 * P, o.wrn)
                    if not s & 1:
                        defer += [f"v_add_u32 v{r}, {4 * P}, v{r}" for r in ST]
                seen = set()
                seq = [(k, SET[U] + 4 * int(k[0][1])) for k in ops[:10]] + [(k, SET[Lo] + 4 * int(k[0][1])) for k in ops[13:]] + [(k, XR) for k in ops[10:13]]
                behind = 0
                for g, (k, b) in enumerate(seq):
                    if g == 10:
                        e(f"s_waitcnt lgkmcnt({behind})")
                    t = k[1]
                    a = ACC(acc, t)
                    cin = f"v[{a}:{a + 3}]" if t in seen else "0"
                    seen.add(t)
                    e(f"v_mfma_f32_16x16x32_bf16 v[{a}:{a + 3}], v[{W[k]}:{W[k] + 3}], v[{b}:{b + 3}], {cin}")
                    cap = 2
                    if inter:
                        e(inter.pop(0)[0])
                        cap -= 1
                    elif post and not defer:
                        while post and cap:
                            e(post.pop(0))
                            cap -= 1
                    while defer and cap and g >= 2 and g != 9:
                        isw = defer[0].startswith("ds_write")
                        if isw and cap < 2:
                            break
                        x = defer.pop(0)
                        e(x)
                        cap -= 2 if isw else 1
                        if isw and g < 10:
                            behind += 1
                assert not defer and not inter, (u, defer)
                fill = list(post)
                if md != "n" or s == 5:
                    fill.append("v_add_u32 v10, 1, v10")
                    if want_f:
                        fill.append("ds_read_b32 v5, v9")
                    for x in fill:
                        e(x)
                    if len(fill) < 6:
                        e(f"s_nop {5 - len(fill)}")
                    ep = epilogue(acc, (s & 1) * 2 * P, o.wr)
                    for x in ep:
                        e(x)
                    if want_f:
                        fpending = sum(1 for x in ep if x.startswith("ds_"))
                    if s & 1 and (u < 17 or loop):
                        adv = 4 * P if s < 5 else "s38" if o.hf else (-3072 if o.d2 else 3072) - 8 * P
                        for r in ST:
                            e(f"v_add_u32 v{r}, {adv}, v{r}")
                    if o.defer and s in (o.defer - 1, 5 - o.defer):
                        e("s_cbranch_scc1 L_c_stub")
                    if loop and nb == 2 and s == 5:
                        e("s_cbranch_scc1 L_c_loop")
                        e("s_cmp_lt_u32 s37, 3")
                        if T == 0:
                            e("s_cbranch_scc0 L_c_done")
                        else:
                            e("s_cbranch_scc1 L_c_loop1")
                            self.lab("L_c_done")
                else:
                    for x in fill:
                        e(x)
                    if want_f:
                        e("ds_read_b32 v5, v9")
                        fpending = 0
                    if o.defer and s in (o.defer - 1, 5 - o.defer):
                        e("s_cbranch_scc1 L_c_stub")
        if loop and nb == 1:
            e("s_cbranch_scc1 L_c_loop")
        if o.d2 and not o.defer:
            e("s_cmp_eq_u32 s37, 3")
            e("s_cbranch_scc1 L_c_fin")
            e("v_mov_b32 v11, v9")
            e("v_mov_b32 v5, 0")
            for r in (A1, A2, AX):
                e(f"v_add_u32 v{r}, 9216, v{r}")
            for t in range(3):
                e(f"v_mov_b32 v{ST[t]}, v{180 + t}")
            e("s_branch L_c_loop")
            self.lab("L_c_fin")
        if o.defer:
            D = o.defer
            for r in (A1, A2, AX):
                e(f"v_add_u32 v{r}, {(12 - 2 * D) * P}, v{r}")
            for t in range(3):
                back = 2 * D * P if md == "n" else (2 * P if D == 1 else 0)
                e(f"v_add_u32 v{ST[t]}, {back}, v{180 + t}")
            e("s_branch L_c_loop")
            self.lab("L_c_stub")
            if md == "n":
                e("v_add_u32 v10, 1, v10")
            e("s_cmp_eq_u32 s37, 0")
            e("s_mov_b32 s37, 1")
            e("v_mov_b32 v11, v9")
            e("v_mov_b32 v5, 0")
            if md == "n":
                for x in epilogue((D - 1) & 1, ((D - 1) & 1) * 2 * P, o.wr):
                    e(x)
            for r in (A1, A2, AX):
                e(f"v_add_u32 v{r}, {6144 - 8 * P}, v{r}")
            for t in range(3):
                e(f"v_swap_b32 v{ST[t]}, v{180 + t}")
            e("s_cbranch_scc1 L_c_loop")
        if o.cstamp == 2:
            e("s_memtime s[88:89]")
            e("s_waitcnt lgkmcnt(0)")
            for u in range(18):
                e(f"v_writelane_b32 v{PV}, s{16 + 4 * u}, {22 + u}")
                e(f"v_writelane_b32 v{PV}, s{18 + 4 * u}, {40 + u}")
            e("s_mov_b32 s46, s94")
            e("s_mov_b32 s48, s88")
            self.nstamp = 2
        else:
            self.stamp()
        self.stamp_flush()
        if o.diag.startswith("k"):
            self.diag_mark("kend")
            self.diag_end(True)
        self.lab("L_end")
        e("s_endpgm")
        for u, nd in slow:
            self.lab(f"L_c_slow{u}")
            self.poll(11 if loop else 9, 5, nd, sleep=o.csleep)
            e(f"s_branch L_c_ready{u}")

        self.lab("L_code_end")

    def loop_compact(self, ops, W, SET, XR, ACC, PK, A1, A2, AX, ST, c1, ntot, pair_reads, epilogue):
        e, o = self.e, self.o
        D = o.defer
        assert D in (0, 2, 4) and (not o.hf or D == 0)
        del self.L[-1]
        AB = [183, 184, 185]
        if not o.hf:
            for r, b in zip((A1, A2, AX), AB):
                e(f"v_mov_b32 v{b}, v{r}")
        e("v_and_b32 v11, -9, v9")
        if o.hf:
            e("v_lshl_add_u32 v11, s43, 3, v11")
            e(f"s_sub_u32 s39, s38, {4 * P}")
        e("v_mov_b32 v5, 0")
        e("s_mov_b32 s37, 0")
        e(f"s_mov_b32 s36, {2 * c1}")
        e(f"s_mov_b32 s35, {c1}")
        e(f"s_mov_b32 s34, {(4 - D) // 2}")

        def unit(kind):
            U = 1 if kind == "O" else 0
            Lo, acc = U ^ 1, U
            self.lab({"F": "L_c_loop", "O": "L_c_odd", "E": "L_c_even"}[kind])
            if kind == "F" and o.prof:
                self.stamp_now(24, "s37", real=(o.prof == 2))
            e("v_cmp_gt_i32 vcc, s36, v5")
            e(f"s_cbranch_vccnz L_c_slow{kind}")
            self.lab(f"L_c_ready{kind}")
            ro = 2 * P if kind == "O" else 0
            rd = (pair_reads(0, 0) if kind == "F" else []) + pair_reads(Lo, ro + 2 * P)
            rd.append(f"ds_read_b128 v[{XR}:{XR + 3}], v{AX} offset:{ro}")
            post = ["s_add_u32 s36, s36, s35"]
            inter, defer = [], []
            if kind == "F":
                for x in rd:
                    e(x)
                e("s_waitcnt lgkmcnt(5)")
            else:
                inter = rd
                defer = ["v_add_u32 v10, 1, v10"] + epilogue(acc ^ 1, 0 if kind == "O" else 2 * P, o.wrn)
            if kind == "O":
                post += [f"v_add_u32 v{r}, {4 * P}, v{r}" for r in (A1, A2, AX)] + ["s_sub_u32 s34, s34, 1"]
            if kind == "E":
                defer += [f"v_add_u32 v{r}, {4 * P}, v{r}" for r in ST]
            seen = set()
            sq = [(k, SET[U] + 4 * int(k[0][1])) for k in ops[:10]] + [(k, SET[Lo] + 4 * int(k[0][1])) for k in ops[13:]] + [(k, XR) for k in ops[10:13]]
            behind = 0
            for g, (k, b) in enumerate(sq):
                if g == 10:
                    e(f"s_waitcnt lgkmcnt({behind})")
                t = k[1]
                a = ACC(acc, t)
                cin = f"v[{a}:{a + 3}]" if t in seen else "0"
                seen.add(t)
                e(f"v_mfma_f32_16x16x32_bf16 v[{a}:{a + 3}], v[{W[k]}:{W[k] + 3}], v[{b}:{b + 3}], {cin}")
                cap = 2
                if inter:
                    e(inter.pop(0))
                    cap -= 1
                elif post and not defer:
                    while post and cap:
                        e(post.pop(0))
                        cap -= 1
                while defer and cap and g >= 2 and g != 9:
                    isw = defer[0].startswith("ds_write")
                    if isw and cap < 2:
                        break
                    x = defer.pop(0)
                    e(x)
                    cap -= 2 if isw else 1
                    if isw and g < 10:
                        behind += 1
            assert not defer and not inter and not post, (kind, defer, post)

        unit("F")
        unit("O")
        e("s_cbranch_scc0 L_c_even")
        e("v_add_u32 v10, 1, v10")
        e("s_add_u32 s37, s37, 1")
        if o.hf:
            e(f"v_add_u32 v{A1}, s39, v{A1}")
            e(f"v_add_u32 v{A2}, s39, v{A2}")
        else:
            e("s_mul_i32 s33, s37, -3072")
            e("s_add_u32 s33, s33, 9216")
        e("s_cmp_eq_u32 s37, 1")
        e(f"s_cselect_b32 s36, {2 * c1}, {ntot}")
        ep = epilogue(1, 2 * P, o.wr)
        tail = [f"s_cselect_b32 s35, {c1}, 0", "s_cselect_b32 s32, 0, -1", "v_mov_b32 v11, v9", "v_and_b32 v5, s32, v5",
                "s_cmp_eq_u32 s37, 3", f"s_cselect_b32 s33, {(12 - 2 * D) * P}, s33", f"s_cselect_b32 s34, {max(D - 2, 0) // 2}, 2"]
        if o.hf:
            tail = tail[:4] + ["s_mov_b32 s34, 2", f"v_add_u32 v{AX}, s39, v{AX}"]
        for x in ep:
            e(x)
            if tail and x.startswith("v_cvt"):
                e(tail.pop(0))
        for x in tail:
            e(x)
        if o.hf:
            for r in ST:
                e(f"v_add_u32 v{r}, s38, v{r}")
        else:
            for r, b in zip((A1, A2, AX), AB):
                e(f"v_add_u32 v{r}, s33, v{b}")
            for t in range(3):
                e(f"v_add_u32 v{ST[t]}, s33, v{180 + t}")
        e(f"s_cmp_lt_u32 s37, {4 if D else 3}")
        e("s_cbranch_scc1 L_c_loop")
        self.stamp()
        self.stamp_flush()
        if o.diag.startswith("k"):
            self.diag_mark("kend")
            self.diag_end(True)
        self.lab("L_end")
        e("s_endpgm")
        unit("E")
        e("s_branch L_c_odd")
        for kind in "FOE":
            self.lab(f"L_c_slow{kind}")
            self.poll(11, 5, "s36", sleep=o.csleep)
            e(f"s_branch L_c_ready{kind}")
        self.lab("L_code_end")

    def loop_q(self, ops, W, SET, XR, ACC, PK, A1, A2, AX, ST, c1, ntot):
        e, o = self.e, self.o
        assert o.hf or o.order == "A"
        del self.L[-1]
        q = []

        def rd(tag, reg, a, off):
            return ("ds", tag, f"ds_read_b128 v[{reg}:{reg + 3}], v{a} offset:{off}")

        def pair(k, st, off):
            b = SET[st]
            return [rd(("P", k, 0), b, A1, off), rd(("P", k, 1), b + 4, A2, off),
                    rd(("P", k, 2), b + 8, A1, off + P), rd(("P", k, 3), b + 12, A2, off + P)]

        def emit(it):
            e(it[2])
            if it[0] in ("ds", "dw"):
                q.append(it[1])

        def wait_for(tags):
            ix = [q.index(t) for t in tags if t in q]
            if not ix:
                return 0
            e(f"s_waitcnt lgkmcnt({len(q) - 1 - max(ix)})")
            del q[: max(ix) + 1]
            return 1

        def epilogue(acc, off, wr):
            r = []
            for t in range(3):
                a = ACC(acc, t)
                r.append(("v", None, f"v_cvt_pk_bf16_f32 v{PK + 2 * t}, v{a}, v{a + 1}"))
                r.append(("v", None, f"v_cvt_pk_bf16_f32 v{PK + 2 * t + 1}, v{a + 2}, v{a + 3}"))
                if wr == 32:
                    r.append(("dw", ("W",), f"ds_write_b32 v{ST[t]}, v{PK + 2 * t} offset:{off}"))
                    r.append(("dw", ("W",), f"ds_write_b32 v{ST[t]}, v{PK + 2 * t + 1} offset:{off + 4}"))
                else:
                    r.append(("dw", ("W",), f"ds_write_b64 v{ST[t]}, v[{PK + 2 * t}:{PK + 2 * t + 1}] offset:{off}"))
            r.append(("dw", ("W",), "ds_write_b32 v8, v10"))
            return r

        e("s_mov_b32 s37, 0")
        e("v_and_b32 v11, -9, v9")
        if o.hf:
            e("v_lshl_add_u32 v11, s43, 3, v11")
            e(f"s_sub_u32 s39, s38, {4 * P}")
        else:
            e(f"s_mov_b32 s39, {3072 - 12 * P}")
        e("s_mov_b32 s33, 0")
        e(f"s_add_u32 s32, s39, {12 * P}")
        for t in range(3):
            e(f"v_mov_b32 v{180 + t}, v{ST[t]}")
            e(f"v_mov_b32 v{ST[t]}, {FLAGS + 64 - 2 * P}")
        e(f"s_mov_b32 s35, {2 * c1}")
        e(f"s_mov_b32 s34, {ntot if o.order != 'A' else 2 * c1}")
        self.poll(11, 5, 2 * c1, sleep=o.csleep)
        for it in pair(0, 0, 0) + [rd(("X", 0), XR, AX, 0)]:
            emit(it)
        for r in (A1, A2, AX):
            e(f"v_add_u32 v{r}, {2 * P}, v{r}")
        wait_for([("P", 0, 3)])
        self.lab("L_c_loop")
        slow = []
        for s in range(6):
            if s == 0 and o.prof:
                self.stamp_now(24, "s37", real=(o.prof == 2))
                q.clear()
            U, Lo = s & 1, (s & 1) ^ 1
            acc = s & 1
            up = [(k, SET[U] + 4 * int(k[0][1])) for k in ops[:10]]
            xs = [(k, XR) for k in ops[10:13]]
            lo = [(k, SET[Lo] + 4 * int(k[0][1])) for k in ops[13:]]
            sq = up + xs + lo if s < 5 else lo + xs + up
            pin = {g: [] for g in range(23)}
            if s < 5:
                pr, xr = pair(s + 2, U, 2 * P), rd(("X", s + 1), XR, AX, 0)
            else:
                pr, xr = pair(0, Lo, 0), rd(("X", 0), XR, AX, 0)
                pin[0] += [("v", None, f"v_add_u32 v{AX}, s39, v{AX}"), ("v", None, f"v_add_u32 v{A1}, s39, v{A1}")]
                pin[1] += [("v", None, f"v_add_u32 v{A2}, s39, v{A2}"), ("s", None, "s_add_u32 s37, s37, 1")]
                pin[2] += [("s", None, "s_cmp_eq_u32 s37, 1"), ("s", None, "s_cselect_b32 s36, 0, -1")]
                pin[3] += [("v", None, "v_and_b32 v5, s36, v5"), ("v", None, "v_mov_b32 v11, v9")]
                pin[17] += [("s", None, "s_mov_b32 s35, s34"), ("s", None, "s_cmp_lt_u32 s37, 3")]
            if s == 1:
                pin[0] += [("s", None, "s_add_u32 s33, s33, s32")]
            if s == 3:
                pin[21] += [("s", None, "s_cmp_lt_u32 s37, 2"), ("s", None, f"s_cselect_b32 s39, s39, {-12 * P}")]
            for i_, it in enumerate(pr):
                pin[10 + i_].append(it)
            pin[14].append(xr)
            pin[15] += [("v", None, f"v_add_u32 v{A1}, {2 * P}, v{A1}"), ("v", None, f"v_add_u32 v{A2}, {2 * P}, v{A2}")]
            pin[16] += [("v", None, f"v_add_u32 v{AX}, {2 * P}, v{AX}")]
            if s == 0:
                for i_, it in enumerate(pair(1, 1, 0)):
                    pin[1 + i_].append(it)
            flow = epilogue(acc ^ 1, ((s - 1) & 1) * 2 * P, o.wrn) + [("v", None, "v_add_u32 v10, 1, v10")]
            if s == 0:
                flow += [("v", None, f"v_add_u32 v{ST[t]}, s33, v{180 + t}") for t in range(3)]
            elif not s & 1:
                flow += [("v", None, f"v_add_u32 v{r}, {4 * P}, v{r}") for r in ST]
            seen = set()
            for g, (k, b) in enumerate(sq):
                t = k[1]
                a = ACC(acc, t)
                cin = f"v[{a}:{a + 3}]" if t in seen else "0"
                seen.add(t)
                e(f"v_mfma_f32_16x16x32_bf16 v[{a}:{a + 3}], v[{W[k]}:{W[k] + 3}], v[{b}:{b + 3}], {cin}")
                cap = 2
                if g == 8:
                    cap -= wait_for([("X", s)] + ([("P", s + 1, 3)] if 0 < s < 5 else []))
                    nd = c1 * (s + 3) if s < 5 else "s35"
                    e(f"v_cmp_gt_i32 vcc, {nd}, v5")
                    cap = 0
                if g == 9:
                    e(f"s_cbranch_vccnz L_c_slow{s}")
                    self.lab(f"L_c_ready{s}")
                    slow.append((s, nd))
                    cap -= 1
                if s == 0 and g == 12:
                    cap -= wait_for([("P", 1, 3)])
                if s in (4, 5) and g == 22:
                    cap -= wait_for([("P", 6, 3)] if s == 4 else [("P", 0, 3)])
                for it in pin[g]:
                    emit(it)
                    cap -= 1
                while flow and g >= 2 and cap > 0:
                    pick = None
                    ndw = sum(1 for f in flow if f[0] == "dw")
                    for ix, f in enumerate(flow):
                        if f[0] == "dw":
                            cv = [re.match(r"v_cvt\S+ v(\d+)", h[2]).group(1) for h in flow[:ix] if "v_cvt" in h[2]]
                            if cap >= 2 and not any(c in self.srcs(f[2]) for c in cv) and not ("v8" in f[2] and cv):
                                pick = ix
                            break
                    if pick is None:
                        for ix, f in enumerate(flow):
                            if f[0] != "dw" and ("v_cvt" in f[2] or ndw == 0):
                                pick = ix
                                break
                    if pick is None:
                        break
                    it = flow.pop(pick)
                    emit(it)
                    cap -= 2 if it[0] == "dw" else 1
            assert not flow, (s, flow)
        e("s_cbranch_scc1 L_c_loop")
        e("s_nop 5")
        for it in epilogue(1, 2 * P, o.wr):
            e(it[2])
        self.stamp()
        self.stamp_flush()
        self.lab("L_end")
        e("s_endpgm")
        for u, nd in slow:
            self.lab(f"L_c_slow{u}")
            self.poll(11, 5, nd, sleep=o.csleep)
            e(f"s_branch L_c_ready{u}")
        self.lab("L_code_end")

    @staticmethod
    def srcs(txt):
        m = re.search(r", v\[(\d+):(\d+)\]", txt)
        if m:
            return [str(r) for r in range(int(m.group(1)), int(m.group(2)) + 1)]
        return [re.search(r", v(\d+)", txt).group(1)]

    def check_mfma_hazards(self):
        L = [l.strip() for l in self.L]
        if "L_c_loop:" not in L:
            return
        i = L.index("L_c_loop:")
        k = L.index("L_end:")
        if "L_c_even:" in L:
            io, ie = L.index("L_c_odd:"), L.index("L_c_even:")
            bo = L.index("s_cbranch_scc0 L_c_even")
            be = L.index("s_branch L_c_odd")
            L = L[:i] + L[i:bo + 1] + L[ie:be + 1] + L[io:]
            k = L.index("L_end:")
        jj = [n for n, l in enumerate(L) if l == "s_cbranch_scc1 L_c_loop"]
        for seqn in [L[i:k]] + ([L[i:jj[-1] + 1] * 2] if jj else []):
            pend = {}
            pos = 0
            for l in seqn:
                if l.endswith(":"):
                    continue
                regs = set()
                for m in re.finditer(r"v\[(\d+):(\d+)\]|v(\d+)", l.split(None, 1)[1] if " " in l else ""):
                    if m.group(3):
                        regs.add(int(m.group(3)))
                    else:
                        regs.update(range(int(m.group(1)), int(m.group(2)) + 1))
                if l.startswith("v_mfma"):
                    m = re.match(r"v_mfma\S+ v\[(\d+):(\d+)\]", l)
                    for r in range(int(m.group(1)), int(m.group(2)) + 1):
                        pend[r] = pos
                else:
                    for r in regs:
                        if r in pend:
                            assert pos - pend[r] - 1 >= 8, (l, pos - pend[r] - 1)
                m = re.match(r"s_nop (\d+)", l)
                pos += int(m.group(1)) + 1 if m else 1

    def build(self):
        self.prologue()
        self.helper()
        self.compute()
        self.check_mfma_hazards()
        if self.o.drop:
            i = self.L.index("L_c_loop:")
            j = self.L.index("L_end:")
            pats = self.o.drop.split(",")
            self.L = self.L[:i] + [l for l in self.L[i:j] if not any(l.strip().startswith(p) for p in pats)] + self.L[j:]
        return HEADER + "\n".join(self.L) + "\n" + FOOTER.format(vgpr=192, acc=192)


def main():
    p = argparse.ArgumentParser()
    p.add_argument("-o", default="-")
    p.add_argument("--prof", type=int, default=0)
    p.add_argument("--hflip", type=int, default=1)
    p.add_argument("--win", type=int, default=11)
    p.add_argument("--barpair", type=int, default=2)
    p.add_argument("--ldflags", default="nt")
    p.add_argument("--wflags", default="")
    p.add_argument("--stflags", default="sc0 sc1 nt")
    p.add_argument("--prio_loader", type=int, default=0)
    p.add_argument("--prio_comp", type=int, default=0)
    p.add_argument("--nocomp", type=int, default=0)
    p.add_argument("--noload", type=int, default=0)
    p.add_argument("--cstamp", type=int, default=0)
    p.add_argument("--drop", default="")
    p.add_argument("--wr", type=int, default=64)
    p.add_argument("--estart", type=int, default=2)
    p.add_argument("--diag", default="")
    p.add_argument("--now", type=int, default=0)
    p.add_argument("--stwait", type=int, default=0)
    p.add_argument("--stwin", type=int, default=0)
    p.add_argument("--pad", type=int, default=0)
    p.add_argument("--padk", type=int, default=1)
    p.add_argument("--padmask", type=int, default=7)
    p.add_argument("--fpre", type=int, default=0)
    p.add_argument("--csleep", type=int, default=1)
    p.add_argument("--eflag", type=int, default=0)
    p.add_argument("--rdint", type=int, default=0)
    p.add_argument("--sched", default="plain")
    p.add_argument("--stag", type=int, default=0)
    p.add_argument("--stagw", type=int, default=2)
    p.add_argument("--gate", type=int, default=0)
    p.add_argument("--gsleep", type=int, default=4)
    p.add_argument("--padper", default="")
    p.add_argument("--nostore", type=int, default=0)
    p.add_argument("--jmask", type=int, default=0)
    p.add_argument("--cls", default="1,2,3,4")
    p.add_argument("--order", default="C")
    p.add_argument("--modes", default="n")
    p.add_argument("--loop", type=int, default=1)
    p.add_argument("--winl", type=int, default=9)
    p.add_argument("--winr", type=int, default=11)
    p.add_argument("--prio_left", type=int, default=0)
    p.add_argument("--tlbw", type=int, default=0)
    p.add_argument("--tlbf", default="nt")
    p.add_argument("--defer", type=int, default=0)
    p.add_argument("--wrn", type=int, default=64)
    p.add_argument("--hf", type=int, default=1)
    p.add_argument("--seq", default="010")
    p.add_argument("--ipf", type=int, default=0)
    p.add_argument("--ipfh", type=int, default=0)
    p.add_argument("--early", type=int, default=0)
    p.add_argument("--wsplit", type=int, default=0)
    p.add_argument("--compact", type=int, default=0)
    p.add_argument("--warm", type=int, default=0)
    p.add_argument("--fevery", type=int, default=0)
    p.add_argument("--two", type=int, default=0)
    p.add_argument("--rdint2", type=int, default=1)
    p.add_argument("--sleep", type=int, default=2)
    o = p.parse_args()
    if o.order in "MN":
        o.hf = 0
    o.d2 = o.defer or o.order in "MN" or (o.compact and not o.hf)
    s = Gen(o).build()
    if o.o == "-":
        sys.stdout.write(s)
    else:
        open(o.o, "w").write(s)


if __name__ == "__main__":
    main()
```
